```python
import torch

def _softmax(x, axis=-1):
    return torch.softmax(x, dim=axis)
def _gelu(x):
    return torch.nn.functional.gelu(x, approximate="tanh")
def _silu(x):
    return torch.nn.functional.silu(x)
def _sigmoid(x):
    return torch.sigmoid(x)
def _layernorm(x, axis=-1, eps=1e-5):
    m = x.mean(dim=axis, keepdim=True)
    v = x.var(dim=axis, keepdim=True, unbiased=False)
    return (x - m) / torch.sqrt(v + eps)
def _scatter_add(tgt, idx, src, axis=0):
    return tgt.clone().index_add_(axis, idx, src)
def _segment_sum(src, seg, n):
    out = torch.zeros((n,) + src.shape[1:], dtype=src.dtype)
    return out.index_add_(0, seg, src)
def _pad(x, pw):
    flat = tuple(v for pair in reversed(pw) for v in pair)
    return torch.nn.functional.pad(x, flat)

kernel_name = 'standalone__gqa_softmax__near_ridge'

def setup_inputs():

    _w = (lambda a: (lambda t: t.to(torch.bfloat16) if t.is_floating_point() else t)(torch.as_tensor(a)))
    B, Hq, Hkv, Sq, Sk, D = 8, 16, 8, 288, 1024, 256
    return {
        "q": _w((lambda *s: torch.randn(*s, dtype=torch.bfloat16) * 0.8)(B, Hq, Sq, D)),
        "k": _w((lambda *s: torch.randn(*s, dtype=torch.bfloat16) * 0.8)(B, Hkv, Sk, D)),
        "v": _w((lambda *s: torch.randn(*s, dtype=torch.bfloat16) * 0.05)(B, Hkv, Sk, D)),
    }

def reference(q, k, v):
    B, Hq, Sq, D = q.shape
    Hkv = k.shape[1]
    rep = Hq // Hkv
    k = (lambda x, n, axis: torch.repeat_interleave(x, n, dim=axis))(k, rep, axis=1)
    v = (lambda x, n, axis: torch.repeat_interleave(x, n, dim=axis))(v, rep, axis=1)
    scale = D ** -0.5
    scores = torch.einsum("bhqd,bhkd->bhqk", q, k) * scale
    p = _softmax(scores, axis=-1)
    return torch.einsum("bhqk,bhkd->bhqd", p, v)
```

```python
import re


def regs(spec):
    spec = spec.strip()
    m = re.fullmatch(r"([vas])\[(\d+):(\d+)\]", spec)
    if m:
        return [f"{m.group(1)}{i}" for i in range(int(m.group(2)), int(m.group(3)) + 1)]
    if re.fullmatch(r"[vas]\d+", spec) or spec in ("m0", "vcc", "exec", "scc"):
        return [spec]
    if spec.startswith("-") and re.fullmatch(r"-[vas]\d+", spec):
        return [spec[1:]]
    return []


def R(f, i, n=1):
    return f"{f}{i}" if n == 1 else f"{f}[{i}:{i + n - 1}]"


class I:
    __slots__ = ("text", "kind", "rd", "wr", "A", "B", "C", "lds_rd", "lds_wr", "tag", "vm", "lg", "note", "bar")

    def __init__(self, text, kind, rd=(), wr=(), **kw):
        self.text = text
        self.kind = kind
        self.rd = set(rd)
        self.wr = set(wr)
        self.A = self.B = self.C = None
        self.lds_rd = self.lds_wr = None
        self.tag = None
        self.vm = None
        self.lg = None
        self.note = None
        for k, v in kw.items():
            setattr(self, k, v)

    def __repr__(self):
        return self.text


def _ops(s):
    return [x.strip() for x in s.split(",")]


def valu(text, kind="valu", rmw=False):
    op, rest = text.split(None, 1)
    rest0 = re.split(r"\s+(?=op_sel|row_|quad_perm|bank_mask|bound_ctrl|neg_|clamp|mul:|div:)", rest)[0]
    o = _ops(rest0)
    wr = regs(o[0])
    rd = [r for x in o[1:] for r in regs(x)]
    if op.startswith("v_permlane"):
        wr = regs(o[0]) + regs(o[1])
        rd = list(wr)
        kind = "perm"
    if "dpp" in op:
        kind = "dpp"
        rd += wr
    if op.startswith(("v_exp", "v_rcp", "v_log", "v_rsq", "v_sqrt")):
        kind = "trans"
    if op.startswith(("v_readfirstlane", "v_readlane")):
        kind = "rfl"
    if op.startswith("v_cndmask") and len(o) == 3:
        rd.append("vcc")
    if rmw or op.startswith("v_fmac"):
        rd += wr
    return I(text, kind, rd, wr)


def salu(text):
    op, rest = (text.split(None, 1) + [""])[:2]
    o = _ops(rest) if rest else []
    if op.startswith("s_cmp"):
        return I(text, "salu", [r for x in o for r in regs(x)], ["scc"])
    if op.startswith(("s_cbranch", "s_branch")):
        return I(text, "branch", ["scc"] if "scc" in op else (["vcc"] if "vcc" in op else []), [])
    wr = regs(o[0]) if o else []
    rd = [r for x in o[1:] for r in regs(x)]
    if op.startswith(("s_cselect", "s_addc")):
        rd.append("scc")
    return I(text, "salu", rd, wr)


def mfma(D, A, B, C):
    i = I(f"v_mfma_f32_16x16x32_bf16 {D}, {A}, {B}, {C}", "mfma", regs(A) + regs(B) + regs(C), regs(D))
    i.A, i.B, i.C = regs(A), regs(B), regs(C)
    return i


def ds_read(op, dst, addr, off, lds=None):
    return I(f"{op} {dst}, {addr} {off}".rstrip(), "dsr", regs(addr), regs(dst), lds_rd=lds)


def ds_write(op, addr, src, off, lds=None):
    if addr is None:
        return I(f"{op} {src} {off}".rstrip(), "dsw", regs(src) + ["m0"], [], lds_wr=lds)
    return I(f"{op} {addr}, {src} {off}".rstrip(), "dsw", regs(addr) + regs(src), [], lds_wr=lds)


def dma(vaddr, srd, soff, imm, pol, lds, tag):
    o = f" offset:{imm}" if imm else ""
    return I(f"buffer_load_dwordx4 {vaddr}, {srd}, {soff} offen{o}{pol} lds", "dma",
             regs(vaddr) + regs(srd) + regs(soff) + ["m0"], [], lds_wr=lds, tag=tag)


def vload(op, dst, vaddr, srd, soff, imm=0, pol="", tag=None):
    o = f" offset:{imm}" if imm else ""
    return I(f"{op} {dst}, {vaddr}, {srd}, {soff} offen{o}{pol}", "vld", regs(vaddr) + regs(srd) + regs(soff), regs(dst), tag=tag)


def vstore(op, src, vaddr, srd, soff, imm=0, pol="", tag=None):
    o = f" offset:{imm}" if imm else ""
    i = I(f"{op} {src}, {vaddr}, {srd}, {soff} offen{o}{pol}", "vst", regs(src) + regs(vaddr) + regs(srd) + regs(soff), [], tag=tag)
    i.A = regs(src)
    return i


def wait(vm=None, lg=None):
    return I("s_waitcnt ?", "wait", vm=vm, lg=lg)


def barrier():
    return I("s_barrier", "barrier")


def nop(n):
    return I(f"s_nop {n}", "nop", note=n + 1)


def label(name):
    return I(f"{name}:", "label")


def raw(text):
    return I(text, "raw")


VALUK = ("valu", "trans", "perm", "dpp", "rfl")


def needed_gap(p, c):
    n = 0
    pw, crd, cwr = p.wr, c.rd, c.wr
    if p.kind in VALUK:
        vw = {r for r in pw if r[0] in "va" and r != "vcc"}
        sw = {r for r in pw if r[0] == "s" or r == "vcc"}
        if vw & crd:
            if c.kind == "mfma":
                n = max(n, 2)
            if c.kind in ("perm", "dpp"):
                n = max(n, 2)
            if c.kind == "rfl":
                n = max(n, 1)
            if p.kind == "trans" and c.kind != "trans":
                n = max(n, 1)
        if sw & crd:
            if c.kind in VALUK:
                n = max(n, 2)
            if c.kind in ("vld", "vst", "dma"):
                n = max(n, 5)
            if c.kind in ("salu", "branch"):
                n = max(n, 1)
    if p.kind == "mfma":
        if c.kind == "mfma":
            if pw & (set(c.A) | set(c.B)):
                n = max(n, 8)
            if pw & set(c.C) and set(c.C) != pw:
                n = max(n, 6)
            if pw & cwr and not (pw & set(c.C)):
                n = max(n, 6)
        else:
            if pw & (crd | cwr):
                n = max(n, 8)
            if c.kind in VALUK and set(p.C) & cwr:
                n = max(n, 3)
    if p.kind == "salu" and "m0" in pw and "m0" in crd and c.kind in ("dma", "dsw"):
        n = max(n, 1)
    if p.kind == "vst" and len(p.A) >= 3 and set(p.A) & cwr:
        n = max(n, 2)
    return n


def resolve(trace, name="", quiet=False):
    out = []
    lgq = []
    vmq = []
    epoch = 0
    ev = []
    inserted = []

    def done_lg(n):
        while len(lgq) > n:
            x, e0 = lgq.pop(0)
            if x.lds_rd:
                ev.append(("rd", x.lds_rd, e0, epoch))
            if x.lds_wr:
                ev.append(("wr", x.lds_wr, e0, epoch))

    def done_vm(n):
        while len(vmq) > n:
            x, e0 = vmq.pop(0)
            if x.lds_wr:
                ev.append(("wr", x.lds_wr, e0, epoch))

    def need(q, pred):
        idx = -1
        for k, (x, _) in enumerate(q):
            if pred(x):
                idx = k
        return None if idx < 0 else len(q) - 1 - idx

    def wtext(nv, nl):
        s = []
        if nv is not None:
            assert nv <= 63
            s.append(f"vmcnt({nv})")
        if nl is not None:
            s.append(f"lgkmcnt({min(nl, 15)})")
        return "s_waitcnt " + " ".join(s)

    for ins in trace:
        if ins.kind == "wait":
            nv = nl = None
            if ins.vm == "all":
                nv = 0
            elif ins.vm is not None:
                nv = need(vmq, lambda x: x.tag in ins.vm)
            if ins.lg == "all":
                nl = 0
            elif ins.lg is not None:
                nl = need(lgq, lambda x: x.wr & set(ins.lg))
            if nv is None and nl is None:
                continue
            w = I(wtext(nv, nl), "wait")
            out.append(w)
            if nv is not None:
                done_vm(nv)
            if nl is not None:
                done_lg(min(nl, 15))
            continue
        if ins.kind in ("label", "raw"):
            out.append(ins)
            continue
        touch = ins.rd | ins.wr
        nl = need(lgq, lambda x: x.wr & touch)
        nv = need(vmq, lambda x: x.wr & touch)
        if nl is not None or nv is not None:
            w = I(wtext(nv, nl), "wait", note="auto")
            out.append(w)
            inserted.append((len(out), w.text, ins.text))
            if nv is not None:
                done_vm(nv)
            if nl is not None:
                done_lg(min(nl, 15))
        dist = 0
        short = 0
        for p in reversed(out[-40:]):
            if p.kind in ("label",):
                continue
            if dist >= 8:
                break
            g = needed_gap(p, ins)
            if g > dist:
                short = max(short, g - dist)
            dist += p.note if p.kind == "nop" else 1
        if short:
            n = nop(short - 1)
            out.append(n)
            inserted.append((len(out), n.text, ins.text))
        out.append(ins)
        if ins.kind in ("dsr", "dsw"):
            lgq.append((ins, epoch))
        if ins.kind in ("dma", "vld", "vst"):
            vmq.append((ins, epoch))
            assert len(vmq) <= 63, f"vmcnt overflow at {ins.text}"
        if ins.kind == "barrier":
            epoch += 1
    epoch += 1000
    done_lg(0)
    done_vm(0)
    return out, ev, inserted


def check_lds(evs):
    from collections import defaultdict
    W = defaultdict(list)
    Rd = defaultdict(list)
    for k, (reg, ver), e0, e1 in evs:
        (W if k == "wr" else Rd)[(reg, ver)].append((e0, e1))
    bad = 0
    regsn = defaultdict(set)
    for (reg, ver) in list(W) + list(Rd):
        regsn[reg].add(ver)
    for reg, vers in regsn.items():
        vs = sorted(vers)
        for i, v in enumerate(vs):
            w = W.get((reg, v), [])
            r = Rd.get((reg, v), [])
            if r and not w:
                print("LDS: read without write", reg, v)
                bad += 1
            if r and w:
                if max(x[1] for x in w) >= min(x[0] for x in r):
                    print("LDS RAW violation", reg, v, "write done epoch", max(x[1] for x in w), "read issue", min(x[0] for x in r))
                    bad += 1
            if i + 1 < len(vs):
                w2 = W.get((reg, vs[i + 1]), [])
                if w2:
                    first = min(x[0] for x in w2)
                    if r and max(x[1] for x in r) >= first:
                        print("LDS WAR violation", reg, v, "read done", max(x[1] for x in r), "next write issue", first)
                        bad += 1
                    if w and max(x[1] for x in w) >= first:
                        print("LDS WAW violation", reg, v)
                        bad += 1
    return bad
```

```python
import sys, struct, math
from asmlib import *

KN = "standalone__gqa_softmax__near_ridge_kernel"
OPT = dict(pol_kv=" nt", pol_q=" nt", pol_o=" sc0 sc1", stamps=0, loop=(3, 27), defer=1, show=0, thr=30, dma0=1, dmastep=4)

PXA = 10240
KRING = 3 * PXA
SLOT = 16640
VRING = KRING + 4 * SLOT
LDS_BYTES = VRING + 4 * SLOT

sQ, sK, sV, sO, sC = "s[12:15]", "s[16:19]", "s[20:23]", "s[24:27]", "s[44:47]"
sW, sA, sB, sCNT, sKo, sVo, sKm, sVm, sPm, sMODE, sMASK = "s28", "s29", "s30", "s31", "s32", "s33", "s34", "s35", "s36", "s38", "s39"
sSC = "s[40:41]"
sT = ["0", "s48", "s49", "s50", "s51"]
sTHR = "s52"
vQ, vKr, vV0, vV1, vKd, vVd, vPr, vPr2, vO, vKr0 = "v1", "v2", "v3", "v4", "v5", "v6", "v7", "v8", "v9", "v10"
TMP = 12
vL = [36, 38, 40, 42, 44]
NEGM = 48
SS = 68
PP = 88
OO = 128
AQ, AX, AKF, AVF = 0, 128, 160, 192


def Qf(t, s):
    return R("a", (AQ + 32 * t if t < 4 else AX) + 4 * s, 4)


def Kf(s):
    return R("a", AKF + 4 * s, 4)


def Vf(dt):
    return R("a", AVF + 4 * dt, 4)


def S(t):
    return R("v", SS + 4 * t, 4)


def Ng(t):
    return R("v", NEGM + 4 * t, 4)


def P(par, t):
    return PP + 20 * par + 4 * t


def O(t, dt):
    return R("v", OO + 32 * t + 4 * dt, 4) if t < 4 else R("a", AX + 4 * dt, 4)


def kdma(tile, i):
    slot = tile % 4
    return (salu(f"s_add_u32 m0, {sKm}, {slot * SLOT + i * 1568}"),
            dma(vKd, sK, sKo, 512 * i, OPT["pol_kv"], (("K", slot), tile), ("K", tile)))


def vdma(tile, i):
    slot = tile % 4
    return (salu(f"s_add_u32 m0, {sVm}, {slot * SLOT + i * 1568}"),
            dma(vVd, sV, sVo, 512 * i, OPT["pol_kv"], (("V", slot), tile), ("V", tile)))


def dma_tile(kind, tile):
    out = []
    for i in range(4):
        out += list((kdma if kind == "K" else vdma)(tile, i))
    out.append(salu(f"s_add_u32 {sKo if kind == 'K' else sVo}, {sKo if kind == 'K' else sVo}, 16384"))
    return out


def kread(tile, s, addr=vKr, dst=None):
    slot = tile % 4
    return ds_read("ds_read_b128", dst or Kf(s), addr, f"offset:{slot * SLOT + 64 * s}", (("K", slot), tile))


def vread(tile, dt, u):
    slot = tile % 4
    return ds_read("ds_read_b64_tr_b16", R("a", AVF + 4 * dt + 2 * u, 2), (vV0, vV1)[u], f"offset:{slot * SLOT + 32 * dt}", (("V", slot), tile))


def pwrite(j, t, h):
    par = j % 2
    return ds_write("ds_write_addtid_b32", None, f"v{P(par, t) + h}", f"offset:{par * PXA + (2 * t + h) * 256}", (("P", par), j))


def pread(j, a, t, own=False):
    par = j % 2
    if t < 4:
        o = par * 40 + a * 20 + 2 * t
        return ds_read("ds_read2st64_b32", R("v", P(par, t) + 2, 2), vPr, f"offset0:{o} offset1:{o + 1}", (("P", par), j))
    o = par * 40 + 8
    return ds_read("ds_read2st64_b32", R("v", P(par, 4) + (0 if own else 2), 2), vPr2 if own else vPr, f"offset0:{o} offset1:{o + 1}", (("P", par), j))


def stamp(idx):
    if not OPT["stamps"]:
        return []
    return [raw(f"s_memtime s[{60 + 2 * idx}:{61 + 2 * idx}]")]


class Op:
    def __init__(self, ins, cls, earliest, deadline, deps=(), m0=None, setter=None):
        self.ins, self.cls, self.earliest, self.deadline, self.deps, self.m0, self.setter = ins, cls, earliest, deadline, list(deps), m0, setter
        self.gap = None


def interval(j, a, looped_end=None):
    NQ = 5 - a
    NP = 4 + a
    do_qk = j + 1 <= 31
    mf = []
    if do_qk:
        for t in range(NQ):
            for s in range(8):
                mf.append(mfma(S(t), Kf(s), Qf(t, s), Ng(t) if s == 0 else S(t)))
    pv0 = len(mf)
    par = j % 2
    for dt in range(8):
        for t in range(NP):
            mf.append(mfma(O(t, dt), Vf(dt), R("v", P(par, t), 4), "0" if j == 0 else O(t, dt)))
    G = len(mf)
    ops = []
    pre = []
    rd = []
    for t in range(NP):
        rd.append((pread(j, a, t), pv0 + t - 8))
    if a == 1:
        rd.append((pread(j, a, 4, own=True), pv0 + 4 - 8))
    for dt in range(8):
        for u in range(2):
            rd.append((vread(j, dt, u), pv0 + dt * NP - 9 + u))
    if do_qk:
        for ins, dl in rd:
            ops.append(Op(ins, "ds", 0, dl))
    else:
        rd.sort(key=lambda x: x[1])
        npre = [x for x in rd if x[1] < 2]
        pre += [x[0] for x in npre]
        for ins, dl in rd[len(npre):]:
            ops.append(Op(ins, "ds", 0, dl))
    if j + 2 <= 31:
        for s in range(8):
            ops.append(Op(kread(j + 2, s), "ds", 8 * (NQ - 1) + s, G - 18 + s))
    dl = []
    if j + 5 <= 31:
        dl += [kdma(j + 5, i) + ("K",) for i in range(4)]
    if j + 3 <= 31:
        dl += [vdma(j + 3, i) + ("V",) for i in range(4)]
    lastdma = -1
    dops = []
    for n, (st, d, kind) in enumerate(dl):
        e = OPT["dma0"] + OPT["dmastep"] * n
        o = Op(d, "dma", e, e - 100, m0=("d", n), setter=st)
        ops.append(o)
        dops.append((o, kind))
        lastdma = e
    defer_tiles = [NQ - 1, NQ - 2] if OPT["defer"] else []
    if j >= 1 and j <= 30:
        for t in defer_tiles:
            for r in range(4):
                ops.append(Op(valu(f"v_add_f32 v{vL[t]}, v{SS + 4 * t + r}, v{vL[t]}"), "valu", 0, 8 * t - 8 + r))
    addops = []
    if do_qk:
        pn = (j + 1) % 2
        msetter = lambda: salu(f"s_mov_b32 m0, {sPm}")
        for t in range(NQ):
            ex = []
            base = 8 * t + 7 + 4
            late = G - 8 - 5 * (NQ - 1 - t)
            for r in range(4):
                o = Op(valu(f"v_exp_f32 v{SS + 4 * t + r}, v{SS + 4 * t + r}"), "exp", base, min(base + 10, late - 8) + r)
                ops.append(o)
                ex.append(o)
            for h in range(2):
                c = Op(valu(f"v_cvt_pk_bf16_f32 v{P(pn, t) + h}, v{SS + 4 * t + 2 * h}, v{SS + 4 * t + 2 * h + 1}"), "valu", 0, late - 3 + h, deps=ex[2 * h:2 * h + 2])
                ops.append(c)
                ops.append(Op(pwrite(j + 1, t, h), "ds", lastdma + 2, late - 1 + h, deps=[c], m0="p", setter=msetter()))
            if t not in defer_tiles or j == 30:
                for r in range(4):
                    o = Op(valu(f"v_add_f32 v{vL[t]}, v{SS + 4 * t + r}, v{vL[t]}"), "valu", 0, (late if j == 30 else G) + r, deps=[ex[r]])
                    ops.append(o)
                    addops.append(o)
    gaps = [dict(s=None, v=[], typ=None, m0=None) for _ in range(G)]
    m0 = None
    todo = list(ops)
    lastvec = G - 2 if do_qk else G
    for g in range(lastvec):
        def ready(o):
            if o.earliest > g or any(d.gap is None or d.gap >= g for d in o.deps):
                return False
            if o.m0 is not None and o.m0 != m0:
                if g == 0:
                    return False
                pg = gaps[g - 1]
                if pg["s"] is not None or pg["typ"] == "dma" or pg["m0"] is not None:
                    return False
            return True
        cand = sorted([o for o in todo if ready(o)], key=lambda o: o.deadline)
        if not cand:
            continue
        first = cand[0]
        pick = []
        if first.cls in ("exp", "dma"):
            pick = [first]
        else:
            ds = [o for o in cand if o.cls == "ds"]
            va = [o for o in cand if o.cls == "valu"]
            if ds:
                pick = [ds[0]] + va[:1]
            else:
                ex = [o for o in cand if o.cls == "exp"]
                if len(va) < 2 and ex:
                    pick = [ex[0]]
                else:
                    pick = va[:2]
                    if len(pick) == 2 and pick[0].ins.wr & pick[1].ins.rd:
                        alt = [o for o in va[1:] if not (pick[0].ins.wr & o.ins.rd)]
                        if alt:
                            pick = [pick[0], alt[0]]
        for o in pick:
            o.gap = g
            todo.remove(o)
            gaps[g]["v"].append(o.ins)
            if o.m0 is not None:
                if o.m0 != m0:
                    gaps[g - 1]["s"] = o.setter
                    m0 = o.m0
                gaps[g]["m0"] = o.m0
        gaps[g]["typ"] = pick[0].cls
    post = []
    if todo:
        print(f"; WARNING interval {j} role {a}: {len(todo)} ops left: {[o.ins.text for o in todo]}", file=sys.stderr)
        for o in sorted(todo, key=lambda o: o.deadline):
            if o.m0 is not None and o.m0 != m0:
                post.append(o.setter)
                m0 = o.m0
            post.append(o.ins)

    def put_scalar(ins, lo, hi):
        for g in range(hi, lo - 1, -1):
            if gaps[g]["s"] is None and gaps[g]["typ"] != "dma":
                gaps[g]["s"] = ins
                return g
        raise RuntimeError(f"no scalar slot for {ins.text} in [{lo},{hi}] j={j} a={a}")

    def put_scalar_early(ins, lo, hi):
        for g in range(lo, hi + 1):
            if gaps[g]["s"] is None and gaps[g]["typ"] != "dma":
                gaps[g]["s"] = ins
                return g
        raise RuntimeError("no scalar slot")

    placed = {}
    for o in ops:
        if o.cls == "ds" and o.ins.kind == "dsr" and o.gap is not None:
            for r in o.ins.wr:
                placed[r] = o.gap
    covered = set()
    for g in range(pv0, G):
        needr = {r for r in (set(mf[g].A) | set(mf[g].B)) if r in placed and r not in covered}
        if needr and g >= 1:
            lo = max(placed[r] for r in needr) + 1
            assert lo <= g - 1, (j, a, g, lo)
            gw = put_scalar(wait(lg=needr), lo, g - 1)
            mx = max(placed[r] for r in needr)
            covered |= {r for r, pg in placed.items() if pg <= mx}
    for kind, so in (("K", sKo), ("V", sVo)):
        gs = [o.gap for o, k in dops if k == kind]
        if gs:
            put_scalar_early(salu(f"s_add_u32 {so}, {so}, 16384"), max(gs) + 1, G - 6)
    tail = []
    if j == 30:
        tail.append(salu(f"s_mov_b32 m0, {sPm}"))
        tail.append(valu(f"v_add_f32 v{TMP}, v{vL[0]}, v{vL[1]}"))
        tail.append(valu(f"v_add_f32 v{TMP + 1}, v{vL[2]}, v{vL[3]}"))
        for t in range(NQ):
            tail.append(ds_write("ds_write_addtid_b32", None, f"v{vL[t]}", f"offset:{2 * PXA + t * 256}", (("L", 0), 0)))
        tail.append(valu(f"v_add_f32 v{TMP}, v{TMP}, v{TMP + 1}"))
        if a == 0:
            tail.append(valu(f"v_add_f32 v{TMP}, v{TMP}, v{vL[4]}"))
        tail.append(ds_write("ds_write_addtid_b32", None, f"v{TMP}", f"offset:{2 * PXA + 5 * 256}", (("L", 0), 0)))
    out = list(pre)
    if do_qk:
        vm = []
        if j + 1 <= 31:
            vm.append(("V", j + 1))
        if j + 3 <= 31:
            vm.append(("K", j + 3))
        endwait = wait(vm=vm, lg="all")
        if looped_end:
            put_scalar(salu(f"s_sub_u32 {sCNT}, {sCNT}, 1"), G - 8, G - 4)
            put_scalar(salu(f"s_cmp_lg_u32 {sCNT}, 0"), G - 3, G - 3)
    for g in range(G):
        out.append(mf[g])
        if gaps[g]["s"] is not None:
            out.append(gaps[g]["s"])
        out += gaps[g]["v"]
        if do_qk and g == G - 3:
            out += post + tail
        if do_qk and g == G - 2:
            out.append(endwait)
    if do_qk:
        out.append(barrier())
        if looped_end:
            out.append(salu(f"s_cbranch_scc1 {looped_end}"))
    if OPT["show"] and j in (5, 30, 31):
        print(f"--- interval {j} role {a}", file=sys.stderr)
        for g in range(G):
            print(g, "QK" if g < pv0 else "PV", "|", gaps[g]["s"].text[:28] if gaps[g]["s"] else "", "|", " ; ".join(x.text[:46] for x in gaps[g]["v"]), file=sys.stderr)
    return out


def xlane(op, reg, tmp):
    o = []
    for sw in ("v_permlane32_swap_b32", "v_permlane16_swap_b32"):
        o.append(valu(f"v_mov_b32 v{tmp}, v{reg}"))
        o.append(valu(f"{sw} v{tmp}, v{reg}"))
        o.append(valu(f"{op} v{reg}, v{tmp}, v{reg}"))
    return o


def entry():
    o = []
    A = lambda t: o.append(salu(t))
    V = lambda t: o.append(valu(t))
    A("s_cmp_ge_u32 s2, 256")
    A("s_cbranch_scc1 L_end")
    o.append(raw("s_load_dwordx8 s[4:11], s[0:1], 0"))
    if OPT["stamps"]:
        o.append(raw("s_load_dwordx2 s[56:57], s[0:1], 40"))
        o.append(raw("s_memrealtime s[58:59]"))
    o += stamp(0)
    o.append(raw("s_getpc_b64 s[44:45]"))
    o.append(label("L_pc"))
    A("s_and_b32 s45, s45, 0xffff")
    o.append(raw("s_mov_b32 s46, L_end-L_pc"))
    A("s_mov_b32 s47, 0x20000")
    V("v_lshlrev_b32 v11, 7, v0")
    o.append(vload("buffer_load_dword", f"v{TMP + 23}", "v11", sC, "0"))
    V("v_add_u32 v11, 0x8000, v11")
    o.append(vload("buffer_load_dword", f"v{TMP + 22}", "v11", sC, "0"))
    A(f"s_mov_b32 {sMODE}, 0")
    V("v_lshrrev_b32 v11, 6, v0")
    V(f"v_readfirstlane_b32 {sW}, v11")
    A("s_and_b32 s53, s2, 7")
    A("s_lshl_b32 s53, s53, 3")
    A("s_lshr_b32 s54, s2, 5")
    A("s_add_u32 s53, s53, s54")
    A("s_lshr_b32 s54, s2, 3")
    A("s_and_b32 s54, s54, 3")
    A("s_lshl_b32 s55, s53, 2")
    A("s_add_u32 s55, s55, s54")
    A("s_mul_i32 s55, s55, 73728")
    A("s_lshl_b32 s53, s53, 19")
    A(f"s_lshr_b32 {sA}, {sW}, 1")
    A(f"s_and_b32 {sB}, {sW}, 1")
    o.append(raw("s_waitcnt lgkmcnt(0)"))
    for srd, ptr, off, n in ((16, 6, "s53", 524288), (12, 4, "s55", 73728), (20, 8, "s53", 524288), (24, 10, "s55", 73728)):
        A(f"s_add_u32 s{srd}, s{ptr}, {off}")
        A(f"s_addc_u32 s{srd + 1}, s{ptr + 1}, 0")
        A(f"s_and_b32 s{srd + 1}, s{srd + 1}, 0xffff")
        A(f"s_mov_b32 s{srd + 2}, {n}")
        A(f"s_mov_b32 s{srd + 3}, 0x20000")
    t0, t1, t2, t3, t4 = (f"v{TMP + i}" for i in range(5))
    V(f"v_and_b32 {t0}, 31, v0")
    V(f"v_lshlrev_b32 {t0}, 4, {t0}")
    V(f"v_bfe_u32 {t1}, v0, 5, 1")
    A(f"s_lshl_b32 s54, {sW}, 11")
    V(f"v_lshl_add_u32 {vKd}, {t1}, 13, {t0}")
    V(f"v_add_u32 {vKd}, s54, {vKd}")
    A(f"s_lshl_b32 s54, {sB}, 11")
    A(f"s_lshl_b32 s55, {sA}, 13")
    A("s_add_u32 s54, s54, s55")
    V(f"v_lshl_add_u32 {vVd}, {t1}, 12, {t0}")
    V(f"v_add_u32 {vVd}, s54, {vVd}")
    A(f"s_add_u32 s54, {sW}, 1")
    A("s_and_b32 s55, s54, 1")
    A("s_lshl_b32 s55, s55, 3")
    A("s_lshr_b32 s54, s54, 1")
    A("s_and_b32 s54, s54, 1")
    A("s_add_u32 s54, s54, s55")
    A("s_mul_i32 s54, s54, 1040")
    A(f"s_add_u32 {sKm}, s54, {KRING}")
    A(f"s_mul_i32 s54, {sB}, {4 * 2080}")
    A(f"s_lshl_b32 s55, {sA}, 10")
    A("s_add_u32 s54, s54, s55")
    A(f"s_add_u32 {sVm}, s54, {VRING}")
    A(f"s_mul_i32 {sPm}, {sW}, 2560")
    V(f"v_and_b32 {t0}, 15, v0")
    V(f"v_bfe_u32 {t1}, v0, 4, 1")
    V(f"v_bfe_u32 {t2}, v0, 5, 1")
    V(f"v_lshlrev_b32 {t3}, 5, {t1}")
    V(f"v_lshl_add_u32 {t3}, {t2}, 4, {t3}")
    A(f"s_lshl_b32 s54, {sA}, 15")
    V(f"v_lshl_add_u32 {vQ}, {t0}, 9, {t3}")
    V(f"v_add_u32 {vQ}, s54, {vQ}")
    A(f"s_lshl_b32 s54, {sB}, 8")
    V(f"v_add_u32 {vO}, s54, {vQ}")
    V(f"v_add_u32 {t4}, 4, {t0}")
    V(f"v_bfe_u32 {vKr0}, {t4}, 3, 1")
    V(f"v_and_b32 {t4}, 7, {t4}")
    V(f"v_lshl_add_u32 {vKr0}, {t4}, 1, {vKr0}")
    V(f"v_mul_u32_u24 {vKr0}, 1040, {vKr0}")
    V(f"v_add_u32 {vKr0}, {vKr0}, {t3}")
    V(f"v_add_u32 {vKr0}, {KRING}, {vKr0}")
    A(f"s_lshl_b32 s54, {sB}, 9")
    V(f"v_add_u32 {vKr}, s54, {vKr0}")
    V(f"v_bfe_u32 {t4}, v0, 2, 3")
    V(f"v_mul_u32_u24 {vV0}, 2080, {t4}")
    V(f"v_lshl_add_u32 {vV0}, {t2}, 9, {vV0}")
    V(f"v_and_b32 {t4}, 3, v0")
    V(f"v_lshl_add_u32 {vV0}, {t4}, 3, {vV0}")
    A(f"s_mul_i32 s54, {sB}, {256 + 1024}")
    A(f"s_add_u32 s54, s54, {VRING}")
    A(f"s_mul_i32 s55, {sB}, {1024 - 256}")
    A(f"s_sub_u32 s55, {VRING + 1024}, s55")
    V(f"v_add_u32 {vV1}, s55, {vV0}")
    V(f"v_add_u32 {vV0}, s54, {vV0}")
    V(f"v_and_b32 {t4}, 63, v0")
    V(f"v_lshlrev_b32 {t4}, 2, {t4}")
    A(f"s_mul_i32 s54, {sB}, 2560")
    A("s_sub_u32 s55, 2560, s54")
    V(f"v_add_u32 {vPr2}, s54, {t4}")
    V(f"v_add_u32 {vPr}, s55, {t4}")
    c = struct.unpack("<I", struct.pack("<f", math.log2(math.e) / 16.0))[0]
    A(f"s_mov_b32 s40, {c:#x}")
    A(f"s_mov_b32 s41, {c:#x}")
    A(f"s_mov_b32 {sMASK}, 0xffff0000")
    A("s_mov_b32 s48, 8192")
    A("s_mov_b32 s49, 16384")
    A("s_mov_b32 s50, 24576")
    A(f"s_lshl_b32 s54, {sA}, 15")
    A("s_sub_u32 s51, 65536, s54")
    A(f"s_mov_b32 {sTHR}, {(127 + OPT['thr']) << 23:#x}")
    A(f"s_cmp_eq_u32 {sA}, 1")
    A("s_cbranch_scc1 L_role1")
    return o


def scale_frag(src, dst):
    o = []
    T = TMP
    for i in range(4):
        o.append(valu(f"v_lshlrev_b32 v{T + 2 * i}, 16, v{src + i}"))
        o.append(valu(f"v_and_b32 v{T + 2 * i + 1}, {sMASK}, v{src + i}"))
    for i in range(4):
        o.append(valu(f"v_pk_mul_f32 {R('v', T + 2 * i, 2)}, {R('v', T + 2 * i, 2)}, {sSC}"))
    for i in range(4):
        o.append(valu(f"v_cvt_pk_bf16_f32 v{T + 8 + i}, v{T + 2 * i}, v{T + 2 * i + 1}"))
    for i in range(4):
        o.append(valu(f"v_accvgpr_write_b32 a{dst + i}, v{T + 8 + i}"))
    return o


def prologue(a):
    NQ = 5 - a
    o = [label(f"L_role{a}")]
    o.append(salu(f"s_mov_b32 {sKo}, 0"))
    o.append(salu(f"s_mov_b32 {sVo}, 0"))
    o += dma_tile("K", 0)

    def qload(t, slot):
        return [vload("buffer_load_dwordx4", R("v", OO + 32 * slot + 4 * s, 4), vQ, sQ, sT[t], 64 * s, OPT["pol_q"]) for s in range(8)]
    for t in range(4):
        o += qload(t, t)
    o += dma_tile("K", 1)
    o += dma_tile("V", 0)
    for t in range(NQ):
        o.append(valu(f"v_mov_b32 v{vL[t]}, 0"))
    o.append(wait(vm=[("K", 0)]))
    o.append(barrier())
    o += stamp(1)
    for s in range(8):
        o.append(kread(0, s))
    for s in range(8):
        o.append(kread(0, s, vKr0, Vf(s)))
    for t in range(NQ):
        slot = t % 4
        for s in range(8):
            o += scale_frag(OO + 32 * slot + 4 * s, (AQ + 32 * t if t < 4 else AX) + 4 * s)
        if t == 0:
            if a == 0:
                o += qload(4, 0)
            o += dma_tile("K", 2)
        if t == 1:
            o += dma_tile("V", 1)
            o += dma_tile("K", 3)
        if t == 2:
            o += dma_tile("V", 2)
        o.append(wait(lg="all"))
        o.append(salu(f"s_cmp_eq_u32 {sMODE}, 1"))
        o.append(salu(f"s_cbranch_scc1 L_skipmax{a}_{t}"))
        for s in range(8):
            o.append(mfma(S(t), Vf(s), Qf(t, s), "0" if s == 0 else S(t)))
        b = SS + 4 * t
        o.append(valu(f"v_max3_f32 v{TMP}, v{b}, v{b + 1}, v{b + 2}"))
        o.append(valu(f"v_max_f32 v{TMP}, v{TMP}, v{b + 3}"))
        o += xlane("v_max_f32", TMP, TMP + 1)
        for r in range(4):
            o.append(valu(f"v_sub_f32 v{NEGM + 4 * t + r}, 0, v{TMP}"))
        o.append(label(f"L_skipmax{a}_{t}"))
        o.append(nop(1))
        for s in range(8):
            o.append(mfma(S(t), Kf(s), Qf(t, s), Ng(t) if s == 0 else S(t)))
        o.append(salu(f"s_mov_b32 m0, {sPm}"))
        for r in range(4):
            o.append(valu(f"v_exp_f32 v{b + r}, v{b + r}"))
        for h in range(2):
            o.append(valu(f"v_cvt_pk_bf16_f32 v{P(0, t) + h}, v{b + 2 * h}, v{b + 2 * h + 1}"))
        for r in range(4):
            o.append(valu(f"v_add_f32 v{vL[t]}, v{b + r}, v{vL[t]}"))
        for h in range(2):
            o.append(pwrite(0, t, h))
        if t == NQ - 2:
            o.append(wait(vm=[("K", 1)]))
            o.append(barrier())
    o += stamp(2)
    for s in range(8):
        o.append(kread(1, s))
    o += dma_tile("K", 4)
    o.append(wait(vm=[("V", 0), ("K", 2)], lg="all"))
    o.append(barrier())
    o += stamp(3)
    return o


def epilogue_head(a):
    o = []
    L = (("L", 0), 0)
    T = TMP
    base = 80
    for t in range(0, 4, 2):
        o.append(ds_read("ds_read2st64_b32", R("v", T + t, 2), vPr, f"offset0:{base + a * 20 + t} offset1:{base + a * 20 + t + 1}", L))
    o.append(ds_read("ds_read2st64_b32", R("v", T + 6, 2), vPr, f"offset0:{base + 5} offset1:{base + 25}", L))
    o.append(ds_read("ds_read2st64_b32", R("v", T + 8, 2), vPr2, f"offset0:{base + 5} offset1:{base + 25}", L))
    if a == 1:
        o.append(ds_read("ds_read_b32", f"v{T + 4}", vPr, f"offset:{(base + 4) * 256}", L))
        o.append(ds_read("ds_read_b32", f"v{vL[4]}", vPr2, f"offset:{(base + 4) * 256}", L))
    return o


def epilogue(a):
    NP = 4 + a
    o = []
    T = TMP
    o += stamp(5)
    o.append(salu(f"s_cmp_eq_u32 {sMODE}, 1"))
    o.append(salu(f"s_cbranch_scc1 L_nocheck{a}"))
    for i in range(4):
        o.append(valu(f"v_cmp_nlt_f32 s[{54}:{55}], v{T + 6 + i}, {sTHR}".replace("s[54:55]", "vcc") if False else f"v_cmp_ngt_f32 vcc, {sTHR}, v{T + 6 + i}"))
        o.append(salu(f"s_cbranch_vccnz L_fallback{a}"))
    o.append(label(f"L_nocheck{a}"))
    o.append(wait(lg="all"))
    for t in range(NP):
        o.append(valu(f"v_add_f32 v{vL[t]}, v{vL[t]}, v{T + t}"))
    for t in range(NP):
        o += xlane("v_add_f32", vL[t], T + 10)
    for t in range(NP):
        o.append(valu(f"v_rcp_f32 v{vL[t]}, v{vL[t]}"))
    for t in range(NP):
        if t == 4:
            for i in range(32):
                o.append(valu(f"v_accvgpr_read_b32 v{PP + i}, a{AX + i}"))
        base = OO + 32 * t if t < 4 else PP
        for Tt in range(4):
            x = base + 8 * Tt
            for i in range(4):
                o.append(valu(f"v_pk_mul_f32 {R('v', x + 2 * i, 2)}, {R('v', x + 2 * i, 2)}, {R('v', vL[t], 2)} op_sel_hi:[1,0]"))
            for i in range(4):
                o.append(valu(f"v_cvt_pk_bf16_f32 v{x + i}, v{x + 2 * i}, v{x + 2 * i + 1}"))
        for Tt in range(4):
            x = base + 8 * Tt
            o.append(valu(f"v_permlane16_swap_b32 v{x}, v{x + 2}"))
            o.append(valu(f"v_permlane16_swap_b32 v{x + 1}, v{x + 3}"))
            o.append(vstore("buffer_store_dwordx4", R("v", x, 4), vO, sO, sT[t], 64 * Tt, OPT["pol_o"]))
    o += stamp(6)
    if OPT["stamps"]:
        o.append(raw("s_waitcnt vmcnt(0)"))
        o += stamp(7)
        o.append(raw("s_memrealtime s[76:77]"))
        o.append(raw("s_waitcnt lgkmcnt(0)"))
        o.append(raw("s_mov_b32 s80, s56\ns_and_b32 s81, s57, 0xffff\ns_mov_b32 s82, 0x100000\ns_mov_b32 s83, 0x20000"))
        o.append(raw(f"s_lshl_b32 s84, s2, 2\ns_add_u32 s84, s84, {sW}\ns_lshl_b32 s84, s84, 6"))
        for i in range(8):
            o.append(raw(f"v_mov_b32 v{16 + i}, s{60 + 2 * i}"))
        o.append(raw("v_mov_b32 v24, s58\nv_mov_b32 v25, s76\nv_mov_b32 v26, 0\nv_mov_b32 v27, 0\nv_mov_b32 v28, 0"))
        o.append(raw("s_mov_b64 exec, 1"))
        for i in range(3):
            o.append(raw(f"buffer_store_dwordx4 v[{16 + 4 * i}:{19 + 4 * i}], v28, s[80:83], s84 offen offset:{16 * i}"))
    o.append(raw("s_endpgm"))
    return o


def fallback(a):
    NQ = 5 - a
    o = [label(f"L_fallback{a}")]
    o.append(raw("s_waitcnt vmcnt(0) lgkmcnt(0)"))
    o.append(nop(7))
    o.append(salu(f"s_lshl_b32 s54, {sA}, 15"))
    o.append(valu(f"v_subrev_u32 v{TMP + 8}, s54, {vQ}"))
    for t in range(NQ):
        o.append(valu(f"v_mov_b32 v{TMP + t}, 0xff800000"))
    o.append(salu("s_mov_b32 s54, 0"))
    o.append(label(f"L_fbloop{a}"))
    for s in range(8):
        o.append(vload("buffer_load_dwordx4", Kf(s), f"v{TMP + 8}", sK, "s54", 64 * s))
    for t in range(NQ):
        for s in range(8):
            o.append(mfma(S(t), Kf(s), Qf(t, s), "0" if s == 0 else S(t)))
    for t in range(NQ):
        b = SS + 4 * t
        o.append(valu(f"v_max3_f32 v{TMP + t}, v{b}, v{b + 1}, v{TMP + t}"))
        o.append(valu(f"v_max3_f32 v{TMP + t}, v{b + 2}, v{b + 3}, v{TMP + t}"))
    o.append(salu("s_add_u32 s54, s54, 8192"))
    o.append(salu("s_cmp_lt_u32 s54, 524288"))
    o.append(salu(f"s_cbranch_scc1 L_fbloop{a}"))
    for t in range(NQ):
        o += xlane("v_max_f32", TMP + t, TMP + 9)
        for r in range(4):
            o.append(valu(f"v_sub_f32 v{NEGM + 4 * t + r}, 0, v{TMP + t}"))
    o.append(salu(f"s_mov_b32 {sMODE}, 1"))
    o.append(barrier())
    o.append(salu(f"s_branch L_role{a}"))
    return o


def build():
    j0, j1 = OPT["loop"]
    assert (j1 - j0) % 4 == 0
    ent = entry()
    text = []
    evs = []
    ent_out = None
    for a in (0, 1):
        tr = list(ent) + [raw(";;ROLE")] + prologue(a)
        for j in range(32):
            if j == j0:
                tr.append(salu(f"s_mov_b32 {sCNT}, {(j1 - j0) // 4}"))
            tr.append(raw(f";;IV {j}"))
            if j == 31:
                tr += stamp(4)
                tr += epilogue_head(a)
            le = f"L_loop{a}" if (j0 <= j < j1 and (j - j0) % 4 == 3) else None
            tr += interval(j, a, le)
        tr.append(raw(";;IV 32"))
        tr += epilogue(a)
        out, ev, ins = resolve(tr)
        evs += ev
        lines = [x.text for x in out]
        k = lines.index(";;ROLE")
        if a == 0:
            text += lines[:k]
        idx = {j: lines.index(f";;IV {j}") for j in range(33)}
        for pos, w, c in ins:
            if idx[0] < pos < idx[31]:
                print(f"; auto-inserted in role {a} main: {w} before {c}", file=sys.stderr)
        seg = lambda j: lines[idx[j] + 1: idx[j + 1]]
        for j in range(j0 + 4, j1):
            assert seg(j) == seg(j - 4), f"loop body not periodic at {j} role {a}"
        text += lines[k + 1: idx[j0]]
        text.append(".p2align 3")
        text.append(f"L_loop{a}:")
        text += lines[idx[j0]: idx[j0 + 4]]
        text += lines[idx[j1]:]
        fb, _, _ = resolve(fallback(a))
        text += [x.text for x in fb]
    bad = check_lds(evs)
    assert bad == 0
    hdr = open("header.txt").read()
    body = "\n".join(("" if l.endswith(":") or l.startswith(".") else "    ") + l.replace(";;IV", "; interval") for l in text)
    return f"""{hdr}; @launch grid=(256,1,1) block=(256,1,1) lds={LDS_BYTES}
.amdgcn_target "amdgcn-amd-amdhsa--gfx950"
.text
.globl {KN}
.p2align 8
.type {KN},@function
{KN}:
{body}
L_end:
    s_endpgm
.section .rodata,"a"
.p2align 6
.amdhsa_kernel {KN}
  .amdhsa_next_free_vgpr 512
  .amdhsa_next_free_sgpr 102
  .amdhsa_accum_offset 256
  .amdhsa_group_segment_fixed_size 0
  .amdhsa_kernarg_size 48
  .amdhsa_user_sgpr_count 2
  .amdhsa_user_sgpr_kernarg_segment_ptr 1
  .amdhsa_system_sgpr_workgroup_id_x 1
.end_amdhsa_kernel
"""


if __name__ == "__main__":
    for kv in sys.argv[1:]:
        k, v = kv.split("=", 1)
        if k.startswith("pol"):
            OPT[k] = "".join(" " + x for x in v.split("+") if x and x != "d")
        elif k == "loop":
            OPT[k] = tuple(int(x) for x in v.split(","))
        else:
            OPT[k] = int(v)
    print(build())
```

```python
import re


def regs(spec):
    spec = spec.strip()
    m = re.fullmatch(r"([vas])\[(\d+):(\d+)\]", spec)
    if m:
        return [f"{m.group(1)}{i}" for i in range(int(m.group(2)), int(m.group(3)) + 1)]
    if re.fullmatch(r"[vas]\d+", spec) or spec in ("m0", "vcc", "exec", "scc"):
        return [spec]
    if spec.startswith("-") and re.fullmatch(r"-[vas]\d+", spec):
        return [spec[1:]]
    return []


def R(f, i, n=1):
    return f"{f}{i}" if n == 1 else f"{f}[{i}:{i + n - 1}]"


class I:
    __slots__ = ("text", "kind", "rd", "wr", "A", "B", "C", "lds_rd", "lds_wr", "tag", "vm", "lg", "note", "bar")

    def __init__(self, text, kind, rd=(), wr=(), **kw):
        self.text = text
        self.kind = kind
        self.rd = set(rd)
        self.wr = set(wr)
        self.A = self.B = self.C = None
        self.lds_rd = self.lds_wr = None
        self.tag = None
        self.vm = None
        self.lg = None
        self.note = None
        for k, v in kw.items():
            setattr(self, k, v)

    def __repr__(self):
        return self.text


def _ops(s):
    return [x.strip() for x in s.split(",")]


def valu(text, kind="valu", rmw=False):
    op, rest = text.split(None, 1)
    rest0 = re.split(r"\s+(?=op_sel|row_|quad_perm|bank_mask|bound_ctrl|neg_|clamp|mul:|div:)", rest)[0]
    o = _ops(rest0)
    wr = regs(o[0])
    rd = [r for x in o[1:] for r in regs(x)]
    if op.startswith("v_permlane"):
        wr = regs(o[0]) + regs(o[1])
        rd = list(wr)
        kind = "perm"
    if "dpp" in op:
        kind = "dpp"
        rd += wr
    if op.startswith(("v_exp", "v_rcp", "v_log", "v_rsq", "v_sqrt")):
        kind = "trans"
    if op.startswith(("v_readfirstlane", "v_readlane")):
        kind = "rfl"
    if op.startswith("v_cndmask") and len(o) == 3:
        rd.append("vcc")
    if rmw or op.startswith("v_fmac"):
        rd += wr
    return I(text, kind, rd, wr)


def salu(text):
    op, rest = (text.split(None, 1) + [""])[:2]
    o = _ops(rest) if rest else []
    if op.startswith("s_cmp"):
        return I(text, "salu", [r for x in o for r in regs(x)], ["scc"])
    if op.startswith(("s_cbranch", "s_branch")):
        return I(text, "branch", ["scc"] if "scc" in op else (["vcc"] if "vcc" in op else []), [])
    wr = regs(o[0]) if o else []
    rd = [r for x in o[1:] for r in regs(x)]
    if op.startswith(("s_cselect", "s_addc")):
        rd.append("scc")
    return I(text, "salu", rd, wr)


def mfma(D, A, B, C):
    i = I(f"v_mfma_f32_16x16x32_bf16 {D}, {A}, {B}, {C}", "mfma", regs(A) + regs(B) + regs(C), regs(D))
    i.A, i.B, i.C = regs(A), regs(B), regs(C)
    return i


def ds_read(op, dst, addr, off, lds=None):
    return I(f"{op} {dst}, {addr} {off}".rstrip(), "dsr", regs(addr), regs(dst), lds_rd=lds)


def ds_write(op, addr, src, off, lds=None):
    if addr is None:
        return I(f"{op} {src} {off}".rstrip(), "dsw", regs(src) + ["m0"], [], lds_wr=lds)
    return I(f"{op} {addr}, {src} {off}".rstrip(), "dsw", regs(addr) + regs(src), [], lds_wr=lds)


def dma(vaddr, srd, soff, imm, pol, lds, tag):
    o = f" offset:{imm}" if imm else ""
    return I(f"buffer_load_dwordx4 {vaddr}, {srd}, {soff} offen{o}{pol} lds", "dma",
             regs(vaddr) + regs(srd) + regs(soff) + ["m0"], [], lds_wr=lds, tag=tag)


def vload(op, dst, vaddr, srd, soff, imm=0, pol="", tag=None):
    o = f" offset:{imm}" if imm else ""
    return I(f"{op} {dst}, {vaddr}, {srd}, {soff} offen{o}{pol}", "vld", regs(vaddr) + regs(srd) + regs(soff), regs(dst), tag=tag)


def vstore(op, src, vaddr, srd, soff, imm=0, pol="", tag=None):
    o = f" offset:{imm}" if imm else ""
    i = I(f"{op} {src}, {vaddr}, {srd}, {soff} offen{o}{pol}", "vst", regs(src) + regs(vaddr) + regs(srd) + regs(soff), [], tag=tag)
    i.A = regs(src)
    return i


def wait(vm=None, lg=None):
    return I("s_waitcnt ?", "wait", vm=vm, lg=lg)


def barrier():
    return I("s_barrier", "barrier")


def nop(n):
    return I(f"s_nop {n}", "nop", note=n + 1)


def label(name):
    return I(f"{name}:", "label")


def raw(text):
    return I(text, "raw")


VALUK = ("valu", "trans", "perm", "dpp", "rfl")


def needed_gap(p, c):
    n = 0
    pw, crd, cwr = p.wr, c.rd, c.wr
    if p.kind in VALUK:
        vw = {r for r in pw if r[0] in "va" and r != "vcc"}
        sw = {r for r in pw if r[0] == "s" or r == "vcc"}
        if vw & crd:
            if c.kind == "mfma":
                n = max(n, 2)
            if c.kind in ("perm", "dpp"):
                n = max(n, 2)
            if c.kind == "rfl":
                n = max(n, 1)
            if p.kind == "trans" and c.kind != "trans":
                n = max(n, 1)
        if sw & crd:
            if c.kind in VALUK:
                n = max(n, 2)
            if c.kind in ("vld", "vst", "dma"):
                n = max(n, 5)
            if c.kind in ("salu", "branch"):
                n = max(n, 1)
    if p.kind == "mfma":
        if c.kind == "mfma":
            if pw & (set(c.A) | set(c.B)):
                n = max(n, 8)
            if pw & set(c.C) and set(c.C) != pw:
                n = max(n, 6)
            if pw & cwr and not (pw & set(c.C)):
                n = max(n, 6)
        else:
            if pw & (crd | cwr):
                n = max(n, 8)
            if c.kind in VALUK and set(p.C) & cwr:
                n = max(n, 3)
    if p.kind == "salu" and "m0" in pw and "m0" in crd and c.kind in ("dma", "dsw"):
        n = max(n, 1)
    if p.kind == "vst" and len(p.A) >= 3 and set(p.A) & cwr:
        n = max(n, 2)
    return n


def resolve(trace, name="", quiet=False):
    out = []
    lgq = []
    vmq = []
    epoch = 0
    ev = []
    inserted = []

    def done_lg(n):
        while len(lgq) > n:
            x, e0 = lgq.pop(0)
            if x.lds_rd:
                ev.append(("rd", x.lds_rd, e0, epoch))
            if x.lds_wr:
                ev.append(("wr", x.lds_wr, e0, epoch))

    def done_vm(n):
        while len(vmq) > n:
            x, e0 = vmq.pop(0)
            if x.lds_wr:
                ev.append(("wr", x.lds_wr, e0, epoch))

    def need(q, pred):
        idx = -1
        for k, (x, _) in enumerate(q):
            if pred(x):
                idx = k
        return None if idx < 0 else len(q) - 1 - idx

    def wtext(nv, nl):
        s = []
        if nv is not None:
            assert nv <= 62
            s.append(f"vmcnt({nv})")
        if nl is not None:
            s.append(f"lgkmcnt({min(nl, 14)})")
        return "s_waitcnt " + " ".join(s)

    for ins in trace:
        if ins.kind == "wait":
            nv = nl = None
            if ins.vm == "all":
                nv = 0
            elif ins.vm is not None:
                nv = need(vmq, lambda x: x.tag in ins.vm)
            if ins.lg == "all":
                nl = 0
            elif "w" in ins.lg if ins.lg is not None else False:
                nl = need(lgq, lambda x: x.kind == "dsw" or x.wr & set(ins.lg))
            elif ins.lg is not None:
                nl = need(lgq, lambda x: x.wr & set(ins.lg))
            if nv is None and nl is None:
                continue
            w = I(wtext(nv, nl), "wait")
            out.append(w)
            if nv is not None:
                done_vm(nv)
            if nl is not None:
                done_lg(min(nl, 14))
            continue
        if ins.kind in ("label", "raw"):
            out.append(ins)
            continue
        touch = ins.rd | ins.wr
        nl = need(lgq, lambda x: x.wr & touch)
        nv = need(vmq, lambda x: x.wr & (ins.rd if ins.kind == "vld" else touch))
        if nl is not None or nv is not None:
            w = I(wtext(nv, nl), "wait", note="auto")
            out.append(w)
            inserted.append((len(out), w.text, ins.text))
            if nv is not None:
                done_vm(nv)
            if nl is not None:
                done_lg(min(nl, 14))
        dist = 0
        short = 0
        for p in reversed(out[-40:]):
            if p.kind in ("label",):
                continue
            if dist >= 8:
                break
            g = needed_gap(p, ins)
            if g > dist:
                short = max(short, g - dist)
            dist += p.note if p.kind == "nop" else 1
        if short:
            n = nop(short - 1)
            out.append(n)
            inserted.append((len(out), n.text, ins.text))
        out.append(ins)
        if ins.kind in ("dsr", "dsw"):
            lgq.append((ins, epoch))
        if ins.kind in ("dma", "vld", "vst"):
            vmq.append((ins, epoch))
            assert len(vmq) <= 63, f"vmcnt overflow at {ins.text}"
        if ins.kind == "barrier":
            epoch += 1
    epoch += 1000
    done_lg(0)
    done_vm(0)
    return out, ev, inserted


def check_lds(evs):
    from collections import defaultdict
    W = defaultdict(list)
    Rd = defaultdict(list)
    for k, (reg, ver), e0, e1 in evs:
        (W if k == "wr" else Rd)[(reg, ver)].append((e0, e1))
    bad = 0
    regsn = defaultdict(set)
    for (reg, ver) in list(W) + list(Rd):
        regsn[reg].add(ver)
    for reg, vers in regsn.items():
        vs = sorted(vers)
        for i, v in enumerate(vs):
            w = W.get((reg, v), [])
            r = Rd.get((reg, v), [])
            if r and not w:
                print("LDS: read without write", reg, v)
                bad += 1
            if r and w:
                if max(x[1] for x in w) >= min(x[0] for x in r):
                    print("LDS RAW violation", reg, v, "write done epoch", max(x[1] for x in w), "read issue", min(x[0] for x in r))
                    bad += 1
            if i + 1 < len(vs):
                w2 = W.get((reg, vs[i + 1]), [])
                if w2:
                    first = min(x[0] for x in w2)
                    if r and max(x[1] for x in r) >= first:
                        print("LDS WAR violation", reg, v, "read done", max(x[1] for x in r), "next write issue", first)
                        bad += 1
                    if w and max(x[1] for x in w) >= first:
                        print("LDS WAW violation", reg, v)
                        bad += 1
    return bad
```

```python
import sys, struct, math
from asmlib import *

KN = "standalone__gqa_softmax__near_ridge_kernel"
OPT = dict(abl=0, pol_kv="", pol_q="", pol_o=" sc0 sc1", stamps=0, loop=(3, 27), defer=1, show=0, thr=30, dma0=1, wfree=1, w64=0, wsolo=0, dmastag=4, dmastep=8, zig=1, feed0=4, skew=0, skewmode=0, cpf=2, ibar=1)

PXA = 10240
KRING = 3 * PXA
SLOT = 16640
VRING = KRING + 4 * SLOT
LDS_BYTES = VRING + 4 * SLOT

sQ, sK, sV, sO, sC = "s[12:15]", "s[16:19]", "s[20:23]", "s[24:27]", "s[44:47]"
sW, sA, sB, sCNT, sKo, sVo, sKm, sVm, sPm, sMODE, sMASK = "s28", "s29", "s30", "s31", "s32", "s33", "s34", "s35", "s36", "s38", "s39"
sSC = "s[40:41]"
sT = ["0", "s48", "s49", "s50", "s51"]
sTHR = "s52"
vQ, vKr, vV0, vV1, vKd, vVd, vPr, vPr2, vO, vKr0 = "v1", "v2", "v3", "v4", "v5", "v6", "v7", "v8", "v9", "v10"
vPw = "v46"
vQl, vQlx, vQw, vQw2, vQwx, vQr, vQr2, vQrx = "v47", "v45", "v26", "v27", "v28", "v29", "v30", "v31"
vO2, vEw, vEr = "v43", "v41", "v39"
RAW, RAWX = 128, 192
TMP = 12
vL = [36, 38, 40, 42, 44]
NEGM = 48
SS = 68
PP = 88
OO = 128
AQ, AX, AKF, AVF = 0, 128, 160, 192


def Qf(t, s):
    return R("a", (AQ + 32 * t if t < 4 else AX) + 4 * s, 4)


def Kf(s):
    return R("a", AKF + 4 * s, 4)


def Vf(dt):
    return R("a", AVF + 4 * dt, 4)


def S(t):
    return R("v", SS + 4 * t, 4)


def Ng(t):
    return R("v", NEGM + 4 * t, 4)


def P(par, t):
    return PP + 20 * par + 4 * t


def O(t, dt):
    return R("v", OO + 32 * t + 4 * dt, 4) if t < 4 else R("a", AX + 4 * dt, 4)


def kdma(tile, i):
    slot = tile % 4
    return (salu(f"s_add_u32 m0, {sKm}, {slot * SLOT + i * 1568}"),
            dma(vKd, sK, sKo, 512 * i, OPT["pol_kv"], (("K", slot), tile), ("K", tile)))


def vdma(tile, i):
    slot = tile % 4
    return (salu(f"s_add_u32 m0, {sVm}, {slot * SLOT + i * 1568}"),
            dma(vVd, sV, sVo, 512 * i, OPT["pol_kv"], (("V", slot), tile), ("V", tile)))


def dma_tile(kind, tile):
    out = []
    for i in range(4):
        out += list((kdma if kind == "K" else vdma)(tile, i))
    out.append(salu(f"s_add_u32 {sKo if kind == 'K' else sVo}, {sKo if kind == 'K' else sVo}, 16384"))
    return out


def kread(tile, s, addr=vKr, dst=None):
    slot = tile % 4
    return ds_read("ds_read_b128", dst or Kf(s), addr, f"offset:{slot * SLOT + 64 * s}", (("K", slot), tile))


def vread(tile, dt, u):
    slot = tile % 4
    return ds_read("ds_read_b64_tr_b16", R("a", AVF + 4 * dt + 2 * u, 2), (vV0, vV1)[u], f"offset:{slot * SLOT + 32 * dt}", (("V", slot), tile))


def pwrite(j, t, h):
    par = j % 2
    return ds_write("ds_write_addtid_b32", None, f"v{P(par, t) + h}", f"offset:{par * PXA + (2 * t + h) * 256}", (("P", par), j))


def pwrite64(j, t):
    par = j % 2
    return ds_write("ds_write2st64_b32", vPw, f"v{P(par, t)}, v{P(par, t) + 1}", f"offset0:{par * 40 + 2 * t} offset1:{par * 40 + 2 * t + 1}", (("P", par), j))


def pread(j, a, t, own=False):
    par = j % 2
    if t < 4:
        o = par * 40 + a * 20 + 2 * t
        return ds_read("ds_read2st64_b32", R("v", P(par, t) + 2, 2), vPr, f"offset0:{o} offset1:{o + 1}", (("P", par), j))
    o = par * 40 + 8
    return ds_read("ds_read2st64_b32", R("v", P(par, 4) + (0 if own else 2), 2), vPr2 if own else vPr, f"offset0:{o} offset1:{o + 1}", (("P", par), j))


def stamp(idx):
    if not OPT["stamps"]:
        return []
    return [raw(f"s_memtime s[{60 + 2 * idx}:{61 + 2 * idx}]")]


class Op:
    def __init__(self, ins, cls, earliest, deadline, deps=(), m0=None, setter=None):
        self.ins, self.cls, self.earliest, self.deadline, self.deps, self.m0, self.setter = ins, cls, earliest, deadline, list(deps), m0, setter
        self.gap = None


def interval(j, a, looped_end=None):
    NQ = 5 - a
    NP = 4 + a
    do_qk = j + 1 <= 31
    mf = []
    if do_qk:
        for t in range(NQ):
            for s in range(8):
                mf.append(mfma(S(t), Kf(s), Qf(t, s), Ng(t) if s == 0 else S(t)))
    pv0 = len(mf)
    par = j % 2
    for dt in range(8):
        for t in (range(NP) if dt % 2 == 0 or not OPT["zig"] else reversed(range(NP))):
            mf.append(mfma(O(t, dt), Vf(dt), R("v", P(par, t), 4), "0" if j == 0 else O(t, dt)))
    G = len(mf)
    ops = []
    pre = []
    rd = []
    for t in range(NP):
        rd.append((pread(j, a, t), pv0 + t - 8))
    if a == 1:
        rd.append((pread(j, a, 4, own=True), pv0 + 4 - 8))
    for dt in range(8):
        for u in range(2):
            rd.append((vread(j, dt, u), pv0 + dt * NP - 9 + u))
    if do_qk:
        for ins, dl in rd:
            ops.append(Op(ins, "ds", 0, dl))
    else:
        rd.sort(key=lambda x: x[1])
        npre = [x for x in rd if x[1] < 2]
        pre += [x[0] for x in npre]
        for ins, dl in rd[len(npre):]:
            ops.append(Op(ins, "ds", 0, dl))
    if j + 2 <= 31:
        for s in range(8):
            ops.append(Op(kread(j + 2, s), "ds", 8 * (NQ - 1) + s, G - 18 + s))
    dl = []
    tiles = {0: [("V", 2), ("K", 4), ("V", 3)], 1: [("K", 5), ("V", 4), ("K", 6)]}.get(j, [("K", j + 5), ("V", j + 3)])
    for kind, tile in tiles:
        if tile <= 31:
            dl += [(kdma if kind == "K" else vdma)(tile, i) + ((kind, tile),) for i in range(4)]
    lastdma = -1
    dops = []
    step, stag = (OPT["dmastep"], OPT["dmastag"]) if len(dl) <= 8 else (5, 2)
    for n, (st, d, kind) in enumerate(dl):
        e = OPT["dma0"] + step * n + a * stag
        o = Op(d, "dma", e, e - 100, m0=("d", n), setter=st)
        ops.append(o)
        dops.append((o, kind))
        lastdma = e
    defer_tiles = [NQ - 1, NQ - 2] if OPT["defer"] else []
    if j >= 1 and j <= 30:
        for t in defer_tiles:
            for r in range(4):
                ops.append(Op(valu(f"v_add_f32 v{vL[t]}, v{SS + 4 * t + r}, v{vL[t]}"), "valu", 0, 8 * t - 8 + r))
    addops = []
    if do_qk:
        pn = (j + 1) % 2
        msetter = lambda: salu(f"s_mov_b32 m0, {sPm}")
        for t in range(NQ):
            ex = []
            cv = []
            base = 8 * t + 7 + 4
            late = G - 8 - 5 * (NQ - 1 - t)
            for r in range(4):
                o = Op(valu(f"v_exp_f32 v{SS + 4 * t + r}, v{SS + 4 * t + r}"), "exp", base, min(base + 10, late - 8) + r)
                ops.append(o)
                ex.append(o)
            for h in range(2):
                c = Op(valu(f"v_cvt_pk_bf16_f32 v{P(pn, t) + h}, v{SS + 4 * t + 2 * h}, v{SS + 4 * t + 2 * h + 1}"), "valu", 0, late - 3 + h, deps=ex[2 * h:2 * h + 2])
                ops.append(c)
                cv.append(c)
                if not OPT["w64"]:
                    ops.append(Op(pwrite(j + 1, t, h), "solo" if OPT["wsolo"] else "ds", 0 if OPT["wfree"] else lastdma + 2, late - 1 + h, deps=[c], m0="p", setter=msetter()))
            if OPT["w64"]:
                w = pwrite64(j + 1, t)
                w.rd |= {f"v{P(pn, t)}", f"v{P(pn, t) + 1}"}
                ops.append(Op(w, "solo", 0, late, deps=cv))
            if t not in defer_tiles or j == 30:
                for r in range(4):
                    o = Op(valu(f"v_add_f32 v{vL[t]}, v{SS + 4 * t + r}, v{vL[t]}"), "valu", 0, (late if j == 30 else G) + r, deps=[ex[r]])
                    ops.append(o)
                    addops.append(o)
    gaps = [dict(s=None, v=[], typ=None, m0=None) for _ in range(G)]
    m0 = None
    todo = list(ops)
    lastvec = G - 2 if do_qk else G
    for g in range(lastvec):
        def ready(o):
            if o.earliest > g or any(d.gap is None or d.gap >= g for d in o.deps):
                return False
            if o.m0 is not None and o.m0 != m0:
                if g == 0:
                    return False
                pg = gaps[g - 1]
                if pg["s"] is not None or pg["typ"] == "dma" or pg["m0"] is not None:
                    return False
            return True
        cand = sorted([o for o in todo if ready(o)], key=lambda o: o.deadline)
        if any(o.cls == "dma" and o.earliest <= g + 1 for o in todo):
            cand = [o for o in cand if o.m0 != "p"]
        if not cand:
            continue
        first = cand[0]
        pick = []
        if first.cls in ("exp", "dma", "solo"):
            pick = [first]
        else:
            ds = [o for o in cand if o.cls == "ds"]
            va = [o for o in cand if o.cls == "valu"]
            if ds:
                pick = [ds[0]] + va[:1]
            else:
                ex = [o for o in cand if o.cls in ("exp", "solo")]
                if len(va) < 2 and ex:
                    pick = [ex[0]]
                else:
                    pick = va[:2]
                    if len(pick) == 2 and pick[0].ins.wr & pick[1].ins.rd:
                        alt = [o for o in va[1:] if not (pick[0].ins.wr & o.ins.rd)]
                        if alt:
                            pick = [pick[0], alt[0]]
        for o in pick:
            o.gap = g
            todo.remove(o)
            gaps[g]["v"].append(o.ins)
            if o.m0 is not None:
                if o.m0 != m0:
                    gaps[g - 1]["s"] = o.setter
                    m0 = o.m0
                gaps[g]["m0"] = o.m0
        gaps[g]["typ"] = pick[0].cls
    post = []
    if todo:
        print(f"; WARNING interval {j} role {a}: {len(todo)} ops left: {[o.ins.text for o in todo]}", file=sys.stderr)
        for o in sorted(todo, key=lambda o: o.deadline):
            if o.m0 is not None and o.m0 != m0:
                post.append(o.setter)
                m0 = o.m0
            post.append(o.ins)

    def put_scalar(ins, lo, hi):
        for g in range(hi, lo - 1, -1):
            if gaps[g]["s"] is None and gaps[g]["typ"] != "dma":
                gaps[g]["s"] = ins
                return g
        raise RuntimeError(f"no scalar slot for {ins.text} in [{lo},{hi}] j={j} a={a}")

    def put_scalar_early(ins, lo, hi):
        for g in range(lo, hi + 1):
            if gaps[g]["s"] is None and gaps[g]["typ"] != "dma":
                gaps[g]["s"] = ins
                return g
        raise RuntimeError("no scalar slot")

    placed = {}
    for o in ops:
        if o.cls == "ds" and o.ins.kind == "dsr" and o.gap is not None:
            for r in o.ins.wr:
                placed[r] = o.gap
    covered = set()
    for g in range(pv0, G):
        needr = {r for r in (set(mf[g].A) | set(mf[g].B)) if r in placed and r not in covered}
        if needr and g >= 1:
            lo = max(placed[r] for r in needr) + 1
            assert lo <= g - 1, (j, a, g, lo)
            gw = put_scalar(wait(lg=needr), lo, g - 1)
            mx = max(placed[r] for r in needr)
            covered |= {r for r, pg in placed.items() if pg <= mx}
    for kt in tiles:
        gs = [o.gap for o, k in dops if k == kt]
        if gs:
            so = sKo if kt[0] == "K" else sVo
            nxt = [o.gap for o, k in dops if k[0] == kt[0] and k[1] > kt[1]]
            put_scalar_early(salu(f"s_add_u32 {so}, {so}, 16384"), max(gs) + 1, min(nxt) - 1 if nxt else G - 5)
    tail = []
    if j == 30:
        tail.append(salu(f"s_mov_b32 m0, {sPm}"))
        tail.append(valu(f"v_add_f32 v{TMP}, v{vL[0]}, v{vL[1]}"))
        tail.append(valu(f"v_add_f32 v{TMP + 1}, v{vL[2]}, v{vL[3]}"))
        for t in range(NQ):
            tail.append(ds_write("ds_write_addtid_b32", None, f"v{vL[t]}", f"offset:{2 * PXA + t * 256}", (("L", 0), 0)))
        tail.append(valu(f"v_add_f32 v{TMP}, v{TMP}, v{TMP + 1}"))
        if a == 0:
            tail.append(valu(f"v_add_f32 v{TMP}, v{TMP}, v{vL[4]}"))
        tail.append(ds_write("ds_write_addtid_b32", None, f"v{TMP}", f"offset:{2 * PXA + 5 * 256}", (("L", 0), 0)))
    out = list(pre)
    if do_qk:
        vm = []
        if j + 1 <= 31:
            vm.append(("V", j + 1))
        if j + 3 <= 31:
            vm.append(("K", j + 3))
        endwait = wait(vm=vm, lg="all")
        if looped_end:
            put_scalar(salu(f"s_sub_u32 {sCNT}, {sCNT}, 1"), G - 8, G - 4)
            put_scalar(salu(f"s_cmp_lg_u32 {sCNT}, 0"), G - 3, G - 3)
    for g in range(G):
        out.append(mf[g])
        if gaps[g]["s"] is not None:
            out.append(gaps[g]["s"])
        out += gaps[g]["v"]
        if do_qk and g == G - 3:
            out += post + tail
        if do_qk and g == G - 2:
            out.append(endwait)
    if do_qk:
        out.append(barrier())
        if looped_end:
            out.append(salu(f"s_cbranch_scc1 {looped_end}"))
    if OPT["show"] and j in (5, 30, 31):
        print(f"--- interval {j} role {a}", file=sys.stderr)
        for g in range(G):
            print(g, "QK" if g < pv0 else "PV", "|", gaps[g]["s"].text[:28] if gaps[g]["s"] else "", "|", " ; ".join(x.text[:46] for x in gaps[g]["v"]), file=sys.stderr)
    return out


def xlane(op, reg, tmp):
    o = []
    for sw in ("v_permlane32_swap_b32", "v_permlane16_swap_b32"):
        o.append(valu(f"v_mov_b32 v{tmp}, v{reg}"))
        o.append(valu(f"{sw} v{tmp}, v{reg}"))
        o.append(valu(f"{op} v{reg}, v{tmp}, v{reg}"))
    return o


def qload(k, i):
    return [vload("buffer_load_dwordx4", R("v", RAW + 16 * k + 4 * i, 4), vQl, sQ, sT[k], 512 * i, OPT["pol_q"])]


def dma_piece(kind, tile, i):
    o = list((kdma if kind == "K" else vdma)(tile, i))
    if i == 3:
        so = sKo if kind == "K" else sVo
        o.append(salu(f"s_add_u32 {so}, {so}, 16384"))
    return o


def entry():
    o = []
    A = lambda t: o.append(salu(t))
    V = lambda t: o.append(valu(t))
    t0, t1, t2, t3, t4 = (f"v{TMP + i}" for i in range(5))
    A("s_cmp_ge_u32 s2, 256")
    A("s_cbranch_scc1 L_end")
    o.append(raw("s_load_dwordx8 s[4:11], s[0:1], 0"))
    if OPT["stamps"]:
        o.append(raw("s_load_dwordx2 s[56:57], s[0:1], 40"))
        o.append(raw("s_memrealtime s[58:59]"))
    o += stamp(0)
    o.append(raw("s_getpc_b64 s[44:45]"))
    o.append(label("L_pc"))
    A("s_and_b32 s45, s45, 0xffff")
    o.append(raw("s_mov_b32 s46, L_end-L_pc"))
    A("s_mov_b32 s47, 0x20000")
    if OPT["cpf"] == 1:
        V("v_lshlrev_b32 v11, 7, v0")
        o.append(vload("buffer_load_dword", f"v{TMP + 23}", "v11", sC, "0"))
        V("v_add_u32 v11, 0x8000, v11")
        o.append(vload("buffer_load_dword", f"v{TMP + 22}", "v11", sC, "0"))
    if OPT["cpf"] == 2:
        A("s_lshr_b32 s54, s2, 3")
        A("s_lshl_b32 s54, s54, 7")
        V("v_lshlrev_b32 v11, 12, v0")
        o.append(vload("buffer_load_dword", f"v{TMP + 23}", "v11", sC, "s54"))
    V("v_lshrrev_b32 v11, 6, v0")
    A(f"s_mov_b32 {sMODE}, 0")
    V(f"v_readfirstlane_b32 {sW}, v11")
    A("s_and_b32 s53, s2, 7")
    A("s_lshl_b32 s53, s53, 3")
    A("s_lshr_b32 s54, s2, 5")
    A("s_add_u32 s53, s53, s54")
    A("s_lshr_b32 s54, s2, 3")
    A("s_and_b32 s54, s54, 3")
    A("s_lshl_b32 s55, s53, 2")
    A("s_add_u32 s55, s55, s54")
    A("s_mul_i32 s37, s55, 73728")
    A("s_lshl_b32 s53, s53, 19")
    A(f"s_lshr_b32 {sA}, {sW}, 1")
    A(f"s_and_b32 {sB}, {sW}, 1")
    V(f"v_and_b32 {t0}, 31, v0")
    V(f"v_lshlrev_b32 {t0}, 4, {t0}")
    V(f"v_bfe_u32 {t1}, v0, 5, 1")
    A(f"s_lshl_b32 s54, {sW}, 11")
    V(f"v_add_u32 {t2}, s54, {t0}")
    V(f"v_lshl_add_u32 {vKd}, {t1}, 13, {t2}")
    V(f"v_lshl_add_u32 {vQl}, {t1}, 15, {t2}")
    V(f"v_lshl_add_u32 {vQlx}, {t1}, 9, {t2}")
    A(f"s_add_u32 s54, {sW}, 1")
    A("s_and_b32 s55, s54, 1")
    A("s_lshl_b32 s55, s55, 3")
    A("s_lshr_b32 s54, s54, 1")
    A("s_and_b32 s54, s54, 1")
    A("s_add_u32 s54, s54, s55")
    A("s_mul_i32 s54, s54, 1040")
    A(f"s_add_u32 {sKm}, s54, {KRING}")
    A("s_mov_b32 s48, 8192")
    A("s_mov_b32 s49, 16384")
    A("s_mov_b32 s50, 24576")
    A("s_mov_b32 s42, 65536")
    for srd, n in ((16, 524288), (12, 73728), (20, 524288), (24, 73728)):
        A(f"s_mov_b32 s{srd + 2}, {n}")
        A(f"s_mov_b32 s{srd + 3}, 0x20000")
    o.append(raw("s_waitcnt lgkmcnt(0)"))
    o += stamp(8)
    for srd, ptr, off in ((16, 6, "s53"), (12, 4, "s37"), (20, 8, "s53"), (24, 10, "s37")):
        A(f"s_add_u32 s{srd}, s{ptr}, {off}")
        A(f"s_addc_u32 s{srd + 1}, s{ptr + 1}, 0")
        A(f"s_and_b32 s{srd + 1}, s{srd + 1}, 0xffff")
    if OPT["skew"]:
        sh, msk = {0: (5, 1), 1: (3, 1), 2: (5, 3), 3: (3, 3), 4: (5, 7)}[OPT["skewmode"]]
        o.append(raw(f"s_lshr_b32 s54, s2, {sh}\ns_and_b32 s54, s54, {msk}\nL_skew:\ns_cmp_eq_u32 s54, 0\ns_cbranch_scc1 L_skewdone\ns_sleep {OPT['skew']}\ns_sub_u32 s54, s54, 1\ns_branch L_skew\nL_skewdone:"))
    o.append(label("L_restart"))
    A(f"s_mov_b32 {sKo}, 0")
    A(f"s_mov_b32 {sVo}, 0")
    o += dma_tile("K", 0)
    for i in range(2):
        o.append(vload("buffer_load_dwordx4", R("v", RAWX + 4 * i, 4), vQlx, sQ, "s42", 1024 * i, OPT["pol_q"]))
    if OPT["ibar"]:
        o.append(barrier())
    for i in range(4):
        o += qload(0, i)
    o += stamp(9)
    V(f"v_and_b32 {t0}, 31, v0")
    V(f"v_lshlrev_b32 {t0}, 4, {t0}")
    V(f"v_bfe_u32 {t2}, v0, 5, 1")
    A(f"s_lshl_b32 s54, {sB}, 11")
    A(f"s_lshl_b32 s55, {sA}, 13")
    A("s_add_u32 s54, s54, s55")
    V(f"v_lshl_add_u32 {vVd}, {t2}, 12, {t0}")
    V(f"v_add_u32 {vVd}, s54, {vVd}")
    A(f"s_add_u32 s54, {sKm}, {3 * SLOT}")
    V(f"v_lshl_add_u32 {vQw}, {t2}, 9, {t0}")
    V(f"v_add_u32 {vQw}, s54, {vQw}")
    V(f"v_add_u32 {vQw2}, {4 * SLOT}, {vQw}")
    A(f"s_sub_u32 s54, {sKm}, {KRING - PXA}")
    V(f"v_mul_u32_u24 {vQwx}, 2080, {t2}")
    V(f"v_add3_u32 {vQwx}, {vQwx}, {t0}, s54")
    A(f"s_mul_i32 s54, {sB}, {4 * 2080}")
    A(f"s_lshl_b32 s55, {sA}, 10")
    A("s_add_u32 s54, s54, s55")
    A(f"s_add_u32 {sVm}, s54, {VRING}")
    A(f"s_mul_i32 {sPm}, {sW}, 2560")
    V(f"v_and_b32 {t0}, 15, v0")
    V(f"v_bfe_u32 {t1}, v0, 4, 1")
    V(f"v_lshlrev_b32 {t3}, 5, {t1}")
    V(f"v_lshl_add_u32 {t3}, {t2}, 4, {t3}")
    A(f"s_lshl_b32 s54, {sA}, 15")
    A(f"s_lshl_b32 s55, {sB}, 8")
    A("s_add_u32 s55, s55, s54")
    A("s_sub_u32 s51, 65536, s54")
    V(f"v_lshl_add_u32 {vQ}, {t0}, 9, {t3}")
    V(f"v_bfe_u32 {t4}, v0, 4, 2")
    V(f"v_lshlrev_b32 {vO}, 9, {t4}")
    V(f"v_lshl_add_u32 {vO}, {t0}, 4, {vO}")
    V(f"v_add_u32 {vO}, s55, {vO}")
    V(f"v_add_u32 {vO2}, 0x1000, {vO}")
    A(f"s_mul_i32 s55, {sW}, {SLOT}")
    A(f"s_add_u32 s55, s55, {KRING}")
    V(f"v_mul_u32_u24 {vEw}, 272, {t0}")
    V(f"v_lshl_add_u32 {vEw}, {t4}, 3, {vEw}")
    V(f"v_add_u32 {vEw}, s55, {vEw}")
    V(f"v_mul_u32_u24 {vEr}, 272, {t4}")
    V(f"v_lshl_add_u32 {vEr}, {t0}, 4, {vEr}")
    V(f"v_add_u32 {vEr}, s55, {vEr}")
    V(f"v_add_u32 {t4}, 4, {t0}")
    V(f"v_bfe_u32 {vKr0}, {t4}, 3, 1")
    V(f"v_and_b32 {t4}, 7, {t4}")
    V(f"v_lshl_add_u32 {vKr0}, {t4}, 1, {vKr0}")
    V(f"v_mul_u32_u24 {vKr0}, 1040, {vKr0}")
    V(f"v_add_u32 {vKr0}, {vKr0}, {t3}")
    V(f"v_add_u32 {vQrx}, {PXA}, {vKr0}")
    V(f"v_add_u32 {vKr0}, {KRING}, {vKr0}")
    A(f"s_lshl_b32 s54, {sB}, 9")
    V(f"v_add_u32 {vKr}, s54, {vKr0}")
    A(f"s_lshl_b32 s54, {sA}, 9")
    A(f"s_add_u32 s54, s54, {3 * SLOT}")
    V(f"v_add_u32 {vQr}, s54, {vKr0}")
    V(f"v_add_u32 {vQr2}, {4 * SLOT}, {vQr}")
    V(f"v_bfe_u32 {t4}, v0, 2, 3")
    V(f"v_mul_u32_u24 {vV0}, 2080, {t4}")
    V(f"v_lshl_add_u32 {vV0}, {t2}, 9, {vV0}")
    V(f"v_and_b32 {t4}, 3, v0")
    V(f"v_lshl_add_u32 {vV0}, {t4}, 3, {vV0}")
    A(f"s_mul_i32 s54, {sB}, {256 + 1024}")
    A(f"s_add_u32 s54, s54, {VRING}")
    A(f"s_mul_i32 s55, {sB}, {1024 - 256}")
    A(f"s_sub_u32 s55, {VRING + 1024}, s55")
    V(f"v_add_u32 {vV1}, s55, {vV0}")
    V(f"v_add_u32 {vV0}, s54, {vV0}")
    V(f"v_and_b32 {t4}, 63, v0")
    V(f"v_lshlrev_b32 {t4}, 2, {t4}")
    A(f"s_mul_i32 s54, {sB}, 2560")
    A("s_sub_u32 s55, 2560, s54")
    V(f"v_add_u32 {vPw}, {sPm}, {t4}")
    V(f"v_add_u32 {vPr2}, s54, {t4}")
    V(f"v_add_u32 {vPr}, s55, {t4}")
    c = struct.unpack("<I", struct.pack("<f", math.log2(math.e) / 16.0))[0]
    A(f"s_mov_b32 s40, {c:#x}")
    A(f"s_mov_b32 s41, {c:#x}")
    A(f"s_mov_b32 {sMASK}, 0xffff0000")
    A(f"s_mov_b32 {sTHR}, {(127 + OPT['thr']) << 23:#x}")
    for t in range(5):
        V(f"v_mov_b32 v{vL[t]}, 0")
    A(f"s_cmp_eq_u32 {sA}, 1")
    A("s_cbranch_scc1 L_role1")
    return o


def scale4(src):
    o = []
    T = TMP
    for i in range(4):
        o.append(valu(f"v_lshlrev_b32 v{T + 2 * i}, 16, v{src + i}"))
        o.append(valu(f"v_and_b32 v{T + 2 * i + 1}, {sMASK}, v{src + i}"))
    for i in range(4):
        o.append(valu(f"v_pk_mul_f32 {R('v', T + 2 * i, 2)}, {R('v', T + 2 * i, 2)}, {sSC}"))
    for i in range(4):
        o.append(valu(f"v_cvt_pk_bf16_f32 v{src + i}, v{T + 2 * i}, v{T + 2 * i + 1}"))
    return o


QST = {0: (("V", 1), vQw, vQr, 2 * SLOT), 1: (("K", 3), vQw, vQr, 0), 2: (("V", 2), vQw, vQr, 3 * SLOT), 3: (("V", 3), vQw2, vQr2, 0)}


def stage_in(k, feed):
    o = []
    n = 2 if k == 4 else 4
    for i in range(n):
        src = RAWX + 4 * i if k == 4 else RAW + 16 * k + 4 * i
        sc = scale4(src)
        o.append(sc[0])
        o += feed(OPT["feed0"] if (k == 4 and i == 0) else 1)
        o += sc[1:]
        if k == 4:
            o.append(ds_write("ds_write_b128", vQwx, R("v", src, 4), f"offset:{4160 * i}", (("P", 1), -1)))
        else:
            reg, wb, rb, off = QST[k]
            o.append(ds_write("ds_write_b128", wb, R("v", src, 4), f"offset:{off + 2080 * i}", (reg, -1)))
    return o


def stage_read(k):
    if k == 4:
        return [ds_read("ds_read_b128", Qf(4, s), vQrx, f"offset:{64 * s}", (("P", 1), -1)) for s in range(8)]
    reg, wb, rb, off = QST[k]
    return [ds_read("ds_read_b128", Qf(k, s), rb, f"offset:{off + 64 * s}", (reg, -1)) for s in range(8)]


def stage_compute(a, t, feed=None):
    o = []
    b = SS + 4 * t
    SP = R("v", TMP + 4, 4)
    for s in range(8):
        o.append(mfma(SP, Vf(s), Qf(t, s), "0" if s == 0 else SP))
        if feed and s % 2 == 1:
            o += feed(1)
    mx = [valu(f"v_max3_f32 v{TMP}, v{TMP + 4}, v{TMP + 5}, v{TMP + 6}"), valu(f"v_max_f32 v{TMP}, v{TMP}, v{TMP + 7}")]
    for s in range(8):
        o.append(mfma(S(t), Kf(s), Qf(t, s), "0" if s == 0 else S(t)))
        if feed and s % 2 == 1:
            o += feed(1)
    o.append(salu(f"s_cmp_eq_u32 {sMODE}, 1"))
    o.append(salu(f"s_mov_b32 m0, {sPm}"))
    o += mx
    o += xlane("v_max_f32", TMP, TMP + 1)
    o.append(salu(f"s_cbranch_scc1 L_skipmax{a}_{t}"))
    for r in range(4):
        o.append(valu(f"v_sub_f32 v{NEGM + 4 * t + r}, 0, v{TMP}"))
    o.append(label(f"L_skipmax{a}_{t}"))
    for r in range(4):
        o.append(valu(f"v_add_f32 v{b + r}, v{b + r}, v{NEGM + 4 * t}"))
    for r in range(4):
        o.append(valu(f"v_exp_f32 v{b + r}, v{b + r}"))
    for h in range(2):
        o.append(valu(f"v_cvt_pk_bf16_f32 v{P(0, t) + h}, v{b + 2 * h}, v{b + 2 * h + 1}"))
    for h in range(2):
        o.append(pwrite(0, t, h))
    for r in range(4):
        o.append(valu(f"v_add_f32 v{vL[t]}, v{b + r}, v{vL[t]}"))
    return o


def prologue(a):
    o = [label(f"L_role{a}")]
    order = [qload(k, i) for k in (1, 2, 3) for i in range(4)]
    order += [dma_piece(kind, tile, i) for kind, tile in (("K", 1), ("V", 0), ("K", 2), ("V", 1), ("K", 3)) for i in range(4)]

    def feed(n):
        r = []
        for _ in range(n):
            if order:
                r += order.pop(0)
        return r
    o += stage_in(4, feed)
    o += stamp(10)
    o.append(wait(vm=[("K", 0)], lg="all"))
    o.append(barrier())
    o += stamp(1)
    for s in range(8):
        o.append(kread(0, s, vKr0, Vf(s)))
    if a == 0:
        o += stage_read(4)
    for s in range(8):
        o.append(kread(0, s))
    if a == 0:
        o += stage_compute(a, 4)
    for k in range(4):
        o += stage_in(k, feed)
        o += stamp(11 + k)
        o.append(wait(vm=[("K", 1)] if k == 3 else None, lg="all"))
        o.append(barrier())
        o += stage_read(k)
        o += stage_compute(a, k, feed if k == 3 else None)
    o += stamp(2)
    for s in range(8):
        o.append(kread(1, s))
    o += feed(99)
    o.append(wait(vm=[("V", 0), ("K", 2)], lg="all"))
    o.append(barrier())
    o += stamp(3)
    return o


def epilogue_head(a):
    o = []
    L = (("L", 0), 0)
    T = TMP
    base = 80
    for t in range(0, 4, 2):
        o.append(ds_read("ds_read2st64_b32", R("v", T + t, 2), vPr, f"offset0:{base + a * 20 + t} offset1:{base + a * 20 + t + 1}", L))
    o.append(ds_read("ds_read2st64_b32", R("v", T + 6, 2), vPr, f"offset0:{base + 5} offset1:{base + 25}", L))
    o.append(ds_read("ds_read2st64_b32", R("v", T + 8, 2), vPr2, f"offset0:{base + 5} offset1:{base + 25}", L))
    if a == 1:
        o.append(ds_read("ds_read_b32", f"v{T + 4}", vPr, f"offset:{(base + 4) * 256}", L))
        o.append(ds_read("ds_read_b32", f"v{vL[4]}", vPr2, f"offset:{(base + 4) * 256}", L))
    return o


def epilogue(a):
    NP = 4 + a
    o = []
    T = TMP
    o += stamp(5)
    o.append(salu(f"s_cmp_eq_u32 {sMODE}, 1"))
    o.append(salu(f"s_cbranch_scc1 L_nocheck{a}"))
    for i in range(4 if not OPT["abl"] else 0):
        o.append(valu(f"v_cmp_nlt_f32 s[{54}:{55}], v{T + 6 + i}, {sTHR}".replace("s[54:55]", "vcc") if False else f"v_cmp_ngt_f32 vcc, {sTHR}, v{T + 6 + i}"))
        o.append(salu(f"s_cbranch_vccnz L_fallback{a}"))
    o.append(label(f"L_nocheck{a}"))
    o.append(wait(lg="all"))
    for t in range(NP):
        o.append(valu(f"v_add_f32 v{vL[t]}, v{vL[t]}, v{T + t}"))
    for t in range(NP):
        o += xlane("v_add_f32", vL[t], T + 10)
    for t in range(NP):
        o.append(valu(f"v_rcp_f32 v{vL[t]}, v{vL[t]}"))
    pend = []
    for t in range(NP):
        if t == 4:
            for i in range(32):
                o.append(valu(f"v_accvgpr_read_b32 v{PP + i}, a{AX + i}"))
        base = OO + 32 * t if t < 4 else PP
        for dt in range(8):
            x = base + 4 * dt
            for i in range(2):
                o.append(valu(f"v_pk_mul_f32 {R('v', x + 2 * i, 2)}, {R('v', x + 2 * i, 2)}, {R('v', vL[t], 2)} op_sel_hi:[1,0]"))
        for dt in range(8):
            x = base + 4 * dt
            for i in range(2):
                o.append(valu(f"v_cvt_pk_bf16_f32 v{x + i}, v{x + 2 * i}, v{x + 2 * i + 1}"))
        o += pend
        for dt in range(8):
            o.append(ds_write("ds_write_b64", vEw, R("v", base + 4 * dt, 2), f"offset:{32 * dt}"))
        pend = []
        for i in range(4):
            o.append(ds_read("ds_read_b128", R("a", AKF + 16 * (t % 2) + 4 * i, 4), vEr, f"offset:{4 * 272 * i}"))
            pend.append(vstore("buffer_store_dwordx4", R("a", AKF + 16 * (t % 2) + 4 * i, 4), vO2 if i >= 2 else vO, sO, sT[t], 2048 * (i % 2), OPT["pol_o"]))
    o += pend
    o += stamp(6)
    if OPT["stamps"]:
        o.append(raw("s_waitcnt vmcnt(0)"))
        o += stamp(7)
        o.append(raw("s_memrealtime s[92:93]"))
        o.append(raw("s_waitcnt lgkmcnt(0)"))
        o.append(raw("s_mov_b32 s96, s56\ns_and_b32 s97, s57, 0xffff\ns_mov_b32 s98, 0x100000\ns_mov_b32 s99, 0x20000"))
        o.append(raw(f"s_lshl_b32 s94, s2, 2\ns_add_u32 s94, s94, {sW}\ns_lshl_b32 s94, s94, 7"))
        for i in range(16):
            o.append(raw(f"v_mov_b32 v{16 + i}, s{60 + 2 * i}"))
        o.append(raw("v_mov_b32 v32, s58\nv_mov_b32 v33, s92\nv_mov_b32 v34, 0\nv_mov_b32 v35, 0\nv_mov_b32 v36, 0"))
        o.append(raw("s_mov_b64 exec, 1"))
        for i in range(5):
            o.append(raw(f"buffer_store_dwordx4 v[{16 + 4 * i}:{19 + 4 * i}], v36, s[96:99], s94 offen offset:{16 * i}"))
    o.append(raw("s_endpgm"))
    return o


def fallback(a):
    NQ = 5 - a
    o = [label(f"L_fallback{a}")]
    o.append(raw("s_waitcnt vmcnt(0) lgkmcnt(0)"))
    o.append(nop(7))
    o.append(valu(f"v_mov_b32 v{TMP + 8}, {vQ}"))
    for t in range(NQ):
        o.append(valu(f"v_mov_b32 v{TMP + t}, 0xff800000"))
    o.append(salu("s_mov_b32 s54, 0"))
    o.append(label(f"L_fbloop{a}"))
    for s in range(8):
        o.append(vload("buffer_load_dwordx4", Kf(s), f"v{TMP + 8}", sK, "s54", 64 * s))
    for t in range(NQ):
        for s in range(8):
            o.append(mfma(S(t), Kf(s), Qf(t, s), "0" if s == 0 else S(t)))
    for t in range(NQ):
        b = SS + 4 * t
        o.append(valu(f"v_max3_f32 v{TMP + t}, v{b}, v{b + 1}, v{TMP + t}"))
        o.append(valu(f"v_max3_f32 v{TMP + t}, v{b + 2}, v{b + 3}, v{TMP + t}"))
    o.append(salu("s_add_u32 s54, s54, 8192"))
    o.append(salu("s_cmp_lt_u32 s54, 524288"))
    o.append(salu(f"s_cbranch_scc1 L_fbloop{a}"))
    for t in range(NQ):
        o += xlane("v_max_f32", TMP + t, TMP + 9)
        for r in range(4):
            o.append(valu(f"v_sub_f32 v{NEGM + 4 * t + r}, 0, v{TMP + t}"))
    o.append(salu(f"s_mov_b32 {sMODE}, 1"))
    o.append(barrier())
    o.append(salu("s_branch L_restart"))
    return o


def build():
    j0, j1 = OPT["loop"]
    assert (j1 - j0) % 4 == 0
    ent = entry()
    text = []
    evs = []
    ent_out = None
    for a in (0, 1):
        tr = list(ent) + [raw(";;ROLE")] + prologue(a)
        for j in range(32):
            if j == j0:
                tr.append(salu(f"s_mov_b32 {sCNT}, {(j1 - j0) // 4}"))
            tr.append(raw(f";;IV {j}"))
            if j == 31:
                tr += stamp(4)
                tr += epilogue_head(a)
            le = f"L_loop{a}" if (j0 <= j < j1 and (j - j0) % 4 == 3) else None
            tr += interval(j, a, le)
        tr.append(raw(";;IV 32"))
        tr += epilogue(a)
        out, ev, ins = resolve(tr)
        evs += ev
        lines = [x.text for x in out]
        k = lines.index(";;ROLE")
        if a == 0:
            text += lines[:k]
        idx = {j: lines.index(f";;IV {j}") for j in range(33)}
        for pos, w, c in ins:
            if idx[0] < pos < idx[31]:
                print(f"; auto-inserted in role {a} main: {w} before {c}", file=sys.stderr)
        seg = lambda j: lines[idx[j] + 1: idx[j + 1]]
        for j in range(j0 + 4, j1):
            assert seg(j) == seg(j - 4), f"loop body not periodic at {j} role {a}"
        if OPT["abl"]:
            ab = OPT["abl"]
            for n in range(idx[0], idx[31]):
                l = lines[n]
                if (ab & 1 and l.endswith(" lds")) or (ab & 2 and l == "s_barrier") or (ab & 4 and l.startswith("ds_write")) or (ab & 8 and l.startswith("ds_read2")) \
                   or (ab & 16 and l.startswith("ds_read_b64_tr")) or (ab & 32 and l.startswith("ds_read_b128")) or (ab & 64 and l.startswith("s_waitcnt")) or (ab & 128 and l.startswith(("v_exp", "v_add", "v_cvt"))):
                    lines[n] = "; ablated"
                if ab & 512 and l.startswith("ds_write_addtid"):
                    p = l.split()
                    lines[n] = f"ds_write_b32 v8, {p[1]} {p[2]}"
                if ab & 1024 and l.startswith(("s_add_u32 s32", "s_add_u32 s33")):
                    lines[n] = "; ablated"
                if ab & 2048 and l.endswith(" lds"):
                    lines[n] = l.replace("buffer_load_dwordx4 ", "buffer_load_dwordx4 a[252:255], ").replace(" lds", "")
                if ab & 256 and l.startswith("s_waitcnt vmcnt"):
                    lines[n] = "s_waitcnt lgkmcnt(0)"
        text += lines[k + 1: idx[j0]]
        text.append(".p2align 3")
        text.append(f"L_loop{a}:")
        text += lines[idx[j0]: idx[j0 + 4]]
        text += lines[idx[j1]:]
        fb, _, _ = resolve(fallback(a))
        text += [x.text for x in fb]
    bad = check_lds(evs)
    assert bad == 0
    hdr = open("header.txt").read()
    body = "\n".join(("" if l.endswith(":") or l.startswith(".") else "    ") + l.replace(";;IV", "; interval") for l in text)
    return f"""{hdr}; @launch grid=(256,1,1) block=(256,1,1) lds={LDS_BYTES}
.amdgcn_target "amdgcn-amd-amdhsa--gfx950"
.text
.globl {KN}
.p2align 8
.type {KN},@function
{KN}:
{body}
L_end:
    s_endpgm
.section .rodata,"a"
.p2align 6
.amdhsa_kernel {KN}
  .amdhsa_next_free_vgpr 512
  .amdhsa_next_free_sgpr 102
  .amdhsa_accum_offset 256
  .amdhsa_group_segment_fixed_size 0
  .amdhsa_kernarg_size 48
  .amdhsa_user_sgpr_count 2
  .amdhsa_user_sgpr_kernarg_segment_ptr 1
  .amdhsa_system_sgpr_workgroup_id_x 1
.end_amdhsa_kernel
"""


if __name__ == "__main__":
    for kv in sys.argv[1:]:
        k, v = kv.split("=", 1)
        if k.startswith("pol"):
            OPT[k] = "".join(" " + x for x in v.split("+") if x and x != "d")
        elif k == "loop":
            OPT[k] = tuple(int(x) for x in v.split(","))
        else:
            OPT[k] = int(v)
    print(build())
```

```python
import sys
from asmlib import *


class Op:
    def __init__(self, ins, cls, lo=0, dl=0, deps=(), hard=None, m0=None, setter=None):
        self.ins, self.cls, self.lo, self.dl, self.hard, self.m0, self.setter = ins, cls, lo, dl, hard, m0, setter
        self.deps = [d if isinstance(d, tuple) else (d, 1) for d in deps]
        self.gap = None


class Block:
    def __init__(self, name, wq=0, wprio=False):
        self.name = name
        self.mf = []
        self.ops = []
        self.bars = {}
        self.scal = []
        self.pre = []
        self.inserts = {}
        self.wq = wq
        self.wprio = wprio
        self.over = 0
        self.lazy = 999

    def mfma(self, ins):
        self.mf.append(ins)
        return len(self.mf) - 1

    def op(self, *a, **k):
        o = Op(*a, **k)
        self.ops.append(o)
        return o

    def barrier(self, gap, vm):
        self.bars[gap] = wait(vm=vm, lg="all")

    def scalar(self, ins, lo, hi, late=False):
        self.scal.append((ins, lo, hi, late))

    def schedule(self, show=False, leftover_ok=False):
        G = len(self.mf)
        gaps = [dict(s=[], v=[], typ=None, m0=None) for _ in range(G)]
        for g, w in self.bars.items():
            gaps[g - 1]["s"].append(w)
            gaps[g]["s"].append(barrier())
        m0 = [None]
        todo = list(self.ops)
        isds = lambda o: o.ins.kind in ("dsr", "dsw")

        def deps_ok(o, g):
            return o.lo <= g and all(d.gap is not None and d.gap + k <= g for d, k in o.deps)

        def place(o, g, forced=False):
            o.gap = g
            todo.remove(o)
            if o.m0 is not None:
                if o.m0 != m0[0]:
                    if forced and not (g > 0 and not gaps[g - 1]["s"] and gaps[g - 1]["typ"] != "dma" and gaps[g - 1]["m0"] is None and gaps[g]["m0"] is None):
                        gaps[g]["v"].append(o.setter)
                    else:
                        gaps[g - 1]["s"].append(o.setter)
                    m0[0] = o.m0
                gaps[g]["m0"] = o.m0
            gaps[g]["v"].append(o.ins)

        for g in range(G):
            def ready(o):
                if not deps_ok(o, g):
                    return False
                if (g + 1) in self.bars and (isds(o) or o.cls in ("dma", "st")):
                    return False
                if o.cls in ("dma", "st") and gaps[g]["s"]:
                    return False
                if o.m0 is not None and o.m0 != m0[0]:
                    if g == 0:
                        return False
                    pg = gaps[g - 1]
                    if pg["s"] or pg["typ"] == "dma" or pg["m0"] is not None:
                        return False
                return True
            cand = sorted([o for o in todo if ready(o)], key=lambda o: o.dl)
            if self.wprio:
                if any(o.m0 == "p" and o.lo <= g + 1 and o.lo > 0 for o in todo):
                    cand = [o for o in cand if o.cls != "dma"]
            elif any(o.cls == "dma" and o.lo <= g + 1 for o in todo):
                cand = [o for o in cand if o.m0 != "p"]
            if self.wq:
                lastw = max([o.gap for o in self.ops if o.ins.kind == "dsw" and o.gap is not None] + [-99])
                if g - lastw <= self.wq:
                    cand = [o for o in cand if o.ins.kind != "dsr"]
            pick = []
            if cand:
                first = cand[0]
                if first.cls in ("exp", "dma", "st", "solo"):
                    pick = [first]
                else:
                    ds = [o for o in cand if o.cls == "ds"]
                    va = [o for o in cand if o.cls == "valu"]
                    if ds and len(va) >= 2 and ds[0].dl > va[1].dl + self.lazy and ds[0].dl > g + self.lazy:
                        pick = va[:2]
                    elif ds:
                        pick = [ds[0]] + va[:1]
                    else:
                        ex = [o for o in cand if o.cls in ("exp", "solo")]
                        if len(va) < 2 and ex and ex[0].dl <= va[0].dl + 12:
                            pick = [ex[0]]
                        else:
                            pick = va[:2]
                for o in pick:
                    place(o, g)
                gaps[g]["typ"] = "dma" if pick[0].cls == "st" else pick[0].cls
            while True:
                f = [o for o in todo if o.hard is not None and o.hard <= g]
                f = [o for o in f if o.lo <= g and all(d.gap is not None for d, k in o.deps)]
                if not f:
                    break
                o = min(f, key=lambda o: o.dl)
                place(o, g, forced=True)
                self.over += 1
        left = sorted(todo, key=lambda o: o.dl)
        if left and not leftover_ok:
            raise RuntimeError(f"{self.name}: ops left {[o.ins.text for o in left]}")

        def free(g):
            return not gaps[g]["s"] and gaps[g]["typ"] != "dma"

        for ins, lo, hi, late in self.scal:
            lo = lo() if callable(lo) else lo
            hi = hi() if callable(hi) else hi
            rng = range(hi, lo - 1, -1) if late else range(lo, hi + 1)
            for g in rng:
                if free(g):
                    gaps[g]["s"].append(ins)
                    break
            else:
                g = hi if late else lo
                assert gaps[g]["typ"] != "dma" or True
                gaps[g]["s"].append(ins)
                self.over += 1
        pend = {}
        for n, x in enumerate(self.pre):
            if x.kind == "dsr":
                for r in x.wr:
                    pend[r] = n - len(self.pre) - 1
        for g in range(G):
            if any(x.kind == "wait" and x.lg == "all" for x in gaps[g]["s"]):
                pend.clear()
            need = set()
            for x in gaps[g]["v"]:
                need |= {r for r in (x.rd | x.wr) if r in pend}
            if g + 1 < G:
                nx = self.mf[g + 1]
                need |= {r for r in (nx.rd | nx.wr) if r in pend}
            if need:
                mx = max(pend[r] for r in need)
                for k in range(g, max(mx, -1), -1):
                    if free(k):
                        gaps[k]["s"].append(wait(lg=need))
                        break
                for r in [r for r, pg in pend.items() if pg <= mx]:
                    del pend[r]
            for x in gaps[g]["v"]:
                if x.kind == "dsr":
                    for r in x.wr:
                        pend[r] = g
        out = list(self.pre)
        for g in range(G):
            out.append(self.mf[g])
            out += gaps[g]["s"]
            out += gaps[g]["v"]
            out += self.inserts.get(g, [])
        if show:
            print(f"--- {self.name} (overfull {self.over}, left {len(left)})", file=sys.stderr)
            for g in range(G):
                m = self.mf[g].text.split(None, 1)[1]
                print(f"{g:3d} {m[:46]:46s}|", " ; ".join(x.text[:26] for x in gaps[g]["s"]), "|", " ; ".join(x.text[:44] for x in gaps[g]["v"]), f"+{len(self.inserts[g])} inserted" if g in self.inserts else "", file=sys.stderr)
        return out, left
```

```python
import sys, struct, math
from asmlib import *
from sched import Block

KN = "standalone__gqa_softmax__near_ridge_kernel"
OPT = dict(abl=0, pol_kv="", pol_q="", pol_o=" sc0 sc1", stamps=0, prof=0, show=-1, thr=30,
           dma0=1, dmastep=8, dmastag=4, klead=2, walign=0, wq=1, feed0=4, feedl=1, prefeed=3,
           bar0=32, barv=34, barl=62, lalign=3, lazy=16, order=1, win=11, aux=2, auxper=2, auxn=4, auxend=24, auxt0=28, nfast=2, nin=2)

PXA = 10240
KRING = 3 * PXA
SLOT = 16640
VRING = KRING + 4 * SLOT
LDS_BYTES = VRING + 4 * SLOT

sQ, sK, sV, sO, sC = "s[12:15]", "s[16:19]", "s[20:23]", "s[24:27]", "s[44:47]"
sW, sA, sB, sCNT, sKo, sVo, sKm, sVm, sPm, sMASK = "s28", "s29", "s30", "s31", "s32", "s33", "s34", "s35", "s36", "s39"
sSC, sKEEP = "s[40:41]", "s[42:43]"
sT = ["0", "s48", "s49", "s50", "s51"]
sT8 = ["s4", "s5", "s6", "s7", "s8"]
sX, sTHR = "s38", "s52"
vKr, vV0, vV1, vKd, vVd, vPr, vPr2 = "v1", "v2", "v3", "v4", "v5", "v6", "v7"
vL = [8, 9, 10, 11, 12]
vO, vEw, vEr = "v13", "v22", "v23"
PXT = 14
TMP = 16
vAuxC, vAuxT, vAuxD, vAuxD2, sP = "v18", "v19", "v20", "v17", "s[88:91]"
NEGM, SS, PP, OO = 24, 44, 64, 128
SCT = 80
vQl, vQlx, vQw, vQw2, vQwx, vQr, vQr2, vQrx, vKr0 = (f"v{96 + i}" for i in range(9))
RAWX, SPRE = 112, 120
LP, FLG, RL = 24, 30, 34
AQ, AX, AKF, AVF, ASP = 0, 128, 160, 192, 224


def Qf(t, s):
    return R("a", (AQ + 32 * t if t < 4 else AX) + 4 * s, 4)


def Kf(s):
    return R("a", AKF + 4 * s, 4)


def S(t):
    return R("v", SS + 4 * t, 4)


def Ng(t):
    return R("v", NEGM + 4 * t, 4)


def Pown(j, t):
    return PP + 16 * (j % 4) + 4 * t if t < 4 else PXT


def Pop(j, t):
    return R("v", PP + 16 * (j % 4) + 4 * t, 4) if t < 4 else R("a", ASP + 4 * (j % 4), 4)


def O(t, dt):
    return R("v", OO + 32 * t + 4 * dt, 4) if t < 4 else R("a", AX + 4 * dt, 4)


def RAW(k, i):
    return OO + 32 * k + 4 * i


def tdma(kind, tile, i):
    slot = tile % 4
    m, v, srd, so = (sKm, vKd, sK, sKo) if kind == "K" else (sVm, vVd, sV, sVo)
    return (salu(f"s_add_u32 m0, {m}, {slot * SLOT + i * 1568}"),
            dma(v, srd, so, 512 * i, OPT["pol_kv"], ((kind, slot), tile), (kind, tile)))


def bump(kind):
    so = sKo if kind == "K" else sVo
    return salu(f"s_add_u32 {so}, {so}, 16384")


def dma_piece(kind, tile, i):
    return list(tdma(kind, tile, i)) + ([bump(kind)] if i == 3 else [])


def kread(tile, s, addr=vKr, dst=None):
    slot = tile % 4
    return ds_read("ds_read_b128", dst or Kf(s), addr, f"offset:{slot * SLOT + 64 * s}", (("K", slot), tile))


def vread(tile, dt, u, frag):
    slot = tile % 4
    return ds_read("ds_read_b64_tr_b16", R("a", frag + 2 * u, 2), (vV0, vV1)[u], f"offset:{slot * SLOT + 32 * dt}", (("V", slot), tile))


def pwrite(j, t, h):
    par = j % 2
    return ds_write("ds_write_addtid_b32", None, f"v{Pown(j, t) + h}", f"offset:{par * PXA + (2 * t + h) * 256}", (("P", par), j))


def preads(j, a):
    par = j % 2
    o = []
    for t in range(4):
        n = par * 40 + a * 20 + 2 * t
        o.append((t, ds_read("ds_read2st64_b32", R("v", Pown(j, t) + 2, 2), vPr, f"offset0:{n} offset1:{n + 1}", (("P", par), j))))
    if a == 1:
        n = par * 40 + 8
        for u in range(2):
            o.append((4, ds_read("ds_read2st64_b32", R("a", ASP + 4 * (j % 4) + 2 * u, 2), (vPr2, vPr)[u], f"offset0:{n} offset1:{n + 1}", (("P", par), j))))
    return o


def msetter():
    return salu(f"s_mov_b32 m0, {sPm}")


def stamp(idx):
    return [raw(f"s_memtime s[{60 + 2 * idx}:{61 + 2 * idx}]")] if OPT["stamps"] else []


def xlane(op, reg, tmp):
    o = []
    for sw in ("v_permlane32_swap_b32", "v_permlane16_swap_b32"):
        o.append(valu(f"v_mov_b32 v{tmp}, v{reg}"))
        o.append(valu(f"{sw} v{tmp}, v{reg}"))
        o.append(valu(f"{op} v{reg}, v{tmp}, v{reg}"))
    return o


def chain_ops(b, seq, lo, dl, first_deps=(), hard=None):
    prev = None
    for n, ins in enumerate(seq):
        deps = list(first_deps) if prev is None else [(prev, 2 if ins.kind == "perm" else 1)]
        prev = b.op(ins, "exp" if ins.kind == "trans" else "valu", lo, dl + n, deps, hard=hard)
    return prev


def add_qk(b, a, j):
    ends = []
    for t in range(5 - a):
        for s in range(8):
            k = b.mfma(mfma(S(t), Kf(s), Qf(t, s), Ng(t) if s == 0 else S(t)))
        ends.append(k)
    return ends


def add_pv(b, a, tiles, h, frags, lo, zero=False, tmajor=False, lastuse=None):
    NP = 4 + a
    order = [(d, t) for t in range(NP) for d in range(4)] if tmajor else \
            [(d, t) for d in range(4) for t in (range(NP) if d % 2 == 0 else reversed(range(NP)))]
    first, done, pfirst = {}, {}, {}
    war = dict(lastuse) if lastuse is not None else {}
    for d, t in order:
        for n, j in enumerate(tiles):
            k = b.mfma(mfma(O(t, 4 * h + d), R("a", frags[d][n], 4), Pop(j, t), "0" if zero and n == 0 else O(t, 4 * h + d)))
            first.setdefault((d, n), k)
            pfirst.setdefault((j, t), k)
            done[(t, 4 * h + d)] = k
            if lastuse is not None:
                lastuse[frags[d][n]] = k
    for d in range(4):
        for n, j in enumerate(tiles):
            for u in range(2):
                f = first[(d, n)]
                b.op(vread(j, 4 * h + d, u, frags[d][n]), "ds", max(lo[j], war.get(frags[d][n], 0)), f - 10 + u, hard=f - 3)
    return done, pfirst


def add_softmax(b, a, j, ends, pub, defer, adds_by=None):
    NQ = 5 - a
    wa = OPT["walign"]
    adds = {}
    for t in range(NQ):
        base = ends[t] + 4
        late = pub - 7 - 5 * (NQ - 1 - t)
        ex = [b.op(valu(f"v_exp_f32 v{SS + 4 * t + r}, v{SS + 4 * t + r}"), "exp", base, (base - 300 if wa else min(base + 10, late - 8)) + r, hard=pub - 6) for r in range(4)]
        for h in range(2):
            c = b.op(valu(f"v_cvt_pk_bf16_f32 v{Pown(j, t) + h}, v{SS + 4 * t + 2 * h}, v{SS + 4 * t + 2 * h + 1}"), "valu", 0, (base - 50 if wa else late - 3) + h, ex[2 * h:2 * h + 2], hard=pub - 4)
            b.op(pwrite(j, t, h), "ds", base + 6 + h if wa else 0, (base - 200 if wa else late - 1) + h, [c], hard=pub - 3, m0="p", setter=msetter())
        if t not in defer:
            for r in range(4):
                adds[t] = b.op(valu(f"v_add_f32 v{vL[t]}, v{SS + 4 * t + r}, v{vL[t]}"), "valu", 0, (pub if adds_by is None else min(base + 12, adds_by)) + r, [ex[r]] + ([(adds[t], 0)] if t in adds else []),
                               hard=(pub if adds_by is None else adds_by))
    return adds


def add_deferred(b, a, ends):
    for t in deferred(a):
        for r in range(4):
            b.op(valu(f"v_add_f32 v{vL[t]}, v{SS + 4 * t + r}, v{vL[t]}"), "valu", 0, ends[t] - 16 + r, hard=ends[t] - 8)


def deferred(a):
    return [3 - a, 4 - a]


def add_dma(b, a, pieces, g0, step, G, lo=None):
    dops = []
    for n, (kind, tile, i) in enumerate(pieces):
        st, d = tdma(kind, tile, i)
        e = int(g0 + step * n)
        if lo and (kind, tile) in lo:
            e = max(e, lo[(kind, tile)])
        o = b.op(d, "dma", e, e - 100, [(dops[-1][0], 2)] if dops else [], hard=G - 3, m0=("d", n), setter=st)
        dops.append((o, kind, tile, i))
    for o, kind, tile, i in dops:
        if i == 3:
            nxt = [x for x, k, tl, _ in dops if k == kind and tl > tile]
            b.scalar(bump(kind), (lambda o=o: o.gap + 1), (lambda nxt=nxt: nxt[0].gap - 1) if nxt else G - 4)
    return dops


def prof_hooks(out):
    if OPT["prof"]:
        k = max(n for n, x in enumerate(out) if x.kind == "barrier")
        out.insert(k, raw("v_writelane_b32 v21, s100, m0"))
        out.insert(k - 1, raw("s_mov_b32 m0, s3"))
        mk = [n for n, x in enumerate(out[:k]) if x.kind == "mfma"]
        out.insert(mk[-6] + 1, raw("s_memtime s[100:101]" if OPT["prof"] == 1 else "s_memrealtime s[100:101]"))
        out.insert(mk[2] + 1, raw("s_add_u32 s3, s3, 1"))
    return out


def interval(j, a, loop_end=None):
    b = Block(f"interval {j} role {a}", wq=OPT["wq"] if OPT["walign"] else 0, wprio=bool(OPT["walign"]))
    ends = add_qk(b, a, j + 1)
    if j <= 28:
        tiles, h, frags = [j - 1, j], j % 2, [[AVF + 8 * d, AVF + 8 * d + 4] for d in range(4)]
    else:
        tiles, h, frags = [j], 0, [[AVF + 4 * d] for d in range(4)]
    done, pfirst = add_pv(b, a, tiles, h, frags, {j - 1: 0, j: 0})
    G = len(b.mf)
    for t, ins in preads(j, a):
        b.op(ins, "ds", 0, pfirst[(j, t)] - 10, hard=pfirst[(j, t)] - 3)
    for s in range(8):
        b.op(kread(j + 2, s), "ds", ends[-1] - 7 + s, G - 18 + s, hard=G - 3)
    kl = OPT["klead"]
    pieces = [("V", j + 2, i) for i in range(4)]
    if j <= 28:
        pieces += [("K", j + 2 + kl, i) for i in range(4)]
    dops = add_dma(b, a, pieces, OPT["dma0"] + a * OPT["dmastag"], OPT["dmastep"], G)
    if j <= 28 and j % 4 == (30 - kl) % 4:
        kf = [o for o, k, _, _ in dops if k == "K"][0]
        vl = [o for o, k, _, _ in dops if k == "V"][-2]
        pair = raw(f"s_cmp_eq_u32 {sCNT}, 1\n    s_cselect_b32 s18, 0, s18")
        b.scalar(pair, (lambda: vl.gap + 1), (lambda: kf.gap - 2))
    if j <= 28 and j % 4 == 1 and OPT["aux"] & 1:
        b.op(vload("buffer_load_dword", vAuxD, vAuxC, sC, "0"), "st", 3, -90, hard=40)
    if j <= 28 and (j - OPT["auxend"]) % OPT["auxper"] == 0 and OPT["aux"] & 2:
        x = b.op(vload("buffer_load_dword", vAuxD2, vAuxT, sP, "0"), "st", 5 - 4 * a, -90, hard=40)
        b.op(valu(f"v_add_u32 {vAuxT}, {(32 - OPT['auxt0']) * 16384 // OPT['auxn']:#x}, {vAuxT}"), "valu", 0, G, [x], hard=G - 1)
    add_deferred(b, a, ends)
    add_softmax(b, a, j + 1, ends, G - 1, deferred(a))
    vm = [("V", j + 1)] + ([("K", j + 3)] if j + 3 <= 31 else [])
    b.barrier(G - 1, vm)
    if loop_end:
        b.scalar(raw(f"s_sub_u32 {sCNT}, {sCNT}, 1\n    s_cmp_lg_u32 {sCNT}, 0"), G - 3, G - 3)
    out, _ = b.schedule(show=OPT["show"] == j)
    out = prof_hooks(out)
    if loop_end:
        out.append(salu(f"s_cbranch_scc1 {loop_end}"))
    return out


def softmax0_ops(b, t, e_pre, e_c0, pub):
    seq = [valu(f"v_max3_f32 v{TMP}, v{SPRE}, v{SPRE + 1}, v{SPRE + 2}"), valu(f"v_max_f32 v{TMP}, v{TMP}, v{SPRE + 3}")] + xlane("v_max_f32", TMP, TMP + 1)
    last = chain_ops(b, seq, e_pre + 5, -500)
    cm = [b.op(valu(f"v_cndmask_b32 v{NEGM + 4 * t + r}, -v{TMP}, v{NEGM + 4 * t + r}, {sKEEP}"), "valu", 0, -480 + 10 * r, [last]) for r in range(4)]
    s0 = SS + 4 * t
    ex = []
    for r in range(4):
        ad = b.op(valu(f"v_add_f32 v{s0 + r}, v{s0 + r}, v{NEGM + 4 * t}"), "valu", e_c0 + 5, -478 + r, [cm[0]])
        ex.append(b.op(valu(f"v_exp_f32 v{s0 + r}, v{s0 + r}"), "exp", 0, -470 + r, [ad]))
    for h in range(2):
        c = b.op(valu(f"v_cvt_pk_bf16_f32 v{Pown(0, t) + h}, v{s0 + 2 * h}, v{s0 + 2 * h + 1}"), "valu", 0, -465 + h, ex[2 * h:2 * h + 2])
        b.op(pwrite(0, t, h), "ds", 0, -460 + h, [c], hard=pub - 3, m0="p", setter=msetter())
    return ex


def start_block(a, rest):
    b = Block(f"start role {a}")
    save = OPT["walign"]
    OPT["walign"] = 0
    qr, kr = stage_read(3), [kread(1, s) for s in range(8)]
    b.pre = qr + kr
    for _ in range(min(OPT["prefeed"], len(rest))):
        b.pre += dma_piece(*rest.pop(0))
    SP = R("v", SPRE, 4)
    for s in range(8):
        e_pre = b.mfma(mfma(SP, R("a", ASP + 4 * s, 4), Qf(3, s), "0" if s == 0 else SP))
    for s in range(8):
        e_c0 = b.mfma(mfma(S(3), R("a", AVF + 4 * s, 4), Qf(3, s), "0" if s == 0 else S(3)))
    ends = add_qk(b, a, 1)
    bar = OPT["bar0"]
    done, pfirst = add_pv(b, a, [0], 0, [[AVF + 4 * d] for d in range(4)], {0: bar}, zero=True)
    G = len(b.mf)
    ex = softmax0_ops(b, 3, e_pre, e_c0, bar)
    for r in range(4):
        b.op(valu(f"v_add_f32 v{vL[3]}, v{SS + 12 + r}, v{vL[3]}"), "valu", 0, ends[3] - 20 + r, [ex[r]], hard=ends[3] - 8)
    for t, ins in preads(0, a):
        b.op(ins, "ds", bar, pfirst[(0, t)] - 10, hard=pfirst[(0, t)] - 3)
    for s in range(8):
        b.op(kread(2, s), "ds", max(bar, ends[-1] - 7 + s), G - 14 + s, hard=G - 3)
    pieces = rest + [("V", 2, i) for i in range(4)] + [("K", 4, i) for i in range(4)]
    if OPT["klead"] == 3:
        pieces += [("K", 5, i) for i in range(4)]
    add_dma(b, a, pieces, 1, (G - 8) / len(pieces), G, lo={("K", 5): bar + 1})
    add_softmax(b, a, 1, ends, G - 1, deferred(a))
    b.barrier(bar, [("V", 0), ("K", 2)])
    b.barrier(G - 1, [("V", 1), ("K", 3)])
    out, _ = b.schedule(show=OPT["show"] == 0)
    OPT["walign"] = save
    return prof_hooks(out)


def unit_instrs(a, t, h, n, packed):
    va, wr = [], []
    for d in range(4):
        dt = 4 * h + d
        x = OO + 32 * t + 4 * dt if t < 4 else SS + 4 * d
        seq = []
        if t == 4:
            seq += [valu(f"v_accvgpr_read_b32 v{x + i}, a{AX + 4 * dt + i}") for i in range(4)]
        if packed:
            seq += [valu(f"v_pk_mul_f32 {R('v', x + 2 * i, 2)}, {R('v', x + 2 * i, 2)}, {R('v', RL + 2 * t, 2)} op_sel_hi:[1,0]") for i in range(2)]
        else:
            seq += [valu(f"v_mul_f32 v{x + i}, v{x + i}, v{RL + 2 * t}") for i in range(4)]
        seq += [valu(f"v_cvt_pk_bf16_f32 v{x + i}, v{x + 2 * i}, v{x + 2 * i + 1}") for i in range(2)]
        va.append(seq)
        wr.append(ds_write("ds_write_b64", vEw, R("v", x, 2), f"offset:{32 * d}", (("K", 2 * a + d % 2), 99)))
    rd, st = [], []
    for i in range(2):
        q = R("a", ASP + 16 + 8 * (n % 2) + 4 * i, 4)
        rd.append(ds_read("ds_read_b128", q, vEr, f"offset:{8 * 144 * i}"))
        st.append(vstore("buffer_store_dwordx4", q, vO, sO, (sT, sT8)[i][t], 128 * h, OPT["pol_o"]))
    return va, wr, rd, st


def final_block(a):
    NQ, NP = 5 - a, 4 + a
    b = Block(f"final role {a}")
    b.lazy = OPT["lazy"]
    save = OPT["walign"]
    OPT["walign"] = 0
    barv, barl = OPT["barv"], OPT["barl"]
    ends = add_qk(b, a, 31)
    lu = {AKF + 4 * s: ends[-1] - 7 + s for s in range(8)}
    F = lambda i: AVF + 4 * i
    KF = lambda i: AKF + 4 * i
    lo = {28: 0, 29: 0, 30: 0, 31: barv}
    _, pf = add_pv(b, a, [30], 0, [[F(d)] for d in range(4)], lo, lastuse=lu)
    for t, ins in preads(30, a):
        b.op(ins, "ds", 0, pf[(30, t)] - 10, hard=pf[(30, t)] - 3)
    add_pv(b, a, [28], 1, [[F(4 + d)] for d in range(4)], lo, lastuse=lu)
    done0, pf = add_pv(b, a, [31], 0, [[KF(d)] for d in range(4)], lo, tmajor=True, lastuse=lu)
    for t, ins in preads(31, a):
        b.op(ins, "ds", barl, pf[(31, t)] - 12, hard=pf[(31, t)] - 3)
    done1, _ = add_pv(b, a, [29, 30, 31], 1, [[KF(4), KF(5), KF(6)], [F(0), F(1), F(2)], [F(3), F(4), F(5)], [F(6), F(7), KF(7)]], lo, lastuse=lu)
    G = len(b.mf)
    add_deferred(b, a, ends)
    adds = add_softmax(b, a, 31, ends, barl, [], adds_by=barl - 7)
    L = (("L", 0), 0)
    early = (0, 1, 2)
    fin = dict(adds)
    for t in early:
        fin[t] = chain_ops(b, xlane("v_add_f32", vL[t], TMP + 1 + t), 0, ends[t] + 24, [adds[t]], hard=barl - 5)
    for t in range(NQ):
        b.op(ds_write("ds_write_addtid_b32", None, f"v{vL[t]}", f"offset:{2 * PXA + t * 256}", L), "ds", 0, barl - 8, [fin[t]], hard=barl - 3, m0="p", setter=msetter())
    w1 = b.op(valu(f"v_max3_u32 v{TMP}, v{vL[0]}, v{vL[1]}, v{vL[2]}"), "valu", 0, barl - 12, [fin[0], fin[1], fin[2]], hard=barl - 5)
    w2 = b.op(valu(f"v_max3_u32 v{TMP}, v{TMP}, v{vL[3]}, v{vL[NQ - 1]}"), "valu", 0, barl - 11, [w1, fin[3], fin[NQ - 1]], hard=barl - 4)
    b.op(ds_write("ds_write_addtid_b32", None, f"v{TMP}", f"offset:{2 * PXA + 5 * 256}", L), "ds", 0, barl - 9, [w2], hard=barl - 3, m0="p", setter=msetter())
    b.barrier(barv, [("V", 31)])
    b.barrier(barl, None)
    base = 80
    X = max(done0.values())
    lr = {}
    for t in (0, 2):
        lr[t] = lr[t + 1] = b.op(ds_read("ds_read2st64_b32", R("v", LP + t, 2), vPr, f"offset0:{base + a * 20 + t} offset1:{base + a * 20 + t + 1}", L), "ds", barl, barl + 1 + t)
    f1 = b.op(ds_read("ds_read2st64_b32", R("v", FLG, 2), vPr, f"offset0:{base + 5} offset1:{base + 25}", L), "ds", barl, barl + 12)
    f2 = b.op(ds_read("ds_read2st64_b32", R("v", FLG + 2, 2), vPr2, f"offset0:{base + 5} offset1:{base + 25}", L), "ds", barl, barl + 13)
    if a == 1:
        x1 = b.op(ds_read("ds_read_b32", f"v{LP + 4}", vPr, f"offset:{(base + 4) * 256}", L), "ds", barl, barl + 9)
        lr[4] = b.op(ds_read("ds_read_b32", f"v{vL[4]}", vPr2, f"offset:{(base + 4) * 256}", L), "ds", barl, barl + 10, [x1])
    ck = chain_ops(b, [valu(f"v_max3_u32 v{FLG}, v{FLG}, v{FLG + 1}, v{FLG + 2}"), valu(f"v_max_u32 v{FLG}, v{FLG}, v{FLG + 3}"), valu(f"v_cmp_lt_u32 vcc, {sTHR}, v{FLG}")],
                   0, barl + 22, [(f1, 6), (f2, 6)], hard=X - 1)
    if not OPT["abl"]:
        b.scalar(salu(f"s_cbranch_vccnz L_fallback{a}"), (lambda: ck.gap + 1), X)
    rl = {}
    for t in range(NP):
        seq = [valu(f"v_add_f32 v{vL[t]}, v{vL[t]}, v{LP + t}")] + ([] if t in early else xlane("v_add_f32", vL[t], TMP + 1 + t)) + [valu(f"v_rcp_f32 v{RL + 2 * t}, v{vL[t]}")]
        rl[t] = chain_ops(b, seq, 0, barl + 4 + 2 * t, [(lr[t], 6)], hard=X)
    units = [(t, 0) for t in range(NP)] + [(t, 1) for t in range(NP)]
    nfast = min(OPT["nfast"], NP)
    nin = min(OPT["nin"], NP - nfast)

    def straight(lst, pend):
        o = []
        for n, (t, h) in lst:
            va, wr, rd, st = unit_instrs(a, t, h, n, True)
            for k in range(len(va[0])):
                o += [va[d][k] for d in range(4)]
            o += pend
            o += wr + rd
            pend = st
        return o, pend
    en = list(enumerate(units))
    b.inserts[X], pend = straight(en[:nfast], [])
    prev_rd, prev_st = [], {}
    if nfast:
        prev_st[(nfast - 1) % 2] = [b.op(x, "st", X + 6 + i, X + i, hard=G - 1) for i, x in enumerate(pend)]
    for n, (t, h) in en[nfast:nfast + nin]:
        va, wr, rd, st = unit_instrs(a, t, h, n, False)
        p0 = X + 4 + 22 * (n - nfast)
        wops = []
        for d in range(4):
            nv = len(va[d])
            pr = [b.op(x, "valu", max(X + 1, done0[(t, d)] + 5), p0 + 4 * d, prev_rd) for x in va[d][:nv - 6]]
            mu = [b.op(x, "valu", max(X + 1, done0[(t, d)] + 5), p0 + 4 * d + i // 2, [rl[t]] + pr[i:i + 1]) for i, x in enumerate(va[d][nv - 6:nv - 2])]
            c0 = b.op(va[d][nv - 2], "valu", 0, p0 + 4 * d + 2, mu[:2])
            c1 = b.op(va[d][nv - 1], "valu", 0, p0 + 4 * d + 2, mu[2:] + [(c0, 0)])
            wops.append(b.op(wr[d], "solo", 0, p0 + 4 * d + 3, [c0, c1] + prev_rd))
        prev_rd = [b.op(rd[i], "ds", 0, p0 + 17 + i, wops + prev_st.get(n % 2, [])) for i in range(2)]
        prev_st[n % 2] = [b.op(st[i], "st", 0, p0 + 19 + i, [(prev_rd[i], 6)]) for i in range(2)]
    out, left = b.schedule(show=OPT["show"] == 31, leftover_ok=True)
    OPT["walign"] = save
    out += stamp(5)
    pend = []
    for o in left:
        if o.ins.kind == "vst":
            pend.append(o.ins)
        else:
            if any(o.ins.wr & x.rd for x in pend):
                out += pend
                pend = []
            out.append(o.ins)
    o2, pend = straight(en[nfast + nin:], pend)
    return out + o2 + pend


def qload(k, i):
    return [vload("buffer_load_dwordx4", R("v", RAW(k, i), 4), vQl, sQ, sT[k], 512 * i, OPT["pol_q"])]


def entry():
    o = []
    A = lambda t: o.append(salu(t))
    V = lambda t: o.append(valu(t))
    t0, t1, t2, t3, t4 = (f"v{TMP + i}" for i in range(5))
    A("s_cmp_ge_u32 s2, 256")
    A("s_cbranch_scc1 L_end")
    o.append(raw("s_load_dwordx8 s[4:11], s[0:1], 0"))
    if OPT["stamps"]:
        o.append(raw("s_load_dwordx2 s[56:57], s[0:1], 40"))
        o.append(raw("s_memrealtime s[58:59]"))
    o += stamp(0)
    o.append(raw("s_getpc_b64 s[44:45]"))
    o.append(label("L_pc"))
    A("s_and_b32 s45, s45, 0xffff")
    o.append(raw("s_mov_b32 s46, L_end-L_pc"))
    A("s_mov_b32 s47, 0x20000")
    A("s_lshr_b32 s54, s2, 3")
    A("s_lshl_b32 s55, s54, 7")
    V(f"v_lshl_add_u32 {t0}, v0, 12, s55")
    o.append(vload("buffer_load_dword", "v126", t0, sC, "0"))
    V(f"v_lshrrev_b32 {t1}, 6, v0")
    A(f"s_mov_b64 {sKEEP}, 0")
    V(f"v_readfirstlane_b32 {sW}, {t1}")
    A(f"s_mov_b32 {sTHR}, {(127 + OPT['thr']) << 23:#x}")
    if OPT["prof"]:
        A("s_mov_b32 s3, 0")
    A("s_and_b32 s53, s2, 7")
    A("s_lshl_b32 s53, s53, 3")
    A("s_lshr_b32 s55, s2, 5")
    A("s_add_u32 s53, s53, s55")
    A("s_and_b32 s54, s54, 3")
    A("s_lshl_b32 s55, s53, 2")
    A("s_add_u32 s55, s55, s54")
    A("s_mul_i32 s37, s55, 73728")
    A("s_lshl_b32 s53, s53, 19")
    A(f"s_lshr_b32 {sA}, {sW}, 1")
    A(f"s_and_b32 {sB}, {sW}, 1")
    A(f"s_add_u32 s54, {sW}, 1")
    A("s_and_b32 s55, s54, 1")
    A("s_lshl_b32 s55, s55, 3")
    A("s_lshr_b32 s54, s54, 1")
    A("s_and_b32 s54, s54, 1")
    A("s_add_u32 s54, s54, s55")
    A("s_mul_i32 s54, s54, 1040")
    A(f"s_add_u32 {sKm}, s54, {KRING}")
    A("s_mov_b32 s48, 8192")
    A("s_mov_b32 s49, 16384")
    A("s_mov_b32 s50, 24576")
    A(f"s_mov_b32 {sX}, 65536")
    for srd, n in ((16, 524288), (12, 73728), (20, 524288), (24, 73728)):
        A(f"s_mov_b32 s{srd + 2}, {n}")
        A(f"s_mov_b32 s{srd + 3}, 0x20000")

    def src_offsets():
        V(f"v_and_b32 {t0}, 31, v0")
        V(f"v_lshlrev_b32 {t0}, 4, {t0}")
        V(f"v_bfe_u32 {t2}, v0, 5, 1")
        A(f"s_lshl_b32 s54, {sW}, 11")
        V(f"v_add_u32 {t1}, s54, {t0}")
        V(f"v_lshl_add_u32 {vKd}, {t2}, 13, {t1}")
        V(f"v_lshl_add_u32 {vQl}, {t2}, 15, {t1}")
        V(f"v_lshl_add_u32 {vQlx}, {t2}, 9, {t1}")
        A(f"s_mov_b32 {sKo}, 0")
        A(f"s_mov_b32 {sVo}, 0")
    src_offsets()
    o.append(raw("s_waitcnt lgkmcnt(0)"))
    o += stamp(8)
    for srd, ptr, off in ((16, 6, "s53"), (12, 4, "s37"), (20, 8, "s53"), (24, 10, "s37")):
        A(f"s_add_u32 s{srd}, s{ptr}, {off}")
        A(f"s_addc_u32 s{srd + 1}, s{ptr + 1}, 0")
        A(f"s_and_b32 s{srd + 1}, s{srd + 1}, 0xffff")
    o.append(label("L_restart"))
    for i in range(4):
        o += dma_piece("K", 0, i)
    for i in range(2):
        o.append(vload("buffer_load_dwordx4", R("v", RAWX + 4 * i, 4), vQlx, sQ, sX, 1024 * i, OPT["pol_q"]))
    o.append(barrier())
    for i in range(4):
        o += qload(0, i)
    o += stamp(9)
    A(f"s_lshl_b32 s54, {sB}, 11")
    A(f"s_lshl_b32 s55, {sA}, 13")
    A("s_add_u32 s54, s54, s55")
    V(f"v_lshl_add_u32 {vVd}, {t2}, 12, {t0}")
    V(f"v_add_u32 {vVd}, s54, {vVd}")
    A(f"s_add_u32 s54, {sKm}, {3 * SLOT}")
    V(f"v_lshl_add_u32 {vQw}, {t2}, 9, {t0}")
    V(f"v_add_u32 {vQw}, s54, {vQw}")
    V(f"v_add_u32 {vQw2}, {4 * SLOT}, {vQw}")
    A(f"s_sub_u32 s54, {sKm}, {KRING - PXA}")
    V(f"v_mul_u32_u24 {vQwx}, 2080, {t2}")
    V(f"v_add3_u32 {vQwx}, {vQwx}, {t0}, s54")
    A(f"s_mul_i32 s54, {sB}, {4 * 2080}")
    A(f"s_lshl_b32 s55, {sA}, 10")
    A("s_add_u32 s54, s54, s55")
    A(f"s_add_u32 {sVm}, s54, {VRING}")
    A(f"s_mul_i32 {sPm}, {sW}, 2560")
    V(f"v_and_b32 {t0}, 15, v0")
    V(f"v_bfe_u32 {t1}, v0, 4, 1")
    V(f"v_lshlrev_b32 {t3}, 5, {t1}")
    V(f"v_lshl_add_u32 {t3}, {t2}, 4, {t3}")
    V(f"v_add_u32 {t4}, 4, {t0}")
    V(f"v_bfe_u32 {vKr0}, {t4}, 3, 1")
    V(f"v_and_b32 {t4}, 7, {t4}")
    V(f"v_lshl_add_u32 {vKr0}, {t4}, 1, {vKr0}")
    V(f"v_mul_u32_u24 {vKr0}, 1040, {vKr0}")
    V(f"v_add_u32 {vKr0}, {vKr0}, {t3}")
    V(f"v_add_u32 {vQrx}, {PXA}, {vKr0}")
    V(f"v_add_u32 {vKr0}, {KRING}, {vKr0}")
    A(f"s_lshl_b32 s54, {sB}, 9")
    V(f"v_add_u32 {vKr}, s54, {vKr0}")
    A(f"s_lshl_b32 s54, {sA}, 9")
    A(f"s_add_u32 s54, s54, {3 * SLOT}")
    V(f"v_add_u32 {vQr}, s54, {vKr0}")
    V(f"v_add_u32 {vQr2}, {4 * SLOT}, {vQr}")
    V(f"v_bfe_u32 {t4}, v0, 2, 3")
    V(f"v_mul_u32_u24 {vV0}, 2080, {t4}")
    V(f"v_lshl_add_u32 {vV0}, {t2}, 9, {vV0}")
    V(f"v_and_b32 {t4}, 3, v0")
    V(f"v_lshl_add_u32 {vV0}, {t4}, 3, {vV0}")
    A(f"s_mul_i32 s54, {sB}, {256 + 1024}")
    A(f"s_add_u32 s54, s54, {VRING}")
    A(f"s_mul_i32 s55, {sB}, {1024 - 256}")
    A(f"s_sub_u32 s55, {VRING + 1024}, s55")
    V(f"v_add_u32 {vV1}, s55, {vV0}")
    V(f"v_add_u32 {vV0}, s54, {vV0}")
    V(f"v_and_b32 {t4}, 63, v0")
    V(f"v_lshlrev_b32 {t4}, 2, {t4}")
    A(f"s_mul_i32 s54, {sB}, 2560")
    A("s_sub_u32 s55, 2560, s54")
    V(f"v_add_u32 {vPr2}, s54, {t4}")
    V(f"v_add_u32 {vPr}, s55, {t4}")
    A(f"s_mul_i32 s55, {sW}, {SLOT}")
    A(f"s_add_u32 s55, s55, {KRING}")
    V(f"v_bfe_u32 {t4}, v0, 4, 2")
    V(f"v_mul_u32_u24 {vEw}, 144, {t0}")
    V(f"v_lshl_add_u32 {vEw}, {t4}, 3, {vEw}")
    V(f"v_add_u32 {vEw}, s55, {vEw}")
    V(f"v_bfe_u32 {t4}, v0, 3, 3")
    V(f"v_and_b32 {t1}, 7, v0")
    V(f"v_lshlrev_b32 {t1}, 4, {t1}")
    V(f"v_mul_u32_u24 {vEr}, 144, {t4}")
    V(f"v_add3_u32 {vEr}, {vEr}, {t1}, s55")
    A(f"s_lshl_b32 s54, {sA}, 15")
    A(f"s_lshl_b32 s55, {sB}, 8")
    A("s_add_u32 s55, s55, s54")
    A("s_sub_u32 s51, 65536, s54")
    V(f"v_lshl_add_u32 {vO}, {t4}, 9, {t1}")
    V(f"v_add_u32 {vO}, s55, {vO}")
    for t in range(5):
        A(f"s_add_u32 {sT8[t]}, {sT[t]}, 4096" if t else f"s_mov_b32 {sT8[0]}, 4096")
    c = struct.unpack("<I", struct.pack("<f", math.log2(math.e) / 16.0))[0]
    A(f"s_mov_b32 s40, {c:#x}")
    A(f"s_mov_b32 s41, {c:#x}")
    A(f"s_mov_b32 {sMASK}, 0xffff0000")
    for t in range(5):
        V(f"v_mov_b32 v{vL[t]}, 0")
    for t in range(4):
        for i in range(8):
            V(f"v_mov_b64 {R('v', OO + 32 * t + 16 + 2 * i, 2)}, 0")
    for i in range(16):
        V(f"v_accvgpr_write_b32 a{AX + 16 + i}, 0")
    A(f"s_cmp_eq_u32 {sA}, 1")
    A("s_cbranch_scc1 L_role1")
    o2 = []
    o, keep = o2, o
    src_offsets()
    return keep, o2


def scale4(src):
    o = []
    T = SCT
    for i in range(4):
        o.append(valu(f"v_lshlrev_b32 v{T + 2 * i}, 16, v{src + i}"))
        o.append(valu(f"v_and_b32 v{T + 2 * i + 1}, {sMASK}, v{src + i}"))
    for i in range(4):
        o.append(valu(f"v_pk_mul_f32 {R('v', T + 2 * i, 2)}, {R('v', T + 2 * i, 2)}, {sSC}"))
    for i in range(4):
        o.append(valu(f"v_cvt_pk_bf16_f32 v{src + i}, v{T + 2 * i}, v{T + 2 * i + 1}"))
    return o


QST = {0: (("V", 1), vQw, vQr, 2 * SLOT), 1: (("K", 3), vQw, vQr, 0), 2: (("V", 2), vQw, vQr, 3 * SLOT), 3: (("V", 3), vQw2, vQr2, 0)}


def stage_in(k, feed):
    o = []
    for i in range(2 if k == 4 else 4):
        src = RAWX + 4 * i if k == 4 else RAW(k, i)
        sc = scale4(src)
        o.append(sc[0])
        o += feed(("Q", k, i))
        o += sc[1:]
        if k == 4:
            o.append(ds_write("ds_write_b128", vQwx, R("v", src, 4), f"offset:{4160 * i}", (("P", 1), -1)))
        else:
            reg, wb, rb, off = QST[k]
            o.append(ds_write("ds_write_b128", wb, R("v", src, 4), f"offset:{off + 2080 * i}", (reg, -1)))
    return o


def stage_read(k):
    if k == 4:
        return [ds_read("ds_read_b128", Qf(4, s), vQrx, f"offset:{64 * s}", (("P", 1), -1)) for s in range(8)]
    reg, wb, rb, off = QST[k]
    return [ds_read("ds_read_b128", Qf(k, s), rb, f"offset:{off + 64 * s}", (reg, -1)) for s in range(8)]


def stage_compute(t):
    o = []
    s0 = SS + 4 * t
    SP = R("v", SPRE, 4)
    for s in range(8):
        o.append(mfma(SP, R("a", ASP + 4 * s, 4), Qf(t, s), "0" if s == 0 else SP))
    for s in range(8):
        o.append(mfma(S(t), R("a", AVF + 4 * s, 4), Qf(t, s), "0" if s == 0 else S(t)))
    o.append(msetter())
    o.append(valu(f"v_max3_f32 v{TMP}, v{SPRE}, v{SPRE + 1}, v{SPRE + 2}"))
    o.append(valu(f"v_max_f32 v{TMP}, v{TMP}, v{SPRE + 3}"))
    o += xlane("v_max_f32", TMP, TMP + 1)
    for r in range(4):
        o.append(valu(f"v_cndmask_b32 v{NEGM + 4 * t + r}, -v{TMP}, v{NEGM + 4 * t + r}, {sKEEP}"))
    for r in range(4):
        o.append(valu(f"v_add_f32 v{s0 + r}, v{s0 + r}, v{NEGM + 4 * t}"))
    for r in range(4):
        o.append(valu(f"v_exp_f32 v{s0 + r}, v{s0 + r}"))
    for h in range(2):
        o.append(valu(f"v_cvt_pk_bf16_f32 v{Pown(0, t) + h}, v{s0 + 2 * h}, v{s0 + 2 * h + 1}"))
    for h in range(2):
        o.append(pwrite(0, t, h))
    for r in range(4):
        o.append(valu(f"v_add_f32 v{vL[t]}, v{s0 + r}, v{vL[t]}"))
    return o


def prologue(a):
    o = [label(f"L_role{a}")]
    seq = {0: "Q1 Q2 Q3 K1 V0 K2 V1 K3", 1: "Q1 K1 Q2 V0 Q3 K2 V1 K3", 2: "Q1 Q2 K1 Q3 V0 K2 V1 K3", 3: "K1 Q1 V0 Q2 K2 Q3 V1 K3", 4: "Q1 Q2 K1 V0 Q3 K2 V1 K3"}[OPT["order"]]
    full = [("K", 0, i) for i in range(4)] + [("Q", 4, i) for i in range(2)] + [("Q", 0, i) for i in range(4)]
    order = [(x[0], int(x[1]), i) for x in seq.split() for i in range(4)]
    full += order

    def feed(landed):
        r = []
        stage = -1 if landed[1] == 4 else landed[1]
        while order and full.index(order[0]) <= full.index(landed) + OPT["win"]:
            x = order[0]
            if (x[:2] == ("V", 1) and stage < 2) or (x[:2] == ("K", 3) and stage < 3) or landed == ("Q", 3, 3):
                break
            order.pop(0)
            r += qload(x[1], x[2]) if x[0] == "Q" else dma_piece(*x)
        return r
    o += stage_in(4, feed)
    o += stamp(10)
    o.append(wait(vm=[("K", 0)], lg="all"))
    o.append(barrier())
    o += stamp(1)
    for s in range(8):
        o.append(kread(0, s, vKr0, R("a", ASP + 4 * s, 4)))
    if a == 0:
        o += stage_read(4)
    for s in range(8):
        o.append(kread(0, s, vKr, R("a", AVF + 4 * s, 4)))
    if a == 0:
        o += stage_compute(4)
    for k in range(4):
        o += stage_in(k, feed)
        o += stamp(11 + k) if k < 3 or not OPT['aux'] else []
        o.append(wait(vm=[("K", 1)] if k == 3 else None, lg="all"))
        o.append(barrier())
        if k < 3:
            o += stage_read(k)
            o += stage_compute(k)
    o += stamp(2)
    if OPT["aux"]:
        o.append(salu("s_lshr_b32 s54, s2, 3"))
        o.append(salu("s_lshl_b32 s55, s54, 7"))
        o.append(valu(f"v_lshl_add_u32 {vAuxC}, v0, 12, s55"))
        piece = (32 - OPT["auxt0"]) * 16384 // OPT["auxn"]
        before = len([j for j in range(1, OPT["auxend"] + 1) if (j - OPT["auxend"]) % OPT["auxper"] == 0]) - OPT["auxn"]
        o.append(salu("s_and_b32 s54, s54, 3"))
        o.append(salu(f"s_mul_i32 s54, s54, {piece // 4}"))
        o.append(salu(f"s_add_u32 s54, s54, {(a * piece // 8 - before * piece) & 0xffffffff:#x}"))
        o.append(valu(f"v_and_b32 {vAuxT}, 63, v0"))
        o.append(valu(f"v_cmp_le_u32 vcc, {piece // 1024}, {vAuxT}"))
        o.append(valu(f"v_lshl_add_u32 {vAuxT}, {vAuxT}, 7, s54"))
        o.append(valu(f"v_cndmask_b32 {vAuxT}, {vAuxT}, 2.0, vcc"))
        o.append(salu(f"s_cmp_eq_u32 {sB}, 0"))
        o.append(salu("s_cselect_b32 s88, s16, s20"))
        o.append(salu("s_cselect_b32 s89, s17, s21"))
        o.append(salu(f"s_add_u32 s88, s88, {OPT['auxt0'] * 16384}"))
        o.append(salu("s_addc_u32 s89, s89, 0"))
        o.append(salu(f"s_mov_b32 s90, {(32 - OPT['auxt0']) * 16384}"))
        o.append(salu("s_mov_b32 s91, 0x20000"))
    return o, order


def finish():
    o = stamp(6)
    if OPT["stamps"]:
        o.append(raw("s_waitcnt vmcnt(0)"))
        o += stamp(7)
        o.append(raw("s_memrealtime s[92:93]"))
        o.append(raw("s_waitcnt lgkmcnt(0)"))
        o.append(raw("s_mov_b32 s96, s56\ns_and_b32 s97, s57, 0xffff\ns_mov_b32 s98, 0x100000\ns_mov_b32 s99, 0x20000"))
        o.append(raw(f"s_lshl_b32 s94, s2, 2\ns_add_u32 s94, s94, {sW}\ns_lshl_b32 s94, s94, 7"))
        for i in range(16):
            o.append(raw(f"v_mov_b32 v{64 + i}, s{60 + 2 * i}"))
        o.append(raw("v_mov_b32 v80, s58\nv_mov_b32 v81, s92\nv_mov_b32 v82, 0\nv_mov_b32 v83, 0\nv_mov_b32 v84, 0"))
        if OPT["prof"]:
            o.append(raw("v_lshlrev_b32 v85, 2, v0\ns_lshl_b32 s95, s2, 10\ns_add_u32 s95, s95, 0x40000\nbuffer_store_dword v127, v85, s[96:99], s95 offen"))
        o.append(raw("s_mov_b64 exec, 1"))
        for i in range(5):
            o.append(raw(f"buffer_store_dwordx4 v[{64 + 4 * i}:{67 + 4 * i}], v84, s[96:99], s94 offen offset:{16 * i}"))
    o.append(raw("s_endpgm"))
    return o


def fallback(a, redo):
    NQ = 5 - a
    M, AD = PP, PP + 8
    o = [label(f"L_fallback{a}")]
    o.append(raw("s_waitcnt vmcnt(0) lgkmcnt(0)"))
    o.append(nop(7))
    o.append(salu("s_mov_b32 s18, 524288"))
    o.append(valu(f"v_and_b32 v{AD}, 15, v0"))
    o.append(valu(f"v_lshlrev_b32 v{AD}, 9, v{AD}"))
    o.append(valu(f"v_bfe_u32 v{AD + 1}, v0, 4, 1"))
    o.append(valu(f"v_lshl_add_u32 v{AD}, v{AD + 1}, 5, v{AD}"))
    o.append(valu(f"v_bfe_u32 v{AD + 1}, v0, 5, 1"))
    o.append(valu(f"v_lshl_add_u32 v{AD}, v{AD + 1}, 4, v{AD}"))
    for t in range(NQ):
        o.append(valu(f"v_mov_b32 v{M + t}, 0xff800000"))
    o.append(salu("s_mov_b32 s54, 0"))
    o.append(label(f"L_fbloop{a}"))
    for s in range(8):
        o.append(vload("buffer_load_dwordx4", Kf(s), f"v{AD}", sK, "s54", 64 * s))
    for t in range(NQ):
        for s in range(8):
            o.append(mfma(S(t), Kf(s), Qf(t, s), "0" if s == 0 else S(t)))
    for t in range(NQ):
        s0 = SS + 4 * t
        o.append(valu(f"v_max3_f32 v{M + t}, v{s0}, v{s0 + 1}, v{M + t}"))
        o.append(valu(f"v_max3_f32 v{M + t}, v{s0 + 2}, v{s0 + 3}, v{M + t}"))
    o.append(salu("s_add_u32 s54, s54, 8192"))
    o.append(salu("s_cmp_lt_u32 s54, 524288"))
    o.append(salu(f"s_cbranch_scc1 L_fbloop{a}"))
    for t in range(NQ):
        o += xlane("v_max_f32", M + t, AD + 1)
        for r in range(4):
            o.append(valu(f"v_sub_f32 v{NEGM + 4 * t + r}, 0, v{M + t}"))
    o.append(salu(f"s_mov_b64 {sKEEP}, -1"))
    o.append(salu(f"s_mov_b32 {sTHR}, -1"))
    o += redo
    o.append(barrier())
    o.append(salu("s_branch L_restart"))
    return o


def ablate(lines, lo, hi):
    ab = OPT["abl"]
    for n in range(lo, hi):
        l = lines[n]
        if (ab & 1 and l.endswith(" lds")) or (ab & 2 and l == "s_barrier") or (ab & 4 and l.startswith("ds_write")) or (ab & 8 and l.startswith("ds_read2")) \
           or (ab & 16 and l.startswith("ds_read_b64_tr")) or (ab & 32 and l.startswith("ds_read_b128")) or (ab & 64 and l.startswith("s_waitcnt")) \
           or (ab & 4096 and l.startswith("v_add_f32")):
            lines[n] = "; ablated"
        if ab & 256 and l.startswith("s_waitcnt vmcnt"):
            lines[n] = "s_waitcnt lgkmcnt(0)"


def build():
    j0, j1 = 1, 29
    ent, redo = entry()
    text, evs = [], []
    for a in (0, 1):
        pro, rest = prologue(a)
        tr = list(ent) + [raw(";;ROLE")] + pro + [salu(f"s_mov_b32 {sCNT}, {(j1 - j0) // 4}"), raw(";;IV 0")] + start_block(a, rest) + stamp(3)
        for j in range(1, 30):
            tr.append(raw(f";;IV {j}"))
            tr += interval(j, a, f"L_loop{a}" if (j < j1 and (j - j0) % 4 == 3) else None)
        tr.append(raw(";;IV 30"))
        if OPT["prof"]:
            tr.append(raw("s_nop 4\n    v_mov_b32 v5, v21"))
        tr += stamp(4) + final_block(a)
        if OPT["prof"]:
            tr.append(raw("v_mov_b32 v127, v5"))
        tr += finish()
        out, ev, ins = resolve(tr)
        evs += ev
        lines = [x.text for x in out]
        k = lines.index(";;ROLE")
        if a == 0:
            text += lines[:k]
        idx = {j: lines.index(f";;IV {j}") for j in range(31)}
        for pos, w, c in ins:
            if idx[0] < pos and (OPT["show"] >= 0 or idx[1] < pos < idx[30]):
                print(f"; auto-inserted in role {a} @{pos - idx[0]}: {w} before {c}", file=sys.stderr)
        seg = lambda j: lines[idx[j] + 1: idx[j + 1]]
        for j in range(j0 + 4, j1):
            assert seg(j) == seg(j - 4), f"loop body not periodic at {j} role {a}: " + str([(x, y) for x, y in zip(seg(j), seg(j - 4)) if x != y][:3])
        if OPT["abl"]:
            ablate(lines, idx[1], idx[30])
        text += lines[k + 1: idx[j0]]
        text.append(f".p2align {OPT['lalign']}")
        text.append(f"L_loop{a}:")
        text += lines[idx[j0]: idx[j0 + 4]]
        text += lines[idx[j1]:]
        fb, _, _ = resolve(fallback(a, redo))
        text += [x.text for x in fb]
    assert check_lds(evs) == 0
    hdr = open("header.txt").read()
    body = "\n".join(("" if l.endswith(":") or l.startswith(".") else "    ") + l.replace(";;IV", "; interval") for l in text)
    return f"""{hdr}; @launch grid=(256,1,1) block=(256,1,1) lds={LDS_BYTES}
.amdgcn_target "amdgcn-amd-amdhsa--gfx950"
.text
.globl {KN}
.p2align 8
.type {KN},@function
{KN}:
{body}
L_end:
    s_endpgm
.section .rodata,"a"
.p2align 6
.amdhsa_kernel {KN}
  .amdhsa_next_free_vgpr 512
  .amdhsa_next_free_sgpr 102
  .amdhsa_accum_offset 256
  .amdhsa_group_segment_fixed_size 0
  .amdhsa_kernarg_size 48
  .amdhsa_user_sgpr_count 2
  .amdhsa_user_sgpr_kernarg_segment_ptr 1
  .amdhsa_system_sgpr_workgroup_id_x 1
.end_amdhsa_kernel
"""


if __name__ == "__main__":
    for kv in sys.argv[1:]:
        k, v = kv.split("=", 1)
        if k.startswith("pol"):
            OPT[k] = "".join(" " + x for x in v.split("+") if x and x != "d")
        else:
            OPT[k] = int(v)
    print(build())
```

```python
import sys
from asmlib import *


class Op:
    def __init__(self, ins, cls, lo=0, dl=0, deps=(), hard=None, m0=None, setter=None):
        self.ins, self.cls, self.lo, self.dl, self.hard, self.m0, self.setter = ins, cls, lo, dl, hard, m0, setter
        self.deps = [d if isinstance(d, tuple) else (d, 1) for d in deps]
        self.gap = None


class Block:
    def __init__(self, name, wq=0, wprio=False):
        self.name = name
        self.mf = []
        self.ops = []
        self.bars = {}
        self.scal = []
        self.pre = []
        self.inserts = {}
        self.wq = wq
        self.wprio = wprio
        self.over = 0
        self.missed = []
        self.lazy = 999
        self.carry = []
        self.tmpl = None

    def mfma(self, ins):
        self.mf.append(ins)
        return len(self.mf) - 1

    def op(self, *a, **k):
        o = Op(*a, **k)
        self.ops.append(o)
        return o

    def barrier(self, gap, vm, lg="all"):
        self.bars[gap] = wait(vm=vm, lg=lg)

    def scalar(self, ins, lo, hi, late=False):
        self.scal.append((ins, lo, hi, late))

    def schedule(self, show=False, leftover_ok=False):
        G = len(self.mf)
        gaps = [dict(s=[], v=[], typ=None, m0=None) for _ in range(G)]
        for g, w in self.bars.items():
            gaps[g - 1]["s"].append(w)
            gaps[g]["s"].append(barrier())
        m0 = [None]
        todo = list(self.ops)
        isds = lambda o: o.ins.kind in ("dsr", "dsw")

        def deps_ok(o, g):
            return o.lo <= g and all(d.gap is not None and d.gap + k <= g for d, k in o.deps)

        def place(o, g, forced=False):
            o.gap = g
            todo.remove(o)
            if o.m0 is not None:
                if o.m0 != m0[0]:
                    if forced and not (g > 0 and not gaps[g - 1]["s"] and gaps[g - 1]["typ"] != "dma" and gaps[g - 1]["m0"] is None and gaps[g]["m0"] is None):
                        gaps[g]["v"].append(o.setter)
                    else:
                        gaps[g - 1]["s"].append(o.setter)
                    m0[0] = o.m0
                gaps[g]["m0"] = o.m0
            gaps[g]["v"].append(o.ins)

        for g in range(G):
            def ready(o):
                if not deps_ok(o, g):
                    return False
                if (g + 1) in self.bars and ((isds(o) and self.bars[g + 1].lg == "all") or o.cls in ("dma", "st")):
                    return False
                if o.cls in ("dma", "st") and gaps[g]["s"]:
                    return False
                if o.m0 is not None and o.m0 != m0[0]:
                    if g == 0:
                        return False
                    pg = gaps[g - 1]
                    if pg["s"] or pg["typ"] == "dma" or pg["m0"] is not None:
                        return False
                return True
            cand = sorted([o for o in todo if ready(o)], key=lambda o: o.dl)
            if self.wprio:
                if any(o.m0 == "p" and o.lo <= g + 1 and o.lo > 0 for o in todo):
                    cand = [o for o in cand if o.cls != "dma"]
            elif any(o.cls == "dma" and o.lo <= g + 1 for o in todo):
                cand = [o for o in cand if o.m0 != "p"]
            if self.wq:
                lastw = max([o.gap for o in self.ops if o.ins.kind == "dsw" and o.gap is not None] + [-99])
                if g - lastw <= self.wq:
                    cand = [o for o in cand if o.ins.kind != "dsr"]
            pick = []
            if self.tmpl and self.tmpl[g] != "?":
                c = self.tmpl[g]
                allc = sorted([o for o in todo if ready(o)], key=lambda o: o.dl)
                va = [o for o in allc if o.cls == "valu"]
                sel = {"R": lambda o: o.ins.kind == "dsr", "W": lambda o: o.ins.kind == "dsw", "E": lambda o: o.cls == "exp", "D": lambda o: o.cls in ("dma", "st"), ".": lambda o: False}[c]
                pr = [o for o in allc if sel(o)]
                if pr:
                    pick = [pr[0]] + (va[:1] if c in "RW" else [])
                else:
                    pick = va[:2]
                    if c != ".":
                        self.missed.append((g, c))
                for o in pick:
                    place(o, g)
                if pick:
                    gaps[g]["typ"] = "dma" if pick[0].cls == "st" else pick[0].cls
            elif cand:
                first = cand[0]
                if first.cls in ("exp", "dma", "st", "solo"):
                    pick = [first]
                else:
                    ds = [o for o in cand if o.cls == "ds"]
                    va = [o for o in cand if o.cls == "valu"]
                    if ds and len(va) >= 2 and ds[0].dl > va[1].dl + self.lazy and ds[0].dl > g + self.lazy:
                        pick = va[:2]
                    elif ds:
                        pick = [ds[0]] + va[:1]
                    else:
                        ex = [o for o in cand if o.cls in ("exp", "solo")]
                        if len(va) < 2 and ex and ex[0].dl <= va[0].dl + 12:
                            pick = [ex[0]]
                        else:
                            pick = va[:2]
                for o in pick:
                    place(o, g)
                gaps[g]["typ"] = "dma" if pick[0].cls == "st" else pick[0].cls
            while True:
                f = [o for o in todo if o.hard is not None and o.hard <= g]
                f = [o for o in f if o.lo <= g and all(d.gap is not None for d, k in o.deps)]
                if not f:
                    break
                o = min(f, key=lambda o: o.dl)
                place(o, g, forced=True)
                self.over += 1
        left = sorted(todo, key=lambda o: o.dl)
        if left and not leftover_ok:
            raise RuntimeError(f"{self.name}: ops left {[o.ins.text for o in left]}")

        def free(g):
            return not gaps[g]["s"] and gaps[g]["typ"] != "dma"

        for ins, lo, hi, late in self.scal:
            lo = lo() if callable(lo) else lo
            hi = hi() if callable(hi) else hi
            rng = range(hi, lo - 1, -1) if late else range(lo, hi + 1)
            for g in rng:
                if free(g):
                    gaps[g]["s"].append(ins)
                    break
            else:
                g = hi if late else lo
                assert gaps[g]["typ"] != "dma" or True
                gaps[g]["s"].append(ins)
                self.over += 1
        pend = {}
        for r in self.carry:
            pend[r] = -999
        for n, x in enumerate(self.pre):
            if x.kind == "dsr":
                for r in x.wr:
                    pend[r] = n - len(self.pre) - 1
        for g in range(G):
            if any(x.kind == "wait" and x.lg == "all" for x in gaps[g]["s"]):
                pend.clear()
            need = set()
            for x in gaps[g]["v"]:
                need |= {r for r in (x.rd | x.wr) if r in pend}
            if g + 1 < G:
                nx = self.mf[g + 1]
                need |= {r for r in (nx.rd | nx.wr) if r in pend}
            if need:
                mx = max(pend[r] for r in need)
                for k in range(g, max(mx, -1), -1):
                    if free(k):
                        old = {r for r, pg in pend.items() if pg <= k - 9}
                        need |= old
                        mx = max(pend[r] for r in need)
                        gaps[k]["s"].append(wait(lg=need))
                        break
                for r in [r for r, pg in pend.items() if pg <= mx]:
                    del pend[r]
            for x in gaps[g]["v"]:
                if x.kind == "dsr":
                    for r in x.wr:
                        pend[r] = g
        out = list(self.pre)
        for g in range(G):
            out.append(self.mf[g])
            out += gaps[g]["s"]
            out += gaps[g]["v"]
            out += self.inserts.get(g, [])
        if show:
            print(f"--- {self.name} (overfull {self.over}, left {len(left)}, missed {self.missed})", file=sys.stderr)
            for g in range(G):
                m = self.mf[g].text.split(None, 1)[1]
                print(f"{g:3d} {m[:46]:46s}|", " ; ".join(x.text[:26] for x in gaps[g]["s"]), "|", " ; ".join(x.text[:44] for x in gaps[g]["v"]), f"+{len(self.inserts[g])} inserted" if g in self.inserts else "", file=sys.stderr)
        return out, left
```

```python
import sys, struct, math, re
from asmlib import *
from sched import Block

KN = "standalone__gqa_softmax__near_ridge_kernel"
OPT = dict(abl=0, pol_kv="", pol_q=" nt", pol_o=" sc0 sc1", stamps=0, prof=0, show=-1, thr=30,
           dma0=1, dmastep=8, dmastag=4, klead=2, walign=0, wq=1, feed0=4, feedl=1, prefeed=3,
           bar0=32, barv=34, barl=62, lalign=3, lazy=16, order=1, win=11, aux=1, early=3, sdma0=33, lastfeed=0, rwin=1, pf31=0, holes=0, holew=1, auxper=2, auxn=4, auxend=24, auxt0=28, nfast=3, nin=2)

PXA = 10240
KRING = 3 * PXA
SLOT = 16640
VRING = KRING + 4 * SLOT
LDS_BYTES = VRING + 4 * SLOT

sQ, sK, sV, sO, sC = "s[12:15]", "s[16:19]", "s[20:23]", "s[24:27]", "s[44:47]"
sW, sA, sB, sCNT, sKo, sVo, sKm, sVm, sPm, sMASK = "s28", "s29", "s30", "s31", "s32", "s33", "s34", "s35", "s36", "s39"
sSC, sKEEP = "s[40:41]", "s[42:43]"
sT = ["0", "s48", "s49", "s50", "s51"]
sT8 = ["s4", "s5", "s6", "s7", "s8"]
sX, sTHR = "s38", "s52"
vKr, vV0, vV1, vKd, vVd, vPr, vPr2 = "v1", "v2", "v3", "v4", "v5", "v6", "v7"
vL = [8, 9, 10, 11, 12]
vO, vEw, vEr = "v13", "v22", "v23"
PXT = 14
TMP = 16
vAuxC, vAuxT, vAuxD, vAuxD2, sP = "v18", "v19", "v20", "v17", "s[88:91]"
NEGM, SS, PP, OO = 24, 44, 64, 128
SCT = 80
vQl, vQlx, vQw, vQw2, vQwx, vQr, vQr2, vQrx, vKr0 = (f"v{96 + i}" for i in range(9))
RAWX, SPRE = 112, 120
LP, FLG, RL = 24, 30, 34
AQ, AX, AKF, AVF, ASP = 0, 128, 160, 192, 224


def Qf(t, s):
    return R("a", (AQ + 32 * t if t < 4 else AX) + 4 * s, 4)


def Kf(s):
    return R("a", AKF + 4 * s, 4)


def S(t):
    return R("v", SS + 4 * t, 4)


def Ng(t):
    return R("v", NEGM + 4 * t, 4)


def Pown(j, t):
    return PP + 16 * (j % 4) + 4 * t if t < 4 else PXT


def Pop(j, t):
    return R("v", PP + 16 * (j % 4) + 4 * t, 4) if t < 4 else R("a", ASP + 4 * (j % 4), 4)


def O(t, dt):
    return R("v", OO + 32 * t + 4 * dt, 4) if t < 4 else R("a", AX + 4 * dt, 4)


def RAW(k, i):
    return OO + 32 * k + 4 * i


def where(kind, tile):
    if OPT["early"] and kind == "V" and tile >= 30:
        return (("K", 0), 32) if tile == 30 else (("V", 2), 31)
    return ((kind, tile % 4), tile)


def tdma(kind, tile, i):
    reg = where(kind, tile)
    off = reg[0][1] * SLOT + i * 1568 - (4 * SLOT if reg[0][0] != kind else 0)
    m, v, srd, so = (sKm, vKd, sK, sKo) if kind == "K" else (sVm, vVd, sV, sVo)
    return (salu(f"s_add_u32 m0, {m}, {off}" if off >= 0 else f"s_sub_u32 m0, {m}, {-off}"),
            dma(v, srd, so, 512 * i, OPT["pol_kv"], reg, (kind, tile)))


def bump(kind):
    so = sKo if kind == "K" else sVo
    return salu(f"s_add_u32 {so}, {so}, 16384")


def dma_piece(kind, tile, i):
    return list(tdma(kind, tile, i)) + ([bump(kind)] if i == 3 else [])


def kread(tile, s, addr=vKr, dst=None):
    slot = tile % 4
    return ds_read("ds_read_b128", dst or Kf(s), addr, f"offset:{slot * SLOT + 64 * s}", (("K", slot), tile))


def vread(tile, dt, u, frag):
    reg = where("V", tile)
    base = (vV0, vV1) if reg[0][0] == "V" else (vKd, vVd)
    return ds_read("ds_read_b64_tr_b16", R("a", frag + 2 * u, 2), base[u], f"offset:{reg[0][1] * SLOT + 32 * dt}", reg)


def pwrite(j, t, h):
    par = j % 2
    return ds_write("ds_write_addtid_b32", None, f"v{Pown(j, t) + h}", f"offset:{par * PXA + (2 * t + h) * 256}", (("P", par), j))


def preads(j, a):
    par = j % 2
    o = []
    for t in range(4):
        n = par * 40 + a * 20 + 2 * t
        o.append((t, ds_read("ds_read2st64_b32", R("v", Pown(j, t) + 2, 2), vPr, f"offset0:{n} offset1:{n + 1}", (("P", par), j))))
    if a == 1:
        n = par * 40 + 8
        for u in range(2):
            o.append((4, ds_read("ds_read2st64_b32", R("a", ASP + 4 * (j % 4) + 2 * u, 2), (vPr2, vPr)[u], f"offset0:{n} offset1:{n + 1}", (("P", par), j))))
    return o


def msetter():
    return salu(f"s_mov_b32 m0, {sPm}")


def stamp(idx):
    return [raw(f"s_memtime s[{60 + 2 * idx}:{61 + 2 * idx}]")] if OPT["stamps"] else []


def xlane(op, reg, tmp):
    o = []
    for sw in ("v_permlane32_swap_b32", "v_permlane16_swap_b32"):
        o.append(valu(f"v_mov_b32 v{tmp}, v{reg}"))
        o.append(valu(f"{sw} v{tmp}, v{reg}"))
        o.append(valu(f"{op} v{reg}, v{tmp}, v{reg}"))
    return o


def chain_ops(b, seq, lo, dl, first_deps=(), hard=None):
    prev = None
    for n, ins in enumerate(seq):
        deps = list(first_deps) if prev is None else [(prev, 2 if ins.kind == "perm" else 1)]
        prev = b.op(ins, "exp" if ins.kind == "trans" else "valu", lo, dl + n, deps, hard=hard)
    return prev


def add_qk(b, a, j):
    ends = []
    for t in range(5 - a):
        for s in range(8):
            k = b.mfma(mfma(S(t), Kf(s), Qf(t, s), Ng(t) if s == 0 else S(t)))
        ends.append(k)
    return ends


def add_pv(b, a, tiles, h, frags, lo, zero=False, tmajor=False, lastuse=None, have=()):
    NP = 4 + a
    order = [(d, t) for t in range(NP) for d in range(4)] if tmajor else \
            [(d, t) for d in range(4) for t in (range(NP) if d % 2 == 0 else reversed(range(NP)))]
    first, done, pfirst = {}, {}, {}
    war = dict(lastuse) if lastuse is not None else {}
    for d, t in order:
        for n, j in enumerate(tiles):
            k = b.mfma(mfma(O(t, 4 * h + d), R("a", frags[d][n], 4), Pop(j, t), "0" if zero and n == 0 else O(t, 4 * h + d)))
            first.setdefault((d, n), k)
            pfirst.setdefault((j, t), k)
            done[(t, 4 * h + d)] = k
            if lastuse is not None:
                lastuse[frags[d][n]] = k
    for d in range(4):
        for n, j in enumerate(tiles):
            for u in range(2 if j not in have else 0):
                f = first[(d, n)]
                b.op(vread(j, 4 * h + d, u, frags[d][n]), "ds", max(lo[j], war.get(frags[d][n], 0)), f - 10 + u, hard=f - 3)
    return done, pfirst


def add_softmax(b, a, j, ends, pub, defer, adds_by=None):
    NQ = 5 - a
    wa = OPT["walign"]
    adds = {}
    for t in range(NQ):
        base = ends[t] + 4
        late = pub - 7 - 5 * (NQ - 1 - t)
        ex = [b.op(valu(f"v_exp_f32 v{SS + 4 * t + r}, v{SS + 4 * t + r}"), "exp", base, (base - 300 if wa else min(base + 10, late - 8)) + r, hard=pub - 6) for r in range(4)]
        for h in range(2):
            c = b.op(valu(f"v_cvt_pk_bf16_f32 v{Pown(j, t) + h}, v{SS + 4 * t + 2 * h}, v{SS + 4 * t + 2 * h + 1}"), "valu", 0, (base - 50 if wa else late - 3) + h, ex[2 * h:2 * h + 2], hard=pub - 4)
            b.op(pwrite(j, t, h), "ds", base + 6 + h if wa else 0, (base - 200 if wa else late - 1) + h, [c], hard=pub - 3, m0="p", setter=msetter())
        if t not in defer:
            for r in range(4):
                adds[t] = b.op(valu(f"v_add_f32 v{vL[t]}, v{SS + 4 * t + r}, v{vL[t]}"), "valu", 0, (pub if adds_by is None else min(base + 12, adds_by)) + r, [ex[r]] + ([(adds[t], 0)] if t in adds else []),
                               hard=(pub if adds_by is None else adds_by))
    return adds


def add_deferred(b, a, ends):
    for t in deferred(a):
        for r in range(4):
            b.op(valu(f"v_add_f32 v{vL[t]}, v{SS + 4 * t + r}, v{vL[t]}"), "valu", 0, ends[t] - 16 + r, hard=ends[t] - 8)


def deferred(a):
    return [3 - a, 4 - a]


def add_dma(b, a, pieces, g0, step, G, lo=None):
    dops = []
    for n, (kind, tile, i) in enumerate(pieces):
        st, d = tdma(kind, tile, i)
        e = int(g0 + step * n)
        if lo and (kind, tile) in lo:
            e = max(e, lo[(kind, tile)])
        o = b.op(d, "dma", e, e - 100, [(dops[-1][0], 2)] if dops else [], hard=G - 3, m0=("d", n), setter=st)
        dops.append((o, kind, tile, i))
    for o, kind, tile, i in dops:
        if i == 3:
            nxt = [x for x, k, tl, _ in dops if k == kind and tl > tile]
            b.scalar(bump(kind), (lambda o=o: o.gap + 1), (lambda nxt=nxt: nxt[0].gap - 1) if nxt else G - 4)
    return dops


def prof_hooks(out):
    if OPT["prof"]:
        k = max(n for n, x in enumerate(out) if x.kind == "barrier")
        out.insert(k, raw("v_writelane_b32 v21, s100, m0"))
        out.insert(k - 1, raw("s_mov_b32 m0, s3"))
        mk = [n for n, x in enumerate(out[:k]) if x.kind == "mfma"]
        out.insert(mk[22] + 1, raw("s_memtime s[100:101]" if OPT["prof"] == 1 else "s_memrealtime s[100:101]"))
        out.insert(mk[2] + 1, raw("s_add_u32 s3, s3, 1"))
    return out


TMPL = {
    1: ["RDRRRRRR RRDRRRdE E.EDEWEE WEEDEWEW EEWEDEWE EWWEED.E EWW..RDR RRRRRRRD RRRRdRRR",
        "RRRRRDRR RRRRRRDR EE.EEWED EWEEWEEW .DEEWEEW E.DEW.W. d.D..RRR RRRDRRRR RdRDRRRR"],
    2: ["RDRRRRRR RRDRRRdE E.EDEWEE WEEDEWEW EEWEDEWE EWWEED.E EWW.RRDR RRRRRRRD RRRRd.RR",
        "RRRRRDRR RRRRRRDR EE.EEWED EWEEWEEW .DEEWEEW E.DEW.W. d.DRRRRR RRRDRRRR RdRD..RR"],
    3: ["RDRRRRRR RRDRRREE EE.DEWWE EE.DEWWE EE.DEWWE EE.EWWED EE.WW.DR RRRRRRRD RRRRRRRR",
        "RRRRRDRR RRRRRRDR EEEE.WWE DEEE.WWE EDEE.WWE E.DEE.WW d.D.d.RR RRRDRRRR RRRDRRRR"],
}
FOLD = [AVF + 8 * d for d in range(4)]
FNEW = [AVF + 8 * d + 4 for d in range(4)]


def add_old_reads(b, j, lu, lo, G):
    for d in range(4):
        for u in range(2):
            b.op(vread(j, 4 * ((j + 1) % 2) + d, u, FOLD[d]), "ds", max(lo, lu.get(FOLD[d], 0)), G + 2 * d + u, hard=G - 1)


def interval(j, a, loop_end=None):
    b = Block(f"interval {j} role {a}", wq=OPT["wq"] if OPT["walign"] else 0, wprio=bool(OPT["walign"]))
    ends = add_qk(b, a, j + 1)
    lu = {}
    if j <= 28:
        done, pfirst = add_pv(b, a, [j - 1, j], j % 2, [[FOLD[d], FNEW[d]] for d in range(4)], {j: 0}, lastuse=lu, have=[j - 1])
        b.carry = [f"a{x + i}" for x in FOLD for i in range(4)]
    else:
        done, pfirst = add_pv(b, a, [j], 0, [[AVF + 4 * d] for d in range(4)], {j: 0})
    G = len(b.mf)
    if j <= 27:
        add_old_reads(b, j, lu, 0, G)
    for t, ins in preads(j, a):
        b.op(ins, "ds", 0, pfirst[(j, t)] - 10, hard=pfirst[(j, t)] - 3)
    for s in range(8):
        b.op(kread(j + 2, s), "ds", ends[-1] - 7 + s, G - 18 + s, hard=G - 3)
    kl = OPT["klead"]
    T = lambda kind, tile, r=range(4): [(kind, tile, i) for i in r]
    pieces = T("V", j + 2) + (T("K", j + 2 + kl) if j <= 28 else [])
    step = OPT["dmastep"]
    if OPT["early"] and j >= 25:
        if OPT["early"] == 1:
            pieces = {25: T("V", 27) + T("K", 29) + T("K", 30, [0]), 26: T("V", 28) + T("K", 30, [1, 2, 3]) + T("K", 31, [0, 1]),
                      27: T("V", 29) + T("K", 31, [2, 3]) + T("V", 30), 28: T("V", 31), 29: []}[j]
        elif OPT["early"] == 2:
            pieces = {25: T("V", 27) + T("K", 29), 26: T("V", 28) + T("K", 30), 27: T("V", 29) + T("K", 31), 28: T("V", 30) + T("V", 31), 29: []}[j]
        else:
            pieces = {25: T("V", 27) + T("K", 29) + T("K", 30, [0]), 26: T("V", 28) + T("K", 30, [1, 2, 3]) + T("K", 31, [0, 1]),
                      27: T("V", 29) + T("K", 31, [2, 3]) + T("V", 30, [0, 1, 2]), 28: T("V", 30, [3]) + T("V", 31), 29: []}[j]
        step = {25: 7, 26: 7, 27: 6, 28: 4, 29: 4}[j]
    dops = add_dma(b, a, pieces, OPT["dma0"] + a * min(OPT["dmastag"], step // 2), step, G)
    if OPT["early"] and j == 29:
        b.op(valu(f"v_subrev_u32 {vKd}, {4 * SLOT}, {vV0}"), "valu", 0, G, hard=G - 1)
        b.op(valu(f"v_subrev_u32 {vVd}, {4 * SLOT}, {vV1}"), "valu", 0, G, hard=G - 1)
    if OPT["early"] and j == OPT["pf31"]:
        x = chain_ops(b, [valu(f"v_and_b32 {vAuxT}, 7, v0"), valu(f"v_lshl_add_u32 {vAuxT}, {vAuxT}, 7, s37")], 0, -95)
        b.op(vload("buffer_load_dword", vAuxD, vAuxT, sV, "0"), "st", 0, -90, [x], hard=40)
    if not OPT["early"] and j <= 28 and j % 4 == (30 - kl) % 4:
        kf = [o for o, k, _, _ in dops if k == "K"][0]
        vl = [o for o, k, _, _ in dops if k == "V"][-2]
        pair = raw(f"s_cmp_eq_u32 {sCNT}, 1\n    s_cselect_b32 s18, 0, s18")
        b.scalar(pair, (lambda: vl.gap + 1), (lambda: kf.gap - 2))
    if j <= 24 and j % 4 == OPT.get("auxj", 1) and OPT["aux"] & 1:
        b.op(vload("buffer_load_dword", vAuxD, vAuxC, sC, "0"), "st", 3, -90, hard=40)
    if j <= 28 and (j - OPT["auxend"]) % OPT["auxper"] == 0 and OPT["aux"] & 2:
        x = b.op(vload("buffer_load_dword", vAuxD2, vAuxT, sP, "0"), "st", 5 - 4 * a, -90, hard=40)
        b.op(valu(f"v_add_u32 {vAuxT}, {(32 - OPT['auxt0']) * 16384 // OPT['auxn']:#x}, {vAuxT}"), "valu", 0, G, [x], hard=G - 1)
    nh = OPT["holes"] % 10 if a == 0 else OPT["holes"] // 10
    for n in range(nh if j <= 28 else 0):
        ref = dops[min(6, (2 * n + 1) * 8 // (2 * nh) - 1 + (1 if nh < 4 else 0))][0]
        w = OPT["holew"]
        b.op(vload("buffer_load_dword" + ("" if w == 1 else f"x{w}"), "v20" if w == 1 else R("a", 252, w), vAuxT, "s[84:87]", "0"), "st", 0, -95, [(ref, 2)], hard=G - 12)
    add_deferred(b, a, ends)
    add_softmax(b, a, j + 1, ends, G - 1, deferred(a))
    if OPT["rwin"] and j <= 28:
        tm = TMPL[OPT["rwin"]][a].replace(" ", "")
        assert len(tm) == 72, len(tm)
        nd = len([o for o in b.ops if o.cls in ("dma", "st")])
        b.tmpl = tm.replace("d", "D", max(0, nd - 8) if nd > 4 else 1).replace("d", ".")
        for o in b.ops:
            if o.cls == "dma" or o.ins.kind == "dsw":
                o.lo = 0
            if o.ins.text.startswith("v_cvt"):
                o.dl -= 200
    vm = [("V", j + 1)] + ([("K", j + 3)] if j + 3 <= 31 else [])
    if OPT["early"] and j == 29:
        vm.append(("V", 31))
    b.barrier(G - 1, vm, ["w"] + [f"a{AKF + i}" for i in range(32)])
    if loop_end:
        b.scalar(salu(f"s_sub_u32 {sCNT}, {sCNT}, 1"), 20, G - 4)
        b.scalar(salu(f"s_cmp_lg_u32 {sCNT}, 0"), G - 3, G - 3)
    out, _ = b.schedule(show=OPT["show"] == j)
    out = prof_hooks(out)
    if loop_end:
        out.append(salu(f"s_cbranch_scc1 {loop_end}"))
    return out


def softmax0_ops(b, t, e_pre, e_c0, pub):
    seq = [valu(f"v_max3_f32 v{TMP}, v{SPRE}, v{SPRE + 1}, v{SPRE + 2}"), valu(f"v_max_f32 v{TMP}, v{TMP}, v{SPRE + 3}")] + xlane("v_max_f32", TMP, TMP + 1)
    last = chain_ops(b, seq, e_pre + 5, -500)
    cm = [b.op(valu(f"v_cndmask_b32 v{NEGM + 4 * t + r}, -v{TMP}, v{NEGM + 4 * t + r}, {sKEEP}"), "valu", 0, -480 + 10 * r, [last]) for r in range(4)]
    s0 = SS + 4 * t
    ex = []
    for r in range(4):
        ad = b.op(valu(f"v_add_f32 v{s0 + r}, v{s0 + r}, v{NEGM + 4 * t}"), "valu", e_c0 + 5, -478 + r, [cm[0]])
        ex.append(b.op(valu(f"v_exp_f32 v{s0 + r}, v{s0 + r}"), "exp", 0, -470 + r, [ad]))
    for h in range(2):
        c = b.op(valu(f"v_cvt_pk_bf16_f32 v{Pown(0, t) + h}, v{s0 + 2 * h}, v{s0 + 2 * h + 1}"), "valu", 0, -465 + h, ex[2 * h:2 * h + 2])
        b.op(pwrite(0, t, h), "ds", 0, -460 + h, [c], hard=pub - 3, m0="p", setter=msetter())
    return ex


def start_block(a, rest):
    b = Block(f"start role {a}")
    save = OPT["walign"]
    OPT["walign"] = 0
    qr, kr = stage_read(3), [kread(1, s) for s in range(8)]
    b.pre = qr + kr
    for _ in range(min(OPT["prefeed"], len(rest))):
        b.pre += dma_piece(*rest.pop(0))
    SP = R("v", SPRE, 4)
    for s in range(8):
        e_pre = b.mfma(mfma(SP, R("a", ASP + 4 * s, 4), Qf(3, s), "0" if s == 0 else SP))
    for s in range(8):
        e_c0 = b.mfma(mfma(S(3), R("a", AVF + 4 * s, 4), Qf(3, s), "0" if s == 0 else S(3)))
    ends = add_qk(b, a, 1)
    bar = OPT["bar0"]
    done, pfirst = add_pv(b, a, [0], 0, [[FNEW[d]] for d in range(4)], {0: bar}, zero=True)
    G = len(b.mf)
    add_old_reads(b, 0, {}, bar, G)
    ex = softmax0_ops(b, 3, e_pre, e_c0, bar)
    for r in range(4):
        b.op(valu(f"v_add_f32 v{vL[3]}, v{SS + 12 + r}, v{vL[3]}"), "valu", 0, ends[3] - 20 + r, [ex[r]], hard=ends[3] - 8)
    for t, ins in preads(0, a):
        b.op(ins, "ds", bar, pfirst[(0, t)] - 10, hard=pfirst[(0, t)] - 3)
    for s in range(8):
        b.op(kread(2, s), "ds", max(bar, ends[-1] - 7 + s), G - 14 + s, hard=G - 3)
    pieces = rest + [("V", 2, i) for i in range(4)] + [("K", 4, i) for i in range(4)]
    if OPT["klead"] == 3:
        pieces += [("K", 5, i) for i in range(4)]
    add_dma(b, a, pieces, OPT["sdma0"], (G - 7 - OPT["sdma0"]) / len(pieces), G, lo={("K", 5): bar + 1})
    add_softmax(b, a, 1, ends, G - 1, deferred(a))
    b.barrier(bar, [("V", 0), ("K", 2)])
    b.barrier(G - 1, [("V", 1), ("K", 3)], ["w"] + [f"a{AKF + i}" for i in range(32)])
    if OPT["stamps"] == 1:
        b.inserts[0] = stamp(12)
        b.inserts[bar - 2] = stamp(13)
        b.inserts[bar] = stamp(9)
        b.inserts[G - 3] = stamp(10)
    out, _ = b.schedule(show=OPT["show"] == 0)
    OPT["walign"] = save
    return prof_hooks(out)


def unit_instrs(a, t, h, n, packed):
    va, wr = [], []
    for d in range(4):
        dt = 4 * h + d
        x = OO + 32 * t + 4 * dt if t < 4 else SS + 4 * d
        seq = []
        if t == 4:
            seq += [valu(f"v_accvgpr_read_b32 v{x + i}, a{AX + 4 * dt + i}") for i in range(4)]
        if packed:
            seq += [valu(f"v_pk_mul_f32 {R('v', x + 2 * i, 2)}, {R('v', x + 2 * i, 2)}, {R('v', RL + 2 * t, 2)} op_sel_hi:[1,0]") for i in range(2)]
        else:
            seq += [valu(f"v_mul_f32 v{x + i}, v{x + i}, v{RL + 2 * t}") for i in range(4)]
        seq += [valu(f"v_cvt_pk_bf16_f32 v{x + i}, v{x + 2 * i}, v{x + 2 * i + 1}") for i in range(2)]
        va.append(seq)
        wr.append(ds_write("ds_write_b64", vEw, R("v", x, 2), f"offset:{32 * d}", (("K", 1), 99)))
    rd, st = [], []
    for i in range(2):
        q = R("a", ASP + 16 + 8 * (n % 2) + 4 * i, 4)
        rd.append(ds_read("ds_read_b128", q, vEr, f"offset:{8 * 144 * i}"))
        st.append(vstore("buffer_store_dwordx4", q, vO, sO, (sT, sT8)[i][t], 128 * h, OPT["pol_o"]))
    return va, wr, rd, st


def final_block(a):
    NQ, NP = 5 - a, 4 + a
    b = Block(f"final role {a}")
    b.lazy = OPT["lazy"]
    save = OPT["walign"]
    OPT["walign"] = 0
    barv, barl = OPT["barv"], OPT["barl"]
    ends = add_qk(b, a, 31)
    lu = {AKF + 4 * s: ends[-1] - 7 + s for s in range(8)}
    F = lambda i: AVF + 4 * i
    KF = lambda i: AKF + 4 * i
    lo = {28: 0, 29: 0, 30: 0, 31: 0 if OPT["early"] else barv}
    _, pf = add_pv(b, a, [30], 0, [[F(d)] for d in range(4)], lo, lastuse=lu)
    for t, ins in preads(30, a):
        b.op(ins, "ds", 0, pf[(30, t)] - 10, hard=pf[(30, t)] - 3)
    add_pv(b, a, [28], 1, [[F(4 + d)] for d in range(4)], lo, lastuse=lu)
    done0, pf = add_pv(b, a, [31], 0, [[KF(d)] for d in range(4)], lo, tmajor=True, lastuse=lu)
    for t, ins in preads(31, a):
        b.op(ins, "ds", barl, pf[(31, t)] - 12, hard=pf[(31, t)] - 3)
    done1, _ = add_pv(b, a, [29, 30, 31], 1, [[KF(4), KF(5), KF(6)], [F(0), F(1), F(2)], [F(3), F(4), F(5)], [F(6), F(7), KF(7)]], lo, lastuse=lu)
    G = len(b.mf)
    add_deferred(b, a, ends)
    adds = add_softmax(b, a, 31, ends, barl, [], adds_by=barl - 7)
    L = (("L", 0), 0)
    early = (0, 1, 2)
    fin = dict(adds)
    for t in early:
        fin[t] = chain_ops(b, xlane("v_add_f32", vL[t], TMP + 1 + t), 0, ends[t] + 24, [adds[t]], hard=barl - 5)
    for t in range(NQ):
        b.op(ds_write("ds_write_addtid_b32", None, f"v{vL[t]}", f"offset:{2 * PXA + t * 256}", L), "ds", 0, barl - 8, [fin[t]], hard=barl - 3, m0="p", setter=msetter())
    w1 = b.op(valu(f"v_max3_u32 v{TMP}, v{vL[0]}, v{vL[1]}, v{vL[2]}"), "valu", 0, barl - 12, [fin[0], fin[1], fin[2]], hard=barl - 5)
    w2 = b.op(valu(f"v_max3_u32 v{TMP}, v{TMP}, v{vL[3]}, v{vL[NQ - 1]}"), "valu", 0, barl - 11, [w1, fin[3], fin[NQ - 1]], hard=barl - 4)
    b.op(ds_write("ds_write_addtid_b32", None, f"v{TMP}", f"offset:{2 * PXA + 5 * 256}", L), "ds", 0, barl - 9, [w2], hard=barl - 3, m0="p", setter=msetter())
    if not OPT["early"]:
        b.barrier(barv, [("V", 31)])
    b.barrier(barl, None)
    base = 80
    X = max(done0.values())
    lr = {}
    for t in (0, 2):
        lr[t] = lr[t + 1] = b.op(ds_read("ds_read2st64_b32", R("v", LP + t, 2), vPr, f"offset0:{base + a * 20 + t} offset1:{base + a * 20 + t + 1}", L), "ds", barl, barl + 1 + t)
    f1 = b.op(ds_read("ds_read2st64_b32", R("v", FLG, 2), vPr, f"offset0:{base + 5} offset1:{base + 25}", L), "ds", barl, barl + 12)
    f2 = b.op(ds_read("ds_read2st64_b32", R("v", FLG + 2, 2), vPr2, f"offset0:{base + 5} offset1:{base + 25}", L), "ds", barl, barl + 13)
    if a == 1:
        x1 = b.op(ds_read("ds_read_b32", f"v{LP + 4}", vPr, f"offset:{(base + 4) * 256}", L), "ds", barl, barl + 9)
        lr[4] = b.op(ds_read("ds_read_b32", f"v{vL[4]}", vPr2, f"offset:{(base + 4) * 256}", L), "ds", barl, barl + 10, [x1])
    ck = chain_ops(b, [valu(f"v_max3_u32 v{FLG}, v{FLG}, v{FLG + 1}, v{FLG + 2}"), valu(f"v_max_u32 v{FLG}, v{FLG}, v{FLG + 3}"), valu(f"v_cmp_lt_u32 vcc, {sTHR}, v{FLG}")],
                   0, barl + 22, [(f1, 6), (f2, 6)], hard=X - 1)
    if not OPT["abl"]:
        b.scalar(salu(f"s_cbranch_vccnz L_fallback{a}"), (lambda: ck.gap + 1), X)
    rl = {}
    for t in range(NP):
        seq = [valu(f"v_add_f32 v{vL[t]}, v{vL[t]}, v{LP + t}")] + ([] if t in early else xlane("v_add_f32", vL[t], TMP + 1 + t)) + [valu(f"v_rcp_f32 v{RL + 2 * t}, v{vL[t]}")]
        rl[t] = chain_ops(b, seq, 0, barl + 4 + 2 * t, [(lr[t], 6)], hard=X)
    units = [(t, 0) for t in range(NP)] + [(t, 1) for t in range(NP)]
    nfast = min(OPT["nfast"], NP)
    nin = min(OPT["nin"], NP - nfast)

    def straight(lst, pend):
        o = []
        for n, (t, h) in lst:
            va, wr, rd, st = unit_instrs(a, t, h, n, True)
            for k in range(len(va[0])):
                o += [va[d][k] for d in range(4)]
            o += pend
            o += wr + rd
            pend = st
        return o, pend
    en = list(enumerate(units))
    b.inserts[X], pend = straight(en[:nfast], [])
    if OPT["stamps"] == 2:
        b.inserts[barl - 2] = stamp(12)
        b.inserts[barl] = stamp(13)
        b.inserts[X] = stamp(9) + b.inserts[X] + stamp(10)
    prev_rd, prev_st = [], {}
    if nfast:
        prev_st[(nfast - 1) % 2] = [b.op(x, "st", X + 6 + i, X + i, hard=G - 1) for i, x in enumerate(pend)]
    for n, (t, h) in en[nfast:nfast + nin]:
        va, wr, rd, st = unit_instrs(a, t, h, n, False)
        p0 = X + 4 + 22 * (n - nfast)
        wops = []
        for d in range(4):
            nv = len(va[d])
            pr = [b.op(x, "valu", max(X + 1, done0[(t, d)] + 5), p0 + 4 * d, prev_rd) for x in va[d][:nv - 6]]
            mu = [b.op(x, "valu", max(X + 1, done0[(t, d)] + 5), p0 + 4 * d + i // 2, [rl[t]] + pr[i:i + 1]) for i, x in enumerate(va[d][nv - 6:nv - 2])]
            c0 = b.op(va[d][nv - 2], "valu", 0, p0 + 4 * d + 2, mu[:2])
            c1 = b.op(va[d][nv - 1], "valu", 0, p0 + 4 * d + 2, mu[2:] + [(c0, 0)])
            wops.append(b.op(wr[d], "solo", 0, p0 + 4 * d + 3, [c0, c1] + prev_rd))
        prev_rd = [b.op(rd[i], "ds", 0, p0 + 17 + i, wops + prev_st.get(n % 2, [])) for i in range(2)]
        prev_st[n % 2] = [b.op(st[i], "st", 0, p0 + 19 + i, [(prev_rd[i], 6)]) for i in range(2)]
    out, left = b.schedule(show=OPT["show"] == 31, leftover_ok=True)
    OPT["walign"] = save
    out += stamp(5)
    pend = []
    for o in left:
        if o.ins.kind == "vst":
            pend.append(o.ins)
        else:
            if any(o.ins.wr & x.rd for x in pend):
                out += pend
                pend = []
            out.append(o.ins)
    o2, pend = straight(en[nfast + nin:], pend)
    return out + o2 + pend


def qload(k, i):
    return [vload("buffer_load_dwordx4", R("v", RAW(k, i), 4), vQl, sQ, sT[k], 512 * i, OPT["pol_q"])]


def entry():
    o = []
    A = lambda t: o.append(salu(t))
    V = lambda t: o.append(valu(t))
    t0, t1, t2, t3, t4 = (f"v{TMP + i}" for i in range(5))
    A("s_cmp_ge_u32 s2, 256")
    A("s_cbranch_scc1 L_end")
    o.append(raw("s_load_dwordx8 s[4:11], s[0:1], 0"))
    if OPT["stamps"]:
        o.append(raw("s_load_dwordx2 s[56:57], s[0:1], 40"))
        o.append(raw("s_memrealtime s[58:59]"))
    o += stamp(0)
    o.append(raw("s_getpc_b64 s[44:45]"))
    o.append(label("L_pc"))
    A("s_and_b32 s45, s45, 0xffff")
    o.append(raw("s_mov_b32 s46, L_end-L_pc"))
    A("s_mov_b32 s47, 0x20000")
    A("s_lshr_b32 s54, s2, 3")
    A("s_lshl_b32 s55, s54, 7")
    V(f"v_lshl_add_u32 {t0}, v0, 12, s55")
    o.append(vload("buffer_load_dword", "v126", t0, sC, "0"))
    V(f"v_lshrrev_b32 {t1}, 6, v0")
    A(f"s_mov_b64 {sKEEP}, 0")
    V(f"v_readfirstlane_b32 {sW}, {t1}")
    A(f"s_mov_b32 {sTHR}, {(127 + OPT['thr']) << 23:#x}")
    if OPT["prof"]:
        A("s_mov_b32 s3, 0")
    A("s_and_b32 s53, s2, 7")
    A("s_lshl_b32 s53, s53, 3")
    A("s_lshr_b32 s55, s2, 5")
    A("s_add_u32 s53, s53, s55")
    A("s_and_b32 s54, s54, 3")
    A("s_lshl_b32 s55, s53, 2")
    A("s_add_u32 s55, s55, s54")
    A("s_mul_i32 s37, s55, 73728")
    A("s_lshl_b32 s53, s53, 19")
    A(f"s_lshr_b32 {sA}, {sW}, 1")
    A(f"s_and_b32 {sB}, {sW}, 1")
    A(f"s_add_u32 s54, {sW}, 1")
    A("s_and_b32 s55, s54, 1")
    A("s_lshl_b32 s55, s55, 3")
    A("s_lshr_b32 s54, s54, 1")
    A("s_and_b32 s54, s54, 1")
    A("s_add_u32 s54, s54, s55")
    A("s_mul_i32 s54, s54, 1040")
    A(f"s_add_u32 {sKm}, s54, {KRING}")
    A("s_mov_b32 s48, 8192")
    A("s_mov_b32 s49, 16384")
    A("s_mov_b32 s50, 24576")
    A(f"s_mov_b32 {sX}, 65536")
    for srd, n in ((16, 524288), (12, 73728), (20, 524288), (24, 73728)):
        A(f"s_mov_b32 s{srd + 2}, {n}")
        A(f"s_mov_b32 s{srd + 3}, 0x20000")

    def src_offsets():
        V(f"v_and_b32 {t0}, 31, v0")
        V(f"v_lshlrev_b32 {t0}, 4, {t0}")
        V(f"v_bfe_u32 {t2}, v0, 5, 1")
        A(f"s_lshl_b32 s54, {sW}, 11")
        V(f"v_add_u32 {t1}, s54, {t0}")
        V(f"v_lshl_add_u32 {vKd}, {t2}, 13, {t1}")
        V(f"v_lshl_add_u32 {vQl}, {t2}, 15, {t1}")
        V(f"v_lshl_add_u32 {vQlx}, {t2}, 9, {t1}")
        A(f"s_mov_b32 {sKo}, 0")
        A(f"s_mov_b32 {sVo}, 0")
    src_offsets()
    o.append(raw("s_waitcnt lgkmcnt(0)"))
    o += stamp(8)
    for srd, ptr, off in ((16, 6, "s53"), (12, 4, "s37"), (20, 8, "s53"), (24, 10, "s37")):
        A(f"s_add_u32 s{srd}, s{ptr}, {off}")
        A(f"s_addc_u32 s{srd + 1}, s{ptr + 1}, 0")
        A(f"s_and_b32 s{srd + 1}, s{srd + 1}, 0xffff")
    o.append(label("L_restart"))
    for i in range(4):
        o += dma_piece("K", 0, i)
    for i in range(2):
        o.append(vload("buffer_load_dwordx4", R("v", RAWX + 4 * i, 4), vQlx, sQ, sX, 1024 * i, OPT["pol_q"]))
    o.append(barrier())
    for i in range(4):
        o += qload(0, i)
    A(f"s_lshl_b32 s54, {sB}, 11")
    A(f"s_lshl_b32 s55, {sA}, 13")
    A("s_add_u32 s54, s54, s55")
    V(f"v_lshl_add_u32 {vVd}, {t2}, 12, {t0}")
    V(f"v_add_u32 {vVd}, s54, {vVd}")
    A(f"s_add_u32 s54, {sKm}, {3 * SLOT}")
    V(f"v_lshl_add_u32 {vQw}, {t2}, 9, {t0}")
    V(f"v_add_u32 {vQw}, s54, {vQw}")
    V(f"v_add_u32 {vQw2}, {4 * SLOT}, {vQw}")
    A(f"s_sub_u32 s54, {sKm}, {KRING - PXA}")
    V(f"v_mul_u32_u24 {vQwx}, 2080, {t2}")
    V(f"v_add3_u32 {vQwx}, {vQwx}, {t0}, s54")
    A(f"s_mul_i32 s54, {sB}, {4 * 2080}")
    A(f"s_lshl_b32 s55, {sA}, 10")
    A("s_add_u32 s54, s54, s55")
    A(f"s_add_u32 {sVm}, s54, {VRING}")
    A(f"s_mul_i32 {sPm}, {sW}, 2560")
    V(f"v_and_b32 {t0}, 15, v0")
    V(f"v_bfe_u32 {t1}, v0, 4, 1")
    V(f"v_lshlrev_b32 {t3}, 5, {t1}")
    V(f"v_lshl_add_u32 {t3}, {t2}, 4, {t3}")
    V(f"v_add_u32 {t4}, 4, {t0}")
    V(f"v_bfe_u32 {vKr0}, {t4}, 3, 1")
    V(f"v_and_b32 {t4}, 7, {t4}")
    V(f"v_lshl_add_u32 {vKr0}, {t4}, 1, {vKr0}")
    V(f"v_mul_u32_u24 {vKr0}, 1040, {vKr0}")
    V(f"v_add_u32 {vKr0}, {vKr0}, {t3}")
    V(f"v_add_u32 {vQrx}, {PXA}, {vKr0}")
    V(f"v_add_u32 {vKr0}, {KRING}, {vKr0}")
    A(f"s_lshl_b32 s54, {sB}, 9")
    V(f"v_add_u32 {vKr}, s54, {vKr0}")
    A(f"s_lshl_b32 s54, {sA}, 9")
    A(f"s_add_u32 s54, s54, {3 * SLOT}")
    V(f"v_add_u32 {vQr}, s54, {vKr0}")
    V(f"v_add_u32 {vQr2}, {4 * SLOT}, {vQr}")
    V(f"v_bfe_u32 {t4}, v0, 2, 3")
    V(f"v_mul_u32_u24 {vV0}, 2080, {t4}")
    V(f"v_lshl_add_u32 {vV0}, {t2}, 9, {vV0}")
    V(f"v_and_b32 {t4}, 3, v0")
    V(f"v_lshl_add_u32 {vV0}, {t4}, 3, {vV0}")
    A(f"s_mul_i32 s54, {sB}, {256 + 1024}")
    A(f"s_add_u32 s54, s54, {VRING}")
    A(f"s_mul_i32 s55, {sB}, {1024 - 256}")
    A(f"s_sub_u32 s55, {VRING + 1024}, s55")
    V(f"v_add_u32 {vV1}, s55, {vV0}")
    V(f"v_add_u32 {vV0}, s54, {vV0}")
    V(f"v_and_b32 {t4}, 63, v0")
    V(f"v_lshlrev_b32 {t4}, 2, {t4}")
    A(f"s_mul_i32 s54, {sB}, 2560")
    A("s_sub_u32 s55, 2560, s54")
    V(f"v_add_u32 {vPr2}, s54, {t4}")
    V(f"v_add_u32 {vPr}, s55, {t4}")
    if OPT["pf31"]:
        A("s_lshr_b32 s54, s2, 3")
        A("s_and_b32 s54, s54, 3")
        A("s_lshl_b32 s54, s54, 2")
        A(f"s_add_u32 s54, s54, {sW}")
        A("s_lshl_b32 s54, s54, 10")
        A(f"s_add_u32 s37, s54, {31 * 16384}")
    A(f"s_mul_i32 s55, {sW}, 2304")
    A(f"s_add_u32 s55, s55, {KRING + SLOT}")
    V(f"v_bfe_u32 {t4}, v0, 4, 2")
    V(f"v_mul_u32_u24 {vEw}, 144, {t0}")
    V(f"v_lshl_add_u32 {vEw}, {t4}, 3, {vEw}")
    V(f"v_add_u32 {vEw}, s55, {vEw}")
    V(f"v_bfe_u32 {t4}, v0, 3, 3")
    V(f"v_and_b32 {t1}, 7, v0")
    V(f"v_lshlrev_b32 {t1}, 4, {t1}")
    V(f"v_mul_u32_u24 {vEr}, 144, {t4}")
    V(f"v_add3_u32 {vEr}, {vEr}, {t1}, s55")
    A(f"s_lshl_b32 s54, {sA}, 15")
    A(f"s_lshl_b32 s55, {sB}, 8")
    A("s_add_u32 s55, s55, s54")
    A("s_sub_u32 s51, 65536, s54")
    V(f"v_lshl_add_u32 {vO}, {t4}, 9, {t1}")
    V(f"v_add_u32 {vO}, s55, {vO}")
    for t in range(5):
        A(f"s_add_u32 {sT8[t]}, {sT[t]}, 4096" if t else f"s_mov_b32 {sT8[0]}, 4096")
    c = struct.unpack("<I", struct.pack("<f", math.log2(math.e) / 16.0))[0]
    A(f"s_mov_b32 s40, {c:#x}")
    A(f"s_mov_b32 s41, {c:#x}")
    A(f"s_mov_b32 {sMASK}, 0xffff0000")
    for t in range(5):
        V(f"v_mov_b32 v{vL[t]}, 0")
    for t in range(4):
        for i in range(8):
            V(f"v_mov_b64 {R('v', OO + 32 * t + 16 + 2 * i, 2)}, 0")
    for i in range(16):
        V(f"v_accvgpr_write_b32 a{AX + 16 + i}, 0")
    A(f"s_cmp_eq_u32 {sA}, 1")
    A("s_cbranch_scc1 L_role1")
    o2 = []
    o, keep = o2, o
    src_offsets()
    return keep, o2


def scale4(src):
    o = []
    T = SCT
    for i in range(4):
        o.append(valu(f"v_lshlrev_b32 v{T + 2 * i}, 16, v{src + i}"))
        o.append(valu(f"v_and_b32 v{T + 2 * i + 1}, {sMASK}, v{src + i}"))
    for i in range(4):
        o.append(valu(f"v_pk_mul_f32 {R('v', T + 2 * i, 2)}, {R('v', T + 2 * i, 2)}, {sSC}"))
    for i in range(4):
        o.append(valu(f"v_cvt_pk_bf16_f32 v{src + i}, v{T + 2 * i}, v{T + 2 * i + 1}"))
    return o


QST = {0: (("V", 1), vQw, vQr, 2 * SLOT), 1: (("K", 3), vQw, vQr, 0), 2: (("V", 2), vQw, vQr, 3 * SLOT), 3: (("V", 3), vQw2, vQr2, 0)}


def stage_in(k, feed):
    o = []
    for i in range(2 if k == 4 else 4):
        src = RAWX + 4 * i if k == 4 else RAW(k, i)
        sc = scale4(src)
        o.append(sc[0])
        o += feed(("Q", k, i))
        o += sc[1:]
        if k == 4:
            o.append(ds_write("ds_write_b128", vQwx, R("v", src, 4), f"offset:{4160 * i}", (("P", 1), -1)))
        else:
            reg, wb, rb, off = QST[k]
            o.append(ds_write("ds_write_b128", wb, R("v", src, 4), f"offset:{off + 2080 * i}", (reg, -1)))
    return o


def stage_read(k):
    if k == 4:
        return [ds_read("ds_read_b128", Qf(4, s), vQrx, f"offset:{64 * s}", (("P", 1), -1)) for s in range(8)]
    reg, wb, rb, off = QST[k]
    return [ds_read("ds_read_b128", Qf(k, s), rb, f"offset:{off + 64 * s}", (reg, -1)) for s in range(8)]


def stage_compute(t):
    o = []
    s0 = SS + 4 * t
    SP = R("v", SPRE, 4)
    for s in range(8):
        o.append(mfma(SP, R("a", ASP + 4 * s, 4), Qf(t, s), "0" if s == 0 else SP))
    for s in range(8):
        o.append(mfma(S(t), R("a", AVF + 4 * s, 4), Qf(t, s), "0" if s == 0 else S(t)))
    o.append(msetter())
    o.append(valu(f"v_max3_f32 v{TMP}, v{SPRE}, v{SPRE + 1}, v{SPRE + 2}"))
    o.append(valu(f"v_max_f32 v{TMP}, v{TMP}, v{SPRE + 3}"))
    o += xlane("v_max_f32", TMP, TMP + 1)
    for r in range(4):
        o.append(valu(f"v_cndmask_b32 v{NEGM + 4 * t + r}, -v{TMP}, v{NEGM + 4 * t + r}, {sKEEP}"))
    for r in range(4):
        o.append(valu(f"v_add_f32 v{s0 + r}, v{s0 + r}, v{NEGM + 4 * t}"))
    for r in range(4):
        o.append(valu(f"v_exp_f32 v{s0 + r}, v{s0 + r}"))
    for h in range(2):
        o.append(valu(f"v_cvt_pk_bf16_f32 v{Pown(0, t) + h}, v{s0 + 2 * h}, v{s0 + 2 * h + 1}"))
    for h in range(2):
        o.append(pwrite(0, t, h))
    for r in range(4):
        o.append(valu(f"v_add_f32 v{vL[t]}, v{s0 + r}, v{vL[t]}"))
    return o


def prologue(a):
    o = [label(f"L_role{a}")]
    seq = {0: "Q1 Q2 Q3 K1 V0 K2 V1 K3", 1: "Q1 K1 Q2 V0 Q3 K2 V1 K3", 2: "Q1 Q2 K1 Q3 V0 K2 V1 K3", 3: "K1 Q1 V0 Q2 K2 Q3 V1 K3", 4: "Q1 Q2 K1 V0 Q3 K2 V1 K3"}[OPT["order"]]
    full = [("K", 0, i) for i in range(4)] + [("Q", 4, i) for i in range(2)] + [("Q", 0, i) for i in range(4)]
    order = [(x[0], int(x[1]), i) for x in seq.split() for i in range(4)]
    full += order

    def feed(landed):
        r = []
        stage = -1 if landed[1] == 4 else landed[1]
        while order and full.index(order[0]) <= full.index(landed) + OPT["win"]:
            x = order[0]
            if (x[:2] == ("V", 1) and stage < 2) or (x[:2] == ("K", 3) and stage < 3) or (landed == ("Q", 3, 3) and not OPT["lastfeed"]):
                break
            order.pop(0)
            r += qload(x[1], x[2]) if x[0] == "Q" else dma_piece(*x)
        return r
    o += stage_in(4, feed)
    o.append(wait(vm=[("K", 0)], lg="all"))
    o.append(barrier())
    o += stamp(1)
    for s in range(8):
        o.append(kread(0, s, vKr0, R("a", ASP + 4 * s, 4)))
    if a == 0:
        o += stage_read(4)
    for s in range(8):
        o.append(kread(0, s, vKr, R("a", AVF + 4 * s, 4)))
    if a == 0:
        o += stage_compute(4)
    for k in range(4):
        o += stage_in(k, feed)
        o += stamp(11 + k) if k < 1 else []
        o.append(wait(vm=[("K", 1)] if k == 3 else None, lg="all"))
        o.append(barrier())
        if k < 3:
            o += stage_read(k)
            o += stage_compute(k)
    o += stamp(2)
    if OPT["aux"]:
        o.append(salu("s_lshr_b32 s54, s2, 3"))
        o.append(salu("s_lshl_b32 s55, s54, 7"))
        o.append(valu(f"v_lshl_add_u32 {vAuxC}, v0, 12, s55"))
        piece = (32 - OPT["auxt0"]) * 16384 // OPT["auxn"]
        before = len([j for j in range(1, OPT["auxend"] + 1) if (j - OPT["auxend"]) % OPT["auxper"] == 0]) - OPT["auxn"]
        o.append(salu("s_and_b32 s54, s54, 3"))
        o.append(salu(f"s_mul_i32 s54, s54, {piece // 4}"))
        o.append(salu(f"s_add_u32 s54, s54, {(a * piece // 8 - before * piece) & 0xffffffff:#x}"))
        o.append(valu(f"v_and_b32 {vAuxT}, 63, v0"))
        o.append(valu(f"v_cmp_le_u32 vcc, {piece // 1024}, {vAuxT}"))
        o.append(valu(f"v_lshl_add_u32 {vAuxT}, {vAuxT}, 7, s54"))
        o.append(valu(f"v_cndmask_b32 {vAuxT}, {vAuxT}, 2.0, vcc"))
        o.append(salu(f"s_cmp_eq_u32 {sB}, 0"))
        o.append(salu("s_cselect_b32 s88, s16, s20"))
        o.append(salu("s_cselect_b32 s89, s17, s21"))
        o.append(salu(f"s_add_u32 s88, s88, {OPT['auxt0'] * 16384}"))
        o.append(salu("s_addc_u32 s89, s89, 0"))
        o.append(salu(f"s_mov_b32 s90, {(32 - OPT['auxt0']) * 16384}"))
        o.append(salu("s_mov_b32 s91, 0x20000"))
        if OPT["holes"]:
            o.append(salu("s_mov_b64 s[84:85], s[88:89]"))
            o.append(salu("s_mov_b32 s86, 0"))
            o.append(salu("s_mov_b32 s87, 0x20000"))
    return o, order


def finish():
    o = stamp(6)
    if OPT["stamps"]:
        o.append(raw("s_waitcnt vmcnt(0)"))
        o += stamp(7)
        o.append(raw("s_memrealtime s[92:93]"))
        o.append(raw("s_waitcnt lgkmcnt(0)"))
        o.append(raw("s_mov_b32 s96, s56\ns_and_b32 s97, s57, 0xffff\ns_mov_b32 s98, 0x100000\ns_mov_b32 s99, 0x20000"))
        o.append(raw(f"s_lshl_b32 s94, s2, 2\ns_add_u32 s94, s94, {sW}\ns_lshl_b32 s94, s94, 7"))
        for i in range(16):
            o.append(raw(f"v_mov_b32 v{64 + i}, s{60 + 2 * i}"))
        o.append(raw("v_mov_b32 v80, s58\nv_mov_b32 v81, s92\nv_mov_b32 v82, 0\nv_mov_b32 v83, 0\nv_mov_b32 v84, 0"))
        if OPT["prof"]:
            o.append(raw("v_lshlrev_b32 v85, 2, v0\ns_lshl_b32 s95, s2, 10\ns_add_u32 s95, s95, 0x40000\nbuffer_store_dword v127, v85, s[96:99], s95 offen"))
        o.append(raw("s_mov_b64 exec, 1"))
        for i in range(5):
            o.append(raw(f"buffer_store_dwordx4 v[{64 + 4 * i}:{67 + 4 * i}], v84, s[96:99], s94 offen offset:{16 * i}"))
    o.append(raw("s_endpgm"))
    return o


def fallback(a, redo):
    NQ = 5 - a
    M, AD = PP, PP + 8
    o = [label(f"L_fallback{a}")]
    o.append(raw("s_waitcnt vmcnt(0) lgkmcnt(0)"))
    o.append(nop(7))
    o.append(salu("s_mov_b32 s18, 524288"))
    o.append(valu(f"v_and_b32 v{AD}, 15, v0"))
    o.append(valu(f"v_lshlrev_b32 v{AD}, 9, v{AD}"))
    o.append(valu(f"v_bfe_u32 v{AD + 1}, v0, 4, 1"))
    o.append(valu(f"v_lshl_add_u32 v{AD}, v{AD + 1}, 5, v{AD}"))
    o.append(valu(f"v_bfe_u32 v{AD + 1}, v0, 5, 1"))
    o.append(valu(f"v_lshl_add_u32 v{AD}, v{AD + 1}, 4, v{AD}"))
    for t in range(NQ):
        o.append(valu(f"v_mov_b32 v{M + t}, 0xff800000"))
    o.append(salu("s_mov_b32 s54, 0"))
    o.append(label(f"L_fbloop{a}"))
    for s in range(8):
        o.append(vload("buffer_load_dwordx4", Kf(s), f"v{AD}", sK, "s54", 64 * s))
    for t in range(NQ):
        for s in range(8):
            o.append(mfma(S(t), Kf(s), Qf(t, s), "0" if s == 0 else S(t)))
    for t in range(NQ):
        s0 = SS + 4 * t
        o.append(valu(f"v_max3_f32 v{M + t}, v{s0}, v{s0 + 1}, v{M + t}"))
        o.append(valu(f"v_max3_f32 v{M + t}, v{s0 + 2}, v{s0 + 3}, v{M + t}"))
    o.append(salu("s_add_u32 s54, s54, 8192"))
    o.append(salu("s_cmp_lt_u32 s54, 524288"))
    o.append(salu(f"s_cbranch_scc1 L_fbloop{a}"))
    for t in range(NQ):
        o += xlane("v_max_f32", M + t, AD + 1)
        for r in range(4):
            o.append(valu(f"v_sub_f32 v{NEGM + 4 * t + r}, 0, v{M + t}"))
    o.append(salu(f"s_mov_b64 {sKEEP}, -1"))
    o.append(salu(f"s_mov_b32 {sTHR}, -1"))
    o += redo
    o.append(barrier())
    o.append(salu("s_branch L_restart"))
    return o


def ablate(lines, lo, hi):
    ab = OPT["abl"]
    for n in range(lo, hi):
        l = lines[n]
        if (ab & 1 and l.endswith(" lds")) or (ab & 2 and l == "s_barrier") or (ab & 4 and l.startswith("ds_write")) or (ab & 8 and l.startswith("ds_read2")) \
           or (ab & 16 and l.startswith("ds_read_b64_tr")) or (ab & 32 and l.startswith("ds_read_b128")) or (ab & 64 and l.startswith("s_waitcnt")) \
           or (ab & 4096 and l.startswith("v_add_f32")):
            lines[n] = "; ablated"
        if ab & 256 and l.startswith("s_waitcnt vmcnt"):
            lines[n] = "s_waitcnt lgkmcnt(0)"


def build():
    j0, j1 = 1, (25 if OPT["early"] else 29)
    ent, redo = entry()
    text, evs = [], []
    for a in (0, 1):
        pro, rest = prologue(a)
        tr = list(ent) + [raw(";;ROLE")] + pro + [salu(f"s_mov_b32 {sCNT}, {(j1 - j0) // 4}"), raw(";;IV 0")] + start_block(a, rest) + stamp(3)
        for j in range(1, 30):
            tr.append(raw(f";;IV {j}"))
            tr += interval(j, a, f"L_loop{a}" if (j < j1 and (j - j0) % 4 == 3) else None)
        tr.append(raw(";;IV 30"))
        if OPT["prof"]:
            tr.append(raw("s_nop 4\n    v_mov_b32 v1, v21"))
        tr += stamp(4) + final_block(a)
        if OPT["prof"]:
            tr.append(raw("v_mov_b32 v127, v1"))
        tr += finish()
        out, ev, ins = resolve(tr)
        evs += ev
        lines = [x.text for x in out]
        k = lines.index(";;ROLE")
        if a == 0:
            text += lines[:k]
        idx = {j: lines.index(f";;IV {j}") for j in range(31)}
        for pos, w, c in ins:
            if idx[0] < pos and (OPT["show"] >= 0 or idx[1] < pos < idx[30]):
                print(f"; auto-inserted in role {a} @{pos - idx[0]}: {w} before {c}", file=sys.stderr)
        seg = lambda j: lines[idx[j] + 1: idx[j + 1]]
        for j in range(j0 + 4, j1):
            jb = j0 + (j - j0) % 4
            assert len(seg(j)) == len(seg(jb)), f"loop body not periodic at {j} role {a}"
            for n, (x, y) in enumerate(zip(seg(j), seg(jb))):
                if x != y:
                    assert re.sub(r"\d+", "", x) == re.sub(r"\d+", "", y) and x.startswith("s_waitcnt"), (j, a, x, y)
                    it = iter(min(int(p), int(q)) for p, q in zip(re.findall(r"\d+", x), re.findall(r"\d+", y)))
                    lines[idx[jb] + 1 + n] = re.sub(r"\d+", lambda m: str(next(it)), x)
        if OPT["abl"]:
            ablate(lines, idx[1], idx[30])
        text += lines[k + 1: idx[j0]]
        text.append(f".p2align {OPT['lalign']}")
        text.append(f"L_loop{a}:")
        text += lines[idx[j0]: idx[j0 + 4]]
        text += lines[idx[j1]:]
        fb, _, _ = resolve(fallback(a, redo))
        text += [x.text for x in fb]
    assert check_lds(evs) == 0
    hdr = open("header.txt").read()
    body = "\n".join(("" if l.endswith(":") or l.startswith(".") else "    ") + l.replace(";;IV", "; interval") for l in text)
    return f"""{hdr}; @launch grid=(256,1,1) block=(256,1,1) lds={LDS_BYTES}
.amdgcn_target "amdgcn-amd-amdhsa--gfx950"
.text
.globl {KN}
.p2align 8
.type {KN},@function
{KN}:
{body}
L_end:
    s_endpgm
.section .rodata,"a"
.p2align 6
.amdhsa_kernel {KN}
  .amdhsa_next_free_vgpr 512
  .amdhsa_next_free_sgpr 102
  .amdhsa_accum_offset 256
  .amdhsa_group_segment_fixed_size 0
  .amdhsa_kernarg_size 48
  .amdhsa_user_sgpr_count 2
  .amdhsa_user_sgpr_kernarg_segment_ptr 1
  .amdhsa_system_sgpr_workgroup_id_x 1
.end_amdhsa_kernel
"""


if __name__ == "__main__":
    for kv in sys.argv[1:]:
        k, v = kv.split("=", 1)
        if k.startswith("pol"):
            OPT[k] = "".join(" " + x for x in v.split("+") if x and x != "d")
        else:
            OPT[k] = int(v)
    print(build())
```

```python
import sys, struct, math, re
from asmlib import *
from sched import Block

KN = "standalone__gqa_softmax__near_ridge_kernel"
OPT = dict(abl=0, pol_kv="", pol_q=" nt", pol_o=" sc0 sc1", stamps=0, prof=0, show=-1, thr=30,
           dma0=1, dmastep=8, dmastag=4, klead=2, walign=0, wq=1, feed0=4, feedl=1, prefeed=3,
           bar0=32, barv=34, barl=62, lalign=3, lazy=16, order=1, win=11, aux=1, early=3, sdma0=33, lastfeed=0, rwin=1, pf31=0, holes=0, holew=1, auxper=2, auxn=4, auxend=24, auxt0=28, nfast=3, nin=2)

PXA = 10240
KRING = 3 * PXA
SLOT = 16640
VRING = KRING + 4 * SLOT
LDS_BYTES = VRING + 4 * SLOT

sQ, sK, sV, sO, sC = "s[12:15]", "s[16:19]", "s[20:23]", "s[24:27]", "s[44:47]"
sW, sA, sB, sCNT, sKo, sVo, sKm, sVm, sPm, sMASK = "s28", "s29", "s30", "s31", "s32", "s33", "s34", "s35", "s36", "s39"
sSC, sKEEP = "s[40:41]", "s[42:43]"
sT = ["0", "s48", "s49", "s50", "s51"]
sT8 = ["s4", "s5", "s6", "s7", "s8"]
sX, sTHR = "s38", "s52"
vKr, vV0, vV1, vKd, vVd, vPr, vPr2 = "v1", "v2", "v3", "v4", "v5", "v6", "v7"
vL = [8, 9, 10, 11, 12]
vO, vEw, vEr = "v13", "v22", "v23"
PXT = 14
TMP = 16
vAuxC, vAuxT, vAuxD, vAuxD2, sP = "v18", "v19", "v20", "v17", "s[88:91]"
NEGM, SS, PP, OO = 24, 44, 64, 128
SCT = 80
vQl, vQlx, vQw, vQw2, vQwx, vQr, vQr2, vQrx, vKr0 = (f"v{96 + i}" for i in range(9))
RAWX, SPRE = 112, 120
LP, FLG, RL = 24, 30, 34
AQ, AX, AKF, AVF, ASP = 0, 128, 160, 192, 224


def Qf(t, s):
    return R("a", (AQ + 32 * t if t < 4 else AX) + 4 * s, 4)


def Kf(s):
    return R("a", AKF + 4 * s, 4)


def S(t):
    return R("v", SS + 4 * t, 4)


def Ng(t):
    return R("v", NEGM + 4 * t, 4)


def Pown(j, t):
    return PP + 16 * (j % 4) + 4 * t if t < 4 else PXT


def Pop(j, t):
    return R("v", PP + 16 * (j % 4) + 4 * t, 4) if t < 4 else R("a", ASP + 4 * (j % 4), 4)


def O(t, dt):
    return R("v", OO + 32 * t + 4 * dt, 4) if t < 4 else R("a", AX + 4 * dt, 4)


def RAW(k, i):
    return OO + 32 * k + 4 * i


def where(kind, tile):
    if OPT["early"] and kind == "V" and tile >= 30:
        return (("K", 0), 32) if tile == 30 else (("V", 2), 31)
    return ((kind, tile % 4), tile)


def tdma(kind, tile, i):
    reg = where(kind, tile)
    off = reg[0][1] * SLOT + i * 1568 - (4 * SLOT if reg[0][0] != kind else 0)
    m, v, srd, so = (sKm, vKd, sK, sKo) if kind == "K" else (sVm, vVd, sV, sVo)
    return (salu(f"s_add_u32 m0, {m}, {off}" if off >= 0 else f"s_sub_u32 m0, {m}, {-off}"),
            dma(v, srd, so, 512 * i, OPT["pol_kv"], reg, (kind, tile)))


def bump(kind):
    so = sKo if kind == "K" else sVo
    return salu(f"s_add_u32 {so}, {so}, 16384")


def dma_piece(kind, tile, i):
    return list(tdma(kind, tile, i)) + ([bump(kind)] if i == 3 else [])


def kread(tile, s, addr=vKr, dst=None):
    slot = tile % 4
    return ds_read("ds_read_b128", dst or Kf(s), addr, f"offset:{slot * SLOT + 64 * s}", (("K", slot), tile))


def vread(tile, dt, u, frag):
    reg = where("V", tile)
    base = (vV0, vV1) if reg[0][0] == "V" else (vKd, vVd)
    return ds_read("ds_read_b64_tr_b16", R("a", frag + 2 * u, 2), base[u], f"offset:{reg[0][1] * SLOT + 32 * dt}", reg)


def pwrite(j, t, h):
    par = j % 2
    return ds_write("ds_write_addtid_b32", None, f"v{Pown(j, t) + h}", f"offset:{par * PXA + (2 * t + h) * 256}", (("P", par), j))


def preads(j, a):
    par = j % 2
    o = []
    for t in range(4):
        n = par * 40 + a * 20 + 2 * t
        o.append((t, ds_read("ds_read2st64_b32", R("v", Pown(j, t) + 2, 2), vPr, f"offset0:{n} offset1:{n + 1}", (("P", par), j))))
    if a == 1:
        n = par * 40 + 8
        for u in range(2):
            o.append((4, ds_read("ds_read2st64_b32", R("a", ASP + 4 * (j % 4) + 2 * u, 2), (vPr2, vPr)[u], f"offset0:{n} offset1:{n + 1}", (("P", par), j))))
    return o


def msetter():
    return salu(f"s_mov_b32 m0, {sPm}")


def stamp(idx):
    return [raw(f"s_memtime s[{60 + 2 * idx}:{61 + 2 * idx}]")] if OPT["stamps"] else []


def xlane(op, reg, tmp):
    o = []
    for sw in ("v_permlane32_swap_b32", "v_permlane16_swap_b32"):
        o.append(valu(f"v_mov_b32 v{tmp}, v{reg}"))
        o.append(valu(f"{sw} v{tmp}, v{reg}"))
        o.append(valu(f"{op} v{reg}, v{tmp}, v{reg}"))
    return o


def chain_ops(b, seq, lo, dl, first_deps=(), hard=None):
    prev = None
    for n, ins in enumerate(seq):
        deps = list(first_deps) if prev is None else [(prev, 2 if ins.kind == "perm" else 1)]
        prev = b.op(ins, "exp" if ins.kind == "trans" else "valu", lo, dl + n, deps, hard=hard)
    return prev


def add_qk(b, a, j):
    ends = []
    for t in range(5 - a):
        for s in range(8):
            k = b.mfma(mfma(S(t), Kf(s), Qf(t, s), Ng(t) if s == 0 else S(t)))
        ends.append(k)
    return ends


def add_pv(b, a, tiles, h, frags, lo, zero=False, tmajor=False, lastuse=None, have=()):
    NP = 4 + a
    order = [(d, t) for t in range(NP) for d in range(4)] if tmajor else \
            [(d, t) for d in range(4) for t in (range(NP) if d % 2 == 0 else reversed(range(NP)))]
    first, done, pfirst = {}, {}, {}
    war = dict(lastuse) if lastuse is not None else {}
    for d, t in order:
        for n, j in enumerate(tiles):
            k = b.mfma(mfma(O(t, 4 * h + d), R("a", frags[d][n], 4), Pop(j, t), "0" if zero and n == 0 else O(t, 4 * h + d)))
            first.setdefault((d, n), k)
            pfirst.setdefault((j, t), k)
            done[(t, 4 * h + d)] = k
            if lastuse is not None:
                lastuse[frags[d][n]] = k
    for d in range(4):
        for n, j in enumerate(tiles):
            for u in range(2 if j not in have else 0):
                f = first[(d, n)]
                b.op(vread(j, 4 * h + d, u, frags[d][n]), "ds", max(lo[j], war.get(frags[d][n], 0)), f - 10 + u, hard=f - 3)
    return done, pfirst


def add_softmax(b, a, j, ends, pub, defer, adds_by=None):
    NQ = 5 - a
    wa = OPT["walign"]
    adds = {}
    for t in range(NQ):
        base = ends[t] + 4
        late = pub - 7 - 5 * (NQ - 1 - t)
        ex = [b.op(valu(f"v_exp_f32 v{SS + 4 * t + r}, v{SS + 4 * t + r}"), "exp", base, (base - 300 if wa else min(base + 10, late - 8)) + r, hard=pub - 6) for r in range(4)]
        for h in range(2):
            c = b.op(valu(f"v_cvt_pk_bf16_f32 v{Pown(j, t) + h}, v{SS + 4 * t + 2 * h}, v{SS + 4 * t + 2 * h + 1}"), "valu", 0, (base - 50 if wa else late - 3) + h, ex[2 * h:2 * h + 2], hard=pub - 4)
            b.op(pwrite(j, t, h), "ds", base + 6 + h if wa else 0, (base - 200 if wa else late - 1) + h, [c], hard=pub - 3, m0="p", setter=msetter())
        if t not in defer:
            for r in range(4):
                adds[t] = b.op(valu(f"v_add_f32 v{vL[t]}, v{SS + 4 * t + r}, v{vL[t]}"), "valu", 0, (pub if adds_by is None else min(base + 12, adds_by)) + r, [ex[r]] + ([(adds[t], 0)] if t in adds else []),
                               hard=(pub if adds_by is None else adds_by))
    return adds


def add_deferred(b, a, ends):
    for t in deferred(a):
        for r in range(4):
            b.op(valu(f"v_add_f32 v{vL[t]}, v{SS + 4 * t + r}, v{vL[t]}"), "valu", 0, ends[t] - 16 + r, hard=ends[t] - 8)


def deferred(a):
    return [3 - a, 4 - a]


def add_dma(b, a, pieces, g0, step, G, lo=None):
    dops = []
    for n, (kind, tile, i) in enumerate(pieces):
        st, d = tdma(kind, tile, i)
        e = int(g0 + step * n)
        if lo and (kind, tile) in lo:
            e = max(e, lo[(kind, tile)])
        o = b.op(d, "dma", e, e - 100, [(dops[-1][0], 2)] if dops else [], hard=G - 3, m0=("d", n), setter=st)
        dops.append((o, kind, tile, i))
    for o, kind, tile, i in dops:
        if i == 3:
            nxt = [x for x, k, tl, _ in dops if k == kind and tl > tile]
            b.scalar(bump(kind), (lambda o=o: o.gap + 1), (lambda nxt=nxt: nxt[0].gap - 1) if nxt else G - 4)
    return dops


def prof_hooks(out):
    if OPT["prof"]:
        k = max(n for n, x in enumerate(out) if x.kind == "barrier")
        out.insert(k, raw("v_writelane_b32 v21, s100, m0"))
        out.insert(k - 1, raw("s_mov_b32 m0, s3"))
        mk = [n for n, x in enumerate(out[:k]) if x.kind == "mfma"]
        out.insert(mk[22] + 1, raw("s_memtime s[100:101]" if OPT["prof"] == 1 else "s_memrealtime s[100:101]"))
        out.insert(mk[2] + 1, raw("s_add_u32 s3, s3, 1"))
    return out


TMPL = {
    1: ["RDRRRRRR RRDRRRdE E.EDEWEE WEEDEWEW EEWEDEWE EWWEED.E EWW..RDR RRRRRRRD RRRRdRRR",
        "RRRRRDRR RRRRRRDR EE.EEWED EWEEWEEW .DEEWEEW E.DEW.W. d.D..RRR RRRDRRRR RdRDRRRR"],
    2: ["RDRRRRRR RRDRRRdE E.EDEWEE WEEDEWEW EEWEDEWE EWWEED.E EWW.RRDR RRRRRRRD RRRRd.RR",
        "RRRRRDRR RRRRRRDR EE.EEWED EWEEWEEW .DEEWEEW E.DEW.W. d.DRRRRR RRRDRRRR RdRD..RR"],
    3: ["RDRRRRRR RRDRRREE EE.DEWWE EE.DEWWE EE.DEWWE EE.EWWED EE.WW.DR RRRRRRRD RRRRRRRR",
        "RRRRRDRR RRRRRRDR EEEE.WWE DEEE.WWE EDEE.WWE E.DEE.WW d.D.d.RR RRRDRRRR RRRDRRRR"],
}
FOLD = [AVF + 8 * d for d in range(4)]
FNEW = [AVF + 8 * d + 4 for d in range(4)]


def add_old_reads(b, j, lu, lo, G):
    for d in range(4):
        for u in range(2):
            b.op(vread(j, 4 * ((j + 1) % 2) + d, u, FOLD[d]), "ds", max(lo, lu.get(FOLD[d], 0)), G + 2 * d + u, hard=G - 1)


def interval(j, a, loop_end=None):
    b = Block(f"interval {j} role {a}", wq=OPT["wq"] if OPT["walign"] else 0, wprio=bool(OPT["walign"]))
    ends = add_qk(b, a, j + 1)
    lu = {}
    if j <= 28:
        done, pfirst = add_pv(b, a, [j - 1, j], j % 2, [[FOLD[d], FNEW[d]] for d in range(4)], {j: 0}, lastuse=lu, have=[j - 1])
        b.carry = [f"a{x + i}" for x in FOLD for i in range(4)]
    else:
        done, pfirst = add_pv(b, a, [j], 0, [[AVF + 4 * d] for d in range(4)], {j: 0})
    G = len(b.mf)
    if j <= 27:
        add_old_reads(b, j, lu, 0, G)
    for t, ins in preads(j, a):
        b.op(ins, "ds", 0, pfirst[(j, t)] - 10, hard=pfirst[(j, t)] - 3)
    for s in range(8):
        b.op(kread(j + 2, s), "ds", ends[-1] - 7 + s, G - 18 + s, hard=G - 3)
    kl = OPT["klead"]
    T = lambda kind, tile, r=range(4): [(kind, tile, i) for i in r]
    pieces = T("V", j + 2) + (T("K", j + 2 + kl) if j <= 28 else [])
    step = OPT["dmastep"]
    if OPT["early"] and j >= 25:
        if OPT["early"] == 1:
            pieces = {25: T("V", 27) + T("K", 29) + T("K", 30, [0]), 26: T("V", 28) + T("K", 30, [1, 2, 3]) + T("K", 31, [0, 1]),
                      27: T("V", 29) + T("K", 31, [2, 3]) + T("V", 30), 28: T("V", 31), 29: []}[j]
        elif OPT["early"] == 2:
            pieces = {25: T("V", 27) + T("K", 29), 26: T("V", 28) + T("K", 30), 27: T("V", 29) + T("K", 31), 28: T("V", 30) + T("V", 31), 29: []}[j]
        else:
            pieces = {25: T("V", 27) + T("K", 29) + T("K", 30, [0]), 26: T("V", 28) + T("K", 30, [1, 2, 3]) + T("K", 31, [0, 1]),
                      27: T("V", 29) + T("K", 31, [2, 3]) + T("V", 30, [0, 1, 2]), 28: T("V", 30, [3]) + T("V", 31), 29: []}[j]
        step = {25: 7, 26: 7, 27: 6, 28: 4, 29: 4}[j]
    dops = add_dma(b, a, pieces, OPT["dma0"] + a * min(OPT["dmastag"], step // 2), step, G)
    if OPT["early"] and j == 29:
        b.op(valu(f"v_subrev_u32 {vKd}, {4 * SLOT}, {vV0}"), "valu", 0, G, hard=G - 1)
        b.op(valu(f"v_subrev_u32 {vVd}, {4 * SLOT}, {vV1}"), "valu", 0, G, hard=G - 1)
    if OPT["early"] and j == OPT["pf31"]:
        x = chain_ops(b, [valu(f"v_and_b32 {vAuxT}, 7, v0"), valu(f"v_lshl_add_u32 {vAuxT}, {vAuxT}, 7, s37")], 0, -95)
        b.op(vload("buffer_load_dword", vAuxD, vAuxT, sV, "0"), "st", 0, -90, [x], hard=40)
    if not OPT["early"] and j <= 28 and j % 4 == (30 - kl) % 4:
        kf = [o for o, k, _, _ in dops if k == "K"][0]
        vl = [o for o, k, _, _ in dops if k == "V"][-2]
        pair = raw(f"s_cmp_eq_u32 {sCNT}, 1\n    s_cselect_b32 s18, 0, s18")
        b.scalar(pair, (lambda: vl.gap + 1), (lambda: kf.gap - 2))
    if j <= 24 and j % 4 == OPT.get("auxj", 1) and OPT["aux"] & 1:
        b.op(vload("buffer_load_dword", vAuxD, vAuxC, sC, "0"), "st", 3, -90, hard=40)
    if j <= 28 and (j - OPT["auxend"]) % OPT["auxper"] == 0 and OPT["aux"] & 2:
        x = b.op(vload("buffer_load_dword", vAuxD2, vAuxT, sP, "0"), "st", 5 - 4 * a, -90, hard=40)
        b.op(valu(f"v_add_u32 {vAuxT}, {(32 - OPT['auxt0']) * 16384 // OPT['auxn']:#x}, {vAuxT}"), "valu", 0, G, [x], hard=G - 1)
    nh = OPT["holes"] % 10 if a == 0 else OPT["holes"] // 10
    for n in range(nh if j <= 28 else 0):
        ref = dops[min(6, (2 * n + 1) * 8 // (2 * nh) - 1 + (1 if nh < 4 else 0))][0]
        w = OPT["holew"]
        b.op(vload("buffer_load_dword" + ("" if w == 1 else f"x{w}"), "v20" if w == 1 else R("a", 252, w), vAuxT, "s[84:87]", "0"), "st", 0, -95, [(ref, 2)], hard=G - 12)
    add_deferred(b, a, ends)
    add_softmax(b, a, j + 1, ends, G - 1, deferred(a))
    if OPT["rwin"] and j <= 28:
        tm = TMPL[OPT["rwin"]][a].replace(" ", "")
        assert len(tm) == 72, len(tm)
        nd = len([o for o in b.ops if o.cls in ("dma", "st")])
        b.tmpl = tm.replace("d", "D", max(0, nd - 8) if nd > 4 else 1).replace("d", ".")
        for o in b.ops:
            if o.cls == "dma" or o.ins.kind == "dsw":
                o.lo = 0
            if o.ins.text.startswith("v_cvt"):
                o.dl -= 200
    vm = [("V", j + 1)] + ([("K", j + 3)] if j + 3 <= 31 else [])
    if OPT["early"] and j == 29:
        vm.append(("V", 31))
    b.barrier(G - 1, vm, ["w"] + [f"a{AKF + i}" for i in range(32)])
    if loop_end:
        b.scalar(salu(f"s_sub_u32 {sCNT}, {sCNT}, 1"), 20, G - 4)
        b.scalar(salu(f"s_cmp_lg_u32 {sCNT}, 0"), G - 3, G - 3)
    out, _ = b.schedule(show=OPT["show"] == j)
    out = prof_hooks(out)
    if loop_end:
        out.append(salu(f"s_cbranch_scc1 {loop_end}"))
    return out


def softmax0_ops(b, t, e_pre, e_c0, pub):
    seq = [valu(f"v_max3_f32 v{TMP}, v{SPRE}, v{SPRE + 1}, v{SPRE + 2}"), valu(f"v_max_f32 v{TMP}, v{TMP}, v{SPRE + 3}")] + xlane("v_max_f32", TMP, TMP + 1)
    last = chain_ops(b, seq, e_pre + 5, -500)
    cm = [b.op(valu(f"v_cndmask_b32 v{NEGM + 4 * t + r}, -v{TMP}, v{NEGM + 4 * t + r}, {sKEEP}"), "valu", 0, -480 + 10 * r, [last]) for r in range(4)]
    s0 = SS + 4 * t
    ex = []
    for r in range(4):
        ad = b.op(valu(f"v_add_f32 v{s0 + r}, v{s0 + r}, v{NEGM + 4 * t}"), "valu", e_c0 + 5, -478 + r, [cm[0]])
        ex.append(b.op(valu(f"v_exp_f32 v{s0 + r}, v{s0 + r}"), "exp", 0, -470 + r, [ad]))
    for h in range(2):
        c = b.op(valu(f"v_cvt_pk_bf16_f32 v{Pown(0, t) + h}, v{s0 + 2 * h}, v{s0 + 2 * h + 1}"), "valu", 0, -465 + h, ex[2 * h:2 * h + 2])
        b.op(pwrite(0, t, h), "ds", 0, -460 + h, [c], hard=pub - 3, m0="p", setter=msetter())
    return ex


def start_block(a, rest):
    b = Block(f"start role {a}")
    save = OPT["walign"]
    OPT["walign"] = 0
    qr, kr = stage_read(3), [kread(1, s) for s in range(8)]
    b.pre = qr + kr
    for _ in range(min(OPT["prefeed"], len(rest))):
        b.pre += dma_piece(*rest.pop(0))
    SP = R("v", SPRE, 4)
    for s in range(8):
        e_pre = b.mfma(mfma(SP, R("a", ASP + 4 * s, 4), Qf(3, s), "0" if s == 0 else SP))
    for s in range(8):
        e_c0 = b.mfma(mfma(S(3), R("a", AVF + 4 * s, 4), Qf(3, s), "0" if s == 0 else S(3)))
    ends = add_qk(b, a, 1)
    bar = OPT["bar0"]
    done, pfirst = add_pv(b, a, [0], 0, [[FNEW[d]] for d in range(4)], {0: bar}, zero=True)
    G = len(b.mf)
    add_old_reads(b, 0, {}, bar, G)
    ex = softmax0_ops(b, 3, e_pre, e_c0, bar)
    for r in range(4):
        b.op(valu(f"v_add_f32 v{vL[3]}, v{SS + 12 + r}, v{vL[3]}"), "valu", 0, ends[3] - 20 + r, [ex[r]], hard=ends[3] - 8)
    for t, ins in preads(0, a):
        b.op(ins, "ds", bar, pfirst[(0, t)] - 10, hard=pfirst[(0, t)] - 3)
    for s in range(8):
        b.op(kread(2, s), "ds", max(bar, ends[-1] - 7 + s), G - 14 + s, hard=G - 3)
    pieces = rest + [("V", 2, i) for i in range(4)] + [("K", 4, i) for i in range(4)]
    if OPT["klead"] == 3:
        pieces += [("K", 5, i) for i in range(4)]
    add_dma(b, a, pieces, OPT["sdma0"], (G - 7 - OPT["sdma0"]) / len(pieces), G, lo={("K", 5): bar + 1})
    add_softmax(b, a, 1, ends, G - 1, deferred(a))
    b.barrier(bar, [("V", 0), ("K", 2)])
    b.barrier(G - 1, [("V", 1), ("K", 3)], ["w"] + [f"a{AKF + i}" for i in range(32)])
    if OPT["stamps"] == 1:
        b.inserts[0] = stamp(12)
        b.inserts[bar - 2] = stamp(13)
        b.inserts[bar] = stamp(9)
        b.inserts[G - 3] = stamp(10)
    out, _ = b.schedule(show=OPT["show"] == 0)
    OPT["walign"] = save
    return prof_hooks(out)


def unit_instrs(a, t, h, n, packed):
    va, wr = [], []
    for d in range(4):
        dt = 4 * h + d
        x = OO + 32 * t + 4 * dt if t < 4 else SS + 4 * d
        seq = []
        if t == 4:
            seq += [valu(f"v_accvgpr_read_b32 v{x + i}, a{AX + 4 * dt + i}") for i in range(4)]
        if packed:
            seq += [valu(f"v_pk_mul_f32 {R('v', x + 2 * i, 2)}, {R('v', x + 2 * i, 2)}, {R('v', RL + 2 * t, 2)} op_sel_hi:[1,0]") for i in range(2)]
        else:
            seq += [valu(f"v_mul_f32 v{x + i}, v{x + i}, v{RL + 2 * t}") for i in range(4)]
        seq += [valu(f"v_cvt_pk_bf16_f32 v{x + i}, v{x + 2 * i}, v{x + 2 * i + 1}") for i in range(2)]
        va.append(seq)
        wr.append(ds_write("ds_write_b64", vEw, R("v", x, 2), f"offset:{32 * d}", (("K", 1), 99)))
    rd, st = [], []
    for i in range(2):
        q = R("a", ASP + 16 + 8 * (n % 2) + 4 * i, 4)
        rd.append(ds_read("ds_read_b128", q, vEr, f"offset:{8 * 144 * i}"))
        st.append(vstore("buffer_store_dwordx4", q, vO, sO, (sT, sT8)[i][t], 128 * h, OPT["pol_o"]))
    return va, wr, rd, st


def final_block(a):
    NQ, NP = 5 - a, 4 + a
    b = Block(f"final role {a}")
    b.lazy = OPT["lazy"]
    save = OPT["walign"]
    OPT["walign"] = 0
    barv, barl = OPT["barv"], OPT["barl"]
    ends = add_qk(b, a, 31)
    lu = {AKF + 4 * s: ends[-1] - 7 + s for s in range(8)}
    F = lambda i: AVF + 4 * i
    KF = lambda i: AKF + 4 * i
    lo = {28: 0, 29: 0, 30: 0, 31: 0 if OPT["early"] else barv}
    _, pf = add_pv(b, a, [30], 0, [[F(d)] for d in range(4)], lo, lastuse=lu)
    for t, ins in preads(30, a):
        b.op(ins, "ds", 0, pf[(30, t)] - 10, hard=pf[(30, t)] - 3)
    add_pv(b, a, [28], 1, [[F(4 + d)] for d in range(4)], lo, lastuse=lu)
    done0, pf = add_pv(b, a, [31], 0, [[KF(d)] for d in range(4)], lo, tmajor=True, lastuse=lu)
    for t, ins in preads(31, a):
        b.op(ins, "ds", barl, pf[(31, t)] - 12, hard=pf[(31, t)] - 3)
    done1, _ = add_pv(b, a, [29, 30, 31], 1, [[KF(4), KF(5), KF(6)], [F(0), F(1), F(2)], [F(3), F(4), F(5)], [F(6), F(7), KF(7)]], lo, lastuse=lu)
    G = len(b.mf)
    add_deferred(b, a, ends)
    adds = add_softmax(b, a, 31, ends, barl, [], adds_by=barl - 7)
    L = (("L", 0), 0)
    early = (0, 1, 2)
    fin = dict(adds)
    for t in early:
        fin[t] = chain_ops(b, xlane("v_add_f32", vL[t], TMP + 1 + t), 0, ends[t] + 24, [adds[t]], hard=barl - 5)
    for t in range(NQ):
        b.op(ds_write("ds_write_addtid_b32", None, f"v{vL[t]}", f"offset:{2 * PXA + t * 256}", L), "ds", 0, barl - 8, [fin[t]], hard=barl - 3, m0="p", setter=msetter())
    w1 = b.op(valu(f"v_max3_u32 v{TMP}, v{vL[0]}, v{vL[1]}, v{vL[2]}"), "valu", 0, barl - 12, [fin[0], fin[1], fin[2]], hard=barl - 5)
    w2 = b.op(valu(f"v_max3_u32 v{TMP}, v{TMP}, v{vL[3]}, v{vL[NQ - 1]}"), "valu", 0, barl - 11, [w1, fin[3], fin[NQ - 1]], hard=barl - 4)
    b.op(ds_write("ds_write_addtid_b32", None, f"v{TMP}", f"offset:{2 * PXA + 5 * 256}", L), "ds", 0, barl - 9, [w2], hard=barl - 3, m0="p", setter=msetter())
    if not OPT["early"]:
        b.barrier(barv, [("V", 31)])
    b.barrier(barl, None)
    base = 80
    X = max(done0.values())
    lr = {}
    for t in (0, 2):
        lr[t] = lr[t + 1] = b.op(ds_read("ds_read2st64_b32", R("v", LP + t, 2), vPr, f"offset0:{base + a * 20 + t} offset1:{base + a * 20 + t + 1}", L), "ds", barl, barl + 1 + t)
    f1 = b.op(ds_read("ds_read2st64_b32", R("v", FLG, 2), vPr, f"offset0:{base + 5} offset1:{base + 25}", L), "ds", barl, barl + 12)
    f2 = b.op(ds_read("ds_read2st64_b32", R("v", FLG + 2, 2), vPr2, f"offset0:{base + 5} offset1:{base + 25}", L), "ds", barl, barl + 13)
    if a == 1:
        x1 = b.op(ds_read("ds_read_b32", f"v{LP + 4}", vPr, f"offset:{(base + 4) * 256}", L), "ds", barl, barl + 9)
        lr[4] = b.op(ds_read("ds_read_b32", f"v{vL[4]}", vPr2, f"offset:{(base + 4) * 256}", L), "ds", barl, barl + 10, [x1])
    ck = chain_ops(b, [valu(f"v_max3_u32 v{FLG}, v{FLG}, v{FLG + 1}, v{FLG + 2}"), valu(f"v_max_u32 v{FLG}, v{FLG}, v{FLG + 3}"), valu(f"v_cmp_lt_u32 vcc, {sTHR}, v{FLG}")],
                   0, barl + 22, [(f1, 6), (f2, 6)], hard=X - 1)
    if not OPT["abl"]:
        b.scalar(salu(f"s_cbranch_vccnz L_fallback{a}"), (lambda: ck.gap + 1), X)
    rl = {}
    for t in range(NP):
        seq = [valu(f"v_add_f32 v{vL[t]}, v{vL[t]}, v{LP + t}")] + ([] if t in early else xlane("v_add_f32", vL[t], TMP + 1 + t)) + [valu(f"v_rcp_f32 v{RL + 2 * t}, v{vL[t]}")]
        rl[t] = chain_ops(b, seq, 0, barl + 4 + 2 * t, [(lr[t], 6)], hard=X)
    units = [(t, 0) for t in range(NP)] + [(t, 1) for t in range(NP)]
    nfast = min(OPT["nfast"], NP)
    nin = min(OPT["nin"], NP - nfast)

    def straight(lst, pend):
        o = []
        for n, (t, h) in lst:
            va, wr, rd, st = unit_instrs(a, t, h, n, True)
            for k in range(len(va[0])):
                o += [va[d][k] for d in range(4)]
            o += pend
            o += wr + rd
            pend = st
        return o, pend
    en = list(enumerate(units))
    b.inserts[X], pend = straight(en[:nfast], [])
    if OPT["stamps"] == 2:
        b.inserts[barl - 2] = stamp(12)
        b.inserts[barl] = stamp(13)
        b.inserts[X] = stamp(9) + b.inserts[X] + stamp(10)
    prev_rd, prev_st = [], {}
    if nfast:
        prev_st[(nfast - 1) % 2] = [b.op(x, "st", X + 6 + i, X + i, hard=G - 1) for i, x in enumerate(pend)]
    for n, (t, h) in en[nfast:nfast + nin]:
        va, wr, rd, st = unit_instrs(a, t, h, n, False)
        p0 = X + 4 + 22 * (n - nfast)
        wops = []
        for d in range(4):
            nv = len(va[d])
            pr = [b.op(x, "valu", max(X + 1, done0[(t, d)] + 5), p0 + 4 * d, prev_rd) for x in va[d][:nv - 6]]
            mu = [b.op(x, "valu", max(X + 1, done0[(t, d)] + 5), p0 + 4 * d + i // 2, [rl[t]] + pr[i:i + 1]) for i, x in enumerate(va[d][nv - 6:nv - 2])]
            c0 = b.op(va[d][nv - 2], "valu", 0, p0 + 4 * d + 2, mu[:2])
            c1 = b.op(va[d][nv - 1], "valu", 0, p0 + 4 * d + 2, mu[2:] + [(c0, 0)])
            wops.append(b.op(wr[d], "solo", 0, p0 + 4 * d + 3, [c0, c1] + prev_rd))
        prev_rd = [b.op(rd[i], "ds", 0, p0 + 17 + i, wops + prev_st.get(n % 2, [])) for i in range(2)]
        prev_st[n % 2] = [b.op(st[i], "st", 0, p0 + 19 + i, [(prev_rd[i], 6)]) for i in range(2)]
    out, left = b.schedule(show=OPT["show"] == 31, leftover_ok=True)
    OPT["walign"] = save
    out += stamp(5)
    pend = []
    for o in left:
        if o.ins.kind == "vst":
            pend.append(o.ins)
        else:
            if any(o.ins.wr & x.rd for x in pend):
                out += pend
                pend = []
            out.append(o.ins)
    o2, pend = straight(en[nfast + nin:], pend)
    return out + o2 + pend


def qload(k, i):
    return [vload("buffer_load_dwordx4", R("v", RAW(k, i), 4), vQl, sQ, sT[k], 512 * i, OPT["pol_q"])]


def entry():
    o = []
    A = lambda t: o.append(salu(t))
    V = lambda t: o.append(valu(t))
    t0, t1, t2, t3, t4 = (f"v{TMP + i}" for i in range(5))
    A("s_cmp_ge_u32 s2, 256")
    A("s_cbranch_scc1 L_end")
    o.append(raw("s_load_dwordx8 s[4:11], s[0:1], 0"))
    if OPT["stamps"]:
        o.append(raw("s_load_dwordx2 s[56:57], s[0:1], 40"))
        o.append(raw("s_memrealtime s[58:59]"))
    o += stamp(0)
    o.append(raw("s_getpc_b64 s[44:45]"))
    o.append(label("L_pc"))
    A("s_and_b32 s45, s45, 0xffff")
    o.append(raw("s_mov_b32 s46, L_end-L_pc"))
    A("s_mov_b32 s47, 0x20000")
    A("s_lshr_b32 s54, s2, 3")
    A("s_lshl_b32 s55, s54, 7")
    V(f"v_lshl_add_u32 {t0}, v0, 12, s55")
    o.append(vload("buffer_load_dword", "v126", t0, sC, "0"))
    V(f"v_lshrrev_b32 {t1}, 6, v0")
    A(f"s_mov_b64 {sKEEP}, 0")
    V(f"v_readfirstlane_b32 {sW}, {t1}")
    A(f"s_mov_b32 {sTHR}, {(127 + OPT['thr']) << 23:#x}")
    if OPT["prof"]:
        A("s_mov_b32 s3, 0")
    A("s_and_b32 s53, s2, 7")
    A("s_lshl_b32 s53, s53, 3")
    A("s_lshr_b32 s55, s2, 5")
    A("s_add_u32 s53, s53, s55")
    A("s_and_b32 s54, s54, 3")
    A("s_lshl_b32 s55, s53, 2")
    A("s_add_u32 s55, s55, s54")
    A("s_mul_i32 s37, s55, 73728")
    A("s_lshl_b32 s53, s53, 19")
    A(f"s_lshr_b32 {sA}, {sW}, 1")
    A(f"s_and_b32 {sB}, {sW}, 1")
    A(f"s_add_u32 s54, {sW}, 1")
    A("s_and_b32 s55, s54, 1")
    A("s_lshl_b32 s55, s55, 3")
    A("s_lshr_b32 s54, s54, 1")
    A("s_and_b32 s54, s54, 1")
    A("s_add_u32 s54, s54, s55")
    A("s_mul_i32 s54, s54, 1040")
    A(f"s_add_u32 {sKm}, s54, {KRING}")
    A("s_mov_b32 s48, 8192")
    A("s_mov_b32 s49, 16384")
    A("s_mov_b32 s50, 24576")
    A(f"s_mov_b32 {sX}, 65536")
    for srd, n in ((16, 524288), (12, 73728), (20, 524288), (24, 73728)):
        A(f"s_mov_b32 s{srd + 2}, {n}")
        A(f"s_mov_b32 s{srd + 3}, 0x20000")

    def src_offsets():
        V(f"v_and_b32 {t0}, 31, v0")
        V(f"v_lshlrev_b32 {t0}, 4, {t0}")
        V(f"v_bfe_u32 {t2}, v0, 5, 1")
        A(f"s_lshl_b32 s54, {sW}, 11")
        V(f"v_add_u32 {t1}, s54, {t0}")
        V(f"v_lshl_add_u32 {vKd}, {t2}, 13, {t1}")
        V(f"v_lshl_add_u32 {vQl}, {t2}, 15, {t1}")
        V(f"v_lshl_add_u32 {vQlx}, {t2}, 9, {t1}")
        A(f"s_mov_b32 {sKo}, 0")
        A(f"s_mov_b32 {sVo}, 0")
    src_offsets()
    o.append(raw("s_waitcnt lgkmcnt(0)"))
    o += stamp(8)
    for srd, ptr, off in ((16, 6, "s53"), (12, 4, "s37"), (20, 8, "s53"), (24, 10, "s37")):
        A(f"s_add_u32 s{srd}, s{ptr}, {off}")
        A(f"s_addc_u32 s{srd + 1}, s{ptr + 1}, 0")
        A(f"s_and_b32 s{srd + 1}, s{srd + 1}, 0xffff")
    o.append(label("L_restart"))
    for i in range(4):
        o += dma_piece("K", 0, i)
    for i in range(2):
        o.append(vload("buffer_load_dwordx4", R("v", RAWX + 4 * i, 4), vQlx, sQ, sX, 1024 * i, OPT["pol_q"]))
    o.append(barrier())
    for i in range(4):
        o += qload(0, i)
    A(f"s_lshl_b32 s54, {sB}, 11")
    A(f"s_lshl_b32 s55, {sA}, 13")
    A("s_add_u32 s54, s54, s55")
    V(f"v_lshl_add_u32 {vVd}, {t2}, 12, {t0}")
    V(f"v_add_u32 {vVd}, s54, {vVd}")
    A(f"s_add_u32 s54, {sKm}, {3 * SLOT}")
    V(f"v_lshl_add_u32 {vQw}, {t2}, 9, {t0}")
    V(f"v_add_u32 {vQw}, s54, {vQw}")
    V(f"v_add_u32 {vQw2}, {4 * SLOT}, {vQw}")
    A(f"s_sub_u32 s54, {sKm}, {KRING - PXA}")
    V(f"v_mul_u32_u24 {vQwx}, 2080, {t2}")
    V(f"v_add3_u32 {vQwx}, {vQwx}, {t0}, s54")
    A(f"s_mul_i32 s54, {sB}, {4 * 2080}")
    A(f"s_lshl_b32 s55, {sA}, 10")
    A("s_add_u32 s54, s54, s55")
    A(f"s_add_u32 {sVm}, s54, {VRING}")
    A(f"s_mul_i32 {sPm}, {sW}, 2560")
    V(f"v_and_b32 {t0}, 15, v0")
    V(f"v_bfe_u32 {t1}, v0, 4, 1")
    V(f"v_lshlrev_b32 {t3}, 5, {t1}")
    V(f"v_lshl_add_u32 {t3}, {t2}, 4, {t3}")
    V(f"v_add_u32 {t4}, 4, {t0}")
    V(f"v_bfe_u32 {vKr0}, {t4}, 3, 1")
    V(f"v_and_b32 {t4}, 7, {t4}")
    V(f"v_lshl_add_u32 {vKr0}, {t4}, 1, {vKr0}")
    V(f"v_mul_u32_u24 {vKr0}, 1040, {vKr0}")
    V(f"v_add_u32 {vKr0}, {vKr0}, {t3}")
    V(f"v_add_u32 {vQrx}, {PXA}, {vKr0}")
    V(f"v_add_u32 {vKr0}, {KRING}, {vKr0}")
    A(f"s_lshl_b32 s54, {sB}, 9")
    V(f"v_add_u32 {vKr}, s54, {vKr0}")
    A(f"s_lshl_b32 s54, {sA}, 9")
    A(f"s_add_u32 s54, s54, {3 * SLOT}")
    V(f"v_add_u32 {vQr}, s54, {vKr0}")
    V(f"v_add_u32 {vQr2}, {4 * SLOT}, {vQr}")
    V(f"v_bfe_u32 {t4}, v0, 2, 3")
    V(f"v_mul_u32_u24 {vV0}, 2080, {t4}")
    V(f"v_lshl_add_u32 {vV0}, {t2}, 9, {vV0}")
    V(f"v_and_b32 {t4}, 3, v0")
    V(f"v_lshl_add_u32 {vV0}, {t4}, 3, {vV0}")
    A(f"s_mul_i32 s54, {sB}, {256 + 1024}")
    A(f"s_add_u32 s54, s54, {VRING}")
    A(f"s_mul_i32 s55, {sB}, {1024 - 256}")
    A(f"s_sub_u32 s55, {VRING + 1024}, s55")
    V(f"v_add_u32 {vV1}, s55, {vV0}")
    V(f"v_add_u32 {vV0}, s54, {vV0}")
    V(f"v_and_b32 {t4}, 63, v0")
    V(f"v_lshlrev_b32 {t4}, 2, {t4}")
    A(f"s_mul_i32 s54, {sB}, 2560")
    A("s_sub_u32 s55, 2560, s54")
    V(f"v_add_u32 {vPr2}, s54, {t4}")
    V(f"v_add_u32 {vPr}, s55, {t4}")
    if OPT["pf31"]:
        A("s_lshr_b32 s54, s2, 3")
        A("s_and_b32 s54, s54, 3")
        A("s_lshl_b32 s54, s54, 2")
        A(f"s_add_u32 s54, s54, {sW}")
        A("s_lshl_b32 s54, s54, 10")
        A(f"s_add_u32 s37, s54, {31 * 16384}")
    A(f"s_mul_i32 s55, {sW}, 2304")
    A(f"s_add_u32 s55, s55, {KRING + SLOT}")
    V(f"v_bfe_u32 {t4}, v0, 4, 2")
    V(f"v_mul_u32_u24 {vEw}, 144, {t0}")
    V(f"v_lshl_add_u32 {vEw}, {t4}, 3, {vEw}")
    V(f"v_add_u32 {vEw}, s55, {vEw}")
    V(f"v_bfe_u32 {t4}, v0, 3, 3")
    V(f"v_and_b32 {t1}, 7, v0")
    V(f"v_lshlrev_b32 {t1}, 4, {t1}")
    V(f"v_mul_u32_u24 {vEr}, 144, {t4}")
    V(f"v_add3_u32 {vEr}, {vEr}, {t1}, s55")
    A(f"s_lshl_b32 s54, {sA}, 15")
    A(f"s_lshl_b32 s55, {sB}, 8")
    A("s_add_u32 s55, s55, s54")
    A("s_sub_u32 s51, 65536, s54")
    V(f"v_lshl_add_u32 {vO}, {t4}, 9, {t1}")
    V(f"v_add_u32 {vO}, s55, {vO}")
    for t in range(5):
        A(f"s_add_u32 {sT8[t]}, {sT[t]}, 4096" if t else f"s_mov_b32 {sT8[0]}, 4096")
    c = struct.unpack("<I", struct.pack("<f", math.log2(math.e) / 16.0))[0]
    A(f"s_mov_b32 s40, {c:#x}")
    A(f"s_mov_b32 s41, {c:#x}")
    A(f"s_mov_b32 {sMASK}, 0xffff0000")
    for t in range(5):
        V(f"v_mov_b32 v{vL[t]}, 0")
    for t in range(4):
        for i in range(8):
            V(f"v_mov_b64 {R('v', OO + 32 * t + 16 + 2 * i, 2)}, 0")
    for i in range(16):
        V(f"v_accvgpr_write_b32 a{AX + 16 + i}, 0")
    A(f"s_cmp_eq_u32 {sA}, 1")
    A("s_cbranch_scc1 L_role1")
    o2 = []
    o, keep = o2, o
    src_offsets()
    return keep, o2


def scale4(src):
    o = []
    T = SCT
    for i in range(4):
        o.append(valu(f"v_lshlrev_b32 v{T + 2 * i}, 16, v{src + i}"))
        o.append(valu(f"v_and_b32 v{T + 2 * i + 1}, {sMASK}, v{src + i}"))
    for i in range(4):
        o.append(valu(f"v_pk_mul_f32 {R('v', T + 2 * i, 2)}, {R('v', T + 2 * i, 2)}, {sSC}"))
    for i in range(4):
        o.append(valu(f"v_cvt_pk_bf16_f32 v{src + i}, v{T + 2 * i}, v{T + 2 * i + 1}"))
    return o


QST = {0: (("V", 1), vQw, vQr, 2 * SLOT), 1: (("K", 3), vQw, vQr, 0), 2: (("V", 2), vQw, vQr, 3 * SLOT), 3: (("V", 3), vQw2, vQr2, 0)}


def stage_in(k, feed):
    o = []
    for i in range(2 if k == 4 else 4):
        src = RAWX + 4 * i if k == 4 else RAW(k, i)
        sc = scale4(src)
        o.append(sc[0])
        o += feed(("Q", k, i))
        o += sc[1:]
        if k == 4:
            o.append(ds_write("ds_write_b128", vQwx, R("v", src, 4), f"offset:{4160 * i}", (("P", 1), -1)))
        else:
            reg, wb, rb, off = QST[k]
            o.append(ds_write("ds_write_b128", wb, R("v", src, 4), f"offset:{off + 2080 * i}", (reg, -1)))
    return o


def stage_read(k):
    if k == 4:
        return [ds_read("ds_read_b128", Qf(4, s), vQrx, f"offset:{64 * s}", (("P", 1), -1)) for s in range(8)]
    reg, wb, rb, off = QST[k]
    return [ds_read("ds_read_b128", Qf(k, s), rb, f"offset:{off + 64 * s}", (reg, -1)) for s in range(8)]


def stage_compute(t):
    o = []
    s0 = SS + 4 * t
    SP = R("v", SPRE, 4)
    for s in range(8):
        o.append(mfma(SP, R("a", ASP + 4 * s, 4), Qf(t, s), "0" if s == 0 else SP))
    for s in range(8):
        o.append(mfma(S(t), R("a", AVF + 4 * s, 4), Qf(t, s), "0" if s == 0 else S(t)))
    o.append(msetter())
    o.append(valu(f"v_max3_f32 v{TMP}, v{SPRE}, v{SPRE + 1}, v{SPRE + 2}"))
    o.append(valu(f"v_max_f32 v{TMP}, v{TMP}, v{SPRE + 3}"))
    o += xlane("v_max_f32", TMP, TMP + 1)
    for r in range(4):
        o.append(valu(f"v_cndmask_b32 v{NEGM + 4 * t + r}, -v{TMP}, v{NEGM + 4 * t + r}, {sKEEP}"))
    for r in range(4):
        o.append(valu(f"v_add_f32 v{s0 + r}, v{s0 + r}, v{NEGM + 4 * t}"))
    for r in range(4):
        o.append(valu(f"v_exp_f32 v{s0 + r}, v{s0 + r}"))
    for h in range(2):
        o.append(valu(f"v_cvt_pk_bf16_f32 v{Pown(0, t) + h}, v{s0 + 2 * h}, v{s0 + 2 * h + 1}"))
    for h in range(2):
        o.append(pwrite(0, t, h))
    for r in range(4):
        o.append(valu(f"v_add_f32 v{vL[t]}, v{s0 + r}, v{vL[t]}"))
    return o


def prologue(a):
    o = [label(f"L_role{a}")]
    seq = {0: "Q1 Q2 Q3 K1 V0 K2 V1 K3", 1: "Q1 K1 Q2 V0 Q3 K2 V1 K3", 2: "Q1 Q2 K1 Q3 V0 K2 V1 K3", 3: "K1 Q1 V0 Q2 K2 Q3 V1 K3", 4: "Q1 Q2 K1 V0 Q3 K2 V1 K3"}[OPT["order"]]
    full = [("K", 0, i) for i in range(4)] + [("Q", 4, i) for i in range(2)] + [("Q", 0, i) for i in range(4)]
    order = [(x[0], int(x[1]), i) for x in seq.split() for i in range(4)]
    full += order

    def feed(landed):
        r = []
        stage = -1 if landed[1] == 4 else landed[1]
        while order and full.index(order[0]) <= full.index(landed) + OPT["win"]:
            x = order[0]
            if (x[:2] == ("V", 1) and stage < 2) or (x[:2] == ("K", 3) and stage < 3) or (landed == ("Q", 3, 3) and not OPT["lastfeed"]):
                break
            order.pop(0)
            r += qload(x[1], x[2]) if x[0] == "Q" else dma_piece(*x)
        return r
    o += stage_in(4, feed)
    o.append(wait(vm=[("K", 0)], lg="all"))
    o.append(barrier())
    o += stamp(1)
    for s in range(8):
        o.append(kread(0, s, vKr0, R("a", ASP + 4 * s, 4)))
    if a == 0:
        o += stage_read(4)
    for s in range(8):
        o.append(kread(0, s, vKr, R("a", AVF + 4 * s, 4)))
    if a == 0:
        o += stage_compute(4)
    for k in range(4):
        o += stage_in(k, feed)
        o += stamp(11 + k) if k < 1 else []
        o.append(wait(vm=[("K", 1)] if k == 3 else None, lg="all"))
        o.append(barrier())
        if k < 3:
            o += stage_read(k)
            o += stage_compute(k)
    o += stamp(2)
    if OPT["aux"]:
        o.append(salu("s_lshr_b32 s54, s2, 3"))
        o.append(salu("s_lshl_b32 s55, s54, 7"))
        o.append(valu(f"v_lshl_add_u32 {vAuxC}, v0, 12, s55"))
        piece = (32 - OPT["auxt0"]) * 16384 // OPT["auxn"]
        before = len([j for j in range(1, OPT["auxend"] + 1) if (j - OPT["auxend"]) % OPT["auxper"] == 0]) - OPT["auxn"]
        o.append(salu("s_and_b32 s54, s54, 3"))
        o.append(salu(f"s_mul_i32 s54, s54, {piece // 4}"))
        o.append(salu(f"s_add_u32 s54, s54, {(a * piece // 8 - before * piece) & 0xffffffff:#x}"))
        o.append(valu(f"v_and_b32 {vAuxT}, 63, v0"))
        o.append(valu(f"v_cmp_le_u32 vcc, {piece // 1024}, {vAuxT}"))
        o.append(valu(f"v_lshl_add_u32 {vAuxT}, {vAuxT}, 7, s54"))
        o.append(valu(f"v_cndmask_b32 {vAuxT}, {vAuxT}, 2.0, vcc"))
        o.append(salu(f"s_cmp_eq_u32 {sB}, 0"))
        o.append(salu("s_cselect_b32 s88, s16, s20"))
        o.append(salu("s_cselect_b32 s89, s17, s21"))
        o.append(salu(f"s_add_u32 s88, s88, {OPT['auxt0'] * 16384}"))
        o.append(salu("s_addc_u32 s89, s89, 0"))
        o.append(salu(f"s_mov_b32 s90, {(32 - OPT['auxt0']) * 16384}"))
        o.append(salu("s_mov_b32 s91, 0x20000"))
        if OPT["holes"]:
            o.append(salu("s_mov_b64 s[84:85], s[88:89]"))
            o.append(salu("s_mov_b32 s86, 0"))
            o.append(salu("s_mov_b32 s87, 0x20000"))
    return o, order


def finish(a):
    o = stamp(6)
    if OPT.get("amp"):
        lo, hi, base = OPT["amp"] // 100, OPT["amp"] % 100, OPT["ampbase"]
        o.append(raw("s_waitcnt vmcnt(0)"))
        o += stamp(7)
        o.append(raw(f"s_waitcnt lgkmcnt(0)\ns_cmp_lg_u32 s2, {OPT.get('ampwg', 40)}\ns_cbranch_scc1 L_end\ns_sub_u32 s94, s{60 + 2 * hi}, s{60 + 2 * lo}\ns_sub_u32 s94, s94, {base}\ns_max_i32 s94, s94, 0\ns_min_u32 s94, s94, 20000\ns_add_u32 s94, s94, 6000"))
        o.append(raw(f"L_amp{a}:\ns_memrealtime s[92:93]\ns_waitcnt lgkmcnt(0)\ns_sub_u32 s92, s92, s58\ns_cmp_lt_u32 s92, s94\ns_cbranch_scc1 L_amp{a}"))
    elif OPT["stamps"]:
        o.append(raw("s_waitcnt vmcnt(0)"))
        o += stamp(7)
        o.append(raw("s_memrealtime s[92:93]"))
        o.append(raw("s_waitcnt lgkmcnt(0)"))
        o.append(raw("s_mov_b32 s96, s56\ns_and_b32 s97, s57, 0xffff\ns_mov_b32 s98, 0x100000\ns_mov_b32 s99, 0x20000"))
        o.append(raw(f"s_lshl_b32 s94, s2, 2\ns_add_u32 s94, s94, {sW}\ns_lshl_b32 s94, s94, 7"))
        for i in range(16):
            o.append(raw(f"v_mov_b32 v{64 + i}, s{60 + 2 * i}"))
        o.append(raw("v_mov_b32 v80, s58\nv_mov_b32 v81, s92\nv_mov_b32 v82, 0\nv_mov_b32 v83, 0\nv_mov_b32 v84, 0"))
        if OPT["prof"]:
            o.append(raw("v_lshlrev_b32 v85, 2, v0\ns_lshl_b32 s95, s2, 10\ns_add_u32 s95, s95, 0x40000\nbuffer_store_dword v127, v85, s[96:99], s95 offen"))
        o.append(raw("s_mov_b64 exec, 1"))
        for i in range(5):
            o.append(raw(f"buffer_store_dwordx4 v[{64 + 4 * i}:{67 + 4 * i}], v84, s[96:99], s94 offen offset:{16 * i}"))
    o.append(raw("s_endpgm"))
    return o


def fallback(a, redo):
    NQ = 5 - a
    M, AD = PP, PP + 8
    o = [label(f"L_fallback{a}")]
    o.append(raw("s_waitcnt vmcnt(0) lgkmcnt(0)"))
    o.append(nop(7))
    o.append(salu("s_mov_b32 s18, 524288"))
    o.append(valu(f"v_and_b32 v{AD}, 15, v0"))
    o.append(valu(f"v_lshlrev_b32 v{AD}, 9, v{AD}"))
    o.append(valu(f"v_bfe_u32 v{AD + 1}, v0, 4, 1"))
    o.append(valu(f"v_lshl_add_u32 v{AD}, v{AD + 1}, 5, v{AD}"))
    o.append(valu(f"v_bfe_u32 v{AD + 1}, v0, 5, 1"))
    o.append(valu(f"v_lshl_add_u32 v{AD}, v{AD + 1}, 4, v{AD}"))
    for t in range(NQ):
        o.append(valu(f"v_mov_b32 v{M + t}, 0xff800000"))
    o.append(salu("s_mov_b32 s54, 0"))
    o.append(label(f"L_fbloop{a}"))
    for s in range(8):
        o.append(vload("buffer_load_dwordx4", Kf(s), f"v{AD}", sK, "s54", 64 * s))
    for t in range(NQ):
        for s in range(8):
            o.append(mfma(S(t), Kf(s), Qf(t, s), "0" if s == 0 else S(t)))
    for t in range(NQ):
        s0 = SS + 4 * t
        o.append(valu(f"v_max3_f32 v{M + t}, v{s0}, v{s0 + 1}, v{M + t}"))
        o.append(valu(f"v_max3_f32 v{M + t}, v{s0 + 2}, v{s0 + 3}, v{M + t}"))
    o.append(salu("s_add_u32 s54, s54, 8192"))
    o.append(salu("s_cmp_lt_u32 s54, 524288"))
    o.append(salu(f"s_cbranch_scc1 L_fbloop{a}"))
    for t in range(NQ):
        o += xlane("v_max_f32", M + t, AD + 1)
        for r in range(4):
            o.append(valu(f"v_sub_f32 v{NEGM + 4 * t + r}, 0, v{M + t}"))
    o.append(salu(f"s_mov_b64 {sKEEP}, -1"))
    o.append(salu(f"s_mov_b32 {sTHR}, -1"))
    o += redo
    o.append(barrier())
    o.append(salu("s_branch L_restart"))
    return o


def ablate(lines, lo, hi):
    ab = OPT["abl"]
    for n in range(lo, hi):
        l = lines[n]
        if (ab & 1 and l.endswith(" lds")) or (ab & 2 and l == "s_barrier") or (ab & 4 and l.startswith("ds_write")) or (ab & 8 and l.startswith("ds_read2")) \
           or (ab & 16 and l.startswith("ds_read_b64_tr")) or (ab & 32 and l.startswith("ds_read_b128")) or (ab & 64 and l.startswith("s_waitcnt")) \
           or (ab & 4096 and l.startswith("v_add_f32")):
            lines[n] = "; ablated"
        if ab & 256 and l.startswith("s_waitcnt vmcnt"):
            lines[n] = "s_waitcnt lgkmcnt(0)"


def build():
    j0, j1 = 1, (25 if OPT["early"] else 29)
    ent, redo = entry()
    text, evs = [], []
    for a in (0, 1):
        pro, rest = prologue(a)
        tr = list(ent) + [raw(";;ROLE")] + pro + [salu(f"s_mov_b32 {sCNT}, {(j1 - j0) // 4}"), raw(";;IV 0")] + start_block(a, rest) + stamp(3)
        for j in range(1, 30):
            tr.append(raw(f";;IV {j}"))
            tr += interval(j, a, f"L_loop{a}" if (j < j1 and (j - j0) % 4 == 3) else None)
        tr.append(raw(";;IV 30"))
        if OPT["prof"]:
            tr.append(raw("s_nop 4\n    v_mov_b32 v1, v21"))
        tr += stamp(4) + final_block(a)
        if OPT["prof"]:
            tr.append(raw("v_mov_b32 v127, v1"))
        tr += finish(a)
        out, ev, ins = resolve(tr)
        evs += ev
        lines = [x.text for x in out]
        k = lines.index(";;ROLE")
        if a == 0:
            text += lines[:k]
        idx = {j: lines.index(f";;IV {j}") for j in range(31)}
        for pos, w, c in ins:
            if idx[0] < pos and (OPT["show"] >= 0 or idx[1] < pos < idx[30]):
                print(f"; auto-inserted in role {a} @{pos - idx[0]}: {w} before {c}", file=sys.stderr)
        seg = lambda j: lines[idx[j] + 1: idx[j + 1]]
        for j in range(j0 + 4, j1):
            jb = j0 + (j - j0) % 4
            assert len(seg(j)) == len(seg(jb)), f"loop body not periodic at {j} role {a}"
            for n, (x, y) in enumerate(zip(seg(j), seg(jb))):
                if x != y:
                    assert re.sub(r"\d+", "", x) == re.sub(r"\d+", "", y) and x.startswith("s_waitcnt"), (j, a, x, y)
                    it = iter(min(int(p), int(q)) for p, q in zip(re.findall(r"\d+", x), re.findall(r"\d+", y)))
                    lines[idx[jb] + 1 + n] = re.sub(r"\d+", lambda m: str(next(it)), x)
        if OPT["abl"]:
            ablate(lines, idx[1], idx[30])
        text += lines[k + 1: idx[j0]]
        text.append(f".p2align {OPT['lalign']}")
        text.append(f"L_loop{a}:")
        text += lines[idx[j0]: idx[j0 + 4]]
        text += lines[idx[j1]:]
        fb, _, _ = resolve(fallback(a, redo))
        text += [x.text for x in fb]
    assert check_lds(evs) == 0
    hdr = open("header.txt").read()
    body = "\n".join(("" if l.endswith(":") or l.startswith(".") else "    ") + l.replace(";;IV", "; interval") for l in text)
    return f"""{hdr}; @launch grid=(256,1,1) block=(256,1,1) lds={LDS_BYTES}
.amdgcn_target "amdgcn-amd-amdhsa--gfx950"
.text
.globl {KN}
.p2align 8
.type {KN},@function
{KN}:
{body}
L_end:
    s_endpgm
.section .rodata,"a"
.p2align 6
.amdhsa_kernel {KN}
  .amdhsa_next_free_vgpr 512
  .amdhsa_next_free_sgpr 102
  .amdhsa_accum_offset 256
  .amdhsa_group_segment_fixed_size 0
  .amdhsa_kernarg_size 48
  .amdhsa_user_sgpr_count 2
  .amdhsa_user_sgpr_kernarg_segment_ptr 1
  .amdhsa_system_sgpr_workgroup_id_x 1
.end_amdhsa_kernel
"""


if __name__ == "__main__":
    for kv in sys.argv[1:]:
        k, v = kv.split("=", 1)
        if k.startswith("pol"):
            OPT[k] = "".join(" " + x for x in v.split("+") if x and x != "d")
        else:
            OPT[k] = int(v)
    print(build())
```

```python
import re


def regs(spec):
    spec = spec.strip()
    m = re.fullmatch(r"([vas])\[(\d+):(\d+)\]", spec)
    if m:
        return [f"{m.group(1)}{i}" for i in range(int(m.group(2)), int(m.group(3)) + 1)]
    if re.fullmatch(r"[vas]\d+", spec) or spec in ("m0", "vcc", "exec", "scc"):
        return [spec]
    if spec.startswith("-") and re.fullmatch(r"-[vas]\d+", spec):
        return [spec[1:]]
    return []


def R(f, i, n=1):
    return f"{f}{i}" if n == 1 else f"{f}[{i}:{i + n - 1}]"


class I:
    __slots__ = ("text", "kind", "rd", "wr", "A", "B", "C", "lds_rd", "lds_wr", "tag", "vm", "lg", "note", "bar")

    def __init__(self, text, kind, rd=(), wr=(), **kw):
        self.text = text
        self.kind = kind
        self.rd = set(rd)
        self.wr = set(wr)
        self.A = self.B = self.C = None
        self.lds_rd = self.lds_wr = None
        self.tag = None
        self.vm = None
        self.lg = None
        self.note = None
        for k, v in kw.items():
            setattr(self, k, v)

    def __repr__(self):
        return self.text


def _ops(s):
    return [x.strip() for x in s.split(",")]


def valu(text, kind="valu", rmw=False):
    op, rest = text.split(None, 1)
    rest0 = re.split(r"\s+(?=op_sel|row_|quad_perm|bank_mask|bound_ctrl|neg_|clamp|mul:|div:)", rest)[0]
    o = _ops(rest0)
    wr = regs(o[0])
    rd = [r for x in o[1:] for r in regs(x)]
    if op.startswith("v_permlane"):
        wr = regs(o[0]) + regs(o[1])
        rd = list(wr)
        kind = "perm"
    if "dpp" in op:
        kind = "dpp"
        rd += wr
    if op.startswith(("v_exp", "v_rcp", "v_log", "v_rsq", "v_sqrt")):
        kind = "trans"
    if op.startswith(("v_readfirstlane", "v_readlane")):
        kind = "rfl"
    if op.startswith("v_cndmask") and len(o) == 3:
        rd.append("vcc")
    if rmw or op.startswith("v_fmac"):
        rd += wr
    return I(text, kind, rd, wr)


def salu(text):
    op, rest = (text.split(None, 1) + [""])[:2]
    o = _ops(rest) if rest else []
    if op.startswith("s_cmp"):
        return I(text, "salu", [r for x in o for r in regs(x)], ["scc"])
    if op.startswith(("s_cbranch", "s_branch")):
        return I(text, "branch", ["scc"] if "scc" in op else (["vcc"] if "vcc" in op else []), [])
    wr = regs(o[0]) if o else []
    rd = [r for x in o[1:] for r in regs(x)]
    if op.startswith(("s_cselect", "s_addc")):
        rd.append("scc")
    return I(text, "salu", rd, wr)


def mfma(D, A, B, C):
    i = I(f"v_mfma_f32_16x16x32_bf16 {D}, {A}, {B}, {C}", "mfma", regs(A) + regs(B) + regs(C), regs(D))
    i.A, i.B, i.C = regs(A), regs(B), regs(C)
    return i


def ds_read(op, dst, addr, off, lds=None):
    return I(f"{op} {dst}, {addr} {off}".rstrip(), "dsr", regs(addr), regs(dst), lds_rd=lds)


def ds_write(op, addr, src, off, lds=None):
    if addr is None:
        return I(f"{op} {src} {off}".rstrip(), "dsw", regs(src) + ["m0"], [], lds_wr=lds)
    return I(f"{op} {addr}, {src} {off}".rstrip(), "dsw", regs(addr) + regs(src), [], lds_wr=lds)


def dma(vaddr, srd, soff, imm, pol, lds, tag):
    o = f" offset:{imm}" if imm else ""
    return I(f"buffer_load_dwordx4 {vaddr}, {srd}, {soff} offen{o}{pol} lds", "dma",
             regs(vaddr) + regs(srd) + regs(soff) + ["m0"], [], lds_wr=lds, tag=tag)


def vload(op, dst, vaddr, srd, soff, imm=0, pol="", tag=None):
    o = f" offset:{imm}" if imm else ""
    return I(f"{op} {dst}, {vaddr}, {srd}, {soff} offen{o}{pol}", "vld", regs(vaddr) + regs(srd) + regs(soff), regs(dst), tag=tag)


def vstore(op, src, vaddr, srd, soff, imm=0, pol="", tag=None):
    o = f" offset:{imm}" if imm else ""
    i = I(f"{op} {src}, {vaddr}, {srd}, {soff} offen{o}{pol}", "vst", regs(src) + regs(vaddr) + regs(srd) + regs(soff), [], tag=tag)
    i.A = regs(src)
    return i


def wait(vm=None, lg=None):
    return I("s_waitcnt ?", "wait", vm=vm, lg=lg)


def barrier():
    return I("s_barrier", "barrier")


def nop(n):
    return I(f"s_nop {n}", "nop", note=n + 1)


def label(name):
    return I(f"{name}:", "label")


def raw(text):
    return I(text, "raw")


VALUK = ("valu", "trans", "perm", "dpp", "rfl")


def needed_gap(p, c):
    n = 0
    pw, crd, cwr = p.wr, c.rd, c.wr
    if p.kind in VALUK:
        vw = {r for r in pw if r[0] in "va" and r != "vcc"}
        sw = {r for r in pw if r[0] == "s" or r == "vcc"}
        if vw & crd:
            if c.kind == "mfma":
                n = max(n, 2)
            if c.kind in ("perm", "dpp"):
                n = max(n, 2)
            if c.kind == "rfl":
                n = max(n, 1)
            if p.kind == "trans" and c.kind != "trans":
                n = max(n, 1)
        if sw & crd:
            if c.kind in VALUK:
                n = max(n, 2)
            if c.kind in ("vld", "vst", "dma"):
                n = max(n, 5)
            if c.kind in ("salu", "branch"):
                n = max(n, 1)
    if p.kind == "mfma":
        if c.kind == "mfma":
            if pw & (set(c.A) | set(c.B)):
                n = max(n, 8)
            if pw & set(c.C) and set(c.C) != pw:
                n = max(n, 6)
            if pw & cwr and not (pw & set(c.C)):
                n = max(n, 6)
        else:
            if pw & (crd | cwr):
                n = max(n, 8)
            if c.kind in VALUK and set(p.C) & cwr:
                n = max(n, 3)
    if p.kind == "salu" and "m0" in pw and "m0" in crd and c.kind in ("dma", "dsw"):
        n = max(n, 1)
    if p.kind == "vst" and len(p.A) >= 3 and set(p.A) & cwr:
        n = max(n, 2)
    return n


def resolve(trace, name="", quiet=False):
    out = []
    lgq = []
    vmq = []
    epoch = 0
    ev = []
    inserted = []

    def done_lg(n):
        while len(lgq) > n:
            x, e0 = lgq.pop(0)
            for k, tags in (("rd", x.lds_rd), ("wr", x.lds_wr)):
                for tg in (tags if isinstance(tags, list) else [tags] if tags else []):
                    ev.append((k, tg, e0, epoch))

    def done_vm(n):
        while len(vmq) > n:
            x, e0 = vmq.pop(0)
            if x.lds_wr:
                ev.append(("wr", x.lds_wr, e0, epoch))

    def need(q, pred):
        idx = -1
        for k, (x, _) in enumerate(q):
            if pred(x):
                idx = k
        return None if idx < 0 else len(q) - 1 - idx

    def wtext(nv, nl):
        s = []
        if nv is not None:
            assert nv <= 62
            s.append(f"vmcnt({nv})")
        if nl is not None:
            s.append(f"lgkmcnt({min(nl, 14)})")
        return "s_waitcnt " + " ".join(s)

    for ins in trace:
        if ins.kind == "wait":
            nv = nl = None
            if ins.vm == "all":
                nv = 0
            elif ins.vm is not None:
                nv = need(vmq, lambda x: x.tag in ins.vm)
            if ins.lg == "all":
                nl = 0
            elif "w" in ins.lg if ins.lg is not None else False:
                nl = need(lgq, lambda x: x.kind == "dsw" or x.wr & set(ins.lg))
            elif ins.lg is not None:
                nl = need(lgq, lambda x: x.wr & set(ins.lg))
            if nv is None and nl is None:
                continue
            w = I(wtext(nv, nl), "wait")
            out.append(w)
            if nv is not None:
                done_vm(nv)
            if nl is not None:
                done_lg(min(nl, 14))
            continue
        if ins.kind in ("label", "raw"):
            out.append(ins)
            continue
        touch = ins.rd | ins.wr
        nl = need(lgq, lambda x: x.wr & touch)
        nv = need(vmq, lambda x: x.wr & (ins.rd if ins.kind == "vld" else touch))
        if nl is not None or nv is not None:
            w = I(wtext(nv, nl), "wait", note="auto")
            out.append(w)
            inserted.append((len(out), w.text, ins.text))
            if nv is not None:
                done_vm(nv)
            if nl is not None:
                done_lg(min(nl, 14))
        dist = 0
        short = 0
        for p in reversed(out[-40:]):
            if p.kind in ("label",):
                continue
            if dist >= 8:
                break
            g = needed_gap(p, ins)
            if g > dist:
                short = max(short, g - dist)
            dist += p.note if p.kind == "nop" else 1
        if short:
            n = nop(short - 1)
            out.append(n)
            inserted.append((len(out), n.text, ins.text))
        out.append(ins)
        if ins.kind in ("dsr", "dsw"):
            lgq.append((ins, epoch))
        if ins.kind in ("dma", "vld", "vst"):
            vmq.append((ins, epoch))
            assert len(vmq) <= 63, f"vmcnt overflow at {ins.text}"
        if ins.kind == "barrier":
            epoch += 1
    epoch += 1000
    done_lg(0)
    done_vm(0)
    return out, ev, inserted


def check_lds(evs):
    from collections import defaultdict
    W = defaultdict(list)
    Rd = defaultdict(list)
    for k, (reg, ver), e0, e1 in evs:
        (W if k == "wr" else Rd)[(reg, ver)].append((e0, e1))
    bad = 0
    regsn = defaultdict(set)
    for (reg, ver) in list(W) + list(Rd):
        regsn[reg].add(ver)
    for reg, vers in regsn.items():
        vs = sorted(vers)
        for i, v in enumerate(vs):
            w = W.get((reg, v), [])
            r = Rd.get((reg, v), [])
            if r and not w:
                print("LDS: read without write", reg, v)
                bad += 1
            if r and w:
                if max(x[1] for x in w) >= min(x[0] for x in r):
                    print("LDS RAW violation", reg, v, "write done epoch", max(x[1] for x in w), "read issue", min(x[0] for x in r))
                    bad += 1
            if i + 1 < len(vs):
                w2 = W.get((reg, vs[i + 1]), [])
                if w2:
                    first = min(x[0] for x in w2)
                    if r and max(x[1] for x in r) >= first:
                        print("LDS WAR violation", reg, v, "read done", max(x[1] for x in r), "next write issue", first)
                        bad += 1
                    if w and max(x[1] for x in w) >= first:
                        print("LDS WAW violation", reg, v)
                        bad += 1
    return bad
```

```python
import sys
from asmlib import *


class Op:
    def __init__(self, ins, cls, lo=0, dl=0, deps=(), hard=None, m0=None, setter=None):
        self.ins, self.cls, self.lo, self.dl, self.hard, self.m0, self.setter = ins, cls, lo, dl, hard, m0, setter
        self.deps = [d if isinstance(d, tuple) else (d, 1) for d in deps]
        self.gap = None


class Block:
    def __init__(self, name, wq=0, wprio=False):
        self.name = name
        self.mf = []
        self.ops = []
        self.bars = {}
        self.scal = []
        self.pre = []
        self.inserts = {}
        self.wq = wq
        self.wprio = wprio
        self.over = 0
        self.missed = []
        self.lazy = 999
        self.chainy = False
        self.carry = []
        self.tmpl = None

    def mfma(self, ins):
        self.mf.append(ins)
        return len(self.mf) - 1

    def op(self, *a, **k):
        o = Op(*a, **k)
        self.ops.append(o)
        return o

    def barrier(self, gap, vm, lg="all"):
        self.bars[gap] = wait(vm=vm, lg=lg)

    def scalar(self, ins, lo, hi, late=False):
        self.scal.append((ins, lo, hi, late))

    def schedule(self, show=False, leftover_ok=False):
        G = len(self.mf)
        gaps = [dict(s=[], v=[], typ=None, m0=None) for _ in range(G)]
        for g, w in self.bars.items():
            gaps[g - 1]["s"].append(w)
            gaps[g]["s"].append(barrier())
        m0 = [None]
        todo = list(self.ops)
        isds = lambda o: o.ins.kind in ("dsr", "dsw")

        def deps_ok(o, g):
            return o.lo <= g and all(d.gap is not None and d.gap + k <= g for d, k in o.deps)

        def place(o, g, forced=False):
            o.gap = g
            todo.remove(o)
            if o.m0 is not None:
                if o.m0 != m0[0]:
                    if forced and not (g > 0 and not gaps[g - 1]["s"] and gaps[g - 1]["typ"] != "dma" and gaps[g - 1]["m0"] is None and gaps[g]["m0"] is None):
                        gaps[g]["v"].append(o.setter)
                    else:
                        gaps[g - 1]["s"].append(o.setter)
                    m0[0] = o.m0
                gaps[g]["m0"] = o.m0
            gaps[g]["v"].append(o.ins)

        for g in range(G):
            def ready(o):
                if not deps_ok(o, g):
                    return False
                if (g + 1) in self.bars and ((isds(o) and self.bars[g + 1].lg == "all") or o.cls in ("dma", "st")):
                    return False
                if o.cls in ("dma", "st") and gaps[g]["s"]:
                    return False
                if o.m0 is not None and o.m0 != m0[0]:
                    if g == 0:
                        return False
                    pg = gaps[g - 1]
                    if pg["s"] or pg["typ"] == "dma" or pg["m0"] is not None:
                        return False
                return True
            cand = sorted([o for o in todo if ready(o)], key=lambda o: o.dl)
            if self.wprio:
                if any(o.m0 == "p" and o.lo <= g + 1 and o.lo > 0 for o in todo):
                    cand = [o for o in cand if o.cls != "dma"]
            elif any(o.cls == "dma" and o.lo <= g + 1 for o in todo):
                cand = [o for o in cand if o.m0 != "p"]
            if self.wq:
                lastw = max([o.gap for o in self.ops if o.ins.kind == "dsw" and o.gap is not None] + [-99])
                if g - lastw <= self.wq:
                    cand = [o for o in cand if o.ins.kind != "dsr"]
            pick = []
            if self.tmpl and self.tmpl[g] != "?":
                c = self.tmpl[g]
                allc = sorted([o for o in todo if ready(o)], key=lambda o: o.dl)
                va = [o for o in allc if o.cls == "valu"]
                sel = {"R": lambda o: o.ins.kind == "dsr", "W": lambda o: o.ins.kind == "dsw", "E": lambda o: o.cls == "exp", "D": lambda o: o.cls in ("dma", "st"), ".": lambda o: False}[c]
                pr = [o for o in allc if sel(o)]
                if pr:
                    pick = [pr[0]] + (va[:1] if c in "RW" and pr[0].cls != "solo" else [])
                else:
                    pick = va[:2]
                    if c != ".":
                        self.missed.append((g, c))
                for o in pick:
                    place(o, g)
                if pick:
                    gaps[g]["typ"] = "dma" if pick[0].cls == "st" else pick[0].cls
            elif cand:
                first = cand[0]
                if first.cls in ("exp", "dma", "st", "solo"):
                    pick = [first]
                else:
                    ds = [o for o in cand if o.cls == "ds"]
                    va = [o for o in cand if o.cls == "valu"]
                    if ds and len(va) >= 2 and ds[0].dl > va[1].dl + self.lazy and ds[0].dl > g + self.lazy:
                        pick = va[:2]
                    elif ds and va and self.chainy and va[0].dl < -300 and ds[0].dl > g and any(o.cls == "valu" and o.dl < -300 and o is not va[0] and o.lo <= g and all(d is va[0] and k == 0 or d.gap is not None and d.gap + k <= g for d, k in o.deps) for o in todo):
                        pick = va[:1]
                    elif ds:
                        pick = [ds[0]] + va[:1]
                    else:
                        ex = [o for o in cand if o.cls in ("exp", "solo")]
                        if len(va) < 2 and ex and ex[0].dl <= va[0].dl + 12:
                            pick = [ex[0]]
                        else:
                            pick = va[:2]
                for o in pick:
                    place(o, g)
                gaps[g]["typ"] = "dma" if pick[0].cls == "st" else pick[0].cls
            if len(pick) == 2 and pick[0].cls == "valu" and self.chainy:
                nxt = sorted([o for o in todo if o.cls == "valu" and deps_ok(o, g) and any(d is pick[0] for d, k in o.deps) and not any(d is pick[1] for d, k in o.deps)], key=lambda o: o.dl)
                if nxt and nxt[0].dl < pick[1].dl:
                    gaps[g]["v"].remove(pick[1].ins)
                    pick[1].gap = None
                    todo.append(pick[1])
                    place(nxt[0], g)
            elif len(pick) == 1 and pick[0].cls == "valu":
                nxt = sorted([o for o in todo if o.cls == "valu" and deps_ok(o, g)], key=lambda o: o.dl)
                if nxt:
                    place(nxt[0], g)
            while True:
                f = [o for o in todo if o.hard is not None and o.hard <= g]
                f = [o for o in f if o.lo <= g and all(d.gap is not None for d, k in o.deps)]
                if not f:
                    break
                o = min(f, key=lambda o: o.dl)
                place(o, g, forced=True)
                self.over += 1
        left = sorted(todo, key=lambda o: o.dl)
        if left and not leftover_ok:
            raise RuntimeError(f"{self.name}: ops left {[o.ins.text for o in left]}")

        def free(g):
            return not gaps[g]["s"] and gaps[g]["typ"] != "dma"

        for ins, lo, hi, late in self.scal:
            lo = lo() if callable(lo) else lo
            hi = hi() if callable(hi) else hi
            rng = range(hi, lo - 1, -1) if late else range(lo, hi + 1)
            for g in rng:
                if free(g):
                    gaps[g]["s"].append(ins)
                    break
            else:
                g = hi if late else lo
                assert gaps[g]["typ"] != "dma" or True
                gaps[g]["s"].append(ins)
                self.over += 1
        pend = {}
        for r in self.carry:
            pend[r] = -999
        for n, x in enumerate(self.pre):
            if x.kind == "dsr":
                for r in x.wr:
                    pend[r] = n - len(self.pre) - 1
        for g in range(G):
            if any(x.kind == "wait" and x.lg == "all" for x in gaps[g]["s"]):
                pend.clear()
            need = set()
            for x in gaps[g]["v"]:
                need |= {r for r in (x.rd | x.wr) if r in pend}
            if g + 1 < G:
                nx = self.mf[g + 1]
                need |= {r for r in (nx.rd | nx.wr) if r in pend}
            if need:
                mx = max(pend[r] for r in need)
                for k in range(g, max(mx, -1), -1):
                    if free(k):
                        old = {r for r, pg in pend.items() if pg <= k - 9}
                        need |= old
                        mx = max(pend[r] for r in need)
                        gaps[k]["s"].append(wait(lg=need))
                        break
                for r in [r for r, pg in pend.items() if pg <= mx]:
                    del pend[r]
            for x in gaps[g]["v"]:
                if x.kind == "dsr":
                    for r in x.wr:
                        pend[r] = g
        out = list(self.pre)
        for g in range(G):
            out.append(self.mf[g])
            out += gaps[g]["s"]
            out += gaps[g]["v"]
            out += self.inserts.get(g, [])
        if show:
            print(f"--- {self.name} (overfull {self.over}, left {len(left)}, missed {self.missed})", file=sys.stderr)
            for g in range(G):
                m = self.mf[g].text.split(None, 1)[1]
                print(f"{g:3d} {m[:46]:46s}|", " ; ".join(x.text[:26] for x in gaps[g]["s"]), "|", " ; ".join(x.text[:44] for x in gaps[g]["v"]), f"+{len(self.inserts[g])} inserted" if g in self.inserts else "", file=sys.stderr)
        return out, left
```

```python
import sys, struct, math, re
from asmlib import *
from sched import Block

KN = "standalone__gqa_softmax__near_ridge_kernel"
OPT = dict(abl=0, pol_kv="", pol_q=" nt", pol_o=" sc0 sc1", stamps=0, prof=0, show=-1, thr=30,
           dma0=1, dmastep=8, dmastag=4, klead=3, walign=0, wq=1, feed0=4, feedl=1, prefeed=3,
           bar0=26, bara=31, barb=71, lalign=3, lazy=16, order=1, win=11, aux=1, early=3, sdma0=1, sdmas=3, sdman=8, lastfeed=0, rwin=1, pf31=0, holes=0, holew=1, auxper=2, auxn=4, auxend=24, auxt0=28, nfast=3, nin=2)

PXA = 10240
KRING = 3 * PXA
SLOT = 16640
VRING = KRING + 4 * SLOT
LDS_BYTES = VRING + 4 * SLOT

sQ, sK, sV, sO, sC = "s[12:15]", "s[16:19]", "s[20:23]", "s[24:27]", "s[44:47]"
sW, sA, sB, sCNT, sKo, sVo, sKm, sVm, sPm, sMASK = "s28", "s29", "s30", "s31", "s32", "s33", "s34", "s35", "s36", "s39"
sSC, sKEEP = "s[40:41]", "s[42:43]"
sT = ["0", "s48", "s49", "s50", "s51"]
sT8 = ["s4", "s5", "s6", "s7", "s8"]
sX, sTHR = "s38", "s52"
vKr, vV0, vV1, vKd, vVd, vPr, vPr2 = "v1", "v2", "v3", "v4", "v5", "v6", "v7"
vL = [8, 9, 10, 11, 12]
vO, vEw, vEr = "v13", "v22", "v23"
PXT = 14
TMP = 16
vAuxC, vAuxT, vAuxD, vAuxD2, sP = "v18", "v19", "v20", "v17", "s[88:91]"
NEGM, SS, PP, OO = 24, 44, 64, 128
SCT = 104
vQl, vQw, vQw2, vQwx, vQr, vQr2, vQrx, vKr0 = (f"v{96 + i}" for i in range(8))
vQlx = "v21"
RAWX, SPRE = 112, 120
LP, FLG = 24, 18
RL = lambda t: 30 + 2 * t
QXTAG = [(("P", 1, t), -1) for t in range(5)] + [(("L", t), -1) for t in range(6)]
AQ, AX, AKF, AVF, ASP = 0, 128, 160, 192, 224


def Qf(t, s):
    return R("a", (AQ + 32 * t if t < 4 else AX) + 4 * s, 4)


def Kf(s):
    return R("a", AKF + 4 * s, 4)


def S(t):
    return R("v", SS + 4 * t, 4)


def Ng(t):
    return R("v", NEGM + 4 * t, 4)


def Pown(j, t):
    return PP + 16 * (j % 4) + 4 * t if t < 4 else PXT


def Pop(j, t):
    return R("v", PP + 16 * (j % 4) + 4 * t, 4) if t < 4 else R("a", ASP + 4 * (j % 4), 4)


def O(t, dt):
    return R("v", OO + 32 * t + 4 * dt, 4) if t < 4 else R("a", AX + 4 * dt, 4)


def RAW(k, i):
    return OO + 32 * k + 4 * i


def where(kind, tile):
    if OPT["early"] and kind == "V" and tile >= 30:
        return (("K", 0), 32) if tile == 30 else (("V", 2), 31)
    return ((kind, tile % 4), tile)


def tdma(kind, tile, i):
    reg = where(kind, tile)
    off = reg[0][1] * SLOT + i * 1568 - (4 * SLOT if reg[0][0] != kind else 0)
    m, v, srd, so = (sKm, vKd, sK, sKo) if kind == "K" else (sVm, vVd, sV, sVo)
    return (salu(f"s_add_u32 m0, {m}, {off}" if off >= 0 else f"s_sub_u32 m0, {m}, {-off}"),
            dma(v, srd, so, 512 * i, OPT["pol_kv"], reg, (kind, tile)))


def bump(kind):
    so = sKo if kind == "K" else sVo
    return salu(f"s_add_u32 {so}, {so}, 16384")


def dma_piece(kind, tile, i):
    return list(tdma(kind, tile, i)) + ([bump(kind)] if i == 3 else [])


def kread(tile, s, addr=vKr, dst=None):
    slot = tile % 4
    return ds_read("ds_read_b128", dst or Kf(s), addr, f"offset:{slot * SLOT + 64 * s}", (("K", slot), tile))


def vread(tile, dt, u, frag):
    reg = where("V", tile)
    base = (vV0, vV1) if reg[0][0] == "V" else (vKd, vVd)
    return ds_read("ds_read_b64_tr_b16", R("a", frag + 2 * u, 2), base[u], f"offset:{reg[0][1] * SLOT + 32 * dt}", reg)


def pwrite(j, t, h):
    par = j % 2
    return ds_write("ds_write_addtid_b32", None, f"v{Pown(j, t) + h}", f"offset:{par * PXA + (2 * t + h) * 256}", (("P", par, t), j))


def preads(j, a):
    par = j % 2
    o = []
    for t in range(4):
        n = par * 40 + a * 20 + 2 * t
        o.append((t, ds_read("ds_read2st64_b32", R("v", Pown(j, t) + 2, 2), vPr, f"offset0:{n} offset1:{n + 1}", (("P", par, t), j))))
    if a == 1:
        n = par * 40 + 8
        for u in range(2):
            o.append((4, ds_read("ds_read2st64_b32", R("a", ASP + 4 * (j % 4) + 2 * u, 2), (vPr2, vPr)[u], f"offset0:{n} offset1:{n + 1}", (("P", par, 4), j))))
    return o


def msetter():
    return salu(f"s_mov_b32 m0, {sPm}")


def stamp(idx, mode=0):
    if (OPT["stamps"] == 3) != (mode == 3) and idx > 2:
        return []
    return [raw(f"s_memtime s[{60 + 2 * idx}:{61 + 2 * idx}]")] if OPT["stamps"] else []


def xlane(op, reg, tmp):
    o = []
    for sw in ("v_permlane32_swap_b32", "v_permlane16_swap_b32"):
        o.append(valu(f"v_mov_b32 v{tmp}, v{reg}"))
        o.append(valu(f"{sw} v{tmp}, v{reg}"))
        o.append(valu(f"{op} v{reg}, v{tmp}, v{reg}"))
    return o


def chain_ops(b, seq, lo, dl, first_deps=(), hard=None):
    prev = None
    for n, ins in enumerate(seq):
        deps = list(first_deps) if prev is None else [(prev, (1 if b.chainy else 2) if ins.kind == "perm" else (0 if b.chainy and prev.cls == "valu" else 1))]
        prev = b.op(ins, "exp" if ins.kind == "trans" else "valu", lo, dl + n, deps, hard=hard)
    return prev


def add_qk(b, a, j):
    ends = []
    for t in range(5 - a):
        for s in range(8):
            k = b.mfma(mfma(S(t), Kf(s), Qf(t, s), Ng(t) if s == 0 else S(t)))
        ends.append(k)
    return ends


def add_pv(b, a, tiles, h, frags, lo, zero=False, tmajor=False, lastuse=None, have=(), ts=None):
    NP = 4 + a
    order = [(d, t) for t in (range(NP) if tmajor is True else tmajor) for d in range(4)] if tmajor else \
            [(d, t) for d in range(4) for t in (range(NP) if d % 2 == 0 else reversed(range(NP)))]
    if ts is not None:
        order = [x for x in order if x[1] in ts]
    first, done, pfirst = {}, {}, {}
    war = dict(lastuse) if lastuse is not None else {}
    for d, t in order:
        for n, j in enumerate(tiles):
            k = b.mfma(mfma(O(t, 4 * h + d), R("a", frags[d][n], 4), Pop(j, t), "0" if zero and n == 0 else O(t, 4 * h + d)))
            first.setdefault((d, n), k)
            pfirst.setdefault((j, t), k)
            done[(t, 4 * h + d)] = k
            if lastuse is not None:
                lastuse[frags[d][n]] = k
    for d in range(4):
        for n, j in enumerate(tiles):
            for u in range(2 if j not in have else 0):
                f = first[(d, n)]
                b.op(vread(j, 4 * h + d, u, frags[d][n]), "ds", max(lo[j], war.get(frags[d][n], 0)), f - 10 + u, hard=f - 3)
    return done, pfirst


def add_softmax(b, a, j, ends, pub, defer, adds_by=None, soft=False, sub=None):
    ends = dict(enumerate(ends)) if isinstance(ends, list) else ends
    wa = OPT["walign"]
    H = (lambda x: None) if soft else (lambda x: x)
    adds = {}
    for n, t in enumerate(ends):
        base = ends[t] + 4
        late = pub - 7 - 5 * (len(ends) - 1 - n)
        ex = []
        for r in range(4):
            dl = (base - 300 if wa else min(base + 10, late - 8)) + r
            dep = []
            if sub and t in sub:
                dep = [b.op(valu(f"v_add_f32 v{SS + 4 * t + r}, v{SS + 4 * t + r}, v{NEGM + 4 * t}"), "valu", base + 1, dl - 2, [sub[t]])]
            ex.append(b.op(valu(f"v_exp_f32 v{SS + 4 * t + r}, v{SS + 4 * t + r}"), "exp", base, dl, dep, hard=H(pub - 6)))
        for h in range(2):
            c = b.op(valu(f"v_cvt_pk_bf16_f32 v{Pown(j, t) + h}, v{SS + 4 * t + 2 * h}, v{SS + 4 * t + 2 * h + 1}"), "valu", 0, (base - 50 if wa else late - 3) + h, ex[2 * h:2 * h + 2], hard=H(pub - 4))
            b.op(pwrite(j, t, h), "ds", base + 6 + h if wa else 0, (base - 200 if wa else late - 1) + h, [c], hard=H(pub - 3), m0="p", setter=msetter())
        if t not in defer:
            for r in range(4):
                adds[t] = b.op(valu(f"v_add_f32 v{vL[t]}, v{SS + 4 * t + r}, v{vL[t]}"), "valu", 0, (pub if adds_by is None else min(base + 12, adds_by)) + r, [ex[r]] + ([(adds[t], 0)] if t in adds else []),
                               hard=H(pub if adds_by is None else adds_by))
    return adds


def add_deferred(b, a, ends):
    for t in deferred(a):
        for r in range(4):
            b.op(valu(f"v_add_f32 v{vL[t]}, v{SS + 4 * t + r}, v{vL[t]}"), "valu", 0, ends[t] - 16 + r, hard=ends[t] - 8)


def deferred(a):
    return [3 - a, 4 - a]


def add_dma(b, a, pieces, g0, step, G, lo=None):
    dops = []
    for n, (kind, tile, i) in enumerate(pieces):
        st, d = tdma(kind, tile, i)
        e = int(g0 + step * n)
        if lo and (kind, tile) in lo:
            e = max(e, lo[(kind, tile)])
        o = b.op(d, "dma", e, e - 100, [(dops[-1][0], 2)] if dops else [], hard=G - 3, m0=("d", n), setter=st)
        dops.append((o, kind, tile, i))
    for o, kind, tile, i in dops:
        if i == 3:
            nxt = [x for x, k, tl, _ in dops if k == kind and tl > tile]
            b.scalar(bump(kind), (lambda o=o: o.gap + 1), (lambda nxt=nxt: nxt[0].gap - 1) if nxt else G - 4)
    return dops


def prof_hooks(out):
    if OPT["prof"]:
        k = max(n for n, x in enumerate(out) if x.kind == "barrier")
        out.insert(k, raw("v_writelane_b32 v21, s100, m0"))
        out.insert(k - 1, raw("s_mov_b32 m0, s3"))
        mk = [n for n, x in enumerate(out[:k]) if x.kind == "mfma"]
        out.insert(mk[22] + 1, raw("s_memtime s[100:101]" if OPT["prof"] == 1 else "s_memrealtime s[100:101]"))
        out.insert(mk[2] + 1, raw("s_add_u32 s3, s3, 1"))
    return out


TMPL = {
    1: ["RDRRRRRR RRDRRRdE E.EDEWEE WEEDEWEW EEWEDEWE EWWEED.E EWW..RDR RRRRRRRD RRRRdRRR",
        "RRRRRDRR RRRRRRDR EE.EEWED EWEEWEEW .DEEWEEW E.DEW.W. d.D..RRR RRRDRRRR RdRDRRRR"],
    2: ["RDRRRRRR RRDRRRdE E.EDEWEE WEEDEWEW EEWEDEWE EWWEED.E EWW.RRDR RRRRRRRD RRRRd.RR",
        "RRRRRDRR RRRRRRDR EE.EEWED EWEEWEEW .DEEWEEW E.DEW.W. d.DRRRRR RRRDRRRR RdRD..RR"],
    3: ["RDRRRRRR RRDRRREE EE.DEWWE EE.DEWWE EE.DEWWE EE.EWWED EE.WW.DR RRRRRRRD RRRRRRRR",
        "RRRRRDRR RRRRRRDR EEEE.WWE DEEE.WWE EDEE.WWE E.DEE.WW d.D.d.RR RRRDRRRR RRRDRRRR"],
}
FOLD = [AVF + 8 * d for d in range(4)]
FNEW = [AVF + 8 * d + 4 for d in range(4)]


def add_old_reads(b, j, lu, lo, G):
    for d in range(4):
        for u in range(2):
            b.op(vread(j, 4 * ((j + 1) % 2) + d, u, FOLD[d]), "ds", max(lo, lu.get(FOLD[d], 0)), G + 2 * d + u, hard=G - 1)


def interval(j, a, loop_end=None):
    b = Block(f"interval {j} role {a}", wq=OPT["wq"] if OPT["walign"] else 0, wprio=bool(OPT["walign"]))
    ends = add_qk(b, a, j + 1)
    lu = {}
    if j <= 28:
        done, pfirst = add_pv(b, a, [j - 1, j], j % 2, [[FOLD[d], FNEW[d]] for d in range(4)], {j: 0}, lastuse=lu, have=[j - 1])
        b.carry = [f"a{x + i}" for x in FOLD for i in range(4)]
    else:
        done, pfirst = add_pv(b, a, [j], 0, [[AVF + 4 * d] for d in range(4)], {j: 0})
    G = len(b.mf)
    if j <= 27:
        add_old_reads(b, j, lu, 0, G)
    for t, ins in preads(j, a):
        b.op(ins, "ds", 0, pfirst[(j, t)] - 10, hard=pfirst[(j, t)] - 3)
    for s in range(8):
        b.op(kread(j + 2, s), "ds", ends[-1] - 7 + s, G - 18 + s, hard=G - 3)
    kl = OPT["klead"]
    T = lambda kind, tile, r=range(4): [(kind, tile, i) for i in r]
    pieces = T("V", j + 2) + (T("K", j + 2 + kl) if j <= 28 else [])
    step = OPT["dmastep"]
    if OPT["early"] and j >= 25:
        if kl == 3:
            pieces = {25: T("V", 27) + T("K", 30), 26: T("V", 28) + T("K", 31), 27: T("V", 29) + T("V", 30), 28: T("V", 31), 29: []}[j]
        elif OPT["early"] == 1:
            pieces = {25: T("V", 27) + T("K", 29) + T("K", 30, [0]), 26: T("V", 28) + T("K", 30, [1, 2, 3]) + T("K", 31, [0, 1]),
                      27: T("V", 29) + T("K", 31, [2, 3]) + T("V", 30), 28: T("V", 31), 29: []}[j]
        elif OPT["early"] == 2:
            pieces = {25: T("V", 27) + T("K", 29), 26: T("V", 28) + T("K", 30), 27: T("V", 29) + T("K", 31), 28: T("V", 30) + T("V", 31), 29: []}[j]
        else:
            pieces = {25: T("V", 27) + T("K", 29) + T("K", 30, [0]), 26: T("V", 28) + T("K", 30, [1, 2, 3]) + T("K", 31, [0, 1]),
                      27: T("V", 29) + T("K", 31, [2, 3]) + T("V", 30, [0, 1, 2]), 28: T("V", 30, [3]) + T("V", 31), 29: []}[j]
        step = {25: 7, 26: 7, 27: 6, 28: 4, 29: 4}[j]
    dops = add_dma(b, a, pieces, OPT["dma0"] + a * min(OPT["dmastag"], step // 2), step, G)
    if OPT["early"] and j == 29:
        b.op(valu(f"v_subrev_u32 {vKd}, {4 * SLOT}, {vV0}"), "valu", 0, G, hard=G - 1)
        b.op(valu(f"v_subrev_u32 {vVd}, {4 * SLOT}, {vV1}"), "valu", 0, G, hard=G - 1)
    if OPT["early"] and j == OPT["pf31"]:
        x = chain_ops(b, [valu(f"v_and_b32 {vAuxT}, 7, v0"), valu(f"v_lshl_add_u32 {vAuxT}, {vAuxT}, 7, s37")], 0, -95)
        b.op(vload("buffer_load_dword", vAuxD, vAuxT, sV, "0"), "st", 0, -90, [x], hard=40)
    if not OPT["early"] and j <= 28 and j % 4 == (30 - kl) % 4:
        kf = [o for o, k, _, _ in dops if k == "K"][0]
        vl = [o for o, k, _, _ in dops if k == "V"][-2]
        pair = raw(f"s_cmp_eq_u32 {sCNT}, 1\n    s_cselect_b32 s18, 0, s18")
        b.scalar(pair, (lambda: vl.gap + 1), (lambda: kf.gap - 2))
    if j <= 24 and j % 4 == OPT.get("auxj", 1) and OPT["aux"] & 1:
        b.op(vload("buffer_load_dword", vAuxD, vAuxC, sC, "0"), "st", 3, -90, hard=40)
    if j <= 24 and (j - OPT["auxend"]) % OPT["auxper"] == 0 and OPT["aux"] & 2:
        x = b.op(vload("buffer_load_dword", vAuxD2, vAuxT, sP, "0"), "st", 5 - 4 * a, -90, hard=40)
        b.op(valu(f"v_add_u32 {vAuxT}, {(32 - OPT['auxt0']) * 16384 // OPT['auxn']:#x}, {vAuxT}"), "valu", 0, G, [x], hard=G - 1)
    nh = OPT["holes"] % 10 if a == 0 else OPT["holes"] // 10
    for n in range(nh if j <= 28 else 0):
        ref = dops[min(6, (2 * n + 1) * 8 // (2 * nh) - 1 + (1 if nh < 4 else 0))][0]
        w = OPT["holew"]
        b.op(vload("buffer_load_dword" + ("" if w == 1 else f"x{w}"), "v20" if w == 1 else R("a", 252, w), vAuxT, "s[84:87]", "0"), "st", 0, -95, [(ref, 2)], hard=G - 12)
    add_deferred(b, a, ends)
    add_softmax(b, a, j + 1, ends, G - 1, deferred(a))
    if OPT["rwin"] and j <= 28:
        tm = TMPL[OPT["rwin"]][a].replace(" ", "")
        assert len(tm) == 72, len(tm)
        nd = len([o for o in b.ops if o.cls in ("dma", "st")])
        b.tmpl = tm.replace("d", "D", max(0, nd - 8) if nd > 4 else 1).replace("d", ".")
        for o in b.ops:
            if o.cls == "dma" or o.ins.kind == "dsw":
                o.lo = 0
            if o.ins.text.startswith("v_cvt"):
                o.dl -= 200
    vm = [("V", j + 1)] + ([("K", j + 3)] if j + 3 <= 31 else [])
    if OPT["early"] and j == 29:
        vm.append(("V", 31))
    b.barrier(G - 1, vm, ["w"] + [f"a{AKF + i}" for i in range(32)])
    if loop_end:
        b.scalar(salu(f"s_sub_u32 {sCNT}, {sCNT}, 1"), 20, G - 4)
        b.scalar(salu(f"s_cmp_lg_u32 {sCNT}, 0"), G - 3, G - 3)
    out, _ = b.schedule(show=OPT["show"] == j)
    out = prof_hooks(out)
    if loop_end:
        out.append(salu(f"s_cbranch_scc1 {loop_end}"))
    return out


def first_tile_instrs(t):
    own, oth = R("v", SPRE, 4), R("v", SPRE + 4, 4)
    mf = [mfma(own, R("a", AVF + 4 * s, 4), Qf(t, s), "0" if s == 0 else own) for s in range(8)]
    mf += [mfma(oth, R("a", ASP + 4 * s, 4), Qf(t, s), "0" if s == 0 else oth) for s in range(8)]
    A_, B_, C_ = TMP, TMP + 1, TMP + 4
    m1 = [valu(f"v_max3_f32 v{C_}, v{SPRE}, v{SPRE + 1}, v{SPRE + 2}"), valu(f"v_max_f32 v{C_}, v{C_}, v{SPRE + 3}")]
    m2 = [valu(f"v_max3_f32 v{C_}, v{C_}, v{SPRE + 4}, v{SPRE + 5}"),
          valu(f"v_max3_f32 v{A_}, v{C_}, v{SPRE + 6}, v{SPRE + 7}"), valu(f"v_max3_f32 v{B_}, v{C_}, v{SPRE + 6}, v{SPRE + 7}"),
          valu(f"v_permlane32_swap_b32 v{A_}, v{B_}"),
          valu(f"v_max_f32 v{C_}, v{A_}, v{B_}"), valu(f"v_max_f32 v{B_}, v{A_}, v{B_}"),
          valu(f"v_permlane16_swap_b32 v{C_}, v{B_}"),
          valu(f"v_max_f32 v{A_}, v{C_}, v{B_}")]
    cm = [valu(f"v_cndmask_b32 v{NEGM + 4 * t + r}, -v{TMP}, v{NEGM + 4 * t + r}, {sKEEP}") for r in range(4)]
    n = 8 if t < 4 else 4
    sb = [valu(f"v_add_f32 v{SPRE + r}, v{SPRE + r}, v{NEGM + 4 * t}") for r in range(n)]
    ex = [valu(f"v_exp_f32 v{SPRE + r}, v{SPRE + r}") for r in range(n)]
    cv = [valu(f"v_cvt_pk_bf16_f32 v{Pown(0, t) + h}, v{SPRE + 2 * h}, v{SPRE + 2 * h + 1}") for h in range(n // 2)]
    ad = [valu(f"v_add_f32 v{vL[t]}, v{SPRE + r}, v{vL[t]}") for r in range(4)]
    return mf, m1, m2, cm, sb, ex, cv, ad


def add_first_tile(b, t, need_by=None):
    mf, m1, m2, cm, sb, ex, cv, ad = first_tile_instrs(t)
    idx = [b.mfma(x) for x in mf]

    def ops():
        x = chain_ops(b, m1, idx[7] + 5, -510)
        last = chain_ops(b, m2, idx[15] + 5, -500, [x])
        c = [b.op(y, "valu", 0, -480 if r == 0 else 150, [(last, 0)]) for r, y in enumerate(cm)]
        e = []
        for r in range(len(sb)):
            sbo = b.op(sb[r], "valu", 0, -478 + r, [(c[0], 0)], hard=need_by)
            e.append(b.op(ex[r], "exp", 0, -470 + r, [sbo], hard=need_by))
        for h, y in enumerate(cv):
            b.op(y, "valu", 0, -469 + 2 * h, e[2 * h:2 * h + 2], hard=need_by)
        for r in range(4):
            b.op(ad[r], "valu", 0, 200 + r, [e[r]])
        return c[0]
    return idx, ops


def qk_chain(b, t, zero=False):
    for s in range(8):
        k = b.mfma(mfma(S(t), Kf(s), Qf(t, s), ("0" if zero else Ng(t)) if s == 0 else S(t)))
    return k


def flush(out, left):
    m0 = None
    left = list(left)
    while left:
        o = next(o for o in left if all(d not in left for d, _ in o.deps))
        left.remove(o)
        if o.m0 is not None and o.m0 != m0:
            out.append(o.setter)
            m0 = o.m0
        out.append(o.ins)
    return out


def mid_block(a):
    b = Block(f"mid role {a}")
    b.chainy = True
    b.pre = [kread(1, s) for s in range(8)] + stage_read(2)
    ends = {0: qk_chain(b, 0)}
    idx, ops = add_first_tile(b, 2)
    for t in ((1, 4) if a == 0 else (1,)):
        ends[t] = qk_chain(b, t)
    ops()
    add_softmax(b, a, 1, ends, len(b.mf) + 16, deferred(a), soft=True)
    out, left = b.schedule(show=OPT["show"] == 0, leftover_ok=True)
    return flush(out, left)


def start_block(a, rest):
    b = Block(f"start role {a}")
    b.chainy = True
    b.pre = stage_read(3)
    ends = {2: qk_chain(b, 2)}
    G = 32 + 4 * (4 + a)
    idx, ops = add_first_tile(b, 3, need_by=G - 5)
    ends[3] = qk_chain(b, 3, zero=True)
    lu = {AVF + 4 * s: idx[s] for s in range(8)}
    done, pfirst = add_pv(b, a, [0], 0, [[FNEW[d]] for d in range(4)], {0: 0}, zero=True, tmajor=[0, 1, 2, 4, 3][:3] + ([4] if a else []) + [3], lastuse=dict(lu))
    assert G == len(b.mf)
    bar = OPT["bar0"]
    neg3 = ops()
    for d in range(4):
        for u in range(2):
            b.op(vread(0, 4 + d, u, FOLD[d]), "ds", lu[FOLD[d]], G + 30 + 2 * d + u)
    for t, ins in preads(0, a):
        if t == 4:
            b.op(ins, "ds", idx[8], pfirst[(0, t)] - 10, hard=pfirst[(0, t)] - 3)
    for s in range(8):
        b.op(kread(2, s), "ds", max(bar, ends[3] - 7 + s), G - 10 + s)
    pieces = rest + [("V", 2, i) for i in range(4)] + [("K", 4, i) for i in range(4)]
    if OPT["klead"] == 3:
        pieces += [("K", 5, i) for i in range(4)]
    nin = min(len(pieces), OPT["sdman"])
    add_dma(b, a, pieces[:nin], OPT["sdma0"], OPT["sdmas"], G)
    add_softmax(b, a, 1, ends, G + 12, deferred(a), soft=True, sub={3: neg3})
    b.barrier(bar, [("K", 2)], None)
    if OPT["stamps"] == 1:
        b.inserts[0] = stamp(12)
        b.inserts[bar - 2] = stamp(13)
        b.inserts[bar] = stamp(9)
        b.inserts[G - 1] = stamp(10)
    out, left = b.schedule(show=OPT["show"] == 0, leftover_ok=True)
    out = flush(out, left)
    for p in pieces[nin:]:
        out += dma_piece(*p)
    out.append(wait(vm=[("V", 1), ("K", 3)], lg=["w"] + [f"a{AKF + i}" for i in range(32)]))
    out.append(barrier())
    return prof_hooks(out)


def unit_instrs(a, t, h, n, packed):
    va, wr = [], []
    for d in range(4):
        dt = 4 * h + d
        x = OO + 32 * t + 4 * dt if t < 4 else SS + 4 * d
        seq = []
        if t == 4:
            seq += [valu(f"v_accvgpr_read_b32 v{x + i}, a{AX + 4 * dt + i}") for i in range(4)]
        if packed:
            seq += [valu(f"v_pk_mul_f32 {R('v', x + 2 * i, 2)}, {R('v', x + 2 * i, 2)}, {R('v', RL(t), 2)} op_sel_hi:[1,0]") for i in range(2)]
        else:
            seq += [valu(f"v_mul_f32 v{x + i}, v{x + i}, v{RL(t)}") for i in range(4)]
        seq += [valu(f"v_cvt_pk_bf16_f32 v{x + i}, v{x + 2 * i}, v{x + 2 * i + 1}") for i in range(2)]
        va.append(seq)
        wr.append(ds_write("ds_write_b64", vEw, R("v", x, 2), f"offset:{32 * d}", (("K", 1), 99)))
    rd, st = [], []
    for i in range(2):
        q = R("a", ASP + 16 + 8 * (n % 2) + 4 * i, 4)
        rd.append(ds_read("ds_read_b128", q, vEr, f"offset:{8 * 144 * i}"))
        st.append(vstore("buffer_store_dwordx4", q, vO, sO, (sT, sT8)[i][t], 128 * h, OPT["pol_o"] if h == 0 or "pol_o1" not in OPT else OPT["pol_o1"]))
    return va, wr, rd, st


def final_block(a):
    NQ, NP = 5 - a, 4 + a
    b = Block(f"final role {a}")
    b.lazy = OPT["lazy"]
    b.chainy = True
    save = OPT["walign"]
    OPT["walign"] = 0
    barA, barB = OPT["bara"], OPT["barb"]
    F = lambda i: AVF + 4 * i
    KF = lambda i: AKF + 4 * i
    lo = {28: 0, 29: 0, 30: 0, 31: 0}
    lu = {}
    rest = list(range(2, NP))
    f30, f31 = [[F(d)] for d in range(4)], [[F(4 + d)] for d in range(4)]
    ends = {t: qk_chain(b, t) for t in (0, 1, 2)}
    _, pf = add_pv(b, a, [30], 0, f30, lo, lastuse=lu, ts=[0, 1])
    ends[3] = qk_chain(b, 3)
    done0, pf1 = add_pv(b, a, [31], 0, f31, lo, tmajor=True, lastuse=lu, ts=[0, 1])
    X1 = len(b.mf) - 1
    if a == 0:
        ends[4] = qk_chain(b, 4)
    lu.update({KF(s): ends[NQ - 1] - 7 + s for s in range(8)})
    pf.update(add_pv(b, a, [30], 0, f30, lo, lastuse=lu, ts=rest, have=[30])[1])
    add_pv(b, a, [28], 1, [[ASP + 4 * d if a == 0 else KF(d)] for d in range(4)], lo, lastuse=lu)
    d2, p2 = add_pv(b, a, [31], 0, f31, lo, tmajor=True, lastuse=lu, ts=rest, have=[31])
    done0.update(d2)
    pf1.update(p2)
    X = len(b.mf) - 1
    pool = [KF(i) for i in range(8)] + [F(i) for i in range(4)] if a == 0 else [KF(4 + i) for i in range(4)] + [F(i) for i in range(4)] + [KF(i) for i in range(4)]
    add_pv(b, a, [29, 30, 31], 1, [pool[3 * d:3 * d + 3] for d in range(4)], lo, lastuse=lu)
    G = len(b.mf)
    bar = lambda t: barA if t < 2 else barB
    for t, ins in preads(30, a):
        b.op(ins, "ds", 0, pf[(30, t)] - 10, hard=pf[(30, t)] - 3)
    for t, ins in preads(31, a):
        b.op(ins, "ds", bar(t), pf1[(31, t)] - 12, hard=pf1[(31, t)] - 3)
    add_deferred(b, a, ends)
    adds = add_softmax(b, a, 31, {t: ends[t] for t in (0, 1)}, barA, [], adds_by=barA - 4)
    adds.update(add_softmax(b, a, 31, {t: ends[t] for t in range(2, NQ)}, barB, [], adds_by=barB - 6))
    L = lambda *t: [(("L", x), 0) for x in t]
    lw = {t: b.op(ds_write("ds_write_addtid_b32", None, f"v{vL[t]}", f"offset:{2 * PXA + t * 256}", L(t)), "ds", 0, bar(t) - 8, [adds[t]], hard=bar(t) - 3, m0="p", setter=msetter()) for t in range(NQ)}
    w1 = b.op(valu(f"v_max3_u32 v{TMP}, v{vL[0]}, v{vL[1]}, v{vL[2]}"), "valu", 0, barB - 12, [adds[0], adds[1], adds[2]], hard=barB - 5)
    w2 = b.op(valu(f"v_max3_u32 v{TMP}, v{TMP}, v{vL[3]}, v{vL[NQ - 1]}"), "valu", 0, barB - 11, [w1, adds[3], adds[NQ - 1]], hard=barB - 4)
    b.op(ds_write("ds_write_addtid_b32", None, f"v{TMP}", f"offset:{2 * PXA + 5 * 256}", L(5)), "ds", 0, barB - 9, [w2], hard=barB - 3, m0="p", setter=msetter())
    b.barrier(barA, None, ["w"])
    b.barrier(barB, None, ["w"])
    base = 80
    lr = {}
    for t in (0, 2):
        lr[t] = lr[t + 1] = b.op(ds_read("ds_read2st64_b32", R("v", LP + t, 2), vPr, f"offset0:{base + a * 20 + t} offset1:{base + a * 20 + t + 1}", L(t, t + 1)), "ds", bar(t), bar(t) - 5)
    f1 = b.op(ds_read("ds_read2st64_b32", R("v", FLG, 2), vPr, f"offset0:{base + 5} offset1:{base + 25}", L(5)), "ds", barB, barB + 8)
    f2 = b.op(ds_read("ds_read2st64_b32", R("v", FLG + 2, 2), vPr2, f"offset0:{base + 5} offset1:{base + 25}", L(5)), "ds", barB, barB + 9)
    if a == 1:
        x1 = b.op(ds_read("ds_read_b32", f"v{LP + 4}", vPr, f"offset:{(base + 4) * 256}", L(4)), "ds", barB, barB + 5)
        lr[4] = b.op(ds_read("ds_read_b32", f"v{vL[4]}", vPr2, f"offset:{(base + 4) * 256}", L(4)), "ds", barB, barB + 6, [x1])
    ck = chain_ops(b, [valu(f"v_max3_u32 v{FLG}, v{FLG}, v{FLG + 1}, v{FLG + 2}"), valu(f"v_max_u32 v{FLG}, v{FLG}, v{FLG + 3}"), valu(f"v_cmp_lt_u32 vcc, {sTHR}, v{FLG}")],
                   0, barB + 30, [(f1, 6), (f2, 6)], hard=G - 4)
    if not OPT["abl"]:
        b.scalar(salu(f"s_cbranch_vccnz L_fallback{a}"), (lambda: ck.gap + 1), G - 1)
    rl = {}
    for t in range(NP):
        A_, B_, C_ = RL(t), RL(t) + 1, LP + t
        seq = [valu(f"v_add_f32 v{A_}, v{vL[t]}, v{C_}"), valu(f"v_add_f32 v{B_}, v{vL[t]}, v{C_}"), valu(f"v_permlane32_swap_b32 v{A_}, v{B_}"),
               valu(f"v_add_f32 v{C_}, v{A_}, v{B_}"), valu(f"v_add_f32 v{B_}, v{A_}, v{B_}"), valu(f"v_permlane16_swap_b32 v{C_}, v{B_}"),
               valu(f"v_add_f32 v{A_}, v{C_}, v{B_}"), valu(f"v_rcp_f32 v{A_}, v{A_}")]
        rl[t] = chain_ops(b, seq, 0, bar(t) + t, [(lr[t], 6)], hard=X1 if t < 2 else X)
    units = [(t, 0) for t in range(NP)] + [(t, 1) for t in range(NP)]
    nfast = min(2 + OPT["nfast"], NP)
    nin = min(OPT["nin"], NP - nfast)

    def straight(lst, pend):
        o = []
        for n, (t, h) in lst:
            va, wr, rd, st = unit_instrs(a, t, h, n, True)
            for k in range(len(va[0])):
                o += [va[d][k] for d in range(4)]
            o += pend
            o += wr + rd
            pend = st
        return o, pend
    en = list(enumerate(units))
    b.inserts[X1], pend = straight(en[:2], [])
    prev_rd, prev_st = [], {1: [b.op(x, "st", X1 + 6 + i, X1 - 50 + i, hard=X1 + 12) for i, x in enumerate(pend)]}
    if nfast > 2:
        b.inserts[X], pend = straight(en[2:nfast], [])
        prev_st[(nfast - 1) % 2] = [b.op(x, "st", X + 6 + i, X + i, hard=G - 1) for i, x in enumerate(pend)]
    if OPT["stamps"] == 2:
        b.inserts[barA] = stamp(12)
        b.inserts[X1] = stamp(13) + b.inserts[X1]
        b.inserts[barB] = stamp(9)
        b.inserts[X] = stamp(10) + b.inserts.get(X, [])
    for n, (t, h) in en[nfast:nfast + nin]:
        va, wr, rd, st = unit_instrs(a, t, h, n, False)
        p0 = X + 4 + 22 * (n - nfast)
        wops = []
        for d in range(4):
            nv = len(va[d])
            pr = [b.op(x, "valu", max(X + 1, done0[(t, d)] + 5), p0 + 4 * d, prev_rd) for x in va[d][:nv - 6]]
            mu = [b.op(x, "valu", max(X + 1, done0[(t, d)] + 5), p0 + 4 * d + i // 2, [rl[t]] + pr[i:i + 1]) for i, x in enumerate(va[d][nv - 6:nv - 2])]
            c0 = b.op(va[d][nv - 2], "valu", 0, p0 + 4 * d + 2, mu[:2])
            c1 = b.op(va[d][nv - 1], "valu", 0, p0 + 4 * d + 2, mu[2:] + [(c0, 0)])
            wops.append(b.op(wr[d], "solo", 0, p0 + 4 * d + 3, [c0, c1] + prev_rd))
        prev_rd = [b.op(rd[i], "ds", 0, p0 + 17 + i, wops + prev_st.get(n % 2, [])) for i in range(2)]
        prev_st[n % 2] = [b.op(st[i], "st", 0, p0 + 19 + i, [(prev_rd[i], 6)]) for i in range(2)]
    out, left = b.schedule(show=OPT["show"] == 31, leftover_ok=True)
    OPT["walign"] = save
    out += stamp(5)
    pend = []
    for o in left:
        if o.ins.kind == "vst":
            pend.append(o.ins)
        else:
            if any(o.ins.wr & x.rd for x in pend):
                out += pend
                pend = []
            out.append(o.ins)
    o2, pend = straight(en[nfast + nin:], pend)
    return out + o2 + pend


def qload(k, i):
    return [vload("buffer_load_dwordx4", R("v", RAW(k, i), 4), vQl, sQ, sT[k], 512 * i, OPT["pol_q"])]


def entry():
    o = []
    A = lambda t: o.append(salu(t))
    V = lambda t: o.append(valu(t))
    t0, t1, t2, t3, t4 = (f"v{TMP + i}" for i in range(5))
    A("s_cmp_ge_u32 s2, 256")
    A("s_cbranch_scc1 L_end")
    o.append(raw("s_load_dwordx8 s[4:11], s[0:1], 0"))
    if OPT["stamps"]:
        o.append(raw("s_load_dwordx2 s[56:57], s[0:1], 40"))
        o.append(raw("s_memrealtime s[58:59]"))
    o += stamp(0)
    o.append(raw("s_getpc_b64 s[44:45]"))
    o.append(label("L_pc"))
    A("s_and_b32 s45, s45, 0xffff")
    o.append(raw("s_mov_b32 s46, L_end-L_pc"))
    A("s_mov_b32 s47, 0x20000")
    A("s_lshr_b32 s54, s2, 3")
    A("s_lshl_b32 s55, s54, 7")
    V(f"v_lshl_add_u32 {t0}, v0, 12, s55")
    o.append(vload("buffer_load_dword", "v15", t0, sC, "0"))
    V(f"v_lshrrev_b32 {t1}, 6, v0")
    A(f"s_mov_b64 {sKEEP}, 0")
    V(f"v_readfirstlane_b32 {sW}, {t1}")
    A(f"s_mov_b32 {sTHR}, {(127 + OPT['thr']) << 23:#x}")
    if OPT["prof"]:
        A("s_mov_b32 s3, 0")
    A("s_and_b32 s53, s2, 7")
    A("s_lshl_b32 s53, s53, 3")
    A("s_lshr_b32 s55, s2, 5")
    A("s_add_u32 s53, s53, s55")
    A("s_and_b32 s54, s54, 3")
    A("s_lshl_b32 s55, s53, 2")
    A("s_add_u32 s55, s55, s54")
    A("s_mul_i32 s37, s55, 73728")
    A("s_lshl_b32 s53, s53, 19")
    A(f"s_lshr_b32 {sA}, {sW}, 1")
    A(f"s_and_b32 {sB}, {sW}, 1")
    A(f"s_add_u32 s54, {sW}, 1")
    A("s_and_b32 s55, s54, 1")
    A("s_lshl_b32 s55, s55, 3")
    A("s_lshr_b32 s54, s54, 1")
    A("s_and_b32 s54, s54, 1")
    A("s_add_u32 s54, s54, s55")
    A("s_mul_i32 s54, s54, 1040")
    A(f"s_add_u32 {sKm}, s54, {KRING}")
    A("s_mov_b32 s48, 8192")
    A("s_mov_b32 s49, 16384")
    A("s_mov_b32 s50, 24576")
    A(f"s_mov_b32 {sX}, 65536")
    for srd, n in ((16, 524288), (12, 73728), (20, 524288), (24, 73728)):
        A(f"s_mov_b32 s{srd + 2}, {n}")
        A(f"s_mov_b32 s{srd + 3}, 0x20000")

    def src_offsets():
        V(f"v_and_b32 {t0}, 31, v0")
        V(f"v_lshlrev_b32 {t0}, 4, {t0}")
        V(f"v_bfe_u32 {t2}, v0, 5, 1")
        A(f"s_lshl_b32 s54, {sW}, 11")
        V(f"v_add_u32 {t1}, s54, {t0}")
        V(f"v_lshl_add_u32 {vKd}, {t2}, 13, {t1}")
        V(f"v_lshl_add_u32 {vQl}, {t2}, 15, {t1}")
        V(f"v_lshl_add_u32 {vQlx}, {t2}, 9, {t1}")
        A(f"s_mov_b32 {sKo}, 0")
        A(f"s_mov_b32 {sVo}, 0")
    src_offsets()
    o.append(raw("s_waitcnt lgkmcnt(0)"))
    o += stamp(8)
    for srd, ptr, off in ((16, 6, "s53"), (12, 4, "s37"), (20, 8, "s53"), (24, 10, "s37")):
        A(f"s_add_u32 s{srd}, s{ptr}, {off}")
        A(f"s_addc_u32 s{srd + 1}, s{ptr + 1}, 0")
        A(f"s_and_b32 s{srd + 1}, s{srd + 1}, 0xffff")
    o.append(label("L_restart"))
    for i in range(4):
        o += dma_piece("K", 0, i)
    for i in range(2):
        o.append(vload("buffer_load_dwordx4", R("v", RAWX + 4 * i, 4), vQlx, sQ, sX, 1024 * i, OPT["pol_q"]))
    o.append(barrier())
    for i in range(4):
        o += qload(0, i)
    A(f"s_lshl_b32 s54, {sB}, 11")
    A(f"s_lshl_b32 s55, {sA}, 13")
    A("s_add_u32 s54, s54, s55")
    V(f"v_lshl_add_u32 {vVd}, {t2}, 12, {t0}")
    V(f"v_add_u32 {vVd}, s54, {vVd}")
    A(f"s_add_u32 s54, {sKm}, {3 * SLOT}")
    V(f"v_lshl_add_u32 {vQw}, {t2}, 9, {t0}")
    V(f"v_add_u32 {vQw}, s54, {vQw}")
    V(f"v_add_u32 {vQw2}, {4 * SLOT}, {vQw}")
    A(f"s_sub_u32 s54, {sKm}, {KRING - PXA}")
    V(f"v_mul_u32_u24 {vQwx}, 2080, {t2}")
    V(f"v_add3_u32 {vQwx}, {vQwx}, {t0}, s54")
    A(f"s_mul_i32 s54, {sB}, {4 * 2080}")
    A(f"s_lshl_b32 s55, {sA}, 10")
    A("s_add_u32 s54, s54, s55")
    A(f"s_add_u32 {sVm}, s54, {VRING}")
    A(f"s_mul_i32 {sPm}, {sW}, 2560")
    V(f"v_and_b32 {t0}, 15, v0")
    V(f"v_bfe_u32 {t1}, v0, 4, 1")
    V(f"v_lshlrev_b32 {t3}, 5, {t1}")
    V(f"v_lshl_add_u32 {t3}, {t2}, 4, {t3}")
    V(f"v_add_u32 {t4}, 4, {t0}")
    V(f"v_bfe_u32 {vKr0}, {t4}, 3, 1")
    V(f"v_and_b32 {t4}, 7, {t4}")
    V(f"v_lshl_add_u32 {vKr0}, {t4}, 1, {vKr0}")
    V(f"v_mul_u32_u24 {vKr0}, 1040, {vKr0}")
    V(f"v_add_u32 {vKr0}, {vKr0}, {t3}")
    V(f"v_add_u32 {vQrx}, {PXA}, {vKr0}")
    V(f"v_add_u32 {vKr0}, {KRING}, {vKr0}")
    A(f"s_lshl_b32 s54, {sB}, 9")
    V(f"v_add_u32 {vKr}, s54, {vKr0}")
    A(f"s_lshl_b32 s54, {sA}, 9")
    A(f"s_add_u32 s54, s54, {3 * SLOT}")
    V(f"v_add_u32 {vQr}, s54, {vKr0}")
    V(f"v_add_u32 {vQr2}, {4 * SLOT}, {vQr}")
    A(f"s_lshl_b32 s54, {sB}, 9")
    A("s_sub_u32 s54, 512, s54")
    V(f"v_add_u32 {vKr0}, s54, {vKr0}")
    V(f"v_bfe_u32 {t4}, v0, 2, 3")
    V(f"v_mul_u32_u24 {vV0}, 2080, {t4}")
    V(f"v_lshl_add_u32 {vV0}, {t2}, 9, {vV0}")
    V(f"v_and_b32 {t4}, 3, v0")
    V(f"v_lshl_add_u32 {vV0}, {t4}, 3, {vV0}")
    A(f"s_mul_i32 s54, {sB}, {256 + 1024}")
    A(f"s_add_u32 s54, s54, {VRING}")
    A(f"s_mul_i32 s55, {sB}, {1024 - 256}")
    A(f"s_sub_u32 s55, {VRING + 1024}, s55")
    V(f"v_add_u32 {vV1}, s55, {vV0}")
    V(f"v_add_u32 {vV0}, s54, {vV0}")
    V(f"v_and_b32 {t4}, 63, v0")
    V(f"v_lshlrev_b32 {t4}, 2, {t4}")
    A(f"s_mul_i32 s54, {sB}, 2560")
    A("s_sub_u32 s55, 2560, s54")
    V(f"v_add_u32 {vPr2}, s54, {t4}")
    V(f"v_add_u32 {vPr}, s55, {t4}")
    if OPT["pf31"]:
        A("s_lshr_b32 s54, s2, 3")
        A("s_and_b32 s54, s54, 3")
        A("s_lshl_b32 s54, s54, 2")
        A(f"s_add_u32 s54, s54, {sW}")
        A("s_lshl_b32 s54, s54, 10")
        A(f"s_add_u32 s37, s54, {31 * 16384}")
    A(f"s_mul_i32 s55, {sW}, 2304")
    A(f"s_add_u32 s55, s55, {KRING + SLOT}")
    V(f"v_bfe_u32 {t4}, v0, 4, 2")
    V(f"v_mul_u32_u24 {vEw}, 144, {t0}")
    V(f"v_lshl_add_u32 {vEw}, {t4}, 3, {vEw}")
    V(f"v_add_u32 {vEw}, s55, {vEw}")
    V(f"v_bfe_u32 {t4}, v0, 3, 3")
    V(f"v_and_b32 {t1}, 7, v0")
    V(f"v_lshlrev_b32 {t1}, 4, {t1}")
    V(f"v_mul_u32_u24 {vEr}, 144, {t4}")
    V(f"v_add3_u32 {vEr}, {vEr}, {t1}, s55")
    A(f"s_lshl_b32 s54, {sA}, 15")
    A(f"s_lshl_b32 s55, {sB}, 8")
    A("s_add_u32 s55, s55, s54")
    A("s_sub_u32 s51, 65536, s54")
    V(f"v_lshl_add_u32 {vO}, {t4}, 9, {t1}")
    V(f"v_add_u32 {vO}, s55, {vO}")
    for t in range(5):
        A(f"s_add_u32 {sT8[t]}, {sT[t]}, 4096" if t else f"s_mov_b32 {sT8[0]}, 4096")
    c = struct.unpack("<I", struct.pack("<f", math.log2(math.e) / 16.0))[0]
    A(f"s_mov_b32 s40, {c:#x}")
    A(f"s_mov_b32 s41, {c:#x}")
    A(f"s_mov_b32 {sMASK}, 0xffff0000")
    for t in range(5):
        V(f"v_mov_b32 v{vL[t]}, 0")
    for t in range(4):
        for i in range(8):
            V(f"v_mov_b64 {R('v', OO + 32 * t + 16 + 2 * i, 2)}, 0")
    for i in range(16):
        V(f"v_accvgpr_write_b32 a{AX + 16 + i}, 0")
    A(f"s_cmp_eq_u32 {sA}, 1")
    A("s_cbranch_scc1 L_role1")
    o2 = []
    o, keep = o2, o
    src_offsets()
    return keep, o2


def scale4(src):
    o = []
    T = SCT
    for i in range(4):
        o.append(valu(f"v_lshlrev_b32 v{T + 2 * i}, 16, v{src + i}"))
        o.append(valu(f"v_and_b32 v{T + 2 * i + 1}, {sMASK}, v{src + i}"))
    for i in range(4):
        o.append(valu(f"v_pk_mul_f32 {R('v', T + 2 * i, 2)}, {R('v', T + 2 * i, 2)}, {sSC}"))
    for i in range(4):
        o.append(valu(f"v_cvt_pk_bf16_f32 v{src + i}, v{T + 2 * i}, v{T + 2 * i + 1}"))
    return o


QST = {0: (("V", 1), vQw, vQr, 2 * SLOT), 1: (("K", 3), vQw, vQr, 0), 2: (("V", 2), vQw, vQr, 3 * SLOT), 3: (("V", 3), vQw2, vQr2, 0)}


def stage_in(k, feed):
    o = []
    for i in range(2 if k == 4 else 4):
        src = RAWX + 4 * i if k == 4 else RAW(k, i)
        sc = scale4(src)
        o.append(sc[0])
        o += feed(("Q", k, i))
        o += sc[1:]
        if k == 4:
            o.append(ds_write("ds_write_b128", vQwx, R("v", src, 4), f"offset:{4160 * i}", QXTAG))
        else:
            reg, wb, rb, off = QST[k]
            o.append(ds_write("ds_write_b128", wb, R("v", src, 4), f"offset:{off + 2080 * i}", (reg, -1)))
    return o


def stage_read(k):
    if k == 4:
        return [ds_read("ds_read_b128", Qf(4, s), vQrx, f"offset:{64 * s}", QXTAG) for s in range(8)]
    reg, wb, rb, off = QST[k]
    return [ds_read("ds_read_b128", Qf(k, s), rb, f"offset:{off + 64 * s}", (reg, -1)) for s in range(8)]


def stage_compute(t):
    mf, m1, m2, cm, sb, ex, cv, ad = first_tile_instrs(t)
    o = mf + m1 + m2 + cm + sb + ex + cv
    if t == 4:
        o += [msetter(), ad[0]] + [pwrite(0, t, h) for h in range(2)] + ad[1:]
    else:
        o += ad
    return o


def prologue(a):
    o = [label(f"L_role{a}")] + aux_setup(a) + [salu(f"s_mov_b32 {sCNT}, {(24 if OPT['early'] else 28) // 4}")]
    seq = {0: "Q1 Q2 Q3 K1 V0 K2 V1 K3", 1: "Q1 K1 Q2 V0 Q3 K2 V1 K3", 2: "Q1 Q2 K1 Q3 V0 K2 V1 K3", 3: "K1 Q1 V0 Q2 K2 Q3 V1 K3", 4: "Q1 Q2 K1 V0 Q3 K2 V1 K3"}[OPT["order"]]
    full = [("K", 0, i) for i in range(4)] + [("Q", 4, i) for i in range(2)] + [("Q", 0, i) for i in range(4)]
    order = [(x[0], int(x[1]), i) for x in seq.split() for i in range(4)]
    full += order

    def feed(landed):
        r = []
        stage = -1 if landed[1] == 4 else landed[1]
        while order and full.index(order[0]) <= full.index(landed) + OPT["win"]:
            x = order[0]
            if (x[:2] == ("V", 1) and stage < 2) or (x[:2] == ("K", 3) and stage < 3) or (landed == ("Q", 3, 3) and not OPT["lastfeed"]):
                break
            order.pop(0)
            r += qload(x[1], x[2]) if x[0] == "Q" else dma_piece(*x)
        return r
    o += stage_in(4, feed)
    o.append(wait(vm=[("K", 0)], lg="all"))
    o.append(barrier())
    o += stamp(1)
    for s in range(8):
        o.append(kread(0, s, vKr, R("a", AVF + 4 * s, 4)))
    if a == 0:
        o += stage_read(4)
    for s in range(8):
        o.append(kread(0, s, vKr0, R("a", ASP + 4 * s, 4)))
    if a == 0:
        o += stage_compute(4)
    ps = iter([3, 4, 5, 6, 7, 8, 9, 10, 11, 12, 13, 14])
    pst = lambda: stamp(next(ps), 3)
    o += pst()
    for k in range(4):
        o += stage_in(k, feed)
        o += pst()
        o.append(wait(vm={2: [("K", 1)], 3: [("V", 0)]}.get(k), lg="all"))
        o.append(barrier())
        if k < 3:
            o += pst()
        if k < 2:
            o += stage_read(k)
            o += stage_compute(k)
        if k == 2:
            o += mid_block(a)
        if k < 3:
            o += pst()
    o += stamp(2)
    return o, order


def aux_setup(a):
    o = []
    if OPT["aux"]:
        o.append(salu("s_lshr_b32 s54, s2, 3"))
        o.append(salu("s_lshl_b32 s55, s54, 7"))
        o.append(valu(f"v_lshl_add_u32 {vAuxC}, v0, 12, s55"))
        piece = (32 - OPT["auxt0"]) * 16384 // OPT["auxn"]
        before = len([j for j in range(1, OPT["auxend"] + 1) if (j - OPT["auxend"]) % OPT["auxper"] == 0]) - OPT["auxn"]
        o.append(salu("s_and_b32 s54, s54, 3"))
        o.append(salu(f"s_mul_i32 s54, s54, {piece // 4}"))
        o.append(salu(f"s_add_u32 s54, s54, {(a * piece // 8 - before * piece) & 0xffffffff:#x}"))
        o.append(valu(f"v_and_b32 {vAuxT}, 63, v0"))
        o.append(valu(f"v_cmp_le_u32 vcc, {piece // 1024}, {vAuxT}"))
        o.append(valu(f"v_lshl_add_u32 {vAuxT}, {vAuxT}, 7, s54"))
        o.append(valu(f"v_cndmask_b32 {vAuxT}, {vAuxT}, 2.0, vcc"))
        o.append(salu(f"s_cmp_eq_u32 {sB}, 0"))
        o.append(salu("s_cselect_b32 s88, s16, s20"))
        o.append(salu("s_cselect_b32 s89, s17, s21"))
        o.append(salu(f"s_add_u32 s88, s88, {OPT['auxt0'] * 16384}"))
        o.append(salu("s_addc_u32 s89, s89, 0"))
        o.append(salu(f"s_mov_b32 s90, {(32 - OPT['auxt0']) * 16384}"))
        o.append(salu("s_mov_b32 s91, 0x20000"))
        if OPT["holes"]:
            o.append(salu("s_mov_b64 s[84:85], s[88:89]"))
            o.append(salu("s_mov_b32 s86, 0"))
            o.append(salu("s_mov_b32 s87, 0x20000"))
    return o


def finish(a):
    o = stamp(6)
    if OPT.get("amp"):
        lo, hi, base = OPT["amp"] // 100, OPT["amp"] % 100, OPT["ampbase"]
        o.append(raw("s_waitcnt vmcnt(0)"))
        o += stamp(7)
        o.append(raw(f"s_waitcnt lgkmcnt(0)\ns_cmp_lg_u32 s2, {OPT.get('ampwg', 40)}\ns_cbranch_scc1 L_end\ns_sub_u32 s94, s{60 + 2 * hi}, s{60 + 2 * lo}\ns_sub_u32 s94, s94, {base}\ns_max_i32 s94, s94, 0\ns_min_u32 s94, s94, 20000\ns_add_u32 s94, s94, 6000"))
        o.append(raw(f"L_amp{a}:\ns_memrealtime s[92:93]\ns_waitcnt lgkmcnt(0)\ns_sub_u32 s92, s92, s58\ns_cmp_lt_u32 s92, s94\ns_cbranch_scc1 L_amp{a}"))
    elif OPT["stamps"]:
        o.append(raw("s_waitcnt vmcnt(0)"))
        o += stamp(7)
        o.append(raw("s_memrealtime s[92:93]"))
        o.append(raw("s_waitcnt lgkmcnt(0)"))
        o.append(raw("s_mov_b32 s96, s56\ns_and_b32 s97, s57, 0xffff\ns_mov_b32 s98, 0x100000\ns_mov_b32 s99, 0x20000"))
        o.append(raw(f"s_lshl_b32 s94, s2, 2\ns_add_u32 s94, s94, {sW}\ns_lshl_b32 s94, s94, 7"))
        for i in range(16):
            o.append(raw(f"v_mov_b32 v{64 + i}, s{60 + 2 * i}"))
        o.append(raw("v_mov_b32 v80, s58\nv_mov_b32 v81, s92\nv_mov_b32 v82, 0\nv_mov_b32 v83, 0\nv_mov_b32 v84, 0"))
        if OPT["prof"]:
            o.append(raw("v_lshlrev_b32 v85, 2, v0\ns_lshl_b32 s95, s2, 10\ns_add_u32 s95, s95, 0x40000\nbuffer_store_dword v127, v85, s[96:99], s95 offen"))
        o.append(raw("s_mov_b64 exec, 1"))
        for i in range(5):
            o.append(raw(f"buffer_store_dwordx4 v[{64 + 4 * i}:{67 + 4 * i}], v84, s[96:99], s94 offen offset:{16 * i}"))
    o.append(raw("s_endpgm"))
    return o


def fallback(a, redo):
    NQ = 5 - a
    M, AD = PP, PP + 8
    o = [label(f"L_fallback{a}")]
    o.append(raw("s_waitcnt vmcnt(0) lgkmcnt(0)"))
    o.append(nop(7))
    o.append(salu("s_mov_b32 s18, 524288"))
    o.append(valu(f"v_and_b32 v{AD}, 15, v0"))
    o.append(valu(f"v_lshlrev_b32 v{AD}, 9, v{AD}"))
    o.append(valu(f"v_bfe_u32 v{AD + 1}, v0, 4, 1"))
    o.append(valu(f"v_lshl_add_u32 v{AD}, v{AD + 1}, 5, v{AD}"))
    o.append(valu(f"v_bfe_u32 v{AD + 1}, v0, 5, 1"))
    o.append(valu(f"v_lshl_add_u32 v{AD}, v{AD + 1}, 4, v{AD}"))
    for t in range(NQ):
        o.append(valu(f"v_mov_b32 v{M + t}, 0xff800000"))
    o.append(salu("s_mov_b32 s54, 0"))
    o.append(label(f"L_fbloop{a}"))
    for s in range(8):
        o.append(vload("buffer_load_dwordx4", Kf(s), f"v{AD}", sK, "s54", 64 * s))
    for t in range(NQ):
        for s in range(8):
            o.append(mfma(S(t), Kf(s), Qf(t, s), "0" if s == 0 else S(t)))
    for t in range(NQ):
        s0 = SS + 4 * t
        o.append(valu(f"v_max3_f32 v{M + t}, v{s0}, v{s0 + 1}, v{M + t}"))
        o.append(valu(f"v_max3_f32 v{M + t}, v{s0 + 2}, v{s0 + 3}, v{M + t}"))
    o.append(salu("s_add_u32 s54, s54, 8192"))
    o.append(salu("s_cmp_lt_u32 s54, 524288"))
    o.append(salu(f"s_cbranch_scc1 L_fbloop{a}"))
    for t in range(NQ):
        o += xlane("v_max_f32", M + t, AD + 1)
        for r in range(4):
            o.append(valu(f"v_sub_f32 v{NEGM + 4 * t + r}, 0, v{M + t}"))
    o.append(salu(f"s_mov_b64 {sKEEP}, -1"))
    o.append(salu(f"s_mov_b32 {sTHR}, -1"))
    o += redo
    o.append(barrier())
    o.append(salu("s_branch L_restart"))
    return o


def ablate(lines, lo, hi):
    ab = OPT["abl"]
    for n in range(lo, hi):
        l = lines[n]
        if (ab & 1 and l.endswith(" lds")) or (ab & 2 and l == "s_barrier") or (ab & 4 and l.startswith("ds_write")) or (ab & 8 and l.startswith("ds_read2")) \
           or (ab & 16 and l.startswith("ds_read_b64_tr")) or (ab & 32 and l.startswith("ds_read_b128")) or (ab & 64 and l.startswith("s_waitcnt")) \
           or (ab & 4096 and l.startswith("v_add_f32")):
            lines[n] = "; ablated"
        if ab & 256 and l.startswith("s_waitcnt vmcnt"):
            lines[n] = re.sub(r"vmcnt\(\d+\) ", "", l)


def build():
    j0, j1 = 1, (25 if OPT["early"] else 29)
    ent, redo = entry()
    text, evs = [], []
    for a in (0, 1):
        pro, rest = prologue(a)
        tr = list(ent) + [raw(";;ROLE")] + pro + [raw(";;IV 0")] + start_block(a, rest) + stamp(3)
        for j in range(1, 30):
            tr.append(raw(f";;IV {j}"))
            tr += interval(j, a, f"L_loop{a}" if (j < j1 and (j - j0) % 4 == 3) else None)
        tr.append(raw(";;IV 30"))
        if OPT["prof"]:
            tr.append(raw("s_nop 4\n    v_mov_b32 v1, v21"))
        tr += stamp(4) + final_block(a)
        if OPT["prof"]:
            tr.append(raw("v_mov_b32 v127, v1"))
        tr += finish(a)
        out, ev, ins = resolve(tr)
        evs += ev
        lines = [x.text for x in out]
        k = lines.index(";;ROLE")
        if a == 0:
            text += lines[:k]
        idx = {j: lines.index(f";;IV {j}") for j in range(31)}
        for pos, w, c in ins:
            if idx[0] < pos and (OPT["show"] >= 0 or idx[1] < pos < idx[30]):
                print(f"; auto-inserted in role {a} @{pos - idx[0]}: {w} before {c}", file=sys.stderr)
        seg = lambda j: lines[idx[j] + 1: idx[j + 1]]
        for j in range(j0 + 4, j1):
            jb = j0 + (j - j0) % 4
            assert len(seg(j)) == len(seg(jb)), f"loop body not periodic at {j} role {a}"
            for n, (x, y) in enumerate(zip(seg(j), seg(jb))):
                if x != y:
                    assert re.sub(r"\d+", "", x) == re.sub(r"\d+", "", y) and x.startswith("s_waitcnt"), (j, a, x, y)
                    it = iter(min(int(p), int(q)) for p, q in zip(re.findall(r"\d+", x), re.findall(r"\d+", y)))
                    lines[idx[jb] + 1 + n] = re.sub(r"\d+", lambda m: str(next(it)), x)
        if OPT["abl"]:
            ablate(lines, idx[1], idx[30])
        text += lines[k + 1: idx[j0]]
        text.append(f".p2align {OPT['lalign']}")
        text.append(f"L_loop{a}:")
        text += lines[idx[j0]: idx[j0 + 4]]
        text += lines[idx[j1]:]
        fb, _, _ = resolve(fallback(a, redo))
        text += [x.text for x in fb]
    assert check_lds(evs) == 0
    hdr = open("header.txt").read()
    body = "\n".join(("" if l.endswith(":") or l.startswith(".") else "    ") + l.replace(";;IV", "; interval") for l in text)
    return f"""{hdr}; @launch grid=(256,1,1) block=(256,1,1) lds={LDS_BYTES}
.amdgcn_target "amdgcn-amd-amdhsa--gfx950"
.text
.globl {KN}
.p2align 8
.type {KN},@function
{KN}:
{body}
L_end:
    s_endpgm
.section .rodata,"a"
.p2align 6
.amdhsa_kernel {KN}
  .amdhsa_next_free_vgpr 512
  .amdhsa_next_free_sgpr 102
  .amdhsa_accum_offset 256
  .amdhsa_group_segment_fixed_size 0
  .amdhsa_kernarg_size 48
  .amdhsa_user_sgpr_count 2
  .amdhsa_user_sgpr_kernarg_segment_ptr 1
  .amdhsa_system_sgpr_workgroup_id_x 1
.end_amdhsa_kernel
"""


if __name__ == "__main__":
    for kv in sys.argv[1:]:
        k, v = kv.split("=", 1)
        if k.startswith("pol"):
            OPT[k] = "".join(" " + x for x in v.split("+") if x and x != "d")
        else:
            OPT[k] = int(v)
    print(build())
```

```python
import sys, struct, math, re
from asmlib import *
from sched import Block

KN = "standalone__gqa_softmax__near_ridge_kernel"
OPT = dict(abl=0, pol_kv="", pol_q=" nt", pol_o=" sc0 sc1", stamps=0, prof=0, show=-1, thr=30,
           dma0=1, dmastep=8, dmastag=4, klead=3, walign=0, wq=1, feed0=4, feedl=1, prefeed=3,
           bar0=26, bara=31, barb=71, lalign=3, lazy=16, order=1, win=11, aux=1, early=3, sdma0=1, sdmas=3, sdman=8, lastfeed=0, rwin=1, pf31=0, holes=0, holew=1, auxper=2, auxn=4, auxend=24, auxt0=28, nfast=3, nin=2)

PXA = 10240
KRING = 3 * PXA
SLOT = 16640
VRING = KRING + 4 * SLOT
LDS_BYTES = VRING + 4 * SLOT

sQ, sK, sV, sO, sC = "s[12:15]", "s[16:19]", "s[20:23]", "s[24:27]", "s[44:47]"
sW, sA, sB, sCNT, sKo, sVo, sKm, sVm, sPm, sMASK = "s28", "s29", "s30", "s31", "s32", "s33", "s34", "s35", "s36", "s39"
sSC, sKEEP = "s[40:41]", "s[42:43]"
sT = ["0", "s48", "s49", "s50", "s51"]
sT8 = ["s4", "s5", "s6", "s7", "s8"]
sX, sTHR = "s38", "s52"
vKr, vV0, vV1, vKd, vVd, vPr, vPr2 = "v1", "v2", "v3", "v4", "v5", "v6", "v7"
vL = [8, 9, 10, 11, 12]
vO, vEw, vEr = "v13", "v22", "v23"
PXT = 14
TMP = 16
vAuxC, vAuxT, vAuxD, vAuxD2, sP = "v18", "v19", "v20", "v17", "s[88:91]"
NEGM, SS, PP, OO = 24, 44, 64, 128
SCT = 104
vQl, vQw, vQw2, vQwx, vQr, vQr2, vQrx, vKr0 = (f"v{96 + i}" for i in range(8))
vQlx = "v21"
RAWX, SPRE = 112, 120
LP, FLG = 24, 18
RL = lambda t: 30 + 2 * t
QXTAG = [(("P", 1, t), -1) for t in range(5)] + [(("L", t), -1) for t in range(6)]
AQ, AX, AKF, AVF, ASP = 0, 128, 160, 192, 224


def Qf(t, s):
    return R("a", (AQ + 32 * t if t < 4 else AX) + 4 * s, 4)


def Kf(s):
    return R("a", AKF + 4 * s, 4)


def S(t):
    return R("v", SS + 4 * t, 4)


def Ng(t):
    return R("v", NEGM + 4 * t, 4)


def Pown(j, t):
    return PP + 16 * (j % 4) + 4 * t if t < 4 else PXT


def Pop(j, t):
    return R("v", PP + 16 * (j % 4) + 4 * t, 4) if t < 4 else R("a", ASP + 4 * (j % 4), 4)


def O(t, dt):
    return R("v", OO + 32 * t + 4 * dt, 4) if t < 4 else R("a", AX + 4 * dt, 4)


def RAW(k, i):
    return OO + 32 * k + 4 * i


def where(kind, tile):
    if OPT["early"] and kind == "V" and tile >= 30:
        return (("K", 0), 32) if tile == 30 else (("V", 2), 31)
    return ((kind, tile % 4), tile)


def tdma(kind, tile, i):
    reg = where(kind, tile)
    off = reg[0][1] * SLOT + i * 1568 - (4 * SLOT if reg[0][0] != kind else 0)
    m, v, srd, so = (sKm, vKd, sK, sKo) if kind == "K" else (sVm, vVd, sV, sVo)
    return (salu(f"s_add_u32 m0, {m}, {off}" if off >= 0 else f"s_sub_u32 m0, {m}, {-off}"),
            dma(v, srd, so, 512 * i, OPT["pol_kv"], reg, (kind, tile)))


def bump(kind):
    so = sKo if kind == "K" else sVo
    return salu(f"s_add_u32 {so}, {so}, 16384")


def dma_piece(kind, tile, i):
    return list(tdma(kind, tile, i)) + ([bump(kind)] if i == 3 else [])


def kread(tile, s, addr=vKr, dst=None):
    slot = tile % 4
    return ds_read("ds_read_b128", dst or Kf(s), addr, f"offset:{slot * SLOT + 64 * s}", (("K", slot), tile))


def vread(tile, dt, u, frag):
    reg = where("V", tile)
    base = (vV0, vV1) if reg[0][0] == "V" else (vKd, vVd)
    return ds_read("ds_read_b64_tr_b16", R("a", frag + 2 * u, 2), base[u], f"offset:{reg[0][1] * SLOT + 32 * dt}", reg)


def pwrite(j, t, h):
    par = j % 2
    return ds_write("ds_write_addtid_b32", None, f"v{Pown(j, t) + h}", f"offset:{par * PXA + (2 * t + h) * 256}", (("P", par, t), j))


def preads(j, a):
    par = j % 2
    o = []
    for t in range(4):
        n = par * 40 + a * 20 + 2 * t
        o.append((t, ds_read("ds_read2st64_b32", R("v", Pown(j, t) + 2, 2), vPr, f"offset0:{n} offset1:{n + 1}", (("P", par, t), j))))
    if a == 1:
        n = par * 40 + 8
        for u in range(2):
            o.append((4, ds_read("ds_read2st64_b32", R("a", ASP + 4 * (j % 4) + 2 * u, 2), (vPr2, vPr)[u], f"offset0:{n} offset1:{n + 1}", (("P", par, 4), j))))
    return o


def msetter():
    return salu(f"s_mov_b32 m0, {sPm}")


def stamp(idx, mode=0):
    if (OPT["stamps"] == 3) != (mode == 3) and idx > 2:
        return []
    return [raw(f"{'s_memrealtime' if OPT.get('amprt') else 's_memtime'} s[{60 + 2 * idx}:{61 + 2 * idx}]")] if OPT["stamps"] else []


def xlane(op, reg, tmp):
    o = []
    for sw in ("v_permlane32_swap_b32", "v_permlane16_swap_b32"):
        o.append(valu(f"v_mov_b32 v{tmp}, v{reg}"))
        o.append(valu(f"{sw} v{tmp}, v{reg}"))
        o.append(valu(f"{op} v{reg}, v{tmp}, v{reg}"))
    return o


def chain_ops(b, seq, lo, dl, first_deps=(), hard=None):
    prev = None
    for n, ins in enumerate(seq):
        deps = list(first_deps) if prev is None else [(prev, (1 if b.chainy else 2) if ins.kind == "perm" else (0 if b.chainy and prev.cls == "valu" else 1))]
        prev = b.op(ins, "exp" if ins.kind == "trans" else "valu", lo, dl + n, deps, hard=hard)
    return prev


def add_qk(b, a, j):
    ends = []
    for t in range(5 - a):
        for s in range(8):
            k = b.mfma(mfma(S(t), Kf(s), Qf(t, s), Ng(t) if s == 0 else S(t)))
        ends.append(k)
    return ends


def add_pv(b, a, tiles, h, frags, lo, zero=False, tmajor=False, lastuse=None, have=(), ts=None):
    NP = 4 + a
    order = [(d, t) for t in (range(NP) if tmajor is True else tmajor) for d in range(4)] if tmajor else \
            [(d, t) for d in range(4) for t in (range(NP) if d % 2 == 0 else reversed(range(NP)))]
    if ts is not None:
        order = [x for x in order if x[1] in ts]
    first, done, pfirst = {}, {}, {}
    war = dict(lastuse) if lastuse is not None else {}
    for d, t in order:
        for n, j in enumerate(tiles):
            k = b.mfma(mfma(O(t, 4 * h + d), R("a", frags[d][n], 4), Pop(j, t), "0" if zero and n == 0 else O(t, 4 * h + d)))
            first.setdefault((d, n), k)
            pfirst.setdefault((j, t), k)
            done[(t, 4 * h + d)] = k
            if lastuse is not None:
                lastuse[frags[d][n]] = k
    for d in range(4):
        for n, j in enumerate(tiles):
            for u in range(2 if j not in have else 0):
                f = first[(d, n)]
                b.op(vread(j, 4 * h + d, u, frags[d][n]), "ds", max(lo[j], war.get(frags[d][n], 0)), f - 10 + u, hard=f - 3)
    return done, pfirst


def add_softmax(b, a, j, ends, pub, defer, adds_by=None, soft=False, sub=None):
    ends = dict(enumerate(ends)) if isinstance(ends, list) else ends
    wa = OPT["walign"]
    H = (lambda x: None) if soft else (lambda x: x)
    adds = {}
    for n, t in enumerate(ends):
        base = ends[t] + 4
        late = pub - 7 - 5 * (len(ends) - 1 - n)
        ex = []
        for r in range(4):
            dl = (base - 300 if wa else min(base + 10, late - 8)) + r
            dep = []
            if sub and t in sub:
                dep = [b.op(valu(f"v_add_f32 v{SS + 4 * t + r}, v{SS + 4 * t + r}, v{NEGM + 4 * t}"), "valu", base + 1, dl - 2, [sub[t]])]
            ex.append(b.op(valu(f"v_exp_f32 v{SS + 4 * t + r}, v{SS + 4 * t + r}"), "exp", base, dl, dep, hard=H(pub - 6)))
        for h in range(2):
            c = b.op(valu(f"v_cvt_pk_bf16_f32 v{Pown(j, t) + h}, v{SS + 4 * t + 2 * h}, v{SS + 4 * t + 2 * h + 1}"), "valu", 0, (base - 50 if wa else late - 3) + h, ex[2 * h:2 * h + 2], hard=H(pub - 4))
            b.op(pwrite(j, t, h), "ds", base + 6 + h if wa else 0, (base - 200 if wa else late - 1) + h, [c], hard=H(pub - 3), m0="p", setter=msetter())
        if t not in defer:
            for r in range(4):
                adds[t] = b.op(valu(f"v_add_f32 v{vL[t]}, v{SS + 4 * t + r}, v{vL[t]}"), "valu", 0, (pub if adds_by is None else min(base + 12, adds_by)) + r, [ex[r]] + ([(adds[t], 0)] if t in adds else []),
                               hard=H(pub if adds_by is None else adds_by))
    return adds


def add_deferred(b, a, ends):
    for t in deferred(a):
        for r in range(4):
            b.op(valu(f"v_add_f32 v{vL[t]}, v{SS + 4 * t + r}, v{vL[t]}"), "valu", 0, ends[t] - 16 + r, hard=ends[t] - 8)


def deferred(a):
    return [3 - a, 4 - a]


def add_dma(b, a, pieces, g0, step, G, lo=None):
    dops = []
    for n, (kind, tile, i) in enumerate(pieces):
        st, d = tdma(kind, tile, i)
        e = int(g0 + step * n)
        if lo and (kind, tile) in lo:
            e = max(e, lo[(kind, tile)])
        o = b.op(d, "dma", e, e - 100, [(dops[-1][0], 2)] if dops else [], hard=G - 3, m0=("d", n), setter=st)
        dops.append((o, kind, tile, i))
    for o, kind, tile, i in dops:
        if i == 3:
            nxt = [x for x, k, tl, _ in dops if k == kind and tl > tile]
            b.scalar(bump(kind), (lambda o=o: o.gap + 1), (lambda nxt=nxt: nxt[0].gap - 1) if nxt else G - 4)
    return dops


def prof_hooks(out):
    if OPT["prof"]:
        k = max(n for n, x in enumerate(out) if x.kind == "barrier")
        out.insert(k, raw("v_writelane_b32 v21, s100, m0"))
        out.insert(k - 1, raw("s_mov_b32 m0, s3"))
        mk = [n for n, x in enumerate(out[:k]) if x.kind == "mfma"]
        out.insert(mk[22] + 1, raw("s_memtime s[100:101]" if OPT["prof"] == 1 else "s_memrealtime s[100:101]"))
        out.insert(mk[2] + 1, raw("s_add_u32 s3, s3, 1"))
    return out


TMPL = {
    1: ["RDRRRRRR RRDRRRdE E.EDEWEE WEEDEWEW EEWEDEWE EWWEED.E EWW..RDR RRRRRRRD RRRRdRRR",
        "RRRRRDRR RRRRRRDR EE.EEWED EWEEWEEW .DEEWEEW E.DEW.W. d.D..RRR RRRDRRRR RdRDRRRR"],
    2: ["RDRRRRRR RRDRRRdE E.EDEWEE WEEDEWEW EEWEDEWE EWWEED.E EWW.RRDR RRRRRRRD RRRRd.RR",
        "RRRRRDRR RRRRRRDR EE.EEWED EWEEWEEW .DEEWEEW E.DEW.W. d.DRRRRR RRRDRRRR RdRD..RR"],
    3: ["RDRRRRRR RRDRRREE EE.DEWWE EE.DEWWE EE.DEWWE EE.EWWED EE.WW.DR RRRRRRRD RRRRRRRR",
        "RRRRRDRR RRRRRRDR EEEE.WWE DEEE.WWE EDEE.WWE E.DEE.WW d.D.d.RR RRRDRRRR RRRDRRRR"],
}
FOLD = [AVF + 8 * d for d in range(4)]
FNEW = [AVF + 8 * d + 4 for d in range(4)]


def add_old_reads(b, j, lu, lo, G):
    for d in range(4):
        for u in range(2):
            b.op(vread(j, 4 * ((j + 1) % 2) + d, u, FOLD[d]), "ds", max(lo, lu.get(FOLD[d], 0)), G + 2 * d + u, hard=G - 1)


def interval(j, a, loop_end=None):
    b = Block(f"interval {j} role {a}", wq=OPT["wq"] if OPT["walign"] else 0, wprio=bool(OPT["walign"]))
    ends = add_qk(b, a, j + 1)
    lu = {}
    if j <= 28:
        done, pfirst = add_pv(b, a, [j - 1, j], j % 2, [[FOLD[d], FNEW[d]] for d in range(4)], {j: 0}, lastuse=lu, have=[j - 1])
        b.carry = [f"a{x + i}" for x in FOLD for i in range(4)]
    else:
        done, pfirst = add_pv(b, a, [j], 0, [[AVF + 4 * d] for d in range(4)], {j: 0})
    G = len(b.mf)
    if j <= 27:
        add_old_reads(b, j, lu, 0, G)
    for t, ins in preads(j, a):
        b.op(ins, "ds", 0, pfirst[(j, t)] - 10, hard=pfirst[(j, t)] - 3)
    for s in range(8):
        b.op(kread(j + 2, s), "ds", ends[-1] - 7 + s, G - 18 + s, hard=G - 3)
    kl = OPT["klead"]
    T = lambda kind, tile, r=range(4): [(kind, tile, i) for i in r]
    pieces = T("V", j + 2) + (T("K", j + 2 + kl) if j <= 28 else [])
    step = OPT["dmastep"]
    if OPT["early"] and j >= 25:
        if kl == 3:
            pieces = {25: T("V", 27) + T("K", 30), 26: T("V", 28) + T("K", 31), 27: T("V", 29) + T("V", 30), 28: T("V", 31), 29: []}[j]
        elif OPT["early"] == 1:
            pieces = {25: T("V", 27) + T("K", 29) + T("K", 30, [0]), 26: T("V", 28) + T("K", 30, [1, 2, 3]) + T("K", 31, [0, 1]),
                      27: T("V", 29) + T("K", 31, [2, 3]) + T("V", 30), 28: T("V", 31), 29: []}[j]
        elif OPT["early"] == 2:
            pieces = {25: T("V", 27) + T("K", 29), 26: T("V", 28) + T("K", 30), 27: T("V", 29) + T("K", 31), 28: T("V", 30) + T("V", 31), 29: []}[j]
        else:
            pieces = {25: T("V", 27) + T("K", 29) + T("K", 30, [0]), 26: T("V", 28) + T("K", 30, [1, 2, 3]) + T("K", 31, [0, 1]),
                      27: T("V", 29) + T("K", 31, [2, 3]) + T("V", 30, [0, 1, 2]), 28: T("V", 30, [3]) + T("V", 31), 29: []}[j]
        step = {25: 7, 26: 7, 27: 6, 28: 4, 29: 4}[j]
    dops = add_dma(b, a, pieces, OPT["dma0"] + a * min(OPT["dmastag"], step // 2), step, G)
    if OPT["early"] and j == 29:
        b.op(valu(f"v_subrev_u32 {vKd}, {4 * SLOT}, {vV0}"), "valu", 0, G, hard=G - 1)
        b.op(valu(f"v_subrev_u32 {vVd}, {4 * SLOT}, {vV1}"), "valu", 0, G, hard=G - 1)
    if OPT["early"] and j == OPT["pf31"]:
        x = chain_ops(b, [valu(f"v_and_b32 {vAuxT}, 7, v0"), valu(f"v_lshl_add_u32 {vAuxT}, {vAuxT}, 7, s37")], 0, -95)
        b.op(vload("buffer_load_dword", vAuxD, vAuxT, sV, "0"), "st", 0, -90, [x], hard=40)
    if not OPT["early"] and j <= 28 and j % 4 == (30 - kl) % 4:
        kf = [o for o, k, _, _ in dops if k == "K"][0]
        vl = [o for o, k, _, _ in dops if k == "V"][-2]
        pair = raw(f"s_cmp_eq_u32 {sCNT}, 1\n    s_cselect_b32 s18, 0, s18")
        b.scalar(pair, (lambda: vl.gap + 1), (lambda: kf.gap - 2))
    if j <= 24 and j % 4 == OPT.get("auxj", 1) and OPT["aux"] & 1:
        b.op(vload("buffer_load_dword", vAuxD, vAuxC, sC, "0"), "st", 3, -90, hard=40)
    if j <= 24 and (j - OPT["auxend"]) % OPT["auxper"] == 0 and OPT["aux"] & 2:
        x = b.op(vload("buffer_load_dword", vAuxD2, vAuxT, sP, "0"), "st", 5 - 4 * a, -90, hard=40)
        b.op(valu(f"v_add_u32 {vAuxT}, {(32 - OPT['auxt0']) * 16384 // OPT['auxn']:#x}, {vAuxT}"), "valu", 0, G, [x], hard=G - 1)
    nh = OPT["holes"] % 10 if a == 0 else OPT["holes"] // 10
    for n in range(nh if j <= 28 else 0):
        ref = dops[min(6, (2 * n + 1) * 8 // (2 * nh) - 1 + (1 if nh < 4 else 0))][0]
        w = OPT["holew"]
        b.op(vload("buffer_load_dword" + ("" if w == 1 else f"x{w}"), "v20" if w == 1 else R("a", 252, w), vAuxT, "s[84:87]", "0"), "st", 0, -95, [(ref, 2)], hard=G - 12)
    add_deferred(b, a, ends)
    add_softmax(b, a, j + 1, ends, G - 1, deferred(a))
    if OPT["rwin"] and j <= 28:
        tm = TMPL[OPT["rwin"]][a].replace(" ", "")
        assert len(tm) == 72, len(tm)
        nd = len([o for o in b.ops if o.cls in ("dma", "st")])
        b.tmpl = tm.replace("d", "D", max(0, nd - 8) if nd > 4 else 1).replace("d", ".")
        for o in b.ops:
            if o.cls == "dma" or o.ins.kind == "dsw":
                o.lo = 0
            if o.ins.text.startswith("v_cvt"):
                o.dl -= 200
    vm = [("V", j + 1)] + ([("K", j + 3)] if j + 3 <= 31 else [])
    if OPT["early"] and j == 29:
        vm.append(("V", 31))
    b.barrier(G - 1, vm, ["w"] + [f"a{AKF + i}" for i in range(32)])
    if loop_end:
        b.scalar(salu(f"s_sub_u32 {sCNT}, {sCNT}, 1"), 20, G - 4)
        b.scalar(salu(f"s_cmp_lg_u32 {sCNT}, 0"), G - 3, G - 3)
    out, _ = b.schedule(show=OPT["show"] == j)
    out = prof_hooks(out)
    if loop_end:
        out.append(salu(f"s_cbranch_scc1 {loop_end}"))
    return out


def first_tile_instrs(t):
    own, oth = R("v", SPRE, 4), R("v", SPRE + 4, 4)
    mf = [mfma(own, R("a", AVF + 4 * s, 4), Qf(t, s), "0" if s == 0 else own) for s in range(8)]
    mf += [mfma(oth, R("a", ASP + 4 * s, 4), Qf(t, s), "0" if s == 0 else oth) for s in range(8)]
    A_, B_, C_ = TMP, TMP + 1, TMP + 4
    m1 = [valu(f"v_max3_f32 v{C_}, v{SPRE}, v{SPRE + 1}, v{SPRE + 2}"), valu(f"v_max_f32 v{C_}, v{C_}, v{SPRE + 3}")]
    m2 = [valu(f"v_max3_f32 v{C_}, v{C_}, v{SPRE + 4}, v{SPRE + 5}"),
          valu(f"v_max3_f32 v{A_}, v{C_}, v{SPRE + 6}, v{SPRE + 7}"), valu(f"v_max3_f32 v{B_}, v{C_}, v{SPRE + 6}, v{SPRE + 7}"),
          valu(f"v_permlane32_swap_b32 v{A_}, v{B_}"),
          valu(f"v_max_f32 v{C_}, v{A_}, v{B_}"), valu(f"v_max_f32 v{B_}, v{A_}, v{B_}"),
          valu(f"v_permlane16_swap_b32 v{C_}, v{B_}"),
          valu(f"v_max_f32 v{A_}, v{C_}, v{B_}")]
    cm = [valu(f"v_cndmask_b32 v{NEGM + 4 * t + r}, -v{TMP}, v{NEGM + 4 * t + r}, {sKEEP}") for r in range(4)]
    n = 8 if t < 4 else 4
    sb = [valu(f"v_add_f32 v{SPRE + r}, v{SPRE + r}, v{NEGM + 4 * t}") for r in range(n)]
    ex = [valu(f"v_exp_f32 v{SPRE + r}, v{SPRE + r}") for r in range(n)]
    cv = [valu(f"v_cvt_pk_bf16_f32 v{Pown(0, t) + h}, v{SPRE + 2 * h}, v{SPRE + 2 * h + 1}") for h in range(n // 2)]
    ad = [valu(f"v_add_f32 v{vL[t]}, v{SPRE + r}, v{vL[t]}") for r in range(4)]
    return mf, m1, m2, cm, sb, ex, cv, ad


def add_first_tile(b, t, need_by=None):
    mf, m1, m2, cm, sb, ex, cv, ad = first_tile_instrs(t)
    idx = [b.mfma(x) for x in mf]

    def ops():
        x = chain_ops(b, m1, idx[7] + 5, -510)
        last = chain_ops(b, m2, idx[15] + 5, -500, [x])
        c = [b.op(y, "valu", 0, -480 if r == 0 else 150, [(last, 0)]) for r, y in enumerate(cm)]
        e = []
        for r in range(len(sb)):
            sbo = b.op(sb[r], "valu", 0, -478 + r, [(c[0], 0)], hard=need_by)
            e.append(b.op(ex[r], "exp", 0, -470 + r, [sbo], hard=need_by))
        for h, y in enumerate(cv):
            b.op(y, "valu", 0, -469 + 2 * h, e[2 * h:2 * h + 2], hard=need_by)
        for r in range(4):
            b.op(ad[r], "valu", 0, 200 + r, [e[r]])
        return c[0]
    return idx, ops


def qk_chain(b, t, zero=False):
    for s in range(8):
        k = b.mfma(mfma(S(t), Kf(s), Qf(t, s), ("0" if zero else Ng(t)) if s == 0 else S(t)))
    return k


def flush(out, left):
    m0 = None
    left = list(left)
    while left:
        o = next(o for o in left if all(d not in left for d, _ in o.deps))
        left.remove(o)
        if o.m0 is not None and o.m0 != m0:
            out.append(o.setter)
            m0 = o.m0
        out.append(o.ins)
    return out


def mid_block(a):
    b = Block(f"mid role {a}")
    b.chainy = True
    b.pre = [kread(1, s) for s in range(8)] + stage_read(2)
    ends = {0: qk_chain(b, 0)}
    idx, ops = add_first_tile(b, 2)
    for t in ((1, 4) if a == 0 else (1,)):
        ends[t] = qk_chain(b, t)
    ops()
    add_softmax(b, a, 1, ends, len(b.mf) + 16, deferred(a), soft=True)
    out, left = b.schedule(show=OPT["show"] == 0, leftover_ok=True)
    return flush(out, left)


def start_block(a, rest):
    b = Block(f"start role {a}")
    b.chainy = True
    b.pre = stage_read(3)
    ends = {2: qk_chain(b, 2)}
    G = 32 + 4 * (4 + a)
    idx, ops = add_first_tile(b, 3, need_by=G - 5)
    ends[3] = qk_chain(b, 3, zero=True)
    lu = {AVF + 4 * s: idx[s] for s in range(8)}
    done, pfirst = add_pv(b, a, [0], 0, [[FNEW[d]] for d in range(4)], {0: 0}, zero=True, tmajor=[0, 1, 2, 4, 3][:3] + ([4] if a else []) + [3], lastuse=dict(lu))
    assert G == len(b.mf)
    bar = OPT["bar0"]
    neg3 = ops()
    for d in range(4):
        for u in range(2):
            b.op(vread(0, 4 + d, u, FOLD[d]), "ds", lu[FOLD[d]], G + 30 + 2 * d + u)
    for t, ins in preads(0, a):
        if t == 4:
            b.op(ins, "ds", idx[8], pfirst[(0, t)] - 10, hard=pfirst[(0, t)] - 3)
    for s in range(8):
        b.op(kread(2, s), "ds", max(bar, ends[3] - 7 + s), G - 10 + s)
    pieces = rest + [("V", 2, i) for i in range(4)] + [("K", 4, i) for i in range(4)]
    if OPT["klead"] == 3:
        pieces += [("K", 5, i) for i in range(4)]
    nin = min(len(pieces), OPT["sdman"])
    add_dma(b, a, pieces[:nin], OPT["sdma0"], OPT["sdmas"], G)
    add_softmax(b, a, 1, ends, G + 12, deferred(a), soft=True, sub={3: neg3})
    b.barrier(bar, [("K", 2)], None)
    if OPT["stamps"] == 1:
        b.inserts[0] = stamp(12)
        b.inserts[bar - 2] = stamp(13)
        b.inserts[bar] = stamp(9)
        b.inserts[G - 1] = stamp(10)
    out, left = b.schedule(show=OPT["show"] == 0, leftover_ok=True)
    out = flush(out, left)
    for p in pieces[nin:]:
        out += dma_piece(*p)
    out.append(wait(vm=[("V", 1), ("K", 3)], lg=["w"] + [f"a{AKF + i}" for i in range(32)]))
    out.append(barrier())
    return prof_hooks(out)


def unit_instrs(a, t, h, n, packed):
    va, wr = [], []
    for d in range(4):
        dt = 4 * h + d
        x = OO + 32 * t + 4 * dt if t < 4 else SS + 4 * d
        seq = []
        if t == 4:
            seq += [valu(f"v_accvgpr_read_b32 v{x + i}, a{AX + 4 * dt + i}") for i in range(4)]
        if packed:
            seq += [valu(f"v_pk_mul_f32 {R('v', x + 2 * i, 2)}, {R('v', x + 2 * i, 2)}, {R('v', RL(t), 2)} op_sel_hi:[1,0]") for i in range(2)]
        else:
            seq += [valu(f"v_mul_f32 v{x + i}, v{x + i}, v{RL(t)}") for i in range(4)]
        seq += [valu(f"v_cvt_pk_bf16_f32 v{x + i}, v{x + 2 * i}, v{x + 2 * i + 1}") for i in range(2)]
        va.append(seq)
        wr.append(ds_write("ds_write_b64", vEw, R("v", x, 2), f"offset:{32 * d}", (("K", 1), 99)))
    rd, st = [], []
    for i in range(2):
        q = R("a", ASP + 16 + 8 * (n % 2) + 4 * i, 4)
        rd.append(ds_read("ds_read_b128", q, vEr, f"offset:{8 * 144 * i}"))
        st.append(vstore("buffer_store_dwordx4", q, vO, sO, (sT, sT8)[i][t], 128 * h, OPT["pol_o"] if h == 0 or "pol_o1" not in OPT else OPT["pol_o1"]))
    return va, wr, rd, st


def final_block(a):
    NQ, NP = 5 - a, 4 + a
    b = Block(f"final role {a}")
    b.lazy = OPT["lazy"]
    b.chainy = True
    save = OPT["walign"]
    OPT["walign"] = 0
    barA, barB = OPT["bara"], OPT["barb"]
    F = lambda i: AVF + 4 * i
    KF = lambda i: AKF + 4 * i
    lo = {28: 0, 29: 0, 30: 0, 31: 0}
    lu = {}
    rest = list(range(2, NP))
    f30, f31 = [[F(d)] for d in range(4)], [[F(4 + d)] for d in range(4)]
    ends = {t: qk_chain(b, t) for t in (0, 1, 2)}
    _, pf = add_pv(b, a, [30], 0, f30, lo, lastuse=lu, ts=[0, 1])
    ends[3] = qk_chain(b, 3)
    done0, pf1 = add_pv(b, a, [31], 0, f31, lo, tmajor=True, lastuse=lu, ts=[0, 1])
    X1 = len(b.mf) - 1
    if a == 0:
        ends[4] = qk_chain(b, 4)
    lu.update({KF(s): ends[NQ - 1] - 7 + s for s in range(8)})
    pf.update(add_pv(b, a, [30], 0, f30, lo, lastuse=lu, ts=rest, have=[30])[1])
    add_pv(b, a, [28], 1, [[ASP + 4 * d if a == 0 else KF(d)] for d in range(4)], lo, lastuse=lu)
    d2, p2 = add_pv(b, a, [31], 0, f31, lo, tmajor=True, lastuse=lu, ts=rest, have=[31])
    done0.update(d2)
    pf1.update(p2)
    X = len(b.mf) - 1
    pool = [KF(i) for i in range(8)] + [F(i) for i in range(4)] if a == 0 else [KF(4 + i) for i in range(4)] + [F(i) for i in range(4)] + [KF(i) for i in range(4)]
    add_pv(b, a, [29, 30, 31], 1, [pool[3 * d:3 * d + 3] for d in range(4)], lo, lastuse=lu)
    G = len(b.mf)
    bar = lambda t: barA if t < 2 else barB
    for t, ins in preads(30, a):
        b.op(ins, "ds", 0, pf[(30, t)] - 10, hard=pf[(30, t)] - 3)
    for t, ins in preads(31, a):
        b.op(ins, "ds", bar(t), pf1[(31, t)] - 12, hard=pf1[(31, t)] - 3)
    add_deferred(b, a, ends)
    adds = add_softmax(b, a, 31, {t: ends[t] for t in (0, 1)}, barA, [], adds_by=barA - 4)
    adds.update(add_softmax(b, a, 31, {t: ends[t] for t in range(2, NQ)}, barB, [], adds_by=barB - 6))
    L = lambda *t: [(("L", x), 0) for x in t]
    lw = {t: b.op(ds_write("ds_write_addtid_b32", None, f"v{vL[t]}", f"offset:{2 * PXA + t * 256}", L(t)), "ds", 0, bar(t) - 8, [adds[t]], hard=bar(t) - 3, m0="p", setter=msetter()) for t in range(NQ)}
    w1 = b.op(valu(f"v_max3_u32 v{TMP}, v{vL[0]}, v{vL[1]}, v{vL[2]}"), "valu", 0, barB - 12, [adds[0], adds[1], adds[2]], hard=barB - 5)
    w2 = b.op(valu(f"v_max3_u32 v{TMP}, v{TMP}, v{vL[3]}, v{vL[NQ - 1]}"), "valu", 0, barB - 11, [w1, adds[3], adds[NQ - 1]], hard=barB - 4)
    b.op(ds_write("ds_write_addtid_b32", None, f"v{TMP}", f"offset:{2 * PXA + 5 * 256}", L(5)), "ds", 0, barB - 9, [w2], hard=barB - 3, m0="p", setter=msetter())
    b.barrier(barA, None, ["w"])
    b.barrier(barB, None, ["w"])
    base = 80
    lr = {}
    for t in (0, 2):
        lr[t] = lr[t + 1] = b.op(ds_read("ds_read2st64_b32", R("v", LP + t, 2), vPr, f"offset0:{base + a * 20 + t} offset1:{base + a * 20 + t + 1}", L(t, t + 1)), "ds", bar(t), bar(t) - 5)
    f1 = b.op(ds_read("ds_read2st64_b32", R("v", FLG, 2), vPr, f"offset0:{base + 5} offset1:{base + 25}", L(5)), "ds", barB, barB + 8)
    f2 = b.op(ds_read("ds_read2st64_b32", R("v", FLG + 2, 2), vPr2, f"offset0:{base + 5} offset1:{base + 25}", L(5)), "ds", barB, barB + 9)
    if a == 1:
        x1 = b.op(ds_read("ds_read_b32", f"v{LP + 4}", vPr, f"offset:{(base + 4) * 256}", L(4)), "ds", barB, barB + 5)
        lr[4] = b.op(ds_read("ds_read_b32", f"v{vL[4]}", vPr2, f"offset:{(base + 4) * 256}", L(4)), "ds", barB, barB + 6, [x1])
    ck = chain_ops(b, [valu(f"v_max3_u32 v{FLG}, v{FLG}, v{FLG + 1}, v{FLG + 2}"), valu(f"v_max_u32 v{FLG}, v{FLG}, v{FLG + 3}"), valu(f"v_cmp_lt_u32 vcc, {sTHR}, v{FLG}")],
                   0, barB + 30, [(f1, 6), (f2, 6)], hard=G - 4)
    if not OPT["abl"]:
        b.scalar(salu(f"s_cbranch_vccnz L_fallback{a}"), (lambda: ck.gap + 1), G - 1)
    rl = {}
    for t in range(NP):
        A_, B_, C_ = RL(t), RL(t) + 1, LP + t
        seq = [valu(f"v_add_f32 v{A_}, v{vL[t]}, v{C_}"), valu(f"v_add_f32 v{B_}, v{vL[t]}, v{C_}"), valu(f"v_permlane32_swap_b32 v{A_}, v{B_}"),
               valu(f"v_add_f32 v{C_}, v{A_}, v{B_}"), valu(f"v_add_f32 v{B_}, v{A_}, v{B_}"), valu(f"v_permlane16_swap_b32 v{C_}, v{B_}"),
               valu(f"v_add_f32 v{A_}, v{C_}, v{B_}"), valu(f"v_rcp_f32 v{A_}, v{A_}")]
        rl[t] = chain_ops(b, seq, 0, bar(t) + t, [(lr[t], 6)], hard=X1 if t < 2 else X)
    units = [(t, 0) for t in range(NP)] + [(t, 1) for t in range(NP)]
    nfast = min(2 + OPT["nfast"], NP)
    nin = min(OPT["nin"], NP - nfast)

    def straight(lst, pend):
        o = []
        for n, (t, h) in lst:
            va, wr, rd, st = unit_instrs(a, t, h, n, True)
            for k in range(len(va[0])):
                o += [va[d][k] for d in range(4)]
            o += pend
            o += wr + rd
            pend = st
        return o, pend
    en = list(enumerate(units))
    b.inserts[X1], pend = straight(en[:2], [])
    prev_rd, prev_st = [], {1: [b.op(x, "st", X1 + 6 + i, X1 - 50 + i, hard=X1 + 12) for i, x in enumerate(pend)]}
    if nfast > 2:
        b.inserts[X], pend = straight(en[2:nfast], [])
        prev_st[(nfast - 1) % 2] = [b.op(x, "st", X + 6 + i, X + i, hard=G - 1) for i, x in enumerate(pend)]
    if OPT["stamps"] == 2:
        b.inserts[barA] = stamp(12)
        b.inserts[X1] = stamp(13) + b.inserts[X1]
        b.inserts[barB] = stamp(9)
        b.inserts[X] = stamp(10) + b.inserts.get(X, [])
    for n, (t, h) in en[nfast:nfast + nin]:
        va, wr, rd, st = unit_instrs(a, t, h, n, False)
        p0 = X + 4 + 22 * (n - nfast)
        wops = []
        for d in range(4):
            nv = len(va[d])
            pr = [b.op(x, "valu", max(X + 1, done0[(t, d)] + 5), p0 + 4 * d, prev_rd) for x in va[d][:nv - 6]]
            mu = [b.op(x, "valu", max(X + 1, done0[(t, d)] + 5), p0 + 4 * d + i // 2, [rl[t]] + pr[i:i + 1]) for i, x in enumerate(va[d][nv - 6:nv - 2])]
            c0 = b.op(va[d][nv - 2], "valu", 0, p0 + 4 * d + 2, mu[:2])
            c1 = b.op(va[d][nv - 1], "valu", 0, p0 + 4 * d + 2, mu[2:] + [(c0, 0)])
            wops.append(b.op(wr[d], "solo", 0, p0 + 4 * d + 3, [c0, c1] + prev_rd))
        prev_rd = [b.op(rd[i], "ds", 0, p0 + 17 + i, wops + prev_st.get(n % 2, [])) for i in range(2)]
        prev_st[n % 2] = [b.op(st[i], "st", 0, p0 + 19 + i, [(prev_rd[i], 6)]) for i in range(2)]
    out, left = b.schedule(show=OPT["show"] == 31, leftover_ok=True)
    OPT["walign"] = save
    out += stamp(5)
    pend = []
    for o in left:
        if o.ins.kind == "vst":
            pend.append(o.ins)
        else:
            if any(o.ins.wr & x.rd for x in pend):
                out += pend
                pend = []
            out.append(o.ins)
    o2, pend = straight(en[nfast + nin:], pend)
    return out + o2 + pend


def qload(k, i):
    return [vload("buffer_load_dwordx4", R("v", RAW(k, i), 4), vQl, sQ, sT[k], 512 * i, OPT["pol_q"])]


def entry():
    o = []
    A = lambda t: o.append(salu(t))
    V = lambda t: o.append(valu(t))
    t0, t1, t2, t3, t4 = (f"v{TMP + i}" for i in range(5))
    A("s_cmp_ge_u32 s2, 256")
    A("s_cbranch_scc1 L_end")
    o.append(raw("s_load_dwordx8 s[4:11], s[0:1], 0"))
    if OPT["stamps"]:
        o.append(raw("s_load_dwordx2 s[56:57], s[0:1], 40"))
        o.append(raw("s_memrealtime s[58:59]"))
    o += stamp(0)
    o.append(raw("s_getpc_b64 s[44:45]"))
    o.append(label("L_pc"))
    A("s_and_b32 s45, s45, 0xffff")
    o.append(raw("s_mov_b32 s46, L_end-L_pc"))
    A("s_mov_b32 s47, 0x20000")
    A("s_lshr_b32 s54, s2, 3")
    A("s_lshl_b32 s55, s54, 7")
    V(f"v_lshl_add_u32 {t0}, v0, 12, s55")
    o.append(vload("buffer_load_dword", "v15", t0, sC, "0"))
    V(f"v_lshrrev_b32 {t1}, 6, v0")
    A(f"s_mov_b64 {sKEEP}, 0")
    V(f"v_readfirstlane_b32 {sW}, {t1}")
    A(f"s_mov_b32 {sTHR}, {(127 + OPT['thr']) << 23:#x}")
    if OPT["prof"]:
        A("s_mov_b32 s3, 0")
    A("s_and_b32 s53, s2, 7")
    A("s_lshl_b32 s53, s53, 3")
    A("s_lshr_b32 s55, s2, 5")
    A("s_add_u32 s53, s53, s55")
    A("s_and_b32 s54, s54, 3")
    A("s_lshl_b32 s55, s53, 2")
    A("s_add_u32 s55, s55, s54")
    A("s_mul_i32 s37, s55, 73728")
    A("s_lshl_b32 s53, s53, 19")
    A(f"s_lshr_b32 {sA}, {sW}, 1")
    A(f"s_and_b32 {sB}, {sW}, 1")
    A(f"s_add_u32 s54, {sW}, 1")
    A("s_and_b32 s55, s54, 1")
    A("s_lshl_b32 s55, s55, 3")
    A("s_lshr_b32 s54, s54, 1")
    A("s_and_b32 s54, s54, 1")
    A("s_add_u32 s54, s54, s55")
    A("s_mul_i32 s54, s54, 1040")
    A(f"s_add_u32 {sKm}, s54, {KRING}")
    A("s_mov_b32 s48, 8192")
    A("s_mov_b32 s49, 16384")
    A("s_mov_b32 s50, 24576")
    A(f"s_mov_b32 {sX}, 65536")
    for srd, n in ((16, 524288), (12, 73728), (20, 524288), (24, 73728)):
        A(f"s_mov_b32 s{srd + 2}, {n}")
        A(f"s_mov_b32 s{srd + 3}, 0x20000")

    def src_offsets():
        V(f"v_and_b32 {t0}, 31, v0")
        V(f"v_lshlrev_b32 {t0}, 4, {t0}")
        V(f"v_bfe_u32 {t2}, v0, 5, 1")
        A(f"s_lshl_b32 s54, {sW}, 11")
        V(f"v_add_u32 {t1}, s54, {t0}")
        V(f"v_lshl_add_u32 {vKd}, {t2}, 13, {t1}")
        V(f"v_lshl_add_u32 {vQl}, {t2}, 15, {t1}")
        V(f"v_lshl_add_u32 {vQlx}, {t2}, 9, {t1}")
        A(f"s_mov_b32 {sKo}, 0")
        A(f"s_mov_b32 {sVo}, 0")
    src_offsets()
    o.append(raw("s_waitcnt lgkmcnt(0)"))
    o += stamp(8)
    for srd, ptr, off in ((16, 6, "s53"), (12, 4, "s37"), (20, 8, "s53"), (24, 10, "s37")):
        A(f"s_add_u32 s{srd}, s{ptr}, {off}")
        A(f"s_addc_u32 s{srd + 1}, s{ptr + 1}, 0")
        A(f"s_and_b32 s{srd + 1}, s{srd + 1}, 0xffff")
    o.append(label("L_restart"))
    for i in range(4):
        o += dma_piece("K", 0, i)
    for i in range(2):
        o.append(vload("buffer_load_dwordx4", R("v", RAWX + 4 * i, 4), vQlx, sQ, sX, 1024 * i, OPT["pol_q"]))
    o.append(barrier())
    for i in range(4):
        o += qload(0, i)
    if OPT["stamps"] == 4:
        o += stamp(9)
    A(f"s_lshl_b32 s54, {sB}, 11")
    A(f"s_lshl_b32 s55, {sA}, 13")
    A("s_add_u32 s54, s54, s55")
    V(f"v_lshl_add_u32 {vVd}, {t2}, 12, {t0}")
    V(f"v_add_u32 {vVd}, s54, {vVd}")
    A(f"s_add_u32 s54, {sKm}, {3 * SLOT}")
    V(f"v_lshl_add_u32 {vQw}, {t2}, 9, {t0}")
    V(f"v_add_u32 {vQw}, s54, {vQw}")
    V(f"v_add_u32 {vQw2}, {4 * SLOT}, {vQw}")
    A(f"s_sub_u32 s54, {sKm}, {KRING - PXA}")
    V(f"v_mul_u32_u24 {vQwx}, 2080, {t2}")
    V(f"v_add3_u32 {vQwx}, {vQwx}, {t0}, s54")
    A(f"s_mul_i32 s54, {sB}, {4 * 2080}")
    A(f"s_lshl_b32 s55, {sA}, 10")
    A("s_add_u32 s54, s54, s55")
    A(f"s_add_u32 {sVm}, s54, {VRING}")
    A(f"s_mul_i32 {sPm}, {sW}, 2560")
    V(f"v_and_b32 {t0}, 15, v0")
    V(f"v_bfe_u32 {t1}, v0, 4, 1")
    V(f"v_lshlrev_b32 {t3}, 5, {t1}")
    V(f"v_lshl_add_u32 {t3}, {t2}, 4, {t3}")
    V(f"v_add_u32 {t4}, 4, {t0}")
    V(f"v_bfe_u32 {vKr0}, {t4}, 3, 1")
    V(f"v_and_b32 {t4}, 7, {t4}")
    V(f"v_lshl_add_u32 {vKr0}, {t4}, 1, {vKr0}")
    V(f"v_mul_u32_u24 {vKr0}, 1040, {vKr0}")
    V(f"v_add_u32 {vKr0}, {vKr0}, {t3}")
    V(f"v_add_u32 {vQrx}, {PXA}, {vKr0}")
    V(f"v_add_u32 {vKr0}, {KRING}, {vKr0}")
    A(f"s_lshl_b32 s54, {sB}, 9")
    V(f"v_add_u32 {vKr}, s54, {vKr0}")
    A(f"s_lshl_b32 s54, {sA}, 9")
    A(f"s_add_u32 s54, s54, {3 * SLOT}")
    V(f"v_add_u32 {vQr}, s54, {vKr0}")
    V(f"v_add_u32 {vQr2}, {4 * SLOT}, {vQr}")
    A(f"s_lshl_b32 s54, {sB}, 9")
    A("s_sub_u32 s54, 512, s54")
    V(f"v_add_u32 {vKr0}, s54, {vKr0}")
    V(f"v_bfe_u32 {t4}, v0, 2, 3")
    V(f"v_mul_u32_u24 {vV0}, 2080, {t4}")
    V(f"v_lshl_add_u32 {vV0}, {t2}, 9, {vV0}")
    V(f"v_and_b32 {t4}, 3, v0")
    V(f"v_lshl_add_u32 {vV0}, {t4}, 3, {vV0}")
    A(f"s_mul_i32 s54, {sB}, {256 + 1024}")
    A(f"s_add_u32 s54, s54, {VRING}")
    A(f"s_mul_i32 s55, {sB}, {1024 - 256}")
    A(f"s_sub_u32 s55, {VRING + 1024}, s55")
    V(f"v_add_u32 {vV1}, s55, {vV0}")
    V(f"v_add_u32 {vV0}, s54, {vV0}")
    V(f"v_and_b32 {t4}, 63, v0")
    V(f"v_lshlrev_b32 {t4}, 2, {t4}")
    A(f"s_mul_i32 s54, {sB}, 2560")
    A("s_sub_u32 s55, 2560, s54")
    V(f"v_add_u32 {vPr2}, s54, {t4}")
    V(f"v_add_u32 {vPr}, s55, {t4}")
    if OPT["pf31"]:
        A("s_lshr_b32 s54, s2, 3")
        A("s_and_b32 s54, s54, 3")
        A("s_lshl_b32 s54, s54, 2")
        A(f"s_add_u32 s54, s54, {sW}")
        A("s_lshl_b32 s54, s54, 10")
        A(f"s_add_u32 s37, s54, {31 * 16384}")
    A(f"s_mul_i32 s55, {sW}, 2304")
    A(f"s_add_u32 s55, s55, {KRING + SLOT}")
    V(f"v_bfe_u32 {t4}, v0, 4, 2")
    V(f"v_mul_u32_u24 {vEw}, 144, {t0}")
    V(f"v_lshl_add_u32 {vEw}, {t4}, 3, {vEw}")
    V(f"v_add_u32 {vEw}, s55, {vEw}")
    V(f"v_bfe_u32 {t4}, v0, 3, 3")
    V(f"v_and_b32 {t1}, 7, v0")
    V(f"v_lshlrev_b32 {t1}, 4, {t1}")
    V(f"v_mul_u32_u24 {vEr}, 144, {t4}")
    V(f"v_add3_u32 {vEr}, {vEr}, {t1}, s55")
    A(f"s_lshl_b32 s54, {sA}, 15")
    A(f"s_lshl_b32 s55, {sB}, 8")
    A("s_add_u32 s55, s55, s54")
    A("s_sub_u32 s51, 65536, s54")
    V(f"v_lshl_add_u32 {vO}, {t4}, 9, {t1}")
    V(f"v_add_u32 {vO}, s55, {vO}")
    for t in range(5):
        A(f"s_add_u32 {sT8[t]}, {sT[t]}, 4096" if t else f"s_mov_b32 {sT8[0]}, 4096")
    c = struct.unpack("<I", struct.pack("<f", math.log2(math.e) / 16.0))[0]
    A(f"s_mov_b32 s40, {c:#x}")
    A(f"s_mov_b32 s41, {c:#x}")
    A(f"s_mov_b32 {sMASK}, 0xffff0000")
    for t in range(5):
        V(f"v_mov_b32 v{vL[t]}, 0")
    for t in range(4):
        for i in range(8):
            V(f"v_mov_b64 {R('v', OO + 32 * t + 16 + 2 * i, 2)}, 0")
    for i in range(16):
        V(f"v_accvgpr_write_b32 a{AX + 16 + i}, 0")
    if OPT["stamps"] == 4:
        o += stamp(10)
    A(f"s_cmp_eq_u32 {sA}, 1")
    A("s_cbranch_scc1 L_role1")
    o2 = []
    o, keep = o2, o
    src_offsets()
    return keep, o2


def scale4(src):
    o = []
    T = SCT
    for i in range(4):
        o.append(valu(f"v_lshlrev_b32 v{T + 2 * i}, 16, v{src + i}"))
        o.append(valu(f"v_and_b32 v{T + 2 * i + 1}, {sMASK}, v{src + i}"))
    for i in range(4):
        o.append(valu(f"v_pk_mul_f32 {R('v', T + 2 * i, 2)}, {R('v', T + 2 * i, 2)}, {sSC}"))
    for i in range(4):
        o.append(valu(f"v_cvt_pk_bf16_f32 v{src + i}, v{T + 2 * i}, v{T + 2 * i + 1}"))
    return o


QST = {0: (("V", 1), vQw, vQr, 2 * SLOT), 1: (("K", 3), vQw, vQr, 0), 2: (("V", 2), vQw, vQr, 3 * SLOT), 3: (("V", 3), vQw2, vQr2, 0)}


def stage_in(k, feed):
    o = []
    for i in range(2 if k == 4 else 4):
        src = RAWX + 4 * i if k == 4 else RAW(k, i)
        sc = scale4(src)
        o.append(sc[0])
        o += feed(("Q", k, i))
        o += sc[1:]
        if k == 4:
            o.append(ds_write("ds_write_b128", vQwx, R("v", src, 4), f"offset:{4160 * i}", QXTAG))
        else:
            reg, wb, rb, off = QST[k]
            o.append(ds_write("ds_write_b128", wb, R("v", src, 4), f"offset:{off + 2080 * i}", (reg, -1)))
    return o


def stage_read(k):
    if k == 4:
        return [ds_read("ds_read_b128", Qf(4, s), vQrx, f"offset:{64 * s}", QXTAG) for s in range(8)]
    reg, wb, rb, off = QST[k]
    return [ds_read("ds_read_b128", Qf(k, s), rb, f"offset:{off + 64 * s}", (reg, -1)) for s in range(8)]


def stage_compute(t):
    mf, m1, m2, cm, sb, ex, cv, ad = first_tile_instrs(t)
    o = mf + m1 + m2 + cm + sb + ex + cv
    if t == 4:
        o += [msetter(), ad[0]] + [pwrite(0, t, h) for h in range(2)] + ad[1:]
    else:
        o += ad
    return o


def prologue(a):
    o = [label(f"L_role{a}")] + aux_setup(a) + [salu(f"s_mov_b32 {sCNT}, {(24 if OPT['early'] else 28) // 4}")]
    seq = {0: "Q1 Q2 Q3 K1 V0 K2 V1 K3", 1: "Q1 K1 Q2 V0 Q3 K2 V1 K3", 2: "Q1 Q2 K1 Q3 V0 K2 V1 K3", 3: "K1 Q1 V0 Q2 K2 Q3 V1 K3", 4: "Q1 Q2 K1 V0 Q3 K2 V1 K3"}[OPT["order"]]
    full = [("K", 0, i) for i in range(4)] + [("Q", 4, i) for i in range(2)] + [("Q", 0, i) for i in range(4)]
    order = [(x[0], int(x[1]), i) for x in seq.split() for i in range(4)]
    full += order

    def feed(landed):
        r = []
        stage = -1 if landed[1] == 4 else landed[1]
        while order and full.index(order[0]) <= full.index(landed) + OPT["win"]:
            x = order[0]
            if (x[:2] == ("V", 1) and stage < 2) or (x[:2] == ("K", 3) and stage < 3) or (landed == ("Q", 3, 3) and not OPT["lastfeed"]):
                break
            order.pop(0)
            r += qload(x[1], x[2]) if x[0] == "Q" else dma_piece(*x)
        return r
    o += stage_in(4, feed)
    o.append(wait(vm=[("K", 0)], lg="all"))
    o.append(barrier())
    o += stamp(1)
    for s in range(8):
        o.append(kread(0, s, vKr, R("a", AVF + 4 * s, 4)))
    if a == 0:
        o += stage_read(4)
    for s in range(8):
        o.append(kread(0, s, vKr0, R("a", ASP + 4 * s, 4)))
    if a == 0:
        o += stage_compute(4)
    ps = iter([3, 4, 5, 6, 7, 8, 9, 10, 11, 12, 13, 14])
    pst = lambda: stamp(next(ps), 3)
    o += pst()
    for k in range(4):
        o += stage_in(k, feed)
        o += pst()
        o.append(wait(vm={2: [("K", 1)], 3: [("V", 0)]}.get(k), lg="all"))
        o.append(barrier())
        if k < 3:
            o += pst()
        if k < 2:
            o += stage_read(k)
            o += stage_compute(k)
        if k == 2:
            o += mid_block(a)
        if k < 3:
            o += pst()
    o += stamp(2)
    return o, order


def aux_setup(a):
    o = []
    if OPT["aux"]:
        o.append(salu("s_lshr_b32 s54, s2, 3"))
        o.append(salu("s_lshl_b32 s55, s54, 7"))
        o.append(valu(f"v_lshl_add_u32 {vAuxC}, v0, 12, s55"))
        piece = (32 - OPT["auxt0"]) * 16384 // OPT["auxn"]
        before = len([j for j in range(1, OPT["auxend"] + 1) if (j - OPT["auxend"]) % OPT["auxper"] == 0]) - OPT["auxn"]
        o.append(salu("s_and_b32 s54, s54, 3"))
        o.append(salu(f"s_mul_i32 s54, s54, {piece // 4}"))
        o.append(salu(f"s_add_u32 s54, s54, {(a * piece // 8 - before * piece) & 0xffffffff:#x}"))
        o.append(valu(f"v_and_b32 {vAuxT}, 63, v0"))
        o.append(valu(f"v_cmp_le_u32 vcc, {piece // 1024}, {vAuxT}"))
        o.append(valu(f"v_lshl_add_u32 {vAuxT}, {vAuxT}, 7, s54"))
        o.append(valu(f"v_cndmask_b32 {vAuxT}, {vAuxT}, 2.0, vcc"))
        o.append(salu(f"s_cmp_eq_u32 {sB}, 0"))
        o.append(salu("s_cselect_b32 s88, s16, s20"))
        o.append(salu("s_cselect_b32 s89, s17, s21"))
        o.append(salu(f"s_add_u32 s88, s88, {OPT['auxt0'] * 16384}"))
        o.append(salu("s_addc_u32 s89, s89, 0"))
        o.append(salu(f"s_mov_b32 s90, {(32 - OPT['auxt0']) * 16384}"))
        o.append(salu("s_mov_b32 s91, 0x20000"))
        if OPT["holes"]:
            o.append(salu("s_mov_b64 s[84:85], s[88:89]"))
            o.append(salu("s_mov_b32 s86, 0"))
            o.append(salu("s_mov_b32 s87, 0x20000"))
    return o


def finish(a):
    o = stamp(6)
    if OPT.get("amp"):
        lo, hi, base = OPT["amp"] // 100, OPT["amp"] % 100, OPT["ampbase"]
        o.append(raw("s_waitcnt vmcnt(0)"))
        o += stamp(7)
        o.append(raw(f"s_waitcnt lgkmcnt(0)\ns_and_b32 s95, s2, {OPT.get('ampmask', 255)}\ns_cmp_lg_u32 s95, {OPT.get('ampwg', 40)}\ns_cbranch_scc1 L_end\ns_sub_u32 s94, s{60 + 2 * hi}, s{60 + 2 * lo}\ns_sub_u32 s94, s94, {base}\ns_max_i32 s94, s94, 0\ns_mul_i32 s94, s94, {OPT.get('amprt', 1)}\ns_min_u32 s94, s94, 20000\ns_add_u32 s94, s94, 6000"))
        o.append(raw(f"L_amp{a}:\ns_memrealtime s[92:93]\ns_waitcnt lgkmcnt(0)\ns_sub_u32 s92, s92, s58\ns_cmp_lt_u32 s92, s94\ns_cbranch_scc1 L_amp{a}"))
    elif OPT["stamps"]:
        o.append(raw("s_waitcnt vmcnt(0)"))
        o += stamp(7)
        o.append(raw("s_memrealtime s[92:93]"))
        o.append(raw("s_waitcnt lgkmcnt(0)"))
        o.append(raw("s_mov_b32 s96, s56\ns_and_b32 s97, s57, 0xffff\ns_mov_b32 s98, 0x100000\ns_mov_b32 s99, 0x20000"))
        o.append(raw(f"s_lshl_b32 s94, s2, 2\ns_add_u32 s94, s94, {sW}\ns_lshl_b32 s94, s94, 7"))
        for i in range(16):
            o.append(raw(f"v_mov_b32 v{64 + i}, s{60 + 2 * i}"))
        o.append(raw("v_mov_b32 v80, s58\nv_mov_b32 v81, s92\nv_mov_b32 v82, 0\nv_mov_b32 v83, 0\nv_mov_b32 v84, 0"))
        if OPT["prof"]:
            o.append(raw("v_lshlrev_b32 v85, 2, v0\ns_lshl_b32 s95, s2, 10\ns_add_u32 s95, s95, 0x40000\nbuffer_store_dword v127, v85, s[96:99], s95 offen"))
        o.append(raw("s_mov_b64 exec, 1"))
        for i in range(5):
            o.append(raw(f"buffer_store_dwordx4 v[{64 + 4 * i}:{67 + 4 * i}], v84, s[96:99], s94 offen offset:{16 * i}"))
    o.append(raw("s_endpgm"))
    return o


def fallback(a, redo):
    NQ = 5 - a
    M, AD = PP, PP + 8
    o = [label(f"L_fallback{a}")]
    o.append(raw("s_waitcnt vmcnt(0) lgkmcnt(0)"))
    o.append(nop(7))
    o.append(salu("s_mov_b32 s18, 524288"))
    o.append(valu(f"v_and_b32 v{AD}, 15, v0"))
    o.append(valu(f"v_lshlrev_b32 v{AD}, 9, v{AD}"))
    o.append(valu(f"v_bfe_u32 v{AD + 1}, v0, 4, 1"))
    o.append(valu(f"v_lshl_add_u32 v{AD}, v{AD + 1}, 5, v{AD}"))
    o.append(valu(f"v_bfe_u32 v{AD + 1}, v0, 5, 1"))
    o.append(valu(f"v_lshl_add_u32 v{AD}, v{AD + 1}, 4, v{AD}"))
    for t in range(NQ):
        o.append(valu(f"v_mov_b32 v{M + t}, 0xff800000"))
    o.append(salu("s_mov_b32 s54, 0"))
    o.append(label(f"L_fbloop{a}"))
    for s in range(8):
        o.append(vload("buffer_load_dwordx4", Kf(s), f"v{AD}", sK, "s54", 64 * s))
    for t in range(NQ):
        for s in range(8):
            o.append(mfma(S(t), Kf(s), Qf(t, s), "0" if s == 0 else S(t)))
    for t in range(NQ):
        s0 = SS + 4 * t
        o.append(valu(f"v_max3_f32 v{M + t}, v{s0}, v{s0 + 1}, v{M + t}"))
        o.append(valu(f"v_max3_f32 v{M + t}, v{s0 + 2}, v{s0 + 3}, v{M + t}"))
    o.append(salu("s_add_u32 s54, s54, 8192"))
    o.append(salu("s_cmp_lt_u32 s54, 524288"))
    o.append(salu(f"s_cbranch_scc1 L_fbloop{a}"))
    for t in range(NQ):
        o += xlane("v_max_f32", M + t, AD + 1)
        for r in range(4):
            o.append(valu(f"v_sub_f32 v{NEGM + 4 * t + r}, 0, v{M + t}"))
    o.append(salu(f"s_mov_b64 {sKEEP}, -1"))
    o.append(salu(f"s_mov_b32 {sTHR}, -1"))
    o += redo
    o.append(barrier())
    o.append(salu("s_branch L_restart"))
    return o


def ablate(lines, lo, hi):
    ab = OPT["abl"]
    for n in range(lo, hi):
        l = lines[n]
        if (ab & 1 and l.endswith(" lds")) or (ab & 2 and l == "s_barrier") or (ab & 4 and l.startswith("ds_write")) or (ab & 8 and l.startswith("ds_read2")) \
           or (ab & 16 and l.startswith("ds_read_b64_tr")) or (ab & 32 and l.startswith("ds_read_b128")) or (ab & 64 and l.startswith("s_waitcnt")) \
           or (ab & 4096 and l.startswith("v_add_f32")):
            lines[n] = "; ablated"
        if ab & 256 and l.startswith("s_waitcnt vmcnt"):
            lines[n] = re.sub(r"vmcnt\(\d+\) ", "", l)


def build():
    j0, j1 = 1, (25 if OPT["early"] else 29)
    ent, redo = entry()
    text, evs = [], []
    for a in (0, 1):
        pro, rest = prologue(a)
        tr = list(ent) + [raw(";;ROLE")] + pro + [raw(";;IV 0")] + start_block(a, rest) + stamp(3)
        for j in range(1, 30):
            tr.append(raw(f";;IV {j}"))
            tr += interval(j, a, f"L_loop{a}" if (j < j1 and (j - j0) % 4 == 3) else None)
        tr.append(raw(";;IV 30"))
        if OPT["prof"]:
            tr.append(raw("s_nop 4\n    v_mov_b32 v1, v21"))
        tr += stamp(4) + final_block(a)
        if OPT["prof"]:
            tr.append(raw("v_mov_b32 v127, v1"))
        tr += finish(a)
        out, ev, ins = resolve(tr)
        evs += ev
        lines = [x.text for x in out]
        k = lines.index(";;ROLE")
        if a == 0:
            text += lines[:k]
        idx = {j: lines.index(f";;IV {j}") for j in range(31)}
        for pos, w, c in ins:
            if idx[0] < pos and (OPT["show"] >= 0 or idx[1] < pos < idx[30]):
                print(f"; auto-inserted in role {a} @{pos - idx[0]}: {w} before {c}", file=sys.stderr)
        seg = lambda j: lines[idx[j] + 1: idx[j + 1]]
        for j in range(j0 + 4, j1):
            jb = j0 + (j - j0) % 4
            assert len(seg(j)) == len(seg(jb)), f"loop body not periodic at {j} role {a}"
            for n, (x, y) in enumerate(zip(seg(j), seg(jb))):
                if x != y:
                    assert re.sub(r"\d+", "", x) == re.sub(r"\d+", "", y) and x.startswith("s_waitcnt"), (j, a, x, y)
                    it = iter(min(int(p), int(q)) for p, q in zip(re.findall(r"\d+", x), re.findall(r"\d+", y)))
                    lines[idx[jb] + 1 + n] = re.sub(r"\d+", lambda m: str(next(it)), x)
        if OPT["abl"]:
            ablate(lines, idx[1], idx[30])
        text += lines[k + 1: idx[j0]]
        text.append(f".p2align {OPT['lalign']}")
        text.append(f"L_loop{a}:")
        text += lines[idx[j0]: idx[j0 + 4]]
        text += lines[idx[j1]:]
        fb, _, _ = resolve(fallback(a, redo))
        text += [x.text for x in fb]
    assert check_lds(evs) == 0
    hdr = open("header.txt").read()
    body = "\n".join(("" if l.endswith(":") or l.startswith(".") else "    ") + l.replace(";;IV", "; interval") for l in text)
    return f"""{hdr}; @launch grid=(256,1,1) block=(256,1,1) lds={LDS_BYTES}
.amdgcn_target "amdgcn-amd-amdhsa--gfx950"
.text
.globl {KN}
.p2align 8
.type {KN},@function
{KN}:
{body}
L_end:
    s_endpgm
.section .rodata,"a"
.p2align 6
.amdhsa_kernel {KN}
  .amdhsa_next_free_vgpr 512
  .amdhsa_next_free_sgpr 102
  .amdhsa_accum_offset 256
  .amdhsa_group_segment_fixed_size 0
  .amdhsa_kernarg_size 48
  .amdhsa_user_sgpr_count 2
  .amdhsa_user_sgpr_kernarg_segment_ptr 1
  .amdhsa_system_sgpr_workgroup_id_x 1
.end_amdhsa_kernel
"""


if __name__ == "__main__":
    for kv in sys.argv[1:]:
        k, v = kv.split("=", 1)
        if k.startswith("pol"):
            OPT[k] = "".join(" " + x for x in v.split("+") if x and x != "d")
        else:
            OPT[k] = int(v)
    print(build())
```

```python
import sys, struct, math, re
from asmlib import *
from sched import Block

KN = "standalone__gqa_softmax__near_ridge_kernel"
OPT = dict(abl=0, pol_kv="", pol_q=" nt", pol_o=" sc0 sc1", stamps=0, prof=0, show=-1, thr=30,
           dma0=1, dmastep=8, dmastag=4, klead=3, walign=0, wq=1, feed0=4, feedl=1, prefeed=3,
           bar0=26, bara=31, barb=71, lalign=3, lazy=16, order=1, win=11, aux=1, early=3, sdma0=1, sdmas=3, sdman=8, lastfeed=0, k1stage=2, nunder=1, prewait=0, ulo=2, ulo2=8, split=0, mergetail=1, rwin=1, pf31=0, holes=0, holew=1, auxper=2, auxn=4, auxend=24, auxt0=28, nfast=3, nin=2)

PXA = 10240
KRING = 3 * PXA
SLOT = 16640
VRING = KRING + 4 * SLOT
LDS_BYTES = VRING + 4 * SLOT

sQ, sK, sV, sO, sC = "s[12:15]", "s[16:19]", "s[20:23]", "s[24:27]", "s[44:47]"
sW, sA, sB, sCNT, sKo, sVo, sKm, sVm, sPm, sMASK = "s28", "s29", "s30", "s31", "s32", "s33", "s34", "s35", "s36", "s39"
sSC, sKEEP = "s[40:41]", "s[42:43]"
sT = ["0", "s48", "s49", "s50", "s51"]
sT8 = ["s4", "s5", "s6", "s7", "s8"]
sX, sTHR = "s38", "s52"
vKr, vV0, vV1, vKd, vVd, vPr, vPr2 = "v1", "v2", "v3", "v4", "v5", "v6", "v7"
vL = [8, 9, 10, 11, 12]
vO, vEw, vEr = "v13", "v22", "v23"
PXT = 14
TMP = 16
vAuxC, vAuxT, vAuxD, vAuxD2, sP = "v18", "v19", "v20", "v17", "s[88:91]"
NEGM, SS, PP, OO = 24, 44, 64, 128
SCT = 104
vQl, vQw, vQw2, vQwx, vQr, vQr2, vQrx, vKr0 = (f"v{96 + i}" for i in range(8))
vQlx = "v21"
RAWX, SPRE0 = 112, 120
LP, FLG = 24, 18
RL = lambda t: 30 + 2 * t
QXTAG = [(("P", 1, t), -1) for t in range(5)] + [(("L", t), -1) for t in range(6)]
AQ, AX, AKF, AVF, ASP = 0, 128, 160, 192, 224


def Qf(t, s):
    return R("a", (AQ + 32 * t if t < 4 else AX) + 4 * s, 4)


def Kf(s):
    return R("a", AKF + 4 * s, 4)


def S(t):
    return R("v", SS + 4 * t, 4)


def Ng(t):
    return R("v", NEGM + 4 * t, 4)


def Pown(j, t):
    return PP + 16 * (j % 4) + 4 * t if t < 4 else PXT


def Pop(j, t):
    return R("v", PP + 16 * (j % 4) + 4 * t, 4) if t < 4 else R("a", ASP + 4 * (j % 4), 4)


def O(t, dt):
    return R("v", OO + 32 * t + 4 * dt, 4) if t < 4 else R("a", AX + 4 * dt, 4)


def RAW(k, i):
    return OO + 32 * k + 4 * i


def where(kind, tile):
    if OPT["early"] and kind == "V" and tile >= 30:
        return (("K", 0), 32) if tile == 30 else (("V", 2), 31)
    return ((kind, tile % 4), tile)


def tdma(kind, tile, i):
    reg = where(kind, tile)
    off = reg[0][1] * SLOT + i * 1568 - (4 * SLOT if reg[0][0] != kind else 0)
    m, v, srd, so = (sKm, vKd, sK, sKo) if kind == "K" else (sVm, vVd, sV, sVo)
    return (salu(f"s_add_u32 m0, {m}, {off}" if off >= 0 else f"s_sub_u32 m0, {m}, {-off}"),
            dma(v, srd, so, 512 * i, OPT["pol_kv"], reg, (kind, tile)))


def bump(kind):
    so = sKo if kind == "K" else sVo
    return salu(f"s_add_u32 {so}, {so}, 16384")


def dma_piece(kind, tile, i):
    return list(tdma(kind, tile, i)) + ([bump(kind)] if i == 3 else [])


def kread(tile, s, addr=vKr, dst=None):
    slot = tile % 4
    return ds_read("ds_read_b128", dst or Kf(s), addr, f"offset:{slot * SLOT + 64 * s}", (("K", slot), tile))


def vread(tile, dt, u, frag):
    reg = where("V", tile)
    base = (vV0, vV1) if reg[0][0] == "V" else (vKd, vVd)
    return ds_read("ds_read_b64_tr_b16", R("a", frag + 2 * u, 2), base[u], f"offset:{reg[0][1] * SLOT + 32 * dt}", reg)


def pwrite(j, t, h):
    par = j % 2
    return ds_write("ds_write_addtid_b32", None, f"v{Pown(j, t) + h}", f"offset:{par * PXA + (2 * t + h) * 256}", (("P", par, t), j))


def preads(j, a):
    par = j % 2
    o = []
    for t in range(4):
        n = par * 40 + a * 20 + 2 * t
        o.append((t, ds_read("ds_read2st64_b32", R("v", Pown(j, t) + 2, 2), vPr, f"offset0:{n} offset1:{n + 1}", (("P", par, t), j))))
    if a == 1:
        n = par * 40 + 8
        for u in range(2):
            o.append((4, ds_read("ds_read2st64_b32", R("a", ASP + 4 * (j % 4) + 2 * u, 2), (vPr2, vPr)[u], f"offset0:{n} offset1:{n + 1}", (("P", par, 4), j))))
    return o


def msetter():
    return salu(f"s_mov_b32 m0, {sPm}")


def stamp(idx, mode=0):
    if (OPT["stamps"] == 3) != (mode == 3) and idx > 2:
        return []
    return [raw(f"{'s_memrealtime' if OPT.get('amprt') else 's_memtime'} s[{60 + 2 * idx}:{61 + 2 * idx}]")] if OPT["stamps"] else []


def xlane(op, reg, tmp):
    o = []
    for sw in ("v_permlane32_swap_b32", "v_permlane16_swap_b32"):
        o.append(valu(f"v_mov_b32 v{tmp}, v{reg}"))
        o.append(valu(f"{sw} v{tmp}, v{reg}"))
        o.append(valu(f"{op} v{reg}, v{tmp}, v{reg}"))
    return o


def chain_ops(b, seq, lo, dl, first_deps=(), hard=None):
    prev = None
    for n, ins in enumerate(seq):
        deps = list(first_deps) if prev is None else [(prev, (1 if b.chainy else 2) if ins.kind == "perm" else (0 if b.chainy and prev.cls == "valu" else 1))]
        prev = b.op(ins, "exp" if ins.kind == "trans" else "valu", lo, dl + n, deps, hard=hard)
    return prev


def add_qk(b, a, j):
    ends = []
    for t in range(5 - a):
        for s in range(8):
            k = b.mfma(mfma(S(t), Kf(s), Qf(t, s), Ng(t) if s == 0 else S(t)))
        ends.append(k)
    return ends


def add_pv(b, a, tiles, h, frags, lo, zero=False, tmajor=False, lastuse=None, have=(), ts=None):
    NP = 4 + a
    order = [(d, t) for t in (range(NP) if tmajor is True else tmajor) for d in range(4)] if tmajor else \
            [(d, t) for d in range(4) for t in (range(NP) if d % 2 == 0 else reversed(range(NP)))]
    if ts is not None:
        order = [x for x in order if x[1] in ts]
    first, done, pfirst = {}, {}, {}
    war = dict(lastuse) if lastuse is not None else {}
    for d, t in order:
        for n, j in enumerate(tiles):
            k = b.mfma(mfma(O(t, 4 * h + d), R("a", frags[d][n], 4), Pop(j, t), "0" if zero and n == 0 else O(t, 4 * h + d)))
            first.setdefault((d, n), k)
            pfirst.setdefault((j, t), k)
            done[(t, 4 * h + d)] = k
            if lastuse is not None:
                lastuse[frags[d][n]] = k
    for d in range(4):
        for n, j in enumerate(tiles):
            for u in range(2 if j not in have else 0):
                f = first[(d, n)]
                b.op(vread(j, 4 * h + d, u, frags[d][n]), "ds", max(lo[j], war.get(frags[d][n], 0)), f - 10 + u, hard=f - 3)
    return done, pfirst


def add_softmax(b, a, j, ends, pub, defer, adds_by=None, soft=False, sub=None):
    ends = dict(enumerate(ends)) if isinstance(ends, list) else ends
    wa = OPT["walign"]
    H = (lambda x: None) if soft else (lambda x: x)
    adds = {}
    for n, t in enumerate(ends):
        base = ends[t] + 4
        late = pub - 7 - 5 * (len(ends) - 1 - n)
        ex = []
        for r in range(4):
            dl = (base - 300 if wa else min(base + 10, late - 8)) + r
            dep = []
            if sub and t in sub:
                dep = [b.op(valu(f"v_add_f32 v{SS + 4 * t + r}, v{SS + 4 * t + r}, v{NEGM + 4 * t}"), "valu", base + 1, dl - 2, [sub[t]])]
            ex.append(b.op(valu(f"v_exp_f32 v{SS + 4 * t + r}, v{SS + 4 * t + r}"), "exp", base, dl, dep, hard=H(pub - 6)))
        for h in range(2):
            c = b.op(valu(f"v_cvt_pk_bf16_f32 v{Pown(j, t) + h}, v{SS + 4 * t + 2 * h}, v{SS + 4 * t + 2 * h + 1}"), "valu", 0, (base - 50 if wa else late - 3) + h, ex[2 * h:2 * h + 2], hard=H(pub - 4))
            b.op(pwrite(j, t, h), "ds", base + 6 + h if wa else 0, (base - 200 if wa else late - 1) + h, [c], hard=H(pub - 3), m0="p", setter=msetter())
        if t not in defer:
            for r in range(4):
                adds[t] = b.op(valu(f"v_add_f32 v{vL[t]}, v{SS + 4 * t + r}, v{vL[t]}"), "valu", 0, (pub if adds_by is None else min(base + 12, adds_by)) + r, [ex[r]] + ([(adds[t], 0)] if t in adds else []),
                               hard=H(pub if adds_by is None else adds_by))
    return adds


def add_deferred(b, a, ends):
    for t in deferred(a):
        for r in range(4):
            b.op(valu(f"v_add_f32 v{vL[t]}, v{SS + 4 * t + r}, v{vL[t]}"), "valu", 0, ends[t] - 16 + r, hard=ends[t] - 8)


def deferred(a):
    return [3 - a, 4 - a]


def add_dma(b, a, pieces, g0, step, G, lo=None):
    dops = []
    for n, (kind, tile, i) in enumerate(pieces):
        st, d = tdma(kind, tile, i)
        e = int(g0 + step * n)
        if lo and (kind, tile) in lo:
            e = max(e, lo[(kind, tile)])
        o = b.op(d, "dma", e, e - 100, [(dops[-1][0], 2)] if dops else [], hard=G - 3, m0=("d", n), setter=st)
        dops.append((o, kind, tile, i))
    for o, kind, tile, i in dops:
        if i == 3:
            nxt = [x for x, k, tl, _ in dops if k == kind and tl > tile]
            b.scalar(bump(kind), (lambda o=o: o.gap + 1), (lambda nxt=nxt: nxt[0].gap - 1) if nxt else G - 4)
    return dops


def prof_hooks(out):
    if OPT["prof"]:
        k = max(n for n, x in enumerate(out) if x.kind == "barrier")
        out.insert(k, raw("v_writelane_b32 v21, s100, m0"))
        out.insert(k - 1, raw("s_mov_b32 m0, s3"))
        mk = [n for n, x in enumerate(out[:k]) if x.kind == "mfma"]
        out.insert(mk[22] + 1, raw("s_memtime s[100:101]" if OPT["prof"] == 1 else "s_memrealtime s[100:101]"))
        out.insert(mk[2] + 1, raw("s_add_u32 s3, s3, 1"))
    return out


TMPL = {
    1: ["RDRRRRRR RRDRRRdE E.EDEWEE WEEDEWEW EEWEDEWE EWWEED.E EWW..RDR RRRRRRRD RRRRdRRR",
        "RRRRRDRR RRRRRRDR EE.EEWED EWEEWEEW .DEEWEEW E.DEW.W. d.D..RRR RRRDRRRR RdRDRRRR"],
    2: ["RDRRRRRR RRDRRRdE E.EDEWEE WEEDEWEW EEWEDEWE EWWEED.E EWW.RRDR RRRRRRRD RRRRd.RR",
        "RRRRRDRR RRRRRRDR EE.EEWED EWEEWEEW .DEEWEEW E.DEW.W. d.DRRRRR RRRDRRRR RdRD..RR"],
    3: ["RDRRRRRR RRDRRREE EE.DEWWE EE.DEWWE EE.DEWWE EE.EWWED EE.WW.DR RRRRRRRD RRRRRRRR",
        "RRRRRDRR RRRRRRDR EEEE.WWE DEEE.WWE EDEE.WWE E.DEE.WW d.D.d.RR RRRDRRRR RRRDRRRR"],
}
FOLD = [AVF + 8 * d for d in range(4)]
FNEW = [AVF + 8 * d + 4 for d in range(4)]


def add_old_reads(b, j, lu, lo, G):
    for d in range(4):
        for u in range(2):
            b.op(vread(j, 4 * ((j + 1) % 2) + d, u, FOLD[d]), "ds", max(lo, lu.get(FOLD[d], 0)), G + 2 * d + u, hard=G - 1)


def interval(j, a, loop_end=None):
    b = Block(f"interval {j} role {a}", wq=OPT["wq"] if OPT["walign"] else 0, wprio=bool(OPT["walign"]))
    ends = add_qk(b, a, j + 1)
    lu = {}
    if j <= 28:
        done, pfirst = add_pv(b, a, [j - 1, j], j % 2, [[FOLD[d], FNEW[d]] for d in range(4)], {j: 0}, lastuse=lu, have=[j - 1])
        b.carry = [f"a{x + i}" for x in FOLD for i in range(4)]
    else:
        done, pfirst = add_pv(b, a, [j], 0, [[AVF + 4 * d] for d in range(4)], {j: 0})
    G = len(b.mf)
    if j <= 27:
        add_old_reads(b, j, lu, 0, G)
    for t, ins in preads(j, a):
        b.op(ins, "ds", 0, pfirst[(j, t)] - 10, hard=pfirst[(j, t)] - 3)
    for s in range(8):
        b.op(kread(j + 2, s), "ds", ends[-1] - 7 + s, G - 18 + s, hard=G - 3)
    kl = OPT["klead"]
    T = lambda kind, tile, r=range(4): [(kind, tile, i) for i in r]
    pieces = T("V", j + 2) + (T("K", j + 2 + kl) if j <= 28 else [])
    step = OPT["dmastep"]
    if OPT["early"] and j >= 25:
        if kl == 3:
            pieces = {25: T("V", 27) + T("K", 30), 26: T("V", 28) + T("K", 31), 27: T("V", 29) + T("V", 30), 28: T("V", 31), 29: []}[j]
        elif OPT["early"] == 1:
            pieces = {25: T("V", 27) + T("K", 29) + T("K", 30, [0]), 26: T("V", 28) + T("K", 30, [1, 2, 3]) + T("K", 31, [0, 1]),
                      27: T("V", 29) + T("K", 31, [2, 3]) + T("V", 30), 28: T("V", 31), 29: []}[j]
        elif OPT["early"] == 2:
            pieces = {25: T("V", 27) + T("K", 29), 26: T("V", 28) + T("K", 30), 27: T("V", 29) + T("K", 31), 28: T("V", 30) + T("V", 31), 29: []}[j]
        else:
            pieces = {25: T("V", 27) + T("K", 29) + T("K", 30, [0]), 26: T("V", 28) + T("K", 30, [1, 2, 3]) + T("K", 31, [0, 1]),
                      27: T("V", 29) + T("K", 31, [2, 3]) + T("V", 30, [0, 1, 2]), 28: T("V", 30, [3]) + T("V", 31), 29: []}[j]
        step = {25: 7, 26: 7, 27: 6, 28: 4, 29: 4}[j]
    dops = add_dma(b, a, pieces, OPT["dma0"] + a * min(OPT["dmastag"], step // 2), step, G)
    if OPT["early"] and j == 29:
        b.op(valu(f"v_subrev_u32 {vKd}, {4 * SLOT}, {vV0}"), "valu", 0, G, hard=G - 1)
        b.op(valu(f"v_subrev_u32 {vVd}, {4 * SLOT}, {vV1}"), "valu", 0, G, hard=G - 1)
    if OPT["early"] and j == OPT["pf31"]:
        x = chain_ops(b, [valu(f"v_and_b32 {vAuxT}, 7, v0"), valu(f"v_lshl_add_u32 {vAuxT}, {vAuxT}, 7, s37")], 0, -95)
        b.op(vload("buffer_load_dword", vAuxD, vAuxT, sV, "0"), "st", 0, -90, [x], hard=40)
    if not OPT["early"] and j <= 28 and j % 4 == (30 - kl) % 4:
        kf = [o for o, k, _, _ in dops if k == "K"][0]
        vl = [o for o, k, _, _ in dops if k == "V"][-2]
        pair = raw(f"s_cmp_eq_u32 {sCNT}, 1\n    s_cselect_b32 s18, 0, s18")
        b.scalar(pair, (lambda: vl.gap + 1), (lambda: kf.gap - 2))
    if j <= 24 and j % 4 == OPT.get("auxj", 1) and OPT["aux"] & 1:
        b.op(vload("buffer_load_dword", vAuxD, vAuxC, sC, "0"), "st", 3, -90, hard=40)
    if j <= 24 and (j - OPT["auxend"]) % OPT["auxper"] == 0 and OPT["aux"] & 2:
        x = b.op(vload("buffer_load_dword", vAuxD2, vAuxT, sP, "0"), "st", 5 - 4 * a, -90, hard=40)
        b.op(valu(f"v_add_u32 {vAuxT}, {(32 - OPT['auxt0']) * 16384 // OPT['auxn']:#x}, {vAuxT}"), "valu", 0, G, [x], hard=G - 1)
    nh = OPT["holes"] % 10 if a == 0 else OPT["holes"] // 10
    for n in range(nh if j <= 28 else 0):
        ref = dops[min(6, (2 * n + 1) * 8 // (2 * nh) - 1 + (1 if nh < 4 else 0))][0]
        w = OPT["holew"]
        b.op(vload("buffer_load_dword" + ("" if w == 1 else f"x{w}"), "v20" if w == 1 else R("a", 252, w), vAuxT, "s[84:87]", "0"), "st", 0, -95, [(ref, 2)], hard=G - 12)
    add_deferred(b, a, ends)
    add_softmax(b, a, j + 1, ends, G - 1, deferred(a))
    if OPT["rwin"] and j <= 28:
        tm = TMPL[OPT["rwin"]][a].replace(" ", "")
        assert len(tm) == 72, len(tm)
        nd = len([o for o in b.ops if o.cls in ("dma", "st")])
        b.tmpl = tm.replace("d", "D", max(0, nd - 8) if nd > 4 else 1).replace("d", ".")
        for o in b.ops:
            if o.cls == "dma" or o.ins.kind == "dsw":
                o.lo = 0
            if o.ins.text.startswith("v_cvt"):
                o.dl -= 200
    vm = [("V", j + 1)] + ([("K", j + 3)] if j + 3 <= 31 else [])
    if OPT["early"] and j == 29:
        vm.append(("V", 31))
    b.barrier(G - 1, vm, ["w"] + [f"a{AKF + i}" for i in range(32)])
    if loop_end:
        b.scalar(salu(f"s_sub_u32 {sCNT}, {sCNT}, 1"), 20, G - 4)
        b.scalar(salu(f"s_cmp_lg_u32 {sCNT}, 0"), G - 3, G - 3)
    out, _ = b.schedule(show=OPT["show"] == j)
    out = prof_hooks(out)
    if loop_end:
        out.append(salu(f"s_cbranch_scc1 {loop_end}"))
    return out


def first_tile_instrs(t):
    SPRE = RAWX if t == 4 else SPRE0
    own, oth = R("v", SPRE, 4), R("v", SPRE + 4, 4)
    mf = [mfma(own, R("a", AVF + 4 * s, 4), Qf(t, s), "0" if s == 0 else own) for s in range(8)]
    mf += [mfma(oth, R("a", ASP + 4 * s, 4), Qf(t, s), "0" if s == 0 else oth) for s in range(8)]
    A_, B_, C_ = TMP, TMP + 1, TMP + 4
    m1 = [valu(f"v_max3_f32 v{C_}, v{SPRE}, v{SPRE + 1}, v{SPRE + 2}"), valu(f"v_max_f32 v{C_}, v{C_}, v{SPRE + 3}")]
    m2 = [valu(f"v_max3_f32 v{C_}, v{C_}, v{SPRE + 4}, v{SPRE + 5}"),
          valu(f"v_max3_f32 v{A_}, v{C_}, v{SPRE + 6}, v{SPRE + 7}"), valu(f"v_max3_f32 v{B_}, v{C_}, v{SPRE + 6}, v{SPRE + 7}"),
          valu(f"v_permlane32_swap_b32 v{A_}, v{B_}"),
          valu(f"v_max_f32 v{C_}, v{A_}, v{B_}"), valu(f"v_max_f32 v{B_}, v{A_}, v{B_}"),
          valu(f"v_permlane16_swap_b32 v{C_}, v{B_}"),
          valu(f"v_max_f32 v{A_}, v{C_}, v{B_}")]
    cm = [valu(f"v_cndmask_b32 v{NEGM + 4 * t + r}, -v{TMP}, v{NEGM + 4 * t + r}, {sKEEP}") for r in range(4)]
    n = 8 if t < 4 else 4
    sb = [valu(f"v_add_f32 v{SPRE + r}, v{SPRE + r}, v{NEGM + 4 * t}") for r in range(n)]
    ex = [valu(f"v_exp_f32 v{SPRE + r}, v{SPRE + r}") for r in range(n)]
    cv = [valu(f"v_cvt_pk_bf16_f32 v{Pown(0, t) + h}, v{SPRE + 2 * h}, v{SPRE + 2 * h + 1}") for h in range(n // 2)]
    ad = [valu(f"v_add_f32 v{vL[t]}, v{SPRE + r}, v{vL[t]}") for r in range(4)]
    return mf, m1, m2, cm, sb, ex, cv, ad


def add_first_tile(b, t, need_by=None):
    mf, m1, m2, cm, sb, ex, cv, ad = first_tile_instrs(t)
    idx = [b.mfma(x) for x in mf]

    def ops(after=()):
        x = chain_ops(b, m1, idx[7] + 5, -510, after)
        last = chain_ops(b, m2, idx[15] + 5, -500, [x])
        c = [b.op(y, "valu", 0, -480 if r == 0 or t == 4 else 150, [(last, 0)]) for r, y in enumerate(cm)]
        ops.cm = c
        e = []
        for r in range(len(sb)):
            sbo = b.op(sb[r], "valu", 0, -478 + r, [(c[0], 0)], hard=need_by)
            e.append(b.op(ex[r], "exp", 0, -470 + r, [sbo], hard=need_by))
        for h, y in enumerate(cv):
            cvo = b.op(y, "valu", 0, -469 + 2 * h, e[2 * h:2 * h + 2], hard=need_by)
            if t == 4:
                b.op(pwrite(0, t, h), "ds", 0, 100 + h, [cvo], m0="p", setter=msetter())
        for r in range(4):
            b.op(ad[r], "valu", 0, 200 + r, [e[r]])
        return c[0]
    return idx, ops


def qk_chain(b, t, zero=False):
    for s in range(8):
        k = b.mfma(mfma(S(t), Kf(s), Qf(t, s), ("0" if zero else Ng(t)) if s == 0 else S(t)))
    return k


def flush(out, left):
    m0 = None
    left = list(left)
    while left:
        o = next(o for o in left if all(d not in left for d, _ in o.deps))
        left.remove(o)
        if o.m0 is not None and o.m0 != m0:
            out.append(o.setter)
            m0 = o.m0
        out.append(o.ins)
    return out


def merge(x, y):
    o = []
    for i in range(max(len(x), len(y))):
        o += x[i:i + 1] + y[i:i + 1]
    return o


def stage_block(a, k, feed):
    b = Block(f"stage {k} role {a}")
    b.chainy = True
    k1 = OPT["k1stage"]
    b.pre = ([kread(1, s) for s in range(8)] if k == k1 else []) + stage_read(k)
    c1 = {1: {1: [0, 4], 2: [1]}, 2: {2: [0, 1, 4]}}[k1].get(k, [])
    c1 = [t for t in c1 if t < 5 - a]
    ends, later = {}, []
    covered = (k == 0 and a == 0) or (k > k1)
    if k == 0 and a == 0:
        later.append(add_first_tile(b, 4)[1])
    if c1 and k == 2:
        ends[c1[0]] = qk_chain(b, c1[0])
    later.append(add_first_tile(b, k)[1])
    for t in c1:
        if t not in ends:
            ends[t] = qk_chain(b, t)
    G = len(b.mf)
    prev = ()
    for f in later:
        f(prev)
        prev = f.cm
    if ends:
        add_softmax(b, a, 1, ends, G + 16, deferred(a), soft=True)
    i = 0
    if not covered and OPT["prewait"]:
        b.pre += stage_load(k + 1, 0, feed)
        i = 1
    nun = OPT["nunder"]
    ulo = OPT["ulo"] if G <= 16 else OPT["ulo2"]
    prev = []
    for n in range(nun):
        src = RAW(k + 1, i)
        cv = []
        first = None
        for r in range(4):
            lo_ = b.op(valu(f"v_lshlrev_b32 v{SCT + 2 * r}, 16, v{src + r}"), "valu", ulo, 40 * n + 5 * r, prev)
            hi_ = b.op(valu(f"v_and_b32 v{SCT + 2 * r + 1}, {sMASK}, v{src + r}"), "valu", ulo, 40 * n + 5 * r + 1, prev)
            first = first or lo_
            m0_ = b.op(valu(f"v_mul_f32 v{SCT + 2 * r}, s40, v{SCT + 2 * r}"), "valu", 0, 40 * n + 5 * r + 2, [lo_])
            m1_ = b.op(valu(f"v_mul_f32 v{SCT + 2 * r + 1}, s40, v{SCT + 2 * r + 1}"), "valu", 0, 40 * n + 5 * r + 3, [hi_])
            cv.append(b.op(valu(f"v_cvt_pk_bf16_f32 v{src + r}, v{SCT + 2 * r}, v{SCT + 2 * r + 1}"), "valu", 0, 40 * n + 5 * r + 4, [m0_, m1_]))
        b.op(stage_write(k + 1, i), "solo", 0, 40 * n + 21, cv)
        fd = feed(("Q", k + 1, i))
        if fd:
            grp = I("\n    ".join(x.text for x in fd), "group")
            grp.tag = fd
            b.op(grp, "st", 0, 40 * n + 6, [first], m0=("g", n), setter=nop(0))
        prev = cv
        i += 1
    out, left = b.schedule(show=OPT["show"] == 0, leftover_ok=True)
    tail = flush([], left)
    if not any(x.wr & {f"v{SCT + r}" for r in range(8)} or x.rd & {f"v{SCT + r}" for r in range(8)} for x in tail) and i < 3 and OPT["mergetail"]:
        assert not any(x.kind == "group" for x in tail)
        nx = stage_load(k + 1, i, feed)
        i += 1
        p = max(n for n, x in enumerate(nx) if x.kind in ("dma", "vld", "salu") or n == 0)
        tail = nx[:p + 1] + merge(tail, nx[p + 1:])
    out += tail
    while i < 4:
        out += stage_load(k + 1, i, feed)
        i += 1
    o = []
    for x in out:
        o += x.tag if x.kind == "group" else [x]
    return o


def start_block(a, rest):
    b = Block(f"start role {a}")
    b.chainy = True
    b.pre = stage_read(3)
    ends = {2: qk_chain(b, 2)}
    G = 32 + 4 * (4 + a)
    idx, ops = add_first_tile(b, 3, need_by=G - 5)
    ends[3] = qk_chain(b, 3, zero=True)
    lu = {AVF + 4 * s: idx[s] for s in range(8)}
    done, pfirst = add_pv(b, a, [0], 0, [[FNEW[d]] for d in range(4)], {0: 0}, zero=True, tmajor=[0, 1, 2, 4, 3][:3] + ([4] if a else []) + [3], lastuse=dict(lu))
    assert G == len(b.mf)
    bar = OPT["bar0"]
    neg3 = ops()
    for d in range(4):
        for u in range(2):
            b.op(vread(0, 4 + d, u, FOLD[d]), "ds", lu[FOLD[d]], G + 30 + 2 * d + u)
    for t, ins in preads(0, a):
        if t == 4:
            b.op(ins, "ds", idx[8], pfirst[(0, t)] - 10, hard=pfirst[(0, t)] - 3)
    for s in range(8):
        b.op(kread(2, s), "ds", max(bar, ends[3] - 7 + s), G - 10 + s)
    pieces = rest + [("V", 2, i) for i in range(4)] + [("K", 4, i) for i in range(4)]
    if OPT["klead"] == 3:
        pieces += [("K", 5, i) for i in range(4)]
    nin = min(len(pieces), OPT["sdman"])
    add_dma(b, a, pieces[:nin], OPT["sdma0"], OPT["sdmas"], G)
    add_softmax(b, a, 1, ends, G + 12, deferred(a), soft=True, sub={3: neg3})
    b.barrier(bar, [("K", 2)], None)
    if OPT["stamps"] == 1:
        b.inserts[0] = stamp(12)
        b.inserts[bar - 2] = stamp(13)
        b.inserts[bar] = stamp(9)
        b.inserts[G - 1] = stamp(10)
    out, left = b.schedule(show=OPT["show"] == 0, leftover_ok=True)
    out = flush(out, left)
    for p in pieces[nin:]:
        out += dma_piece(*p)
    out.append(wait(vm=[("V", 1), ("K", 3)], lg=["w"] + [f"a{AKF + i}" for i in range(32)]))
    out.append(barrier())
    return prof_hooks(out)


def unit_instrs(a, t, h, n, packed):
    va, wr = [], []
    for d in range(4):
        dt = 4 * h + d
        x = OO + 32 * t + 4 * dt if t < 4 else SS + 4 * d
        seq = []
        if t == 4:
            seq += [valu(f"v_accvgpr_read_b32 v{x + i}, a{AX + 4 * dt + i}") for i in range(4)]
        if packed:
            seq += [valu(f"v_pk_mul_f32 {R('v', x + 2 * i, 2)}, {R('v', x + 2 * i, 2)}, {R('v', RL(t), 2)} op_sel_hi:[1,0]") for i in range(2)]
        else:
            seq += [valu(f"v_mul_f32 v{x + i}, v{x + i}, v{RL(t)}") for i in range(4)]
        seq += [valu(f"v_cvt_pk_bf16_f32 v{x + i}, v{x + 2 * i}, v{x + 2 * i + 1}") for i in range(2)]
        va.append(seq)
        wr.append(ds_write("ds_write_b64", vEw, R("v", x, 2), f"offset:{32 * d}", (("K", 1), 99)))
    rd, st = [], []
    for i in range(2):
        q = R("a", ASP + 16 + 8 * (n % 2) + 4 * i, 4)
        rd.append(ds_read("ds_read_b128", q, vEr, f"offset:{8 * 144 * i}"))
        st.append(vstore("buffer_store_dwordx4", q, vO, sO, (sT, sT8)[i][t], 128 * h, OPT["pol_o"] if h == 0 or "pol_o1" not in OPT else OPT["pol_o1"]))
    return va, wr, rd, st


def final_block(a):
    NQ, NP = 5 - a, 4 + a
    b = Block(f"final role {a}")
    b.lazy = OPT["lazy"]
    b.chainy = True
    save = OPT["walign"]
    OPT["walign"] = 0
    barA, barB = OPT["bara"], OPT["barb"]
    F = lambda i: AVF + 4 * i
    KF = lambda i: AKF + 4 * i
    lo = {28: 0, 29: 0, 30: 0, 31: 0}
    lu = {}
    rest = list(range(2, NP))
    f30, f31 = [[F(d)] for d in range(4)], [[F(4 + d)] for d in range(4)]
    ends = {t: qk_chain(b, t) for t in (0, 1, 2)}
    _, pf = add_pv(b, a, [30], 0, f30, lo, lastuse=lu, ts=[0, 1])
    ends[3] = qk_chain(b, 3)
    done0, pf1 = add_pv(b, a, [31], 0, f31, lo, tmajor=True, lastuse=lu, ts=[0, 1])
    X1 = len(b.mf) - 1
    if a == 0:
        ends[4] = qk_chain(b, 4)
    lu.update({KF(s): ends[NQ - 1] - 7 + s for s in range(8)})
    pf.update(add_pv(b, a, [30], 0, f30, lo, lastuse=lu, ts=rest, have=[30])[1])
    add_pv(b, a, [28], 1, [[ASP + 4 * d if a == 0 else KF(d)] for d in range(4)], lo, lastuse=lu)
    d2, p2 = add_pv(b, a, [31], 0, f31, lo, tmajor=True, lastuse=lu, ts=rest, have=[31])
    done0.update(d2)
    pf1.update(p2)
    X = len(b.mf) - 1
    pool = [KF(i) for i in range(8)] + [F(i) for i in range(4)] if a == 0 else [KF(4 + i) for i in range(4)] + [F(i) for i in range(4)] + [KF(i) for i in range(4)]
    add_pv(b, a, [29, 30, 31], 1, [pool[3 * d:3 * d + 3] for d in range(4)], lo, lastuse=lu)
    G = len(b.mf)
    bar = lambda t: barA if t < 2 else barB
    for t, ins in preads(30, a):
        b.op(ins, "ds", 0, pf[(30, t)] - 10, hard=pf[(30, t)] - 3)
    for t, ins in preads(31, a):
        b.op(ins, "ds", bar(t), pf1[(31, t)] - 12, hard=pf1[(31, t)] - 3)
    add_deferred(b, a, ends)
    adds = add_softmax(b, a, 31, {t: ends[t] for t in (0, 1)}, barA, [], adds_by=barA - 4)
    adds.update(add_softmax(b, a, 31, {t: ends[t] for t in range(2, NQ)}, barB, [], adds_by=barB - 6))
    L = lambda *t: [(("L", x), 0) for x in t]
    lw = {t: b.op(ds_write("ds_write_addtid_b32", None, f"v{vL[t]}", f"offset:{2 * PXA + t * 256}", L(t)), "ds", 0, bar(t) - 8, [adds[t]], hard=bar(t) - 3, m0="p", setter=msetter()) for t in range(NQ)}
    w1 = b.op(valu(f"v_max3_u32 v{TMP}, v{vL[0]}, v{vL[1]}, v{vL[2]}"), "valu", 0, barB - 12, [adds[0], adds[1], adds[2]], hard=barB - 5)
    w2 = b.op(valu(f"v_max3_u32 v{TMP}, v{TMP}, v{vL[3]}, v{vL[NQ - 1]}"), "valu", 0, barB - 11, [w1, adds[3], adds[NQ - 1]], hard=barB - 4)
    b.op(ds_write("ds_write_addtid_b32", None, f"v{TMP}", f"offset:{2 * PXA + 5 * 256}", L(5)), "ds", 0, barB - 9, [w2], hard=barB - 3, m0="p", setter=msetter())
    b.barrier(barA, None, ["w"])
    b.barrier(barB, None, ["w"])
    base = 80
    lr = {}
    for t in (0, 2):
        lr[t] = lr[t + 1] = b.op(ds_read("ds_read2st64_b32", R("v", LP + t, 2), vPr, f"offset0:{base + a * 20 + t} offset1:{base + a * 20 + t + 1}", L(t, t + 1)), "ds", bar(t), bar(t) - 5)
    f1 = b.op(ds_read("ds_read2st64_b32", R("v", FLG, 2), vPr, f"offset0:{base + 5} offset1:{base + 25}", L(5)), "ds", barB, barB + 8)
    f2 = b.op(ds_read("ds_read2st64_b32", R("v", FLG + 2, 2), vPr2, f"offset0:{base + 5} offset1:{base + 25}", L(5)), "ds", barB, barB + 9)
    if a == 1:
        x1 = b.op(ds_read("ds_read_b32", f"v{LP + 4}", vPr, f"offset:{(base + 4) * 256}", L(4)), "ds", barB, barB + 5)
        lr[4] = b.op(ds_read("ds_read_b32", f"v{vL[4]}", vPr2, f"offset:{(base + 4) * 256}", L(4)), "ds", barB, barB + 6, [x1])
    ck = chain_ops(b, [valu(f"v_max3_u32 v{FLG}, v{FLG}, v{FLG + 1}, v{FLG + 2}"), valu(f"v_max_u32 v{FLG}, v{FLG}, v{FLG + 3}"), valu(f"v_cmp_lt_u32 vcc, {sTHR}, v{FLG}")],
                   0, barB + 30, [(f1, 6), (f2, 6)], hard=G - 4)
    if not OPT["abl"]:
        b.scalar(salu(f"s_cbranch_vccnz L_fallback{a}"), (lambda: ck.gap + 1), G - 1)
    rl = {}
    for t in range(NP):
        A_, B_, C_ = RL(t), RL(t) + 1, LP + t
        seq = [valu(f"v_add_f32 v{A_}, v{vL[t]}, v{C_}"), valu(f"v_add_f32 v{B_}, v{vL[t]}, v{C_}"), valu(f"v_permlane32_swap_b32 v{A_}, v{B_}"),
               valu(f"v_add_f32 v{C_}, v{A_}, v{B_}"), valu(f"v_add_f32 v{B_}, v{A_}, v{B_}"), valu(f"v_permlane16_swap_b32 v{C_}, v{B_}"),
               valu(f"v_add_f32 v{A_}, v{C_}, v{B_}"), valu(f"v_rcp_f32 v{A_}, v{A_}")]
        rl[t] = chain_ops(b, seq, 0, bar(t) + t, [(lr[t], 6)], hard=X1 if t < 2 else X)
    units = [(t, 0) for t in range(NP)] + [(t, 1) for t in range(NP)]
    nfast = min(2 + OPT["nfast"], NP)
    nin = min(OPT["nin"], NP - nfast)

    def straight(lst, pend):
        o = []
        for n, (t, h) in lst:
            va, wr, rd, st = unit_instrs(a, t, h, n, True)
            for k in range(len(va[0])):
                o += [va[d][k] for d in range(4)]
            o += pend
            o += wr + rd
            pend = st
        return o, pend
    en = list(enumerate(units))
    b.inserts[X1], pend = straight(en[:2], [])
    prev_rd, prev_st = [], {1: [b.op(x, "st", X1 + 6 + i, X1 - 50 + i, hard=X1 + 12) for i, x in enumerate(pend)]}
    if nfast > 2:
        b.inserts[X], pend = straight(en[2:nfast], [])
        prev_st[(nfast - 1) % 2] = [b.op(x, "st", X + 6 + i, X + i, hard=G - 1) for i, x in enumerate(pend)]
    if OPT["stamps"] == 2:
        b.inserts[barA] = stamp(12)
        b.inserts[X1] = stamp(13) + b.inserts[X1]
        b.inserts[barB] = stamp(9)
        b.inserts[X] = stamp(10) + b.inserts.get(X, [])
    for n, (t, h) in en[nfast:nfast + nin]:
        va, wr, rd, st = unit_instrs(a, t, h, n, False)
        p0 = X + 4 + 22 * (n - nfast)
        wops = []
        for d in range(4):
            nv = len(va[d])
            pr = [b.op(x, "valu", max(X + 1, done0[(t, d)] + 5), p0 + 4 * d, prev_rd) for x in va[d][:nv - 6]]
            mu = [b.op(x, "valu", max(X + 1, done0[(t, d)] + 5), p0 + 4 * d + i // 2, [rl[t]] + pr[i:i + 1]) for i, x in enumerate(va[d][nv - 6:nv - 2])]
            c0 = b.op(va[d][nv - 2], "valu", 0, p0 + 4 * d + 2, mu[:2])
            c1 = b.op(va[d][nv - 1], "valu", 0, p0 + 4 * d + 2, mu[2:] + [(c0, 0)])
            wops.append(b.op(wr[d], "solo", 0, p0 + 4 * d + 3, [c0, c1] + prev_rd))
        prev_rd = [b.op(rd[i], "ds", 0, p0 + 17 + i, wops + prev_st.get(n % 2, [])) for i in range(2)]
        prev_st[n % 2] = [b.op(st[i], "st", 0, p0 + 19 + i, [(prev_rd[i], 6)]) for i in range(2)]
    out, left = b.schedule(show=OPT["show"] == 31, leftover_ok=True)
    OPT["walign"] = save
    out += stamp(5)
    pend = []
    for o in left:
        if o.ins.kind == "vst":
            pend.append(o.ins)
        else:
            if any(o.ins.wr & x.rd for x in pend):
                out += pend
                pend = []
            out.append(o.ins)
    o2, pend = straight(en[nfast + nin:], pend)
    return out + o2 + pend


def qload(k, i):
    return [vload("buffer_load_dwordx4", R("v", RAW(k, i), 4), vQl, sQ, sT[k], 512 * i, OPT["pol_q"], tag=("Q", k, i))]


def entry():
    o = []
    A = lambda t: o.append(salu(t))
    V = lambda t: o.append(valu(t))
    t0, t1, t2, t3, t4 = (f"v{TMP + i}" for i in range(5))
    A("s_cmp_ge_u32 s2, 256")
    A("s_cbranch_scc1 L_end")
    o.append(raw("s_load_dwordx8 s[4:11], s[0:1], 0"))
    if OPT["stamps"]:
        o.append(raw("s_load_dwordx2 s[56:57], s[0:1], 40"))
        o.append(raw("s_memrealtime s[58:59]"))
    o += stamp(0)
    o.append(raw("s_getpc_b64 s[44:45]"))
    o.append(label("L_pc"))
    A("s_and_b32 s45, s45, 0xffff")
    o.append(raw("s_mov_b32 s46, L_end-L_pc"))
    A("s_mov_b32 s47, 0x20000")
    A("s_lshr_b32 s54, s2, 3")
    A("s_lshl_b32 s55, s54, 7")
    V(f"v_lshl_add_u32 {t0}, v0, 12, s55")
    o.append(vload("buffer_load_dword", "v15", t0, sC, "0"))
    V(f"v_lshrrev_b32 {t1}, 6, v0")
    A(f"s_mov_b64 {sKEEP}, 0")
    V(f"v_readfirstlane_b32 {sW}, {t1}")
    A(f"s_mov_b32 {sTHR}, {(127 + OPT['thr']) << 23:#x}")
    if OPT["prof"]:
        A("s_mov_b32 s3, 0")
    A("s_and_b32 s53, s2, 7")
    A("s_lshl_b32 s53, s53, 3")
    A("s_lshr_b32 s55, s2, 5")
    A("s_add_u32 s53, s53, s55")
    A("s_and_b32 s54, s54, 3")
    A("s_lshl_b32 s55, s53, 2")
    A("s_add_u32 s55, s55, s54")
    A("s_mul_i32 s37, s55, 73728")
    A("s_lshl_b32 s53, s53, 19")
    A(f"s_lshr_b32 {sA}, {sW}, 1")
    A(f"s_and_b32 {sB}, {sW}, 1")
    A(f"s_add_u32 s54, {sW}, 1")
    A("s_and_b32 s55, s54, 1")
    A("s_lshl_b32 s55, s55, 3")
    A("s_lshr_b32 s54, s54, 1")
    A("s_and_b32 s54, s54, 1")
    A("s_add_u32 s54, s54, s55")
    A("s_mul_i32 s54, s54, 1040")
    A(f"s_add_u32 {sKm}, s54, {KRING}")
    A("s_mov_b32 s48, 8192")
    A("s_mov_b32 s49, 16384")
    A("s_mov_b32 s50, 24576")
    A(f"s_mov_b32 {sX}, 65536")
    for srd, n in ((16, 524288), (12, 73728), (20, 524288), (24, 73728)):
        A(f"s_mov_b32 s{srd + 2}, {n}")
        A(f"s_mov_b32 s{srd + 3}, 0x20000")

    def src_offsets():
        V(f"v_and_b32 {t0}, 31, v0")
        V(f"v_lshlrev_b32 {t0}, 4, {t0}")
        V(f"v_bfe_u32 {t2}, v0, 5, 1")
        A(f"s_lshl_b32 s54, {sW}, 11")
        V(f"v_add_u32 {t1}, s54, {t0}")
        V(f"v_lshl_add_u32 {vKd}, {t2}, 13, {t1}")
        V(f"v_lshl_add_u32 {vQl}, {t2}, 15, {t1}")
        V(f"v_lshl_add_u32 {vQlx}, {t2}, 9, {t1}")
        A(f"s_mov_b32 {sKo}, 0")
        A(f"s_mov_b32 {sVo}, 0")
    src_offsets()
    o.append(raw("s_waitcnt lgkmcnt(0)"))
    o += stamp(8)
    for srd, ptr, off in ((16, 6, "s53"), (12, 4, "s37"), (20, 8, "s53"), (24, 10, "s37")):
        A(f"s_add_u32 s{srd}, s{ptr}, {off}")
        A(f"s_addc_u32 s{srd + 1}, s{ptr + 1}, 0")
        A(f"s_and_b32 s{srd + 1}, s{srd + 1}, 0xffff")
    o.append(label("L_restart"))
    for i in range(4):
        o += dma_piece("K", 0, i)
    for i in range(2):
        o.append(vload("buffer_load_dwordx4", R("v", RAWX + 4 * i, 4), vQlx, sQ, sX, 1024 * i, OPT["pol_q"], tag=("Q", 4, i)))
    o.append(barrier())
    for i in range(4):
        o += qload(0, i)
    if OPT["stamps"] == 4:
        o += stamp(9)
    A(f"s_lshl_b32 s54, {sB}, 11")
    A(f"s_lshl_b32 s55, {sA}, 13")
    A("s_add_u32 s54, s54, s55")
    V(f"v_lshl_add_u32 {vVd}, {t2}, 12, {t0}")
    V(f"v_add_u32 {vVd}, s54, {vVd}")
    A(f"s_add_u32 s54, {sKm}, {3 * SLOT}")
    V(f"v_lshl_add_u32 {vQw}, {t2}, 9, {t0}")
    V(f"v_add_u32 {vQw}, s54, {vQw}")
    V(f"v_add_u32 {vQw2}, {4 * SLOT}, {vQw}")
    A(f"s_sub_u32 s54, {sKm}, {KRING - PXA}")
    V(f"v_mul_u32_u24 {vQwx}, 2080, {t2}")
    V(f"v_add3_u32 {vQwx}, {vQwx}, {t0}, s54")
    A(f"s_mul_i32 s54, {sB}, {4 * 2080}")
    A(f"s_lshl_b32 s55, {sA}, 10")
    A("s_add_u32 s54, s54, s55")
    A(f"s_add_u32 {sVm}, s54, {VRING}")
    A(f"s_mul_i32 {sPm}, {sW}, 2560")
    V(f"v_and_b32 {t0}, 15, v0")
    V(f"v_bfe_u32 {t1}, v0, 4, 1")
    V(f"v_lshlrev_b32 {t3}, 5, {t1}")
    V(f"v_lshl_add_u32 {t3}, {t2}, 4, {t3}")
    V(f"v_add_u32 {t4}, 4, {t0}")
    V(f"v_bfe_u32 {vKr0}, {t4}, 3, 1")
    V(f"v_and_b32 {t4}, 7, {t4}")
    V(f"v_lshl_add_u32 {vKr0}, {t4}, 1, {vKr0}")
    V(f"v_mul_u32_u24 {vKr0}, 1040, {vKr0}")
    V(f"v_add_u32 {vKr0}, {vKr0}, {t3}")
    V(f"v_add_u32 {vQrx}, {PXA}, {vKr0}")
    V(f"v_add_u32 {vKr0}, {KRING}, {vKr0}")
    A(f"s_lshl_b32 s54, {sB}, 9")
    V(f"v_add_u32 {vKr}, s54, {vKr0}")
    A(f"s_lshl_b32 s54, {sA}, 9")
    A(f"s_add_u32 s54, s54, {3 * SLOT}")
    V(f"v_add_u32 {vQr}, s54, {vKr0}")
    V(f"v_add_u32 {vQr2}, {4 * SLOT}, {vQr}")
    A(f"s_lshl_b32 s54, {sB}, 9")
    A("s_sub_u32 s54, 512, s54")
    V(f"v_add_u32 {vKr0}, s54, {vKr0}")
    V(f"v_bfe_u32 {t4}, v0, 2, 3")
    V(f"v_mul_u32_u24 {vV0}, 2080, {t4}")
    V(f"v_lshl_add_u32 {vV0}, {t2}, 9, {vV0}")
    V(f"v_and_b32 {t4}, 3, v0")
    V(f"v_lshl_add_u32 {vV0}, {t4}, 3, {vV0}")
    A(f"s_mul_i32 s54, {sB}, {256 + 1024}")
    A(f"s_add_u32 s54, s54, {VRING}")
    A(f"s_mul_i32 s55, {sB}, {1024 - 256}")
    A(f"s_sub_u32 s55, {VRING + 1024}, s55")
    V(f"v_add_u32 {vV1}, s55, {vV0}")
    V(f"v_add_u32 {vV0}, s54, {vV0}")
    V(f"v_and_b32 {t4}, 63, v0")
    V(f"v_lshlrev_b32 {t4}, 2, {t4}")
    A(f"s_mul_i32 s54, {sB}, 2560")
    A("s_sub_u32 s55, 2560, s54")
    V(f"v_add_u32 {vPr2}, s54, {t4}")
    V(f"v_add_u32 {vPr}, s55, {t4}")
    if OPT["pf31"]:
        A("s_lshr_b32 s54, s2, 3")
        A("s_and_b32 s54, s54, 3")
        A("s_lshl_b32 s54, s54, 2")
        A(f"s_add_u32 s54, s54, {sW}")
        A("s_lshl_b32 s54, s54, 10")
        A(f"s_add_u32 s37, s54, {31 * 16384}")
    A(f"s_mul_i32 s55, {sW}, 2304")
    A(f"s_add_u32 s55, s55, {KRING + SLOT}")
    V(f"v_bfe_u32 {t4}, v0, 4, 2")
    V(f"v_mul_u32_u24 {vEw}, 144, {t0}")
    V(f"v_lshl_add_u32 {vEw}, {t4}, 3, {vEw}")
    V(f"v_add_u32 {vEw}, s55, {vEw}")
    V(f"v_bfe_u32 {t4}, v0, 3, 3")
    V(f"v_and_b32 {t1}, 7, v0")
    V(f"v_lshlrev_b32 {t1}, 4, {t1}")
    V(f"v_mul_u32_u24 {vEr}, 144, {t4}")
    V(f"v_add3_u32 {vEr}, {vEr}, {t1}, s55")
    A(f"s_lshl_b32 s54, {sA}, 15")
    A(f"s_lshl_b32 s55, {sB}, 8")
    A("s_add_u32 s55, s55, s54")
    A("s_sub_u32 s51, 65536, s54")
    V(f"v_lshl_add_u32 {vO}, {t4}, 9, {t1}")
    V(f"v_add_u32 {vO}, s55, {vO}")
    for t in range(5):
        A(f"s_add_u32 {sT8[t]}, {sT[t]}, 4096" if t else f"s_mov_b32 {sT8[0]}, 4096")
    c = struct.unpack("<I", struct.pack("<f", math.log2(math.e) / 16.0))[0]
    A(f"s_mov_b32 s40, {c:#x}")
    A(f"s_mov_b32 s41, {c:#x}")
    A(f"s_mov_b32 {sMASK}, 0xffff0000")
    for t in range(5):
        V(f"v_mov_b32 v{vL[t]}, 0")
    for t in range(4):
        for i in range(8):
            V(f"v_mov_b64 {R('v', OO + 32 * t + 16 + 2 * i, 2)}, 0")
    for i in range(16):
        V(f"v_accvgpr_write_b32 a{AX + 16 + i}, 0")
    if OPT["stamps"] == 4:
        o += stamp(10)
    A(f"s_cmp_eq_u32 {sA}, 1")
    A("s_cbranch_scc1 L_role1")
    o2 = []
    o, keep = o2, o
    src_offsets()
    return keep, o2


def scale4(src):
    o = []
    T = SCT
    for i in range(4):
        o.append(valu(f"v_lshlrev_b32 v{T + 2 * i}, 16, v{src + i}"))
        o.append(valu(f"v_and_b32 v{T + 2 * i + 1}, {sMASK}, v{src + i}"))
    for i in range(4):
        o.append(valu(f"v_pk_mul_f32 {R('v', T + 2 * i, 2)}, {R('v', T + 2 * i, 2)}, {sSC}"))
    for i in range(4):
        o.append(valu(f"v_cvt_pk_bf16_f32 v{src + i}, v{T + 2 * i}, v{T + 2 * i + 1}"))
    return o


QST = {0: (("V", 1), vQw, vQr, 2 * SLOT), 1: (("K", 3), vQw, vQr, 0), 2: (("V", 2), vQw, vQr, 3 * SLOT), 3: (("V", 3), vQw2, vQr2, 0)}


def stage_write(k, i):
    if k == 4:
        return ds_write("ds_write_b128", vQwx, R("v", RAWX + 4 * i, 4), f"offset:{4160 * i}", QXTAG)
    reg, wb, rb, off = QST[k]
    return ds_write("ds_write_b128", wb, R("v", RAW(k, i), 4), f"offset:{off + 2080 * i}", (reg, -1))


def stage_load(k, i, feed):
    src = RAWX + 4 * i if k == 4 else RAW(k, i)
    return [wait(vm=[("Q", k, i)])] + feed(("Q", k, i)) + scale4(src) + [stage_write(k, i)]


def stage_in(k, feed):
    o = []
    for i in range(2 if k == 4 else 4):
        o += stage_load(k, i, feed)
    return o


def stage_read(k):
    if k == 4:
        return [ds_read("ds_read_b128", Qf(4, s), vQrx, f"offset:{64 * s}", QXTAG) for s in range(8)]
    reg, wb, rb, off = QST[k]
    return [ds_read("ds_read_b128", Qf(k, s), rb, f"offset:{off + 64 * s}", (reg, -1)) for s in range(8)]


def stage_compute(t):
    mf, m1, m2, cm, sb, ex, cv, ad = first_tile_instrs(t)
    o = mf + m1 + m2 + cm + sb + ex + cv
    if t == 4:
        o += [msetter(), ad[0]] + [pwrite(0, t, h) for h in range(2)] + ad[1:]
    else:
        o += ad
    return o


def prologue(a):
    o = [label(f"L_role{a}")] + aux_setup(a) + [salu(f"s_mov_b32 {sCNT}, {(24 if OPT['early'] else 28) // 4}")]
    seq = {0: "Q1 Q2 Q3 K1 V0 K2 V1 K3", 1: "Q1 K1 Q2 V0 Q3 K2 V1 K3", 2: "Q1 Q2 K1 Q3 V0 K2 V1 K3", 3: "K1 Q1 V0 Q2 K2 Q3 V1 K3", 4: "Q1 Q2 K1 V0 Q3 K2 V1 K3", 5: "K1 Q1 Q2 V0 Q3 K2 V1 K3"}[OPT["order"]]
    full = [("K", 0, i) for i in range(4)] + [("Q", 4, i) for i in range(2)] + [("Q", 0, i) for i in range(4)]
    order = [(x[0], int(x[1]), i) for x in seq.split() for i in range(4)]
    if OPT["split"]:
        n = 0
        while n + 8 <= len(order):
            if order[n][0] != "Q" and order[n + 4][0] == "Q":
                sp = OPT["split"]
                order[n:n + 8] = order[n + 4:n + 4 + sp] + order[n:n + 4] + order[n + 4 + sp:n + 8]
                n += 4
            n += 4
    full += order

    def feed(landed):
        r = []
        stage = -1 if landed[1] == 4 else landed[1]
        while order and full.index(order[0]) <= full.index(landed) + OPT["win"]:
            x = order[0]
            if (x[:2] == ("V", 1) and stage < 2) or (x[:2] == ("K", 3) and stage < 3) or (landed == ("Q", 3, 3) and not OPT["lastfeed"]):
                break
            order.pop(0)
            r += qload(x[1], x[2]) if x[0] == "Q" else dma_piece(*x)
        return r
    o += stage_in(4, feed)
    o.append(wait(vm=[("K", 0)], lg="all"))
    o.append(barrier())
    o += stamp(1)
    for s in range(8):
        o.append(kread(0, s, vKr, R("a", AVF + 4 * s, 4)))
    if a == 0:
        o += stage_read(4)
    for s in range(8):
        o.append(kread(0, s, vKr0, R("a", ASP + 4 * s, 4)))
    ps = iter([3, 4, 5, 6, 7, 8, 9, 10, 11, 12, 13, 14])
    pst = lambda: stamp(next(ps), 3)
    o += pst()
    o += stage_in(0, feed)
    for k in range(4):
        o += pst()
        o.append(wait(vm={OPT["k1stage"]: [("K", 1)], 3: [("V", 0)]}.get(k), lg="all"))
        o.append(barrier())
        if k < 3:
            o += pst() + pst()
            o += stage_block(a, k, feed)
    o += stamp(2)
    return o, order


def aux_setup(a):
    o = []
    if OPT["aux"]:
        o.append(salu("s_lshr_b32 s54, s2, 3"))
        o.append(salu("s_lshl_b32 s55, s54, 7"))
        o.append(valu(f"v_lshl_add_u32 {vAuxC}, v0, 12, s55"))
        piece = (32 - OPT["auxt0"]) * 16384 // OPT["auxn"]
        before = len([j for j in range(1, OPT["auxend"] + 1) if (j - OPT["auxend"]) % OPT["auxper"] == 0]) - OPT["auxn"]
        o.append(salu("s_and_b32 s54, s54, 3"))
        o.append(salu(f"s_mul_i32 s54, s54, {piece // 4}"))
        o.append(salu(f"s_add_u32 s54, s54, {(a * piece // 8 - before * piece) & 0xffffffff:#x}"))
        o.append(valu(f"v_and_b32 {vAuxT}, 63, v0"))
        o.append(valu(f"v_cmp_le_u32 vcc, {piece // 1024}, {vAuxT}"))
        o.append(valu(f"v_lshl_add_u32 {vAuxT}, {vAuxT}, 7, s54"))
        o.append(valu(f"v_cndmask_b32 {vAuxT}, {vAuxT}, 2.0, vcc"))
        o.append(salu(f"s_cmp_eq_u32 {sB}, 0"))
        o.append(salu("s_cselect_b32 s88, s16, s20"))
        o.append(salu("s_cselect_b32 s89, s17, s21"))
        o.append(salu(f"s_add_u32 s88, s88, {OPT['auxt0'] * 16384}"))
        o.append(salu("s_addc_u32 s89, s89, 0"))
        o.append(salu(f"s_mov_b32 s90, {(32 - OPT['auxt0']) * 16384}"))
        o.append(salu("s_mov_b32 s91, 0x20000"))
        if OPT["holes"]:
            o.append(salu("s_mov_b64 s[84:85], s[88:89]"))
            o.append(salu("s_mov_b32 s86, 0"))
            o.append(salu("s_mov_b32 s87, 0x20000"))
    return o


def finish(a):
    o = stamp(6)
    if OPT.get("amp"):
        lo, hi, base = OPT["amp"] // 100, OPT["amp"] % 100, OPT["ampbase"]
        o.append(raw("s_waitcnt vmcnt(0)"))
        o += stamp(7)
        o.append(raw(f"s_waitcnt lgkmcnt(0)\ns_and_b32 s95, s2, {OPT.get('ampmask', 255)}\ns_cmp_lg_u32 s95, {OPT.get('ampwg', 40)}\ns_cbranch_scc1 L_end\ns_sub_u32 s94, s{60 + 2 * hi}, s{60 + 2 * lo}\ns_sub_u32 s94, s94, {base}\ns_max_i32 s94, s94, 0\ns_mul_i32 s94, s94, {OPT.get('amprt', 1)}\ns_min_u32 s94, s94, 20000\ns_add_u32 s94, s94, 6000"))
        o.append(raw(f"L_amp{a}:\ns_memrealtime s[92:93]\ns_waitcnt lgkmcnt(0)\ns_sub_u32 s92, s92, s58\ns_cmp_lt_u32 s92, s94\ns_cbranch_scc1 L_amp{a}"))
    elif OPT["stamps"]:
        o.append(raw("s_waitcnt vmcnt(0)"))
        o += stamp(7)
        o.append(raw("s_memrealtime s[92:93]"))
        o.append(raw("s_waitcnt lgkmcnt(0)"))
        o.append(raw("s_mov_b32 s96, s56\ns_and_b32 s97, s57, 0xffff\ns_mov_b32 s98, 0x100000\ns_mov_b32 s99, 0x20000"))
        o.append(raw(f"s_lshl_b32 s94, s2, 2\ns_add_u32 s94, s94, {sW}\ns_lshl_b32 s94, s94, 7"))
        for i in range(16):
            o.append(raw(f"v_mov_b32 v{64 + i}, s{60 + 2 * i}"))
        o.append(raw("v_mov_b32 v80, s58\nv_mov_b32 v81, s92\nv_mov_b32 v82, 0\nv_mov_b32 v83, 0\nv_mov_b32 v84, 0"))
        if OPT["prof"]:
            o.append(raw("v_lshlrev_b32 v85, 2, v0\ns_lshl_b32 s95, s2, 10\ns_add_u32 s95, s95, 0x40000\nbuffer_store_dword v127, v85, s[96:99], s95 offen"))
        o.append(raw("s_mov_b64 exec, 1"))
        for i in range(5):
            o.append(raw(f"buffer_store_dwordx4 v[{64 + 4 * i}:{67 + 4 * i}], v84, s[96:99], s94 offen offset:{16 * i}"))
    o.append(raw("s_endpgm"))
    return o


def fallback(a, redo):
    NQ = 5 - a
    M, AD = PP, PP + 8
    o = [label(f"L_fallback{a}")]
    o.append(raw("s_waitcnt vmcnt(0) lgkmcnt(0)"))
    o.append(nop(7))
    o.append(salu("s_mov_b32 s18, 524288"))
    o.append(valu(f"v_and_b32 v{AD}, 15, v0"))
    o.append(valu(f"v_lshlrev_b32 v{AD}, 9, v{AD}"))
    o.append(valu(f"v_bfe_u32 v{AD + 1}, v0, 4, 1"))
    o.append(valu(f"v_lshl_add_u32 v{AD}, v{AD + 1}, 5, v{AD}"))
    o.append(valu(f"v_bfe_u32 v{AD + 1}, v0, 5, 1"))
    o.append(valu(f"v_lshl_add_u32 v{AD}, v{AD + 1}, 4, v{AD}"))
    for t in range(NQ):
        o.append(valu(f"v_mov_b32 v{M + t}, 0xff800000"))
    o.append(salu("s_mov_b32 s54, 0"))
    o.append(label(f"L_fbloop{a}"))
    for s in range(8):
        o.append(vload("buffer_load_dwordx4", Kf(s), f"v{AD}", sK, "s54", 64 * s))
    for t in range(NQ):
        for s in range(8):
            o.append(mfma(S(t), Kf(s), Qf(t, s), "0" if s == 0 else S(t)))
    for t in range(NQ):
        s0 = SS + 4 * t
        o.append(valu(f"v_max3_f32 v{M + t}, v{s0}, v{s0 + 1}, v{M + t}"))
        o.append(valu(f"v_max3_f32 v{M + t}, v{s0 + 2}, v{s0 + 3}, v{M + t}"))
    o.append(salu("s_add_u32 s54, s54, 8192"))
    o.append(salu("s_cmp_lt_u32 s54, 524288"))
    o.append(salu(f"s_cbranch_scc1 L_fbloop{a}"))
    for t in range(NQ):
        o += xlane("v_max_f32", M + t, AD + 1)
        for r in range(4):
            o.append(valu(f"v_sub_f32 v{NEGM + 4 * t + r}, 0, v{M + t}"))
    o.append(salu(f"s_mov_b64 {sKEEP}, -1"))
    o.append(salu(f"s_mov_b32 {sTHR}, -1"))
    o += redo
    o.append(barrier())
    o.append(salu("s_branch L_restart"))
    return o


def ablate(lines, lo, hi):
    ab = OPT["abl"]
    for n in range(lo, hi):
        l = lines[n]
        if (ab & 1 and l.endswith(" lds")) or (ab & 2 and l == "s_barrier") or (ab & 4 and l.startswith("ds_write")) or (ab & 8 and l.startswith("ds_read2")) \
           or (ab & 16 and l.startswith("ds_read_b64_tr")) or (ab & 32 and l.startswith("ds_read_b128")) or (ab & 64 and l.startswith("s_waitcnt")) \
           or (ab & 4096 and l.startswith("v_add_f32")):
            lines[n] = "; ablated"
        if ab & 256 and l.startswith("s_waitcnt vmcnt"):
            lines[n] = re.sub(r"vmcnt\(\d+\) ", "", l)


def build():
    j0, j1 = 1, (25 if OPT["early"] else 29)
    ent, redo = entry()
    text, evs = [], []
    for a in (0, 1):
        pro, rest = prologue(a)
        tr = list(ent) + [raw(";;ROLE")] + pro + [raw(";;IV 0")] + start_block(a, rest) + stamp(3)
        for j in range(1, 30):
            tr.append(raw(f";;IV {j}"))
            tr += interval(j, a, f"L_loop{a}" if (j < j1 and (j - j0) % 4 == 3) else None)
        tr.append(raw(";;IV 30"))
        if OPT["prof"]:
            tr.append(raw("s_nop 4\n    v_mov_b32 v1, v21"))
        tr += stamp(4) + final_block(a)
        if OPT["prof"]:
            tr.append(raw("v_mov_b32 v127, v1"))
        tr += finish(a)
        out, ev, ins = resolve(tr)
        evs += ev
        lines = [x.text for x in out]
        k = lines.index(";;ROLE")
        if a == 0:
            text += lines[:k]
        idx = {j: lines.index(f";;IV {j}") for j in range(31)}
        for pos, w, c in ins:
            if idx[0] < pos and (OPT["show"] >= 0 or idx[1] < pos < idx[30]):
                print(f"; auto-inserted in role {a} @{pos - idx[0]}: {w} before {c}", file=sys.stderr)
        seg = lambda j: lines[idx[j] + 1: idx[j + 1]]
        for j in range(j0 + 4, j1):
            jb = j0 + (j - j0) % 4
            assert len(seg(j)) == len(seg(jb)), f"loop body not periodic at {j} role {a}"
            for n, (x, y) in enumerate(zip(seg(j), seg(jb))):
                if x != y:
                    assert re.sub(r"\d+", "", x) == re.sub(r"\d+", "", y) and x.startswith("s_waitcnt"), (j, a, x, y)
                    it = iter(min(int(p), int(q)) for p, q in zip(re.findall(r"\d+", x), re.findall(r"\d+", y)))
                    lines[idx[jb] + 1 + n] = re.sub(r"\d+", lambda m: str(next(it)), x)
        if OPT["abl"]:
            ablate(lines, idx[1], idx[30])
        text += lines[k + 1: idx[j0]]
        text.append(f".p2align {OPT['lalign']}")
        text.append(f"L_loop{a}:")
        text += lines[idx[j0]: idx[j0 + 4]]
        text += lines[idx[j1]:]
        fb, _, _ = resolve(fallback(a, redo))
        text += [x.text for x in fb]
    assert check_lds(evs) == 0
    hdr = open("header.txt").read()
    body = "\n".join(("" if l.endswith(":") or l.startswith(".") else "    ") + l.replace(";;IV", "; interval") for l in text)
    return f"""{hdr}; @launch grid=(256,1,1) block=(256,1,1) lds={LDS_BYTES}
.amdgcn_target "amdgcn-amd-amdhsa--gfx950"
.text
.globl {KN}
.p2align 8
.type {KN},@function
{KN}:
{body}
L_end:
    s_endpgm
.section .rodata,"a"
.p2align 6
.amdhsa_kernel {KN}
  .amdhsa_next_free_vgpr 512
  .amdhsa_next_free_sgpr 102
  .amdhsa_accum_offset 256
  .amdhsa_group_segment_fixed_size 0
  .amdhsa_kernarg_size 48
  .amdhsa_user_sgpr_count 2
  .amdhsa_user_sgpr_kernarg_segment_ptr 1
  .amdhsa_system_sgpr_workgroup_id_x 1
.end_amdhsa_kernel
"""


if __name__ == "__main__":
    for kv in sys.argv[1:]:
        k, v = kv.split("=", 1)
        if k.startswith("pol"):
            OPT[k] = "".join(" " + x for x in v.split("+") if x and x != "d")
        else:
            OPT[k] = int(v)
    print(build())
```

```python
import sys, struct, math, re
from asmlib import *
from sched import Block

KN = "standalone__gqa_softmax__near_ridge_kernel"
OPT = dict(abl=0, pol_kv="", pol_q="", pol_o=" sc0 sc1", stamps=0, prof=0, show=-1, thr=30,
           dma0=1, dmastep=8, dmastag=4, klead=3, walign=0, wq=1, feed0=4, feedl=1, prefeed=3,
           bar0=26, bara=31, barb=71, lalign=3, lazy=16, order=1, win=11, aux=1, early=3, sdma0=1, sdmas=3, sdman=8, lastfeed=0, k1stage=2, touch=0, nunder=0, prewait=0, ulo=2, ulo2=8, split=0, mergetail=1, rwin=1, pf31=0, holes=0, holew=1, auxper=2, auxn=4, auxend=24, auxt0=28, nfast=3, nin=2)

PXA = 10240
KRING = 3 * PXA
SLOT = 16640
VRING = KRING + 4 * SLOT
LDS_BYTES = VRING + 4 * SLOT

sQ, sK, sV, sO, sC = "s[12:15]", "s[16:19]", "s[20:23]", "s[24:27]", "s[44:47]"
sW, sA, sB, sCNT, sKo, sVo, sKm, sVm, sPm, sMASK = "s28", "s29", "s30", "s31", "s32", "s33", "s34", "s35", "s36", "s39"
sSC, sKEEP = "s[40:41]", "s[42:43]"
sT = ["0", "s48", "s49", "s50", "s51"]
sT8 = ["s4", "s5", "s6", "s7", "s8"]
sX, sTHR = "s38", "s52"
vKr, vV0, vV1, vKd, vVd, vPr, vPr2 = "v1", "v2", "v3", "v4", "v5", "v6", "v7"
vL = [8, 9, 10, 11, 12]
vO, vEw, vEr = "v13", "v22", "v23"
PXT = 14
TMP = 16
vAuxC, vAuxT, vAuxD, vAuxD2, sP = "v18", "v19", "v20", "v17", "s[88:91]"
NEGM, SS, PP, OO = 24, 44, 64, 128
SCT = 104
vQl, vQw, vQw2, vQwx, vQr, vQr2, vQrx, vKr0 = (f"v{96 + i}" for i in range(8))
vQlx = "v21"
RAWX, SPRE0 = 112, 120
LP, FLG = 24, 18
RL = lambda t: 30 + 2 * t
QXTAG = [(("P", 1, t), -1) for t in range(5)] + [(("L", t), -1) for t in range(6)]
AQ, AX, AKF, AVF, ASP = 0, 128, 160, 192, 224


def Qf(t, s):
    return R("a", (AQ + 32 * t if t < 4 else AX) + 4 * s, 4)


def Kf(s):
    return R("a", AKF + 4 * s, 4)


def S(t):
    return R("v", SS + 4 * t, 4)


def Ng(t):
    return R("v", NEGM + 4 * t, 4)


def Pown(j, t):
    return PP + 16 * (j % 4) + 4 * t if t < 4 else PXT


def Pop(j, t):
    return R("v", PP + 16 * (j % 4) + 4 * t, 4) if t < 4 else R("a", ASP + 4 * (j % 4), 4)


def O(t, dt):
    return R("v", OO + 32 * t + 4 * dt, 4) if t < 4 else R("a", AX + 4 * dt, 4)


def RAW(k, i):
    return OO + 32 * k + 4 * i


def where(kind, tile):
    if OPT["early"] and kind == "V" and tile >= 30:
        return (("K", 0), 32) if tile == 30 else (("V", 2), 31)
    return ((kind, tile % 4), tile)


def tdma(kind, tile, i):
    reg = where(kind, tile)
    off = reg[0][1] * SLOT + i * 1568 - (4 * SLOT if reg[0][0] != kind else 0)
    m, v, srd, so = (sKm, vKd, sK, sKo) if kind == "K" else (sVm, vVd, sV, sVo)
    return (salu(f"s_add_u32 m0, {m}, {off}" if off >= 0 else f"s_sub_u32 m0, {m}, {-off}"),
            dma(v, srd, so, 512 * i, OPT["pol_kv"], reg, (kind, tile)))


def bump(kind):
    so = sKo if kind == "K" else sVo
    return salu(f"s_add_u32 {so}, {so}, 16384")


def dma_piece(kind, tile, i):
    return list(tdma(kind, tile, i)) + ([bump(kind)] if i == 3 else [])


def kread(tile, s, addr=vKr, dst=None):
    slot = tile % 4
    return ds_read("ds_read_b128", dst or Kf(s), addr, f"offset:{slot * SLOT + 64 * s}", (("K", slot), tile))


def vread(tile, dt, u, frag):
    reg = where("V", tile)
    base = (vV0, vV1) if reg[0][0] == "V" else (vKd, vVd)
    return ds_read("ds_read_b64_tr_b16", R("a", frag + 2 * u, 2), base[u], f"offset:{reg[0][1] * SLOT + 32 * dt}", reg)


def pwrite(j, t, h):
    par = j % 2
    return ds_write("ds_write_addtid_b32", None, f"v{Pown(j, t) + h}", f"offset:{par * PXA + (2 * t + h) * 256}", (("P", par, t), j))


def preads(j, a):
    par = j % 2
    o = []
    for t in range(4):
        n = par * 40 + a * 20 + 2 * t
        o.append((t, ds_read("ds_read2st64_b32", R("v", Pown(j, t) + 2, 2), vPr, f"offset0:{n} offset1:{n + 1}", (("P", par, t), j))))
    if a == 1:
        n = par * 40 + 8
        for u in range(2):
            o.append((4, ds_read("ds_read2st64_b32", R("a", ASP + 4 * (j % 4) + 2 * u, 2), (vPr2, vPr)[u], f"offset0:{n} offset1:{n + 1}", (("P", par, 4), j))))
    return o


def msetter():
    return salu(f"s_mov_b32 m0, {sPm}")


def stamp(idx, mode=0):
    if (OPT["stamps"] == 3) != (mode == 3) and idx > 2:
        return []
    return [raw(f"{'s_memrealtime' if OPT.get('amprt') else 's_memtime'} s[{60 + 2 * idx}:{61 + 2 * idx}]")] if OPT["stamps"] else []


def xlane(op, reg, tmp):
    o = []
    for sw in ("v_permlane32_swap_b32", "v_permlane16_swap_b32"):
        o.append(valu(f"v_mov_b32 v{tmp}, v{reg}"))
        o.append(valu(f"{sw} v{tmp}, v{reg}"))
        o.append(valu(f"{op} v{reg}, v{tmp}, v{reg}"))
    return o


def chain_ops(b, seq, lo, dl, first_deps=(), hard=None):
    prev = None
    for n, ins in enumerate(seq):
        deps = list(first_deps) if prev is None else [(prev, (1 if b.chainy else 2) if ins.kind == "perm" else (0 if b.chainy and prev.cls == "valu" else 1))]
        prev = b.op(ins, "exp" if ins.kind == "trans" else "valu", lo, dl + n, deps, hard=hard)
    return prev


def add_qk(b, a, j):
    ends = []
    for t in range(5 - a):
        for s in range(8):
            k = b.mfma(mfma(S(t), Kf(s), Qf(t, s), Ng(t) if s == 0 else S(t)))
        ends.append(k)
    return ends


def add_pv(b, a, tiles, h, frags, lo, zero=False, tmajor=False, lastuse=None, have=(), ts=None):
    NP = 4 + a
    order = [(d, t) for t in (range(NP) if tmajor is True else tmajor) for d in range(4)] if tmajor else \
            [(d, t) for d in range(4) for t in (range(NP) if d % 2 == 0 else reversed(range(NP)))]
    if ts is not None:
        order = [x for x in order if x[1] in ts]
    first, done, pfirst = {}, {}, {}
    war = dict(lastuse) if lastuse is not None else {}
    for d, t in order:
        for n, j in enumerate(tiles):
            k = b.mfma(mfma(O(t, 4 * h + d), R("a", frags[d][n], 4), Pop(j, t), "0" if zero and n == 0 else O(t, 4 * h + d)))
            first.setdefault((d, n), k)
            pfirst.setdefault((j, t), k)
            done[(t, 4 * h + d)] = k
            if lastuse is not None:
                lastuse[frags[d][n]] = k
    for d in range(4):
        for n, j in enumerate(tiles):
            for u in range(2 if j not in have else 0):
                f = first[(d, n)]
                b.op(vread(j, 4 * h + d, u, frags[d][n]), "ds", max(lo[j], war.get(frags[d][n], 0)), f - 10 + u, hard=f - 3)
    return done, pfirst


def add_softmax(b, a, j, ends, pub, defer, adds_by=None, soft=False, sub=None):
    ends = dict(enumerate(ends)) if isinstance(ends, list) else ends
    wa = OPT["walign"]
    H = (lambda x: None) if soft else (lambda x: x)
    adds = {}
    for n, t in enumerate(ends):
        base = ends[t] + 4
        late = pub - 7 - 5 * (len(ends) - 1 - n)
        ex = []
        for r in range(4):
            dl = (base - 300 if wa else min(base + 10, late - 8)) + r
            dep = []
            if sub and t in sub:
                dep = [b.op(valu(f"v_add_f32 v{SS + 4 * t + r}, v{SS + 4 * t + r}, v{NEGM + 4 * t}"), "valu", base + 1, dl - 2, [sub[t]])]
            ex.append(b.op(valu(f"v_exp_f32 v{SS + 4 * t + r}, v{SS + 4 * t + r}"), "exp", base, dl, dep, hard=H(pub - 6)))
        for h in range(2):
            c = b.op(valu(f"v_cvt_pk_bf16_f32 v{Pown(j, t) + h}, v{SS + 4 * t + 2 * h}, v{SS + 4 * t + 2 * h + 1}"), "valu", 0, (base - 50 if wa else late - 3) + h, ex[2 * h:2 * h + 2], hard=H(pub - 4))
            b.op(pwrite(j, t, h), "ds", base + 6 + h if wa else 0, (base - 200 if wa else late - 1) + h, [c], hard=H(pub - 3), m0="p", setter=msetter())
        if t not in defer:
            for r in range(4):
                adds[t] = b.op(valu(f"v_add_f32 v{vL[t]}, v{SS + 4 * t + r}, v{vL[t]}"), "valu", 0, (pub if adds_by is None else min(base + 12, adds_by)) + r, [ex[r]] + ([(adds[t], 0)] if t in adds else []),
                               hard=H(pub if adds_by is None else adds_by))
    return adds


def add_deferred(b, a, ends):
    for t in deferred(a):
        for r in range(4):
            b.op(valu(f"v_add_f32 v{vL[t]}, v{SS + 4 * t + r}, v{vL[t]}"), "valu", 0, ends[t] - 16 + r, hard=ends[t] - 8)


def deferred(a):
    return [3 - a, 4 - a]


def add_dma(b, a, pieces, g0, step, G, lo=None):
    dops = []
    for n, (kind, tile, i) in enumerate(pieces):
        st, d = tdma(kind, tile, i)
        e = int(g0 + step * n)
        if lo and (kind, tile) in lo:
            e = max(e, lo[(kind, tile)])
        o = b.op(d, "dma", e, e - 100, [(dops[-1][0], 2)] if dops else [], hard=G - 3, m0=("d", n), setter=st)
        dops.append((o, kind, tile, i))
    for o, kind, tile, i in dops:
        if i == 3:
            nxt = [x for x, k, tl, _ in dops if k == kind and tl > tile]
            b.scalar(bump(kind), (lambda o=o: o.gap + 1), (lambda nxt=nxt: nxt[0].gap - 1) if nxt else G - 4)
    return dops


def prof_hooks(out):
    if OPT["prof"]:
        k = max(n for n, x in enumerate(out) if x.kind == "barrier")
        out.insert(k, raw("v_writelane_b32 v21, s100, m0"))
        out.insert(k - 1, raw("s_mov_b32 m0, s3"))
        mk = [n for n, x in enumerate(out[:k]) if x.kind == "mfma"]
        out.insert(mk[22] + 1, raw("s_memtime s[100:101]" if OPT["prof"] == 1 else "s_memrealtime s[100:101]"))
        out.insert(mk[2] + 1, raw("s_add_u32 s3, s3, 1"))
    return out


TMPL = {
    1: ["RDRRRRRR RRDRRRdE E.EDEWEE WEEDEWEW EEWEDEWE EWWEED.E EWW..RDR RRRRRRRD RRRRdRRR",
        "RRRRRDRR RRRRRRDR EE.EEWED EWEEWEEW .DEEWEEW E.DEW.W. d.D..RRR RRRDRRRR RdRDRRRR"],
    2: ["RDRRRRRR RRDRRRdE E.EDEWEE WEEDEWEW EEWEDEWE EWWEED.E EWW.RRDR RRRRRRRD RRRRd.RR",
        "RRRRRDRR RRRRRRDR EE.EEWED EWEEWEEW .DEEWEEW E.DEW.W. d.DRRRRR RRRDRRRR RdRD..RR"],
    3: ["RDRRRRRR RRDRRREE EE.DEWWE EE.DEWWE EE.DEWWE EE.EWWED EE.WW.DR RRRRRRRD RRRRRRRR",
        "RRRRRDRR RRRRRRDR EEEE.WWE DEEE.WWE EDEE.WWE E.DEE.WW d.D.d.RR RRRDRRRR RRRDRRRR"],
}
FOLD = [AVF + 8 * d for d in range(4)]
FNEW = [AVF + 8 * d + 4 for d in range(4)]


def add_old_reads(b, j, lu, lo, G):
    for d in range(4):
        for u in range(2):
            b.op(vread(j, 4 * ((j + 1) % 2) + d, u, FOLD[d]), "ds", max(lo, lu.get(FOLD[d], 0)), G + 2 * d + u, hard=G - 1)


def interval(j, a, loop_end=None):
    b = Block(f"interval {j} role {a}", wq=OPT["wq"] if OPT["walign"] else 0, wprio=bool(OPT["walign"]))
    ends = add_qk(b, a, j + 1)
    lu = {}
    if j <= 28:
        done, pfirst = add_pv(b, a, [j - 1, j], j % 2, [[FOLD[d], FNEW[d]] for d in range(4)], {j: 0}, lastuse=lu, have=[j - 1])
        b.carry = [f"a{x + i}" for x in FOLD for i in range(4)]
    else:
        done, pfirst = add_pv(b, a, [j], 0, [[AVF + 4 * d] for d in range(4)], {j: 0})
    G = len(b.mf)
    if j <= 27:
        add_old_reads(b, j, lu, 0, G)
    for t, ins in preads(j, a):
        b.op(ins, "ds", 0, pfirst[(j, t)] - 10, hard=pfirst[(j, t)] - 3)
    for s in range(8):
        b.op(kread(j + 2, s), "ds", ends[-1] - 7 + s, G - 18 + s, hard=G - 3)
    kl = OPT["klead"]
    T = lambda kind, tile, r=range(4): [(kind, tile, i) for i in r]
    pieces = T("V", j + 2) + (T("K", j + 2 + kl) if j <= 28 else [])
    step = OPT["dmastep"]
    if OPT["early"] and j >= 25:
        if kl == 3:
            pieces = {25: T("V", 27) + T("K", 30), 26: T("V", 28) + T("K", 31), 27: T("V", 29) + T("V", 30), 28: T("V", 31), 29: []}[j]
        elif OPT["early"] == 1:
            pieces = {25: T("V", 27) + T("K", 29) + T("K", 30, [0]), 26: T("V", 28) + T("K", 30, [1, 2, 3]) + T("K", 31, [0, 1]),
                      27: T("V", 29) + T("K", 31, [2, 3]) + T("V", 30), 28: T("V", 31), 29: []}[j]
        elif OPT["early"] == 2:
            pieces = {25: T("V", 27) + T("K", 29), 26: T("V", 28) + T("K", 30), 27: T("V", 29) + T("K", 31), 28: T("V", 30) + T("V", 31), 29: []}[j]
        else:
            pieces = {25: T("V", 27) + T("K", 29) + T("K", 30, [0]), 26: T("V", 28) + T("K", 30, [1, 2, 3]) + T("K", 31, [0, 1]),
                      27: T("V", 29) + T("K", 31, [2, 3]) + T("V", 30, [0, 1, 2]), 28: T("V", 30, [3]) + T("V", 31), 29: []}[j]
        step = {25: 7, 26: 7, 27: 6, 28: 4, 29: 4}[j]
    dops = add_dma(b, a, pieces, OPT["dma0"] + a * min(OPT["dmastag"], step // 2), step, G)
    if OPT["early"] and j == 29:
        b.op(valu(f"v_subrev_u32 {vKd}, {4 * SLOT}, {vV0}"), "valu", 0, G, hard=G - 1)
        b.op(valu(f"v_subrev_u32 {vVd}, {4 * SLOT}, {vV1}"), "valu", 0, G, hard=G - 1)
    if OPT["early"] and j == OPT["pf31"]:
        x = chain_ops(b, [valu(f"v_and_b32 {vAuxT}, 7, v0"), valu(f"v_lshl_add_u32 {vAuxT}, {vAuxT}, 7, s37")], 0, -95)
        b.op(vload("buffer_load_dword", vAuxD, vAuxT, sV, "0"), "st", 0, -90, [x], hard=40)
    if not OPT["early"] and j <= 28 and j % 4 == (30 - kl) % 4:
        kf = [o for o, k, _, _ in dops if k == "K"][0]
        vl = [o for o, k, _, _ in dops if k == "V"][-2]
        pair = raw(f"s_cmp_eq_u32 {sCNT}, 1\n    s_cselect_b32 s18, 0, s18")
        b.scalar(pair, (lambda: vl.gap + 1), (lambda: kf.gap - 2))
    if j <= 24 and j % 4 == OPT.get("auxj", 1) and OPT["aux"] & 1:
        b.op(vload("buffer_load_dword", vAuxD, vAuxC, sC, "0"), "st", 3, -90, hard=40)
    if j <= 24 and (j - OPT["auxend"]) % OPT["auxper"] == 0 and OPT["aux"] & 2:
        x = b.op(vload("buffer_load_dword", vAuxD2, vAuxT, sP, "0"), "st", 5 - 4 * a, -90, hard=40)
        b.op(valu(f"v_add_u32 {vAuxT}, {(32 - OPT['auxt0']) * 16384 // OPT['auxn']:#x}, {vAuxT}"), "valu", 0, G, [x], hard=G - 1)
    nh = OPT["holes"] % 10 if a == 0 else OPT["holes"] // 10
    for n in range(nh if j <= 28 else 0):
        ref = dops[min(6, (2 * n + 1) * 8 // (2 * nh) - 1 + (1 if nh < 4 else 0))][0]
        w = OPT["holew"]
        b.op(vload("buffer_load_dword" + ("" if w == 1 else f"x{w}"), "v20" if w == 1 else R("a", 252, w), vAuxT, "s[84:87]", "0"), "st", 0, -95, [(ref, 2)], hard=G - 12)
    add_deferred(b, a, ends)
    add_softmax(b, a, j + 1, ends, G - 1, deferred(a))
    if OPT["rwin"] and j <= 28:
        tm = TMPL[OPT["rwin"]][a].replace(" ", "")
        assert len(tm) == 72, len(tm)
        nd = len([o for o in b.ops if o.cls in ("dma", "st")])
        b.tmpl = tm.replace("d", "D", max(0, nd - 8) if nd > 4 else 1).replace("d", ".")
        for o in b.ops:
            if o.cls == "dma" or o.ins.kind == "dsw":
                o.lo = 0
            if o.ins.text.startswith("v_cvt"):
                o.dl -= 200
    vm = [("V", j + 1)] + ([("K", j + 3)] if j + 3 <= 31 else [])
    if OPT["early"] and j == 29:
        vm.append(("V", 31))
    b.barrier(G - 1, vm, ["w"] + [f"a{AKF + i}" for i in range(32)])
    if loop_end:
        b.scalar(salu(f"s_sub_u32 {sCNT}, {sCNT}, 1"), 20, G - 4)
        b.scalar(salu(f"s_cmp_lg_u32 {sCNT}, 0"), G - 3, G - 3)
    out, _ = b.schedule(show=OPT["show"] == j)
    out = prof_hooks(out)
    if loop_end:
        out.append(salu(f"s_cbranch_scc1 {loop_end}"))
    return out


def first_tile_instrs(t):
    SPRE = RAWX if t == 4 else SPRE0
    own, oth = R("v", SPRE, 4), R("v", SPRE + 4, 4)
    mf = [mfma(own, R("a", AVF + 4 * s, 4), Qf(t, s), "0" if s == 0 else own) for s in range(8)]
    mf += [mfma(oth, R("a", ASP + 4 * s, 4), Qf(t, s), "0" if s == 0 else oth) for s in range(8)]
    A_, B_, C_ = TMP, TMP + 1, TMP + 4
    m1 = [valu(f"v_max3_f32 v{C_}, v{SPRE}, v{SPRE + 1}, v{SPRE + 2}"), valu(f"v_max_f32 v{C_}, v{C_}, v{SPRE + 3}")]
    m2 = [valu(f"v_max3_f32 v{C_}, v{C_}, v{SPRE + 4}, v{SPRE + 5}"),
          valu(f"v_max3_f32 v{A_}, v{C_}, v{SPRE + 6}, v{SPRE + 7}"), valu(f"v_max3_f32 v{B_}, v{C_}, v{SPRE + 6}, v{SPRE + 7}"),
          valu(f"v_permlane32_swap_b32 v{A_}, v{B_}"),
          valu(f"v_max_f32 v{C_}, v{A_}, v{B_}"), valu(f"v_max_f32 v{B_}, v{A_}, v{B_}"),
          valu(f"v_permlane16_swap_b32 v{C_}, v{B_}"),
          valu(f"v_max_f32 v{A_}, v{C_}, v{B_}")]
    cm = [valu(f"v_cndmask_b32 v{NEGM + 4 * t + r}, -v{TMP}, v{NEGM + 4 * t + r}, {sKEEP}") for r in range(4)]
    n = 8 if t < 4 else 4
    sb = [valu(f"v_add_f32 v{SPRE + r}, v{SPRE + r}, v{NEGM + 4 * t}") for r in range(n)]
    ex = [valu(f"v_exp_f32 v{SPRE + r}, v{SPRE + r}") for r in range(n)]
    cv = [valu(f"v_cvt_pk_bf16_f32 v{Pown(0, t) + h}, v{SPRE + 2 * h}, v{SPRE + 2 * h + 1}") for h in range(n // 2)]
    ad = [valu(f"v_add_f32 v{vL[t]}, v{SPRE + r}, v{vL[t]}") for r in range(4)]
    return mf, m1, m2, cm, sb, ex, cv, ad


def add_first_tile(b, t, need_by=None):
    mf, m1, m2, cm, sb, ex, cv, ad = first_tile_instrs(t)
    idx = [b.mfma(x) for x in mf]

    def ops(after=()):
        x = chain_ops(b, m1, idx[7] + 5, -510, after)
        last = chain_ops(b, m2, idx[15] + 5, -500, [x])
        c = [b.op(y, "valu", 0, -480 if r == 0 or t == 4 else 150, [(last, 0)]) for r, y in enumerate(cm)]
        ops.cm = c
        e = []
        for r in range(len(sb)):
            sbo = b.op(sb[r], "valu", 0, -478 + r, [(c[0], 0)], hard=need_by)
            e.append(b.op(ex[r], "exp", 0, -470 + r, [sbo], hard=need_by))
        for h, y in enumerate(cv):
            cvo = b.op(y, "valu", 0, -469 + 2 * h, e[2 * h:2 * h + 2], hard=need_by)
            if t == 4:
                b.op(pwrite(0, t, h), "ds", 0, 100 + h, [cvo], m0="p", setter=msetter())
        for r in range(4):
            b.op(ad[r], "valu", 0, 200 + r, [e[r]])
        return c[0]
    return idx, ops


def qk_chain(b, t, zero=False):
    for s in range(8):
        k = b.mfma(mfma(S(t), Kf(s), Qf(t, s), ("0" if zero else Ng(t)) if s == 0 else S(t)))
    return k


def flush(out, left):
    m0 = None
    left = list(left)
    while left:
        o = next(o for o in left if all(d not in left for d, _ in o.deps))
        left.remove(o)
        if o.m0 is not None and o.m0 != m0:
            out.append(o.setter)
            m0 = o.m0
        out.append(o.ins)
    return out


def merge(x, y):
    o = []
    for i in range(max(len(x), len(y))):
        o += x[i:i + 1] + y[i:i + 1]
    return o


def stage_block(a, k, feed):
    b = Block(f"stage {k} role {a}")
    b.chainy = True
    k1 = OPT["k1stage"]
    b.pre = ([kread(1, s) for s in range(8)] if k == k1 else []) + stage_read(k)
    c1 = {1: {1: [0, 4], 2: [1]}, 2: {2: [0, 1, 4]}}[k1].get(k, [])
    c1 = [t for t in c1 if t < 5 - a]
    ends, later = {}, []
    covered = (k == 0 and a == 0) or (k > k1)
    if k == 0 and a == 0:
        later.append(add_first_tile(b, 4)[1])
    if c1 and k == 2:
        ends[c1[0]] = qk_chain(b, c1[0])
    later.append(add_first_tile(b, k)[1])
    for t in c1:
        if t not in ends:
            ends[t] = qk_chain(b, t)
    G = len(b.mf)
    prev = ()
    for f in later:
        f(prev)
        prev = f.cm
    if ends:
        add_softmax(b, a, 1, ends, G + 16, deferred(a), soft=True)
    i = 0
    if not covered and OPT["prewait"]:
        b.pre += stage_load(k + 1, 0, feed)
        i = 1
    nun = OPT["nunder"]
    ulo = OPT["ulo"] if G <= 16 else OPT["ulo2"]
    prev = []
    for n in range(nun):
        src = RAW(k + 1, i)
        cv = []
        first = None
        for r in range(4):
            lo_ = b.op(valu(f"v_lshlrev_b32 v{SCT + 2 * r}, 16, v{src + r}"), "valu", ulo, 40 * n + 5 * r, prev)
            hi_ = b.op(valu(f"v_and_b32 v{SCT + 2 * r + 1}, {sMASK}, v{src + r}"), "valu", ulo, 40 * n + 5 * r + 1, prev)
            first = first or lo_
            m0_ = b.op(valu(f"v_mul_f32 v{SCT + 2 * r}, s40, v{SCT + 2 * r}"), "valu", 0, 40 * n + 5 * r + 2, [lo_])
            m1_ = b.op(valu(f"v_mul_f32 v{SCT + 2 * r + 1}, s40, v{SCT + 2 * r + 1}"), "valu", 0, 40 * n + 5 * r + 3, [hi_])
            cv.append(b.op(valu(f"v_cvt_pk_bf16_f32 v{src + r}, v{SCT + 2 * r}, v{SCT + 2 * r + 1}"), "valu", 0, 40 * n + 5 * r + 4, [m0_, m1_]))
        b.op(stage_write(k + 1, i), "solo", 0, 40 * n + 21, cv)
        fd = feed(("Q", k + 1, i))
        if fd:
            grp = I("\n    ".join(x.text for x in fd), "group")
            grp.tag = fd
            b.op(grp, "st", 0, 40 * n + 6, [first], m0=("g", n), setter=nop(0))
        prev = cv
        i += 1
    out, left = b.schedule(show=OPT["show"] == 0, leftover_ok=True)
    tail = flush([], left)
    if not any(x.wr & {f"v{SCT + r}" for r in range(8)} or x.rd & {f"v{SCT + r}" for r in range(8)} for x in tail) and i < 3 and OPT["mergetail"]:
        assert not any(x.kind == "group" for x in tail)
        nx = stage_load(k + 1, i, feed)
        i += 1
        p = max(n for n, x in enumerate(nx) if x.kind in ("dma", "vld", "salu") or n == 0)
        tail = nx[:p + 1] + merge(tail, nx[p + 1:])
    out += tail
    while i < 4:
        out += stage_load(k + 1, i, feed)
        i += 1
    o = []
    for x in out:
        o += x.tag if x.kind == "group" else [x]
    return o


def start_block(a, rest):
    b = Block(f"start role {a}")
    b.chainy = True
    b.pre = stage_read(3)
    ends = {2: qk_chain(b, 2)}
    G = 32 + 4 * (4 + a)
    idx, ops = add_first_tile(b, 3, need_by=G - 5)
    ends[3] = qk_chain(b, 3, zero=True)
    lu = {AVF + 4 * s: idx[s] for s in range(8)}
    done, pfirst = add_pv(b, a, [0], 0, [[FNEW[d]] for d in range(4)], {0: 0}, zero=True, tmajor=[0, 1, 2, 4, 3][:3] + ([4] if a else []) + [3], lastuse=dict(lu))
    assert G == len(b.mf)
    bar = OPT["bar0"]
    neg3 = ops()
    for d in range(4):
        for u in range(2):
            b.op(vread(0, 4 + d, u, FOLD[d]), "ds", lu[FOLD[d]], G + 30 + 2 * d + u)
    for t, ins in preads(0, a):
        if t == 4:
            b.op(ins, "ds", idx[8], pfirst[(0, t)] - 10, hard=pfirst[(0, t)] - 3)
    for s in range(8):
        b.op(kread(2, s), "ds", max(bar, ends[3] - 7 + s), G - 10 + s)
    pieces = rest + [("V", 2, i) for i in range(4)] + [("K", 4, i) for i in range(4)]
    if OPT["klead"] == 3:
        pieces += [("K", 5, i) for i in range(4)]
    nin = min(len(pieces), OPT["sdman"])
    add_dma(b, a, pieces[:nin], OPT["sdma0"], OPT["sdmas"], G)
    add_softmax(b, a, 1, ends, G + 12, deferred(a), soft=True, sub={3: neg3})
    b.barrier(bar, [("K", 2)], None)
    if OPT["stamps"] == 1:
        b.inserts[0] = stamp(12)
        b.inserts[bar - 2] = stamp(13)
        b.inserts[bar] = stamp(9)
        b.inserts[G - 1] = stamp(10)
    out, left = b.schedule(show=OPT["show"] == 0, leftover_ok=True)
    out = flush(out, left)
    for p in pieces[nin:]:
        out += dma_piece(*p)
    out.append(wait(vm=[("V", 1), ("K", 3)], lg=["w"] + [f"a{AKF + i}" for i in range(32)]))
    out.append(barrier())
    return prof_hooks(out)


def unit_instrs(a, t, h, n, packed):
    va, wr = [], []
    for d in range(4):
        dt = 4 * h + d
        x = OO + 32 * t + 4 * dt if t < 4 else SS + 4 * d
        seq = []
        if t == 4:
            seq += [valu(f"v_accvgpr_read_b32 v{x + i}, a{AX + 4 * dt + i}") for i in range(4)]
        if packed:
            seq += [valu(f"v_pk_mul_f32 {R('v', x + 2 * i, 2)}, {R('v', x + 2 * i, 2)}, {R('v', RL(t), 2)} op_sel_hi:[1,0]") for i in range(2)]
        else:
            seq += [valu(f"v_mul_f32 v{x + i}, v{x + i}, v{RL(t)}") for i in range(4)]
        seq += [valu(f"v_cvt_pk_bf16_f32 v{x + i}, v{x + 2 * i}, v{x + 2 * i + 1}") for i in range(2)]
        va.append(seq)
        wr.append(ds_write("ds_write_b64", vEw, R("v", x, 2), f"offset:{32 * d}", (("K", 1), 99)))
    rd, st = [], []
    for i in range(2):
        q = R("a", ASP + 16 + 8 * (n % 2) + 4 * i, 4)
        rd.append(ds_read("ds_read_b128", q, vEr, f"offset:{8 * 144 * i}"))
        st.append(vstore("buffer_store_dwordx4", q, vO, sO, (sT, sT8)[i][t], 128 * h, OPT["pol_o"] if h == 0 or "pol_o1" not in OPT else OPT["pol_o1"]))
    return va, wr, rd, st


def final_block(a):
    NQ, NP = 5 - a, 4 + a
    b = Block(f"final role {a}")
    b.lazy = OPT["lazy"]
    b.chainy = True
    save = OPT["walign"]
    OPT["walign"] = 0
    barA, barB = OPT["bara"], OPT["barb"]
    F = lambda i: AVF + 4 * i
    KF = lambda i: AKF + 4 * i
    lo = {28: 0, 29: 0, 30: 0, 31: 0}
    lu = {}
    rest = list(range(2, NP))
    f30, f31 = [[F(d)] for d in range(4)], [[F(4 + d)] for d in range(4)]
    ends = {t: qk_chain(b, t) for t in (0, 1, 2)}
    _, pf = add_pv(b, a, [30], 0, f30, lo, lastuse=lu, ts=[0, 1])
    ends[3] = qk_chain(b, 3)
    done0, pf1 = add_pv(b, a, [31], 0, f31, lo, tmajor=True, lastuse=lu, ts=[0, 1])
    X1 = len(b.mf) - 1
    if a == 0:
        ends[4] = qk_chain(b, 4)
    lu.update({KF(s): ends[NQ - 1] - 7 + s for s in range(8)})
    pf.update(add_pv(b, a, [30], 0, f30, lo, lastuse=lu, ts=rest, have=[30])[1])
    add_pv(b, a, [28], 1, [[ASP + 4 * d if a == 0 else KF(d)] for d in range(4)], lo, lastuse=lu)
    d2, p2 = add_pv(b, a, [31], 0, f31, lo, tmajor=True, lastuse=lu, ts=rest, have=[31])
    done0.update(d2)
    pf1.update(p2)
    X = len(b.mf) - 1
    pool = [KF(i) for i in range(8)] + [F(i) for i in range(4)] if a == 0 else [KF(4 + i) for i in range(4)] + [F(i) for i in range(4)] + [KF(i) for i in range(4)]
    add_pv(b, a, [29, 30, 31], 1, [pool[3 * d:3 * d + 3] for d in range(4)], lo, lastuse=lu)
    G = len(b.mf)
    bar = lambda t: barA if t < 2 else barB
    for t, ins in preads(30, a):
        b.op(ins, "ds", 0, pf[(30, t)] - 10, hard=pf[(30, t)] - 3)
    for t, ins in preads(31, a):
        b.op(ins, "ds", bar(t), pf1[(31, t)] - 12, hard=pf1[(31, t)] - 3)
    add_deferred(b, a, ends)
    adds = add_softmax(b, a, 31, {t: ends[t] for t in (0, 1)}, barA, [], adds_by=barA - 4)
    adds.update(add_softmax(b, a, 31, {t: ends[t] for t in range(2, NQ)}, barB, [], adds_by=barB - 6))
    L = lambda *t: [(("L", x), 0) for x in t]
    lw = {t: b.op(ds_write("ds_write_addtid_b32", None, f"v{vL[t]}", f"offset:{2 * PXA + t * 256}", L(t)), "ds", 0, bar(t) - 8, [adds[t]], hard=bar(t) - 3, m0="p", setter=msetter()) for t in range(NQ)}
    w1 = b.op(valu(f"v_max3_u32 v{TMP}, v{vL[0]}, v{vL[1]}, v{vL[2]}"), "valu", 0, barB - 12, [adds[0], adds[1], adds[2]], hard=barB - 5)
    w2 = b.op(valu(f"v_max3_u32 v{TMP}, v{TMP}, v{vL[3]}, v{vL[NQ - 1]}"), "valu", 0, barB - 11, [w1, adds[3], adds[NQ - 1]], hard=barB - 4)
    b.op(ds_write("ds_write_addtid_b32", None, f"v{TMP}", f"offset:{2 * PXA + 5 * 256}", L(5)), "ds", 0, barB - 9, [w2], hard=barB - 3, m0="p", setter=msetter())
    b.barrier(barA, None, ["w"])
    b.barrier(barB, None, ["w"])
    base = 80
    lr = {}
    for t in (0, 2):
        lr[t] = lr[t + 1] = b.op(ds_read("ds_read2st64_b32", R("v", LP + t, 2), vPr, f"offset0:{base + a * 20 + t} offset1:{base + a * 20 + t + 1}", L(t, t + 1)), "ds", bar(t), bar(t) - 5)
    f1 = b.op(ds_read("ds_read2st64_b32", R("v", FLG, 2), vPr, f"offset0:{base + 5} offset1:{base + 25}", L(5)), "ds", barB, barB + 8)
    f2 = b.op(ds_read("ds_read2st64_b32", R("v", FLG + 2, 2), vPr2, f"offset0:{base + 5} offset1:{base + 25}", L(5)), "ds", barB, barB + 9)
    if a == 1:
        x1 = b.op(ds_read("ds_read_b32", f"v{LP + 4}", vPr, f"offset:{(base + 4) * 256}", L(4)), "ds", barB, barB + 5)
        lr[4] = b.op(ds_read("ds_read_b32", f"v{vL[4]}", vPr2, f"offset:{(base + 4) * 256}", L(4)), "ds", barB, barB + 6, [x1])
    ck = chain_ops(b, [valu(f"v_max3_u32 v{FLG}, v{FLG}, v{FLG + 1}, v{FLG + 2}"), valu(f"v_max_u32 v{FLG}, v{FLG}, v{FLG + 3}"), valu(f"v_cmp_lt_u32 vcc, {sTHR}, v{FLG}")],
                   0, barB + 30, [(f1, 6), (f2, 6)], hard=G - 4)
    if not OPT["abl"]:
        b.scalar(salu(f"s_cbranch_vccnz L_fallback{a}"), (lambda: ck.gap + 1), G - 1)
    rl = {}
    for t in range(NP):
        A_, B_, C_ = RL(t), RL(t) + 1, LP + t
        seq = [valu(f"v_add_f32 v{A_}, v{vL[t]}, v{C_}"), valu(f"v_add_f32 v{B_}, v{vL[t]}, v{C_}"), valu(f"v_permlane32_swap_b32 v{A_}, v{B_}"),
               valu(f"v_add_f32 v{C_}, v{A_}, v{B_}"), valu(f"v_add_f32 v{B_}, v{A_}, v{B_}"), valu(f"v_permlane16_swap_b32 v{C_}, v{B_}"),
               valu(f"v_add_f32 v{A_}, v{C_}, v{B_}"), valu(f"v_rcp_f32 v{A_}, v{A_}")]
        rl[t] = chain_ops(b, seq, 0, bar(t) + t, [(lr[t], 6)], hard=X1 if t < 2 else X)
    units = [(t, 0) for t in range(NP)] + [(t, 1) for t in range(NP)]
    nfast = min(2 + OPT["nfast"], NP)
    nin = min(OPT["nin"], NP - nfast)

    def straight(lst, pend):
        o = []
        for n, (t, h) in lst:
            va, wr, rd, st = unit_instrs(a, t, h, n, True)
            for k in range(len(va[0])):
                o += [va[d][k] for d in range(4)]
            o += pend
            o += wr + rd
            pend = st
        return o, pend
    en = list(enumerate(units))
    b.inserts[X1], pend = straight(en[:2], [])
    prev_rd, prev_st = [], {1: [b.op(x, "st", X1 + 6 + i, X1 - 50 + i, hard=X1 + 12) for i, x in enumerate(pend)]}
    if nfast > 2:
        b.inserts[X], pend = straight(en[2:nfast], [])
        prev_st[(nfast - 1) % 2] = [b.op(x, "st", X + 6 + i, X + i, hard=G - 1) for i, x in enumerate(pend)]
    if OPT["stamps"] == 2:
        b.inserts[barA] = stamp(12)
        b.inserts[X1] = stamp(13) + b.inserts[X1]
        b.inserts[barB] = stamp(9)
        b.inserts[X] = stamp(10) + b.inserts.get(X, [])
    for n, (t, h) in en[nfast:nfast + nin]:
        va, wr, rd, st = unit_instrs(a, t, h, n, False)
        p0 = X + 4 + 22 * (n - nfast)
        wops = []
        for d in range(4):
            nv = len(va[d])
            pr = [b.op(x, "valu", max(X + 1, done0[(t, d)] + 5), p0 + 4 * d, prev_rd) for x in va[d][:nv - 6]]
            mu = [b.op(x, "valu", max(X + 1, done0[(t, d)] + 5), p0 + 4 * d + i // 2, [rl[t]] + pr[i:i + 1]) for i, x in enumerate(va[d][nv - 6:nv - 2])]
            c0 = b.op(va[d][nv - 2], "valu", 0, p0 + 4 * d + 2, mu[:2])
            c1 = b.op(va[d][nv - 1], "valu", 0, p0 + 4 * d + 2, mu[2:] + [(c0, 0)])
            wops.append(b.op(wr[d], "solo", 0, p0 + 4 * d + 3, [c0, c1] + prev_rd))
        prev_rd = [b.op(rd[i], "ds", 0, p0 + 17 + i, wops + prev_st.get(n % 2, [])) for i in range(2)]
        prev_st[n % 2] = [b.op(st[i], "st", 0, p0 + 19 + i, [(prev_rd[i], 6)]) for i in range(2)]
    out, left = b.schedule(show=OPT["show"] == 31, leftover_ok=True)
    OPT["walign"] = save
    out += stamp(5)
    pend = []
    for o in left:
        if o.ins.kind == "vst":
            pend.append(o.ins)
        else:
            if any(o.ins.wr & x.rd for x in pend):
                out += pend
                pend = []
            out.append(o.ins)
    o2, pend = straight(en[nfast + nin:], pend)
    return out + o2 + pend


def qload(k, i):
    return [vload("buffer_load_dwordx4", R("v", RAW(k, i), 4), vQl, sQ, sT[k], 512 * i, OPT["pol_q"], tag=("Q", k, i))]


def entry():
    o = []
    A = lambda t: o.append(salu(t))
    V = lambda t: o.append(valu(t))
    t0, t1, t2, t3, t4 = (f"v{TMP + i}" for i in range(5))
    A("s_cmp_ge_u32 s2, 256")
    A("s_cbranch_scc1 L_end")
    o.append(raw("s_load_dwordx8 s[4:11], s[0:1], 0"))
    if OPT["stamps"]:
        o.append(raw("s_load_dwordx2 s[56:57], s[0:1], 40"))
        o.append(raw("s_memrealtime s[58:59]"))
    o += stamp(0)
    o.append(raw("s_getpc_b64 s[44:45]"))
    o.append(label("L_pc"))
    A("s_and_b32 s45, s45, 0xffff")
    o.append(raw("s_mov_b32 s46, L_end-L_pc"))
    A("s_mov_b32 s47, 0x20000")
    A("s_lshr_b32 s54, s2, 3")
    A("s_lshl_b32 s55, s54, 7")
    V(f"v_lshl_add_u32 {t0}, v0, 12, s55")
    o.append(vload("buffer_load_dword", "v15", t0, sC, "0"))
    V(f"v_lshrrev_b32 {t1}, 6, v0")
    A(f"s_mov_b64 {sKEEP}, 0")
    V(f"v_readfirstlane_b32 {sW}, {t1}")
    A(f"s_mov_b32 {sTHR}, {(127 + OPT['thr']) << 23:#x}")
    if OPT["prof"]:
        A("s_mov_b32 s3, 0")
    A("s_and_b32 s53, s2, 7")
    A("s_lshl_b32 s53, s53, 3")
    A("s_lshr_b32 s55, s2, 5")
    A("s_add_u32 s53, s53, s55")
    A("s_and_b32 s54, s54, 3")
    A("s_lshl_b32 s55, s53, 2")
    A("s_add_u32 s55, s55, s54")
    A("s_mul_i32 s37, s55, 73728")
    A("s_lshl_b32 s53, s53, 19")
    A(f"s_lshr_b32 {sA}, {sW}, 1")
    A(f"s_and_b32 {sB}, {sW}, 1")
    A(f"s_add_u32 s54, {sW}, 1")
    A("s_and_b32 s55, s54, 1")
    A("s_lshl_b32 s55, s55, 3")
    A("s_lshr_b32 s54, s54, 1")
    A("s_and_b32 s54, s54, 1")
    A("s_add_u32 s54, s54, s55")
    A("s_mul_i32 s54, s54, 1040")
    A(f"s_add_u32 {sKm}, s54, {KRING}")
    A("s_mov_b32 s48, 8192")
    A("s_mov_b32 s49, 16384")
    A("s_mov_b32 s50, 24576")
    A(f"s_mov_b32 {sX}, 65536")
    for srd, n in ((16, 524288), (12, 73728), (20, 524288), (24, 73728)):
        A(f"s_mov_b32 s{srd + 2}, {n}")
        A(f"s_mov_b32 s{srd + 3}, 0x20000")

    def src_offsets():
        V(f"v_and_b32 {t0}, 31, v0")
        V(f"v_lshlrev_b32 {t0}, 4, {t0}")
        V(f"v_bfe_u32 {t2}, v0, 5, 1")
        A(f"s_lshl_b32 s54, {sW}, 11")
        V(f"v_add_u32 {t1}, s54, {t0}")
        V(f"v_lshl_add_u32 {vKd}, {t2}, 13, {t1}")
        V(f"v_lshl_add_u32 {vQl}, {t2}, 15, {t1}")
        V(f"v_lshl_add_u32 {vQlx}, {t2}, 9, {t1}")
        A(f"s_mov_b32 {sKo}, 0")
        A(f"s_mov_b32 {sVo}, 0")
    src_offsets()
    o.append(raw("s_waitcnt lgkmcnt(0)"))
    o += stamp(8)
    for srd, ptr, off in ((16, 6, "s53"), (12, 4, "s37"), (20, 8, "s53"), (24, 10, "s37")):
        A(f"s_add_u32 s{srd}, s{ptr}, {off}")
        A(f"s_addc_u32 s{srd + 1}, s{ptr + 1}, 0")
        A(f"s_and_b32 s{srd + 1}, s{srd + 1}, 0xffff")
    o.append(label("L_restart"))
    for i in range(4):
        o += dma_piece("K", 0, i)
    for i in range(2):
        o.append(vload("buffer_load_dwordx4", R("v", RAWX + 4 * i, 4), vQlx, sQ, sX, 1024 * i, OPT["pol_q"], tag=("Q", 4, i)))
    if OPT["touch"] & 1:
        o.append(I("buffer_load_dword v14, off, s[20:23], 0", "vld", regs(sV), ["v14"]))
    if OPT["touch"] & 2:
        o.append(I("buffer_load_dword v14, off, s[24:27], 0", "vld", regs(sO), ["v14"]))
    o.append(barrier())
    for i in range(4):
        o += qload(0, i)
    if OPT["stamps"] == 4:
        o += stamp(9)
    A(f"s_lshl_b32 s54, {sB}, 11")
    A(f"s_lshl_b32 s55, {sA}, 13")
    A("s_add_u32 s54, s54, s55")
    V(f"v_lshl_add_u32 {vVd}, {t2}, 12, {t0}")
    V(f"v_add_u32 {vVd}, s54, {vVd}")
    A(f"s_add_u32 s54, {sKm}, {3 * SLOT}")
    V(f"v_lshl_add_u32 {vQw}, {t2}, 9, {t0}")
    V(f"v_add_u32 {vQw}, s54, {vQw}")
    V(f"v_add_u32 {vQw2}, {4 * SLOT}, {vQw}")
    A(f"s_sub_u32 s54, {sKm}, {KRING - PXA}")
    V(f"v_mul_u32_u24 {vQwx}, 2080, {t2}")
    V(f"v_add3_u32 {vQwx}, {vQwx}, {t0}, s54")
    A(f"s_mul_i32 s54, {sB}, {4 * 2080}")
    A(f"s_lshl_b32 s55, {sA}, 10")
    A("s_add_u32 s54, s54, s55")
    A(f"s_add_u32 {sVm}, s54, {VRING}")
    A(f"s_mul_i32 {sPm}, {sW}, 2560")
    V(f"v_and_b32 {t0}, 15, v0")
    V(f"v_bfe_u32 {t1}, v0, 4, 1")
    V(f"v_lshlrev_b32 {t3}, 5, {t1}")
    V(f"v_lshl_add_u32 {t3}, {t2}, 4, {t3}")
    V(f"v_add_u32 {t4}, 4, {t0}")
    V(f"v_bfe_u32 {vKr0}, {t4}, 3, 1")
    V(f"v_and_b32 {t4}, 7, {t4}")
    V(f"v_lshl_add_u32 {vKr0}, {t4}, 1, {vKr0}")
    V(f"v_mul_u32_u24 {vKr0}, 1040, {vKr0}")
    V(f"v_add_u32 {vKr0}, {vKr0}, {t3}")
    V(f"v_add_u32 {vQrx}, {PXA}, {vKr0}")
    V(f"v_add_u32 {vKr0}, {KRING}, {vKr0}")
    A(f"s_lshl_b32 s54, {sB}, 9")
    V(f"v_add_u32 {vKr}, s54, {vKr0}")
    A(f"s_lshl_b32 s54, {sA}, 9")
    A(f"s_add_u32 s54, s54, {3 * SLOT}")
    V(f"v_add_u32 {vQr}, s54, {vKr0}")
    V(f"v_add_u32 {vQr2}, {4 * SLOT}, {vQr}")
    A(f"s_lshl_b32 s54, {sB}, 9")
    A("s_sub_u32 s54, 512, s54")
    V(f"v_add_u32 {vKr0}, s54, {vKr0}")
    V(f"v_bfe_u32 {t4}, v0, 2, 3")
    V(f"v_mul_u32_u24 {vV0}, 2080, {t4}")
    V(f"v_lshl_add_u32 {vV0}, {t2}, 9, {vV0}")
    V(f"v_and_b32 {t4}, 3, v0")
    V(f"v_lshl_add_u32 {vV0}, {t4}, 3, {vV0}")
    A(f"s_mul_i32 s54, {sB}, {256 + 1024}")
    A(f"s_add_u32 s54, s54, {VRING}")
    A(f"s_mul_i32 s55, {sB}, {1024 - 256}")
    A(f"s_sub_u32 s55, {VRING + 1024}, s55")
    V(f"v_add_u32 {vV1}, s55, {vV0}")
    V(f"v_add_u32 {vV0}, s54, {vV0}")
    V(f"v_and_b32 {t4}, 63, v0")
    V(f"v_lshlrev_b32 {t4}, 2, {t4}")
    A(f"s_mul_i32 s54, {sB}, 2560")
    A("s_sub_u32 s55, 2560, s54")
    V(f"v_add_u32 {vPr2}, s54, {t4}")
    V(f"v_add_u32 {vPr}, s55, {t4}")
    if OPT["pf31"]:
        A("s_lshr_b32 s54, s2, 3")
        A("s_and_b32 s54, s54, 3")
        A("s_lshl_b32 s54, s54, 2")
        A(f"s_add_u32 s54, s54, {sW}")
        A("s_lshl_b32 s54, s54, 10")
        A(f"s_add_u32 s37, s54, {31 * 16384}")
    A(f"s_mul_i32 s55, {sW}, 2304")
    A(f"s_add_u32 s55, s55, {KRING + SLOT}")
    V(f"v_bfe_u32 {t4}, v0, 4, 2")
    V(f"v_mul_u32_u24 {vEw}, 144, {t0}")
    V(f"v_lshl_add_u32 {vEw}, {t4}, 3, {vEw}")
    V(f"v_add_u32 {vEw}, s55, {vEw}")
    V(f"v_bfe_u32 {t4}, v0, 3, 3")
    V(f"v_and_b32 {t1}, 7, v0")
    V(f"v_lshlrev_b32 {t1}, 4, {t1}")
    V(f"v_mul_u32_u24 {vEr}, 144, {t4}")
    V(f"v_add3_u32 {vEr}, {vEr}, {t1}, s55")
    A(f"s_lshl_b32 s54, {sA}, 15")
    A(f"s_lshl_b32 s55, {sB}, 8")
    A("s_add_u32 s55, s55, s54")
    A("s_sub_u32 s51, 65536, s54")
    V(f"v_lshl_add_u32 {vO}, {t4}, 9, {t1}")
    V(f"v_add_u32 {vO}, s55, {vO}")
    for t in range(5):
        A(f"s_add_u32 {sT8[t]}, {sT[t]}, 4096" if t else f"s_mov_b32 {sT8[0]}, 4096")
    c = struct.unpack("<I", struct.pack("<f", math.log2(math.e) / 16.0))[0]
    A(f"s_mov_b32 s40, {c:#x}")
    A(f"s_mov_b32 s41, {c:#x}")
    A(f"s_mov_b32 {sMASK}, 0xffff0000")
    for t in range(5):
        V(f"v_mov_b32 v{vL[t]}, 0")
    for t in range(4):
        for i in range(8):
            V(f"v_mov_b64 {R('v', OO + 32 * t + 16 + 2 * i, 2)}, 0")
    for i in range(16):
        V(f"v_accvgpr_write_b32 a{AX + 16 + i}, 0")
    if OPT["stamps"] == 4:
        o += stamp(10)
    A(f"s_cmp_eq_u32 {sA}, 1")
    A("s_cbranch_scc1 L_role1")
    o2 = []
    o, keep = o2, o
    src_offsets()
    return keep, o2


def scale4(src):
    o = []
    T = SCT
    for i in range(4):
        o.append(valu(f"v_lshlrev_b32 v{T + 2 * i}, 16, v{src + i}"))
        o.append(valu(f"v_and_b32 v{T + 2 * i + 1}, {sMASK}, v{src + i}"))
    for i in range(4):
        o.append(valu(f"v_pk_mul_f32 {R('v', T + 2 * i, 2)}, {R('v', T + 2 * i, 2)}, {sSC}"))
    for i in range(4):
        o.append(valu(f"v_cvt_pk_bf16_f32 v{src + i}, v{T + 2 * i}, v{T + 2 * i + 1}"))
    return o


QST = {0: (("V", 1), vQw, vQr, 2 * SLOT), 1: (("K", 3), vQw, vQr, 0), 2: (("V", 2), vQw, vQr, 3 * SLOT), 3: (("V", 3), vQw2, vQr2, 0)}


def stage_write(k, i):
    if k == 4:
        return ds_write("ds_write_b128", vQwx, R("v", RAWX + 4 * i, 4), f"offset:{4160 * i}", QXTAG)
    reg, wb, rb, off = QST[k]
    return ds_write("ds_write_b128", wb, R("v", RAW(k, i), 4), f"offset:{off + 2080 * i}", (reg, -1))


def stage_load(k, i, feed):
    src = RAWX + 4 * i if k == 4 else RAW(k, i)
    return [wait(vm=[("Q", k, i)])] + feed(("Q", k, i)) + scale4(src) + [stage_write(k, i)]


def stage_in(k, feed):
    o = []
    for i in range(2 if k == 4 else 4):
        o += stage_load(k, i, feed)
    return o


def stage_read(k):
    if k == 4:
        return [ds_read("ds_read_b128", Qf(4, s), vQrx, f"offset:{64 * s}", QXTAG) for s in range(8)]
    reg, wb, rb, off = QST[k]
    return [ds_read("ds_read_b128", Qf(k, s), rb, f"offset:{off + 64 * s}", (reg, -1)) for s in range(8)]


def stage_compute(t):
    mf, m1, m2, cm, sb, ex, cv, ad = first_tile_instrs(t)
    o = mf + m1 + m2 + cm + sb + ex + cv
    if t == 4:
        o += [msetter(), ad[0]] + [pwrite(0, t, h) for h in range(2)] + ad[1:]
    else:
        o += ad
    return o


def prologue(a):
    o = [label(f"L_role{a}")] + aux_setup(a) + [salu(f"s_mov_b32 {sCNT}, {(24 if OPT['early'] else 28) // 4}")]
    seq = {0: "Q1 Q2 Q3 K1 V0 K2 V1 K3", 1: "Q1 K1 Q2 V0 Q3 K2 V1 K3", 2: "Q1 Q2 K1 Q3 V0 K2 V1 K3", 3: "K1 Q1 V0 Q2 K2 Q3 V1 K3", 4: "Q1 Q2 K1 V0 Q3 K2 V1 K3", 5: "K1 Q1 Q2 V0 Q3 K2 V1 K3"}[OPT["order"]]
    full = [("K", 0, i) for i in range(4)] + [("Q", 4, i) for i in range(2)] + [("Q", 0, i) for i in range(4)]
    order = [(x[0], int(x[1]), i) for x in seq.split() for i in range(4)]
    if OPT["split"]:
        n = 0
        while n + 8 <= len(order):
            if order[n][0] != "Q" and order[n + 4][0] == "Q":
                sp = OPT["split"]
                order[n:n + 8] = order[n + 4:n + 4 + sp] + order[n:n + 4] + order[n + 4 + sp:n + 8]
                n += 4
            n += 4
    full += order

    def feed(landed):
        r = []
        stage = -1 if landed[1] == 4 else landed[1]
        while order and full.index(order[0]) <= full.index(landed) + OPT["win"]:
            x = order[0]
            if (x[:2] == ("V", 1) and stage < 2) or (x[:2] == ("K", 3) and stage < 3) or (landed == ("Q", 3, 3) and not OPT["lastfeed"]):
                break
            order.pop(0)
            r += qload(x[1], x[2]) if x[0] == "Q" else dma_piece(*x)
        return r
    o += stage_in(4, feed)
    o.append(wait(vm=[("K", 0)], lg="all"))
    o.append(barrier())
    o += stamp(1)
    for s in range(8):
        o.append(kread(0, s, vKr, R("a", AVF + 4 * s, 4)))
    if a == 0:
        o += stage_read(4)
    for s in range(8):
        o.append(kread(0, s, vKr0, R("a", ASP + 4 * s, 4)))
    ps = iter([3, 4, 5, 6, 7, 8, 9, 10, 11, 12, 13, 14])
    pst = lambda: stamp(next(ps), 3)
    o += pst()
    o += stage_in(0, feed)
    for k in range(4):
        o += pst()
        o.append(wait(vm={OPT["k1stage"]: [("K", 1)], 3: [("V", 0)]}.get(k), lg="all"))
        o.append(barrier())
        if k < 3:
            o += pst() + pst()
            o += stage_block(a, k, feed)
    o += stamp(2)
    return o, order


def aux_setup(a):
    o = []
    if OPT["aux"]:
        o.append(salu("s_lshr_b32 s54, s2, 3"))
        o.append(salu("s_lshl_b32 s55, s54, 7"))
        o.append(valu(f"v_lshl_add_u32 {vAuxC}, v0, 12, s55"))
        piece = (32 - OPT["auxt0"]) * 16384 // OPT["auxn"]
        before = len([j for j in range(1, OPT["auxend"] + 1) if (j - OPT["auxend"]) % OPT["auxper"] == 0]) - OPT["auxn"]
        o.append(salu("s_and_b32 s54, s54, 3"))
        o.append(salu(f"s_mul_i32 s54, s54, {piece // 4}"))
        o.append(salu(f"s_add_u32 s54, s54, {(a * piece // 8 - before * piece) & 0xffffffff:#x}"))
        o.append(valu(f"v_and_b32 {vAuxT}, 63, v0"))
        o.append(valu(f"v_cmp_le_u32 vcc, {piece // 1024}, {vAuxT}"))
        o.append(valu(f"v_lshl_add_u32 {vAuxT}, {vAuxT}, 7, s54"))
        o.append(valu(f"v_cndmask_b32 {vAuxT}, {vAuxT}, 2.0, vcc"))
        o.append(salu(f"s_cmp_eq_u32 {sB}, 0"))
        o.append(salu("s_cselect_b32 s88, s16, s20"))
        o.append(salu("s_cselect_b32 s89, s17, s21"))
        o.append(salu(f"s_add_u32 s88, s88, {OPT['auxt0'] * 16384}"))
        o.append(salu("s_addc_u32 s89, s89, 0"))
        o.append(salu(f"s_mov_b32 s90, {(32 - OPT['auxt0']) * 16384}"))
        o.append(salu("s_mov_b32 s91, 0x20000"))
        if OPT["holes"]:
            o.append(salu("s_mov_b64 s[84:85], s[88:89]"))
            o.append(salu("s_mov_b32 s86, 0"))
            o.append(salu("s_mov_b32 s87, 0x20000"))
    return o


def finish(a):
    o = stamp(6)
    if OPT.get("amp"):
        lo, hi, base = OPT["amp"] // 100, OPT["amp"] % 100, OPT["ampbase"]
        o.append(raw("s_waitcnt vmcnt(0)"))
        o += stamp(7)
        o.append(raw(f"s_waitcnt lgkmcnt(0)\ns_and_b32 s95, s2, {OPT.get('ampmask', 255)}\ns_cmp_lg_u32 s95, {OPT.get('ampwg', 40)}\ns_cbranch_scc1 L_end\ns_sub_u32 s94, s{60 + 2 * hi}, s{60 + 2 * lo}\ns_sub_u32 s94, s94, {base}\ns_max_i32 s94, s94, 0\ns_mul_i32 s94, s94, {OPT.get('amprt', 1)}\ns_min_u32 s94, s94, 20000\ns_add_u32 s94, s94, 6000"))
        o.append(raw(f"L_amp{a}:\ns_memrealtime s[92:93]\ns_waitcnt lgkmcnt(0)\ns_sub_u32 s92, s92, s58\ns_cmp_lt_u32 s92, s94\ns_cbranch_scc1 L_amp{a}"))
    elif OPT["stamps"]:
        o.append(raw("s_waitcnt vmcnt(0)"))
        o += stamp(7)
        o.append(raw("s_memrealtime s[92:93]"))
        o.append(raw("s_waitcnt lgkmcnt(0)"))
        o.append(raw("s_mov_b32 s96, s56\ns_and_b32 s97, s57, 0xffff\ns_mov_b32 s98, 0x100000\ns_mov_b32 s99, 0x20000"))
        o.append(raw(f"s_lshl_b32 s94, s2, 2\ns_add_u32 s94, s94, {sW}\ns_lshl_b32 s94, s94, 7"))
        for i in range(16):
            o.append(raw(f"v_mov_b32 v{64 + i}, s{60 + 2 * i}"))
        o.append(raw("v_mov_b32 v80, s58\nv_mov_b32 v81, s92\nv_mov_b32 v82, 0\nv_mov_b32 v83, 0\nv_mov_b32 v84, 0"))
        if OPT["prof"]:
            o.append(raw("v_lshlrev_b32 v85, 2, v0\ns_lshl_b32 s95, s2, 10\ns_add_u32 s95, s95, 0x40000\nbuffer_store_dword v127, v85, s[96:99], s95 offen"))
        o.append(raw("s_mov_b64 exec, 1"))
        for i in range(5):
            o.append(raw(f"buffer_store_dwordx4 v[{64 + 4 * i}:{67 + 4 * i}], v84, s[96:99], s94 offen offset:{16 * i}"))
    o.append(raw("s_endpgm"))
    return o


def fallback(a, redo):
    NQ = 5 - a
    M, AD = PP, PP + 8
    o = [label(f"L_fallback{a}")]
    o.append(raw("s_waitcnt vmcnt(0) lgkmcnt(0)"))
    o.append(nop(7))
    o.append(salu("s_mov_b32 s18, 524288"))
    o.append(valu(f"v_and_b32 v{AD}, 15, v0"))
    o.append(valu(f"v_lshlrev_b32 v{AD}, 9, v{AD}"))
    o.append(valu(f"v_bfe_u32 v{AD + 1}, v0, 4, 1"))
    o.append(valu(f"v_lshl_add_u32 v{AD}, v{AD + 1}, 5, v{AD}"))
    o.append(valu(f"v_bfe_u32 v{AD + 1}, v0, 5, 1"))
    o.append(valu(f"v_lshl_add_u32 v{AD}, v{AD + 1}, 4, v{AD}"))
    for t in range(NQ):
        o.append(valu(f"v_mov_b32 v{M + t}, 0xff800000"))
    o.append(salu("s_mov_b32 s54, 0"))
    o.append(label(f"L_fbloop{a}"))
    for s in range(8):
        o.append(vload("buffer_load_dwordx4", Kf(s), f"v{AD}", sK, "s54", 64 * s))
    for t in range(NQ):
        for s in range(8):
            o.append(mfma(S(t), Kf(s), Qf(t, s), "0" if s == 0 else S(t)))
    for t in range(NQ):
        s0 = SS + 4 * t
        o.append(valu(f"v_max3_f32 v{M + t}, v{s0}, v{s0 + 1}, v{M + t}"))
        o.append(valu(f"v_max3_f32 v{M + t}, v{s0 + 2}, v{s0 + 3}, v{M + t}"))
    o.append(salu("s_add_u32 s54, s54, 8192"))
    o.append(salu("s_cmp_lt_u32 s54, 524288"))
    o.append(salu(f"s_cbranch_scc1 L_fbloop{a}"))
    for t in range(NQ):
        o += xlane("v_max_f32", M + t, AD + 1)
        for r in range(4):
            o.append(valu(f"v_sub_f32 v{NEGM + 4 * t + r}, 0, v{M + t}"))
    o.append(salu(f"s_mov_b64 {sKEEP}, -1"))
    o.append(salu(f"s_mov_b32 {sTHR}, -1"))
    o += redo
    o.append(barrier())
    o.append(salu("s_branch L_restart"))
    return o


def ablate(lines, lo, hi):
    ab = OPT["abl"]
    for n in range(lo, hi):
        l = lines[n]
        if (ab & 1 and l.endswith(" lds")) or (ab & 2 and l == "s_barrier") or (ab & 4 and l.startswith("ds_write")) or (ab & 8 and l.startswith("ds_read2")) \
           or (ab & 16 and l.startswith("ds_read_b64_tr")) or (ab & 32 and l.startswith("ds_read_b128")) or (ab & 64 and l.startswith("s_waitcnt")) \
           or (ab & 4096 and l.startswith("v_add_f32")):
            lines[n] = "; ablated"
        if ab & 256 and l.startswith("s_waitcnt vmcnt"):
            lines[n] = re.sub(r"vmcnt\(\d+\) ", "", l)


def build():
    j0, j1 = 1, (25 if OPT["early"] else 29)
    ent, redo = entry()
    text, evs = [], []
    for a in (0, 1):
        pro, rest = prologue(a)
        tr = list(ent) + [raw(";;ROLE")] + pro + [raw(";;IV 0")] + start_block(a, rest) + stamp(3)
        for j in range(1, 30):
            tr.append(raw(f";;IV {j}"))
            tr += interval(j, a, f"L_loop{a}" if (j < j1 and (j - j0) % 4 == 3) else None)
        tr.append(raw(";;IV 30"))
        if OPT["prof"]:
            tr.append(raw("s_nop 4\n    v_mov_b32 v1, v21"))
        tr += stamp(4) + final_block(a)
        if OPT["prof"]:
            tr.append(raw("v_mov_b32 v127, v1"))
        tr += finish(a)
        out, ev, ins = resolve(tr)
        evs += ev
        lines = [x.text for x in out]
        k = lines.index(";;ROLE")
        if a == 0:
            text += lines[:k]
        idx = {j: lines.index(f";;IV {j}") for j in range(31)}
        for pos, w, c in ins:
            if idx[0] < pos and (OPT["show"] >= 0 or idx[1] < pos < idx[30]):
                print(f"; auto-inserted in role {a} @{pos - idx[0]}: {w} before {c}", file=sys.stderr)
        seg = lambda j: lines[idx[j] + 1: idx[j + 1]]
        for j in range(j0 + 4, j1):
            jb = j0 + (j - j0) % 4
            assert len(seg(j)) == len(seg(jb)), f"loop body not periodic at {j} role {a}"
            for n, (x, y) in enumerate(zip(seg(j), seg(jb))):
                if x != y:
                    assert re.sub(r"\d+", "", x) == re.sub(r"\d+", "", y) and x.startswith("s_waitcnt"), (j, a, x, y)
                    it = iter(min(int(p), int(q)) for p, q in zip(re.findall(r"\d+", x), re.findall(r"\d+", y)))
                    lines[idx[jb] + 1 + n] = re.sub(r"\d+", lambda m: str(next(it)), x)
        if OPT["abl"]:
            ablate(lines, idx[1], idx[30])
        text += lines[k + 1: idx[j0]]
        text.append(f".p2align {OPT['lalign']}")
        text.append(f"L_loop{a}:")
        text += lines[idx[j0]: idx[j0 + 4]]
        text += lines[idx[j1]:]
        fb, _, _ = resolve(fallback(a, redo))
        text += [x.text for x in fb]
    assert check_lds(evs) == 0
    hdr = open("header.txt").read()
    body = "\n".join(("" if l.endswith(":") or l.startswith(".") else "    ") + l.replace(";;IV", "; interval") for l in text)
    return f"""{hdr}; @launch grid=(256,1,1) block=(256,1,1) lds={LDS_BYTES}
.amdgcn_target "amdgcn-amd-amdhsa--gfx950"
.text
.globl {KN}
.p2align 8
.type {KN},@function
{KN}:
{body}
L_end:
    s_endpgm
.section .rodata,"a"
.p2align 6
.amdhsa_kernel {KN}
  .amdhsa_next_free_vgpr 512
  .amdhsa_next_free_sgpr 102
  .amdhsa_accum_offset 256
  .amdhsa_group_segment_fixed_size 0
  .amdhsa_kernarg_size 48
  .amdhsa_user_sgpr_count 2
  .amdhsa_user_sgpr_kernarg_segment_ptr 1
  .amdhsa_system_sgpr_workgroup_id_x 1
.end_amdhsa_kernel
"""


if __name__ == "__main__":
    for kv in sys.argv[1:]:
        k, v = kv.split("=", 1)
        if k.startswith("pol"):
            OPT[k] = "".join(" " + x for x in v.split("+") if x and x != "d")
        else:
            OPT[k] = int(v)
    print(build())
```

```python
import sys, struct, math, re
from asmlib import *
from sched import Block

KN = "standalone__gqa_softmax__near_ridge_kernel"
OPT = dict(abl=0, pol_kv="", pol_q="", pol_o=" sc0 sc1", stamps=0, prof=0, show=-1, thr=30,
           dma0=1, dmastep=8, dmastag=4, klead=3, walign=0, wq=1, feed0=4, feedl=1, prefeed=3,
           bar0=26, bara=30, barb=69, lalign=3, lazy=16, order=1, win=11, aux=1, early=3, sdma0=1, sdmas=3, sdman=8, lastfeed=0, k1stage=2, touch=0, pvt=0, defer=0, pvy=0, qkz=1, tm1=2, xearly=1, glds=0, peel0=0, bark=49, thr1=0, thr2=0, rot=0, nunder=0, prewait=0, ulo=2, ulo2=8, split=0, mergetail=1, rwin=1, pf31=25, pft0=29, pfgap=0, holes=0, holew=1, auxper=2, auxn=4, auxend=24, auxt0=28, nfast=3, nin=2)

PXA = 10240
KRING = 3 * PXA
SLOT = 16640
VRING = KRING + 4 * SLOT
LDS_BYTES = VRING + 4 * SLOT

sQ, sK, sV, sO, sC = "s[12:15]", "s[16:19]", "s[20:23]", "s[24:27]", "s[44:47]"
sW, sA, sB, sCNT, sKo, sVo, sKm, sVm, sPm, sMASK = "s28", "s29", "s30", "s31", "s32", "s33", "s34", "s35", "s36", "s39"
sSC, sKEEP = "s[40:41]", "s[42:43]"
sT = ["0", "s48", "s49", "s50", "s51"]
sT8 = ["s4", "s5", "s6", "s7", "s8"]
sX, sTHR = "s38", "s52"
sKg, sVg = "s[32:33]", "s[10:11]"
vKr, vV0, vV1, vKd, vVd, vPr, vPr2 = "v1", "v2", "v3", "v4", "v5", "v6", "v7"
vL = [8, 9, 10, 11, 12]
vO, vEw, vEr = "v13", "v22", "v23"
PXT = 14
TMP = 16
vAuxC, vAuxT, vAuxD, vAuxD2, sP = "v18", "v19", "v20", "v17", "s[88:91]"
NEGM, SS, PP, OO = 24, 44, 64, 128
SCT = 104
vQl, vQw, vQw2, vQwx, vQr, vQr2, vQrx, vKr0 = (f"v{96 + i}" for i in range(8))
vQlx = "v20"
vRr = "v21"
RAWX, SPRE0 = 112, 120
LP, FLG = 24, 30
RL = lambda t: SS + 4 * t
QXTAG = [(("P", 1, t), -1) for t in range(5)] + [(("L", t), -1) for t in range(6)]
AQ, AX, AKF, AVF, ASP = 0, 128, 160, 192, 224


def Qf(t, s):
    return R("a", (AQ + 32 * t if t < 4 else AX) + 4 * s, 4)


def Kf(s):
    return R("a", AKF + 4 * s, 4)


def S(t):
    return R("v", SS + 4 * t, 4)


def Ng(t):
    return R("v", NEGM + 4 * t, 4)


def Pown(j, t):
    return PP + 16 * (j % 4) + 4 * t if t < 4 else PXT


def Pop(j, t):
    return R("v", PP + 16 * (j % 4) + 4 * t, 4) if t < 4 else R("a", ASP + 4 * (j % 4), 4)


def O(t, dt):
    return R("v", OO + 32 * t + 4 * dt, 4) if t < 4 else R("a", AX + 4 * dt, 4)


def RAW(k, i):
    return OO + 32 * k + 4 * i


def where(kind, tile):
    if OPT["early"] and kind == "V" and tile >= 30:
        return (("K", 0), 32) if tile == 30 else (("V", 2), 31)
    return ((kind, tile % 4), tile)


def tdma(kind, tile, i):
    reg = where(kind, tile)
    off = reg[0][1] * SLOT + i * (1568 if kind == "K" else 1552) - (4 * SLOT if reg[0][0] != kind else 0)
    m, v, srd, so = (sKm, vKd, sK, sKo) if kind == "K" else (sVm, vVd, sV, sVo)
    d = dma(v, srd, so, 512 * i, OPT["pol_kv"], reg, (kind, tile))
    if OPT["glds"]:
        pair = sKg if kind == "K" else sVg
        d = I(f"global_load_lds_dwordx4 {v}, {pair}" + (f" offset:{512 * i}" if i else "") + OPT["pol_kv"], "dma", regs(v) + regs(pair) + ["m0"], [], lds_wr=reg, tag=(kind, tile))
    return (salu(f"s_add_u32 m0, {m}, {off}" if off >= 0 else f"s_sub_u32 m0, {m}, {-off}"), d)


def bump(kind):
    so = sKo if kind == "K" else sVo
    if OPT["glds"]:
        lo, hi = regs(sKg if kind == "K" else sVg)
        return raw(f"s_add_u32 {lo}, {lo}, s49\n    s_addc_u32 {hi}, {hi}, 0")
    return salu(f"s_add_u32 {so}, {so}, s49")


def wrap(kind):
    so = sKo if kind == "K" else sVo
    return [salu(f"s_bitset0_b32 {so}, 19")] if OPT["rot"] else []


def dma_piece(kind, tile, i):
    return list(tdma(kind, tile, i)) + ([bump(kind)] + wrap(kind) if i == 3 else [])


def kread(tile, s, addr=vKr, dst=None):
    slot = tile % 4
    return ds_read("ds_read_b128", dst or Kf(s), addr, f"offset:{slot * SLOT + 64 * s}", (("K", slot), tile))


def vread(tile, dt, u, frag):
    reg = where("V", tile)
    base = (vV0, vV1) if reg[0][0] == "V" else (vKd, vVd)
    return ds_read("ds_read_b64_tr_b16", R("a", frag + 2 * u, 2), base[u], f"offset:{reg[0][1] * SLOT + 128 * (dt // 4) + 16 * (dt % 4)}", reg)


def pwrite(j, t, h):
    par = j % 2
    return ds_write("ds_write_addtid_b32", None, f"v{Pown(j, t) + h}", f"offset:{par * PXA + (2 * t + h) * 256}", (("P", par, t), j))


def preads(j, a):
    par = j % 2
    o = []
    for t in range(4):
        n = par * 40 + a * 20 + 2 * t
        o.append((t, ds_read("ds_read2st64_b32", R("v", Pown(j, t) + 2, 2), vPr, f"offset0:{n} offset1:{n + 1}", (("P", par, t), j))))
    if a == 1:
        n = par * 40 + 8
        for u in range(2):
            o.append((4, ds_read("ds_read2st64_b32", R("a", ASP + 4 * (j % 4) + 2 * u, 2), (vPr2, vPr)[u], f"offset0:{n} offset1:{n + 1}", (("P", par, 4), j))))
    return o


def msetter():
    return salu(f"s_mov_b32 m0, {sPm}")


def stamp(idx, mode=0):
    if (OPT["stamps"] == 3) != (mode == 3) and idx > 2:
        return []
    return [raw(f"{'s_memrealtime' if OPT.get('amprt') else 's_memtime'} s[{60 + 2 * idx}:{61 + 2 * idx}]")] if OPT["stamps"] else []


def xlane(op, reg, tmp):
    o = []
    for sw in ("v_permlane32_swap_b32", "v_permlane16_swap_b32"):
        o.append(valu(f"v_mov_b32 v{tmp}, v{reg}"))
        o.append(valu(f"{sw} v{tmp}, v{reg}"))
        o.append(valu(f"{op} v{reg}, v{tmp}, v{reg}"))
    return o


def chain_ops(b, seq, lo, dl, first_deps=(), hard=None):
    prev = None
    for n, ins in enumerate(seq):
        deps = list(first_deps) if prev is None else [(prev, (1 if b.chainy else 2) if ins.kind == "perm" else (0 if b.chainy and prev.cls == "valu" else 1))]
        prev = b.op(ins, "exp" if ins.kind == "trans" else "valu", lo, dl + n, deps, hard=hard)
    return prev


def add_qk(b, a, j):
    ends = []
    for t in range(5 - a):
        for n, s in enumerate(range(8) if not (OPT["qkz"] and t % 2) else reversed(range(8))):
            k = b.mfma(mfma(S(t), Kf(s), Qf(t, s), Ng(t) if n == 0 else S(t)))
        ends.append(k)
    return ends


def add_pv(b, a, tiles, h, frags, lo, zero=False, tmajor=False, lastuse=None, have=(), ts=None):
    NP = 4 + a
    order = [(d, t) for t in (range(NP) if tmajor is True else tmajor) for d in range(4)] if tmajor else \
            [(d, t) for d in range(4) for t in (range(NP) if d % 2 == 0 else reversed(range(NP)))]
    if tmajor and OPT["pvt"] == 2:
        order = [(d if (n // 4) % 2 == 0 else 3 - d, t) for n, (d, t) in enumerate(order)]
    if ts is not None:
        order = [x for x in order if x[1] in ts]
    first, done, pfirst = {}, {}, {}
    war = dict(lastuse) if lastuse is not None else {}
    for ci, (d, t) in enumerate(order):
        seq = list(enumerate(tiles))
        if OPT["pvy"] and len(tiles) == 2 and (len(order) - 1 - ci) % 2 == 1 and not zero:
            seq.reverse()
        for n, j in seq:
            k = b.mfma(mfma(O(t, 4 * h + d), Pop(j, t), R("a", frags[d][n], 4), "0" if zero and n == 0 else O(t, 4 * h + d)))
            first.setdefault((d, n), k)
            pfirst.setdefault((j, t), k)
            done[(t, 4 * h + d)] = k
            if lastuse is not None:
                lastuse[frags[d][n]] = k
    for d in range(4):
        for n, j in enumerate(tiles):
            for u in range(2 if j not in have else 0):
                f = first[(d, n)]
                b.op(vread(j, 4 * h + d, u, frags[d][n]), "ds", max(lo[j], war.get(frags[d][n], 0)), f - 10 + u, hard=f - 3)
    return done, pfirst


def add_softmax(b, a, j, ends, pub, defer, adds_by=None, soft=False, sub=None):
    ends = dict(enumerate(ends)) if isinstance(ends, list) else ends
    wa = OPT["walign"]
    H = (lambda x: None) if soft else (lambda x: x)
    adds = {}
    for n, t in enumerate(ends):
        base = ends[t] + 4
        late = pub - 7 - 5 * (len(ends) - 1 - n)
        ex = []
        for r in range(4):
            dl = (base - 300 if wa else min(base + 10, late - 8)) + r
            dep = []
            if sub and t in sub:
                dep = [b.op(valu(f"v_add_f32 v{SS + 4 * t + r}, v{SS + 4 * t + r}, v{NEGM + 4 * t}"), "valu", base + 1, dl - 2, [sub[t]])]
            ex.append(b.op(valu(f"v_exp_f32 v{SS + 4 * t + r}, v{SS + 4 * t + r}"), "exp", base, dl, dep, hard=H(pub - 6)))
        for h in range(2):
            c = b.op(valu(f"v_cvt_pk_bf16_f32 v{Pown(j, t) + h}, v{SS + 4 * t + 2 * h}, v{SS + 4 * t + 2 * h + 1}"), "valu", 0, (base - 50 if wa else late - 3) + h, ex[2 * h:2 * h + 2], hard=H(pub - 4))
            b.op(pwrite(j, t, h), "ds", base + 6 + h if wa else 0, (base - 200 if wa else late - 1) + h, [c], hard=H(pub - 3), m0="p", setter=msetter())
        if t not in defer:
            for r in range(4):
                adds[t] = b.op(valu(f"v_add_f32 v{vL[t]}, v{SS + 4 * t + r}, v{vL[t]}"), "valu", 0, (pub if adds_by is None else min(base + 12, adds_by)) + r, [ex[r]] + ([(adds[t], 0)] if t in adds else []),
                               hard=H(pub if adds_by is None else adds_by))
    return adds


def add_deferred(b, a, ends, j=None):
    for t in deferred(a, j):
        for r in range(4):
            b.op(valu(f"v_add_f32 v{vL[t]}, v{SS + 4 * t + r}, v{vL[t]}"), "valu", 0, ends[t] - 16 + r, hard=ends[t] - 8)


def deferred(a, j=None):
    if OPT["defer"] or j == 30:
        return [3 - a, 4 - a]
    return []


def add_dma(b, a, pieces, g0, step, G, lo=None):
    dops = []
    for n, (kind, tile, i) in enumerate(pieces):
        st, d = tdma(kind, tile, i)
        e = int(g0 + step * n)
        if lo and (kind, tile) in lo:
            e = max(e, lo[(kind, tile)])
        o = b.op(d, "dma", e, e - 100, [(dops[-1][0], 2)] if dops else [], hard=G - 3, m0=("d", n), setter=st)
        dops.append((o, kind, tile, i))
    for o, kind, tile, i in dops:
        if i == 3:
            nxt = [x for x, k, tl, _ in dops if k == kind and tl > tile]
            bp = bump(kind)
            if OPT["rot"]:
                bp = raw(bp.text + "\n    " + wrap(kind)[0].text)
            b.scalar(bp, (lambda o=o: o.gap + 1), (lambda nxt=nxt: nxt[0].gap - 1) if nxt else G - 4)
    return dops


def prof_hooks(out):
    if OPT["prof"]:
        k = max(n for n, x in enumerate(out) if x.kind == "barrier")
        out.insert(k, raw("v_writelane_b32 v17, s100, m0"))
        out.insert(k - 1, raw("s_mov_b32 m0, s3"))
        mk = [n for n, x in enumerate(out[:k]) if x.kind == "mfma"]
        out.insert(mk[22] + 1, raw("s_memtime s[100:101]" if OPT["prof"] == 1 else "s_memrealtime s[100:101]"))
        out.insert(mk[2] + 1, raw("s_add_u32 s3, s3, 1"))
    return out


TMPL = {
    1: ["RDRRRRRR RRDRRRdE E.EDEWEE WEEDEWEW EEWEDEWE EWWEED.E EWW..RDR RRRRRRRD RRRRdRRR",
        "RRRRRDRR RRRRRRDR EE.EEWED EWEEWEEW .DEEWEEW E.DEW.W. d.D..RRR RRRDRRRR RdRDRRRR"],
    2: ["RDRRRRRR RRDRRRdE E.EDEWEE WEEDEWEW EEWEDEWE EWWEED.E EWW.RRDR RRRRRRRD RRRRd.RR",
        "RRRRRDRR RRRRRRDR EE.EEWED EWEEWEEW .DEEWEEW E.DEW.W. d.DRRRRR RRRDRRRR RdRD..RR"],
    3: ["RDRRRRRR RRDRRREE EE.DEWWE EE.DEWWE EE.DEWWE EE.EWWED EE.WW.DR RRRRRRRD RRRRRRRR",
        "RRRRRDRR RRRRRRDR EEEE.WWE DEEE.WWE EDEE.WWE E.DEE.WW d.D.d.RR RRRDRRRR RRRDRRRR"],
}
FOLD = [AVF + 8 * d for d in range(4)]
FNEW = [AVF + 8 * d + 4 for d in range(4)]


def fold(j):
    return FOLD if j % 2 or not OPT["pvt"] else [ASP + 16 + 4 * d for d in range(4)]


def add_old_reads(b, j, lu, lo, G):
    FOLD = fold(j + 1)
    for d in range(4):
        for u in range(2):
            b.op(vread(j, 4 * ((j + 1) % 2) + d, u, FOLD[d]), "ds", max(lo, lu.get(FOLD[d], 0)), G + 2 * d + u, hard=G - 1)


def interval(j, a, loop_end=None):
    b = Block(f"interval {j} role {a}", wq=OPT["wq"] if OPT["walign"] else 0, wprio=bool(OPT["walign"]))
    ends = add_qk(b, a, j + 1)
    lu = {}
    if j <= 28:
        done, pfirst = add_pv(b, a, [j - 1, j], j % 2, [[fold(j)[d], FNEW[d]] for d in range(4)], {j: 0}, lastuse=lu, have=[j - 1], tmajor=bool(OPT["pvt"]))
        b.carry = [f"a{x + i}" for x in fold(j) for i in range(4)]
    else:
        done, pfirst = add_pv(b, a, [j], 0, [[FNEW[d]] for d in range(4)], {j: 0})
    G = len(b.mf)
    if j <= (27 if OPT["early"] else 28):
        add_old_reads(b, j, lu, 40, G)
    for t, ins in preads(j, a):
        b.op(ins, "ds", 0, pfirst[(j, t)] - 10, hard=pfirst[(j, t)] - 3)
    for s in range(8):
        b.op(kread(j + 2, s), "ds", ends[-1] - (0 if OPT["qkz"] else 7 - s), G - 18 + s, hard=G - 3)
    kl = OPT["klead"]
    T = lambda kind, tile, r=range(4): [(kind, tile, i) for i in r]
    pieces = T("V", j + 2) + (T("K", j + 2 + kl) if j <= 28 else [])
    step = OPT["dmastep"]
    if j == 29:
        step = 4
    p0 = OPT["peel0"]
    if p0 and j <= 4:
        pieces = {1: T("V", 3) + T("K", 5) + T("K", 6, [0]), 2: T("V", 4) + T("K", 6, [1, 2, 3]) + T("K", 7, [0, 1]),
                  3: T("V", 5) + T("K", 7, [2, 3]) + T("K", 8, [0, 1, 2]), 4: T("V", 6) + T("K", 8, [3]) + T("K", 9)}[j]
    if OPT["early"] and j >= 25:
        if kl == 3:
            pieces = {25: T("V", 27) + T("K", 30), 26: T("V", 28) + T("K", 31), 27: T("V", 29) + T("V", 30), 28: T("V", 31), 29: []}[j]
        elif OPT["early"] == 1:
            pieces = {25: T("V", 27) + T("K", 29) + T("K", 30, [0]), 26: T("V", 28) + T("K", 30, [1, 2, 3]) + T("K", 31, [0, 1]),
                      27: T("V", 29) + T("K", 31, [2, 3]) + T("V", 30), 28: T("V", 31), 29: []}[j]
        elif OPT["early"] == 2:
            pieces = {25: T("V", 27) + T("K", 29), 26: T("V", 28) + T("K", 30), 27: T("V", 29) + T("K", 31), 28: T("V", 30) + T("V", 31), 29: []}[j]
        else:
            pieces = {25: T("V", 27) + T("K", 29) + T("K", 30, [0]), 26: T("V", 28) + T("K", 30, [1, 2, 3]) + T("K", 31, [0, 1]),
                      27: T("V", 29) + T("K", 31, [2, 3]) + T("V", 30, [0, 1, 2]), 28: T("V", 30, [3]) + T("V", 31), 29: []}[j]
        step = {25: 7, 26: 7, 27: 6, 28: 4, 29: 4}[j]
    dops = add_dma(b, a, pieces, OPT["dma0"] + a * min(OPT["dmastag"], step // 2), step, G)
    if OPT["early"] and j == 29:
        b.op(valu(f"v_subrev_u32 {vKd}, {4 * SLOT}, {vV0}"), "valu", 0, G, hard=G - 1)
        b.op(valu(f"v_subrev_u32 {vVd}, {4 * SLOT}, {vV1}"), "valu", 0, G, hard=G - 1)
    if OPT["pf31"] and (j == OPT["pf31"] if OPT["early"] else j <= 28 and j % 4 == OPT["pf31"] % 4):
        x = b.op(vload("buffer_load_dword", vAuxD, vAuxT, sV, "0"), "st", OPT["pfgap"], -90 + OPT["pfgap"], hard=G - 3)
        if not OPT["early"]:
            b.op(valu(f"v_add_u32 {vAuxT}, 0x1000000, {vAuxT}"), "valu", 0, G, [x], hard=G - 1)
    if not OPT["early"] and j <= 28 and j % 4 == (30 - kl) % 4:
        kf = [o for o, k, _, _ in dops if k == "K"][0]
        vl = [o for o, k, _, _ in dops if k == "V"][-2]
        pair = raw(f"s_cmp_eq_u32 {sCNT}, 1\n    s_cselect_b32 s18, 0, s18")
        b.scalar(pair, (lambda: vl.gap + 1), (lambda: kf.gap - 2))
    if (5 if p0 else 1) <= j <= (24 if OPT["early"] else 28) and j % 4 == OPT.get("auxj", 1) and OPT["aux"] & 1:
        b.op(vload("buffer_load_dword", vAuxD, vAuxC, sC, "0"), "st", 3, -90, hard=40)
    if j <= 24 and (j - OPT["auxend"]) % OPT["auxper"] == 0 and OPT["aux"] & 2:
        x = b.op(vload("buffer_load_dword", vAuxD2, vAuxT, sP, "0"), "st", 5 - 4 * a, -90, hard=40)
        b.op(valu(f"v_add_u32 {vAuxT}, {(32 - OPT['auxt0']) * 16384 // OPT['auxn']:#x}, {vAuxT}"), "valu", 0, G, [x], hard=G - 1)
    nh = OPT["holes"] % 10 if a == 0 else OPT["holes"] // 10
    for n in range(nh if j <= 28 else 0):
        ref = dops[min(6, (2 * n + 1) * 8 // (2 * nh) - 1 + (1 if nh < 4 else 0))][0]
        w = OPT["holew"]
        b.op(vload("buffer_load_dword" + ("" if w == 1 else f"x{w}"), "v20" if w == 1 else R("a", 252, w), vAuxT, "s[84:87]", "0"), "st", 0, -95, [(ref, 2)], hard=G - 12)
    add_deferred(b, a, ends)
    add_softmax(b, a, j + 1, ends, G - 1, deferred(a, j + 1))
    if OPT["rwin"] and j <= 28:
        tm = TMPL[OPT["rwin"]][a].replace(" ", "")
        assert len(tm) == 72, len(tm)
        nd = len([o for o in b.ops if o.cls in ("dma", "st")])
        b.tmpl = tm.replace("d", "D", max(0, nd - 8) if nd > 4 else 1).replace("d", ".")
        for o in b.ops:
            if o.cls == "dma" or o.ins.kind == "dsw":
                o.lo = 0
            if o.ins.text.startswith("v_cvt"):
                o.dl -= 200
    vm = [("V", j + 1)] + ([("K", j + 3)] if j + 3 <= 31 else [])
    if j == 29:
        vm.append(("V", 31))
    if j < p0:
        b.barrier(OPT["bark"] + 3, [("K", j + 2)], None)
        for o in b.ops:
            if o.ins.text.startswith("ds_read_b128"):
                o.lo = max(o.lo, OPT["bark"] + 3)
    if j + 1 < p0:
        vm = [("V", j + 1)]
    b.barrier(G - 1, vm, ["w"] + [f"a{AKF + i}" for i in range(32)])
    if loop_end:
        b.scalar(salu(f"s_sub_u32 {sCNT}, {sCNT}, 1"), 20, G - 4)
        b.scalar(salu(f"s_cmp_lg_u32 {sCNT}, 0"), G - 3, G - 3)
    out, _ = b.schedule(show=OPT["show"] == j)
    out = prof_hooks(out)
    if loop_end:
        out.append(salu(f"s_cbranch_scc1 {loop_end}"))
    return out


def first_tile_instrs(t):
    SPRE = RAWX if t == 4 else SPRE0
    own, oth = R("v", SPRE, 4), R("v", SPRE + 4, 4)
    mf = [mfma(own, R("a", AVF + 4 * s, 4), Qf(t, s), "0" if s == 0 else own) for s in range(8)]
    mf += [mfma(oth, R("a", ASP + 4 * s, 4), Qf(t, s), "0" if s == 0 else oth) for s in range(8)]
    A_, B_, C_ = TMP, TMP + 1, TMP + 4
    m1 = [valu(f"v_max3_f32 v{C_}, v{SPRE}, v{SPRE + 1}, v{SPRE + 2}"), valu(f"v_max_f32 v{C_}, v{C_}, v{SPRE + 3}")]
    m2 = [valu(f"v_max3_f32 v{C_}, v{C_}, v{SPRE + 4}, v{SPRE + 5}"),
          valu(f"v_max3_f32 v{A_}, v{C_}, v{SPRE + 6}, v{SPRE + 7}"), valu(f"v_max3_f32 v{B_}, v{C_}, v{SPRE + 6}, v{SPRE + 7}"),
          valu(f"v_permlane32_swap_b32 v{A_}, v{B_}"),
          valu(f"v_max_f32 v{C_}, v{A_}, v{B_}"), valu(f"v_max_f32 v{B_}, v{A_}, v{B_}"),
          valu(f"v_permlane16_swap_b32 v{C_}, v{B_}"),
          valu(f"v_max_f32 v{A_}, v{C_}, v{B_}")]
    cm = [valu(f"v_cndmask_b32 v{NEGM + 4 * t + r}, -v{TMP}, v{NEGM + 4 * t + r}, {sKEEP}") for r in range(4)]
    n = 8 if t < 4 else 4
    sb = [valu(f"v_add_f32 v{SPRE + r}, v{SPRE + r}, v{NEGM + 4 * t}") for r in range(n)]
    ex = [valu(f"v_exp_f32 v{SPRE + r}, v{SPRE + r}") for r in range(n)]
    cv = [valu(f"v_cvt_pk_bf16_f32 v{Pown(0, t) + h}, v{SPRE + 2 * h}, v{SPRE + 2 * h + 1}") for h in range(n // 2)]
    ad = [valu(f"v_add_f32 v{vL[t]}, v{SPRE + r}, v{vL[t]}") for r in range(4)]
    return mf, m1, m2, cm, sb, ex, cv, ad


def add_first_tile(b, t, need_by=None):
    mf, m1, m2, cm, sb, ex, cv, ad = first_tile_instrs(t)
    idx = [b.mfma(x) for x in mf]

    def ops(after=()):
        x = chain_ops(b, m1, idx[7] + 5, -510, after)
        last = chain_ops(b, m2, idx[15] + 5, -500, [x])
        c = [b.op(y, "valu", 0, -480 if r == 0 or t == 4 else 150, [(last, 0)]) for r, y in enumerate(cm)]
        ops.cm = c
        e = []
        for r in range(len(sb)):
            sbo = b.op(sb[r], "valu", 0, -478 + r, [(c[0], 0)], hard=need_by)
            e.append(b.op(ex[r], "exp", 0, -470 + r, [sbo], hard=need_by))
        for h, y in enumerate(cv):
            cvo = b.op(y, "valu", 0, -469 + 2 * h, e[2 * h:2 * h + 2], hard=need_by)
            if t == 4:
                b.op(pwrite(0, t, h), "ds", 0, 100 + h, [cvo], m0="p", setter=msetter())
        for r in range(4):
            b.op(ad[r], "valu", 0, 200 + r, [e[r]])
        return c[0]
    return idx, ops


def qk_chain(b, t, zero=False):
    for s in range(8):
        k = b.mfma(mfma(S(t), Kf(s), Qf(t, s), ("0" if zero else Ng(t)) if s == 0 else S(t)))
    return k


def flush(out, left):
    m0 = None
    left = list(left)
    while left:
        o = next(o for o in left if all(d not in left for d, _ in o.deps))
        left.remove(o)
        if o.m0 is not None and o.m0 != m0:
            out.append(o.setter)
            m0 = o.m0
        out.append(o.ins)
    return out


def merge(x, y):
    o = []
    for i in range(max(len(x), len(y))):
        o += x[i:i + 1] + y[i:i + 1]
    return o


def stage_block(a, k, feed):
    b = Block(f"stage {k} role {a}")
    b.chainy = True
    k1 = OPT["k1stage"]
    b.pre = ([kread(1, s) for s in range(8)] if k == k1 else []) + stage_read(k)
    c1 = {1: {1: [0, 4], 2: [1]}, 2: {2: [0, 1, 4]}}[k1].get(k, [])
    c1 = [t for t in c1 if t < 5 - a]
    ends, later = {}, []
    covered = (k == 0 and a == 0) or (k > k1)
    if k == 0 and a == 0:
        later.append(add_first_tile(b, 4)[1])
    if c1 and k == 2:
        ends[c1[0]] = qk_chain(b, c1[0])
    later.append(add_first_tile(b, k)[1])
    for t in c1:
        if t not in ends:
            ends[t] = qk_chain(b, t)
    G = len(b.mf)
    prev = ()
    for f in later:
        f(prev)
        prev = f.cm
    if ends:
        add_softmax(b, a, 1, ends, G + 16, deferred(a), soft=True)
    i = 0
    if not covered and OPT["prewait"]:
        b.pre += stage_load(k + 1, 0, feed)
        i = 1
    nun = OPT["nunder"]
    ulo = OPT["ulo"] if G <= 16 else OPT["ulo2"]
    prev = []
    for n in range(nun):
        src = RAW(k + 1, i)
        cv = []
        first = None
        for r in range(4):
            lo_ = b.op(valu(f"v_lshlrev_b32 v{SCT + 2 * r}, 16, v{src + r}"), "valu", ulo, 40 * n + 5 * r, prev)
            hi_ = b.op(valu(f"v_and_b32 v{SCT + 2 * r + 1}, {sMASK}, v{src + r}"), "valu", ulo, 40 * n + 5 * r + 1, prev)
            first = first or lo_
            m0_ = b.op(valu(f"v_mul_f32 v{SCT + 2 * r}, s40, v{SCT + 2 * r}"), "valu", 0, 40 * n + 5 * r + 2, [lo_])
            m1_ = b.op(valu(f"v_mul_f32 v{SCT + 2 * r + 1}, s40, v{SCT + 2 * r + 1}"), "valu", 0, 40 * n + 5 * r + 3, [hi_])
            cv.append(b.op(valu(f"v_cvt_pk_bf16_f32 v{src + r}, v{SCT + 2 * r}, v{SCT + 2 * r + 1}"), "valu", 0, 40 * n + 5 * r + 4, [m0_, m1_]))
        b.op(stage_write(k + 1, i), "solo", 0, 40 * n + 21, cv)
        fd = feed(("Q", k + 1, i))
        if fd:
            grp = I("\n    ".join(x.text for x in fd), "group")
            grp.tag = fd
            b.op(grp, "st", 0, 40 * n + 6, [first], m0=("g", n), setter=nop(0))
        prev = cv
        i += 1
    out, left = b.schedule(show=OPT["show"] == 0, leftover_ok=True)
    tail = flush([], left)
    if not any(x.wr & {f"v{SCT + r}" for r in range(8)} or x.rd & {f"v{SCT + r}" for r in range(8)} for x in tail) and i < 3 and OPT["mergetail"]:
        assert not any(x.kind == "group" for x in tail)
        nx = stage_load(k + 1, i, feed)
        i += 1
        p = max(n for n, x in enumerate(nx) if x.kind in ("dma", "vld", "salu") or n == 0)
        tail = nx[:p + 1] + merge(tail, nx[p + 1:])
    out += tail
    while i < 4:
        out += stage_load(k + 1, i, feed)
        i += 1
    o = []
    for x in out:
        o += x.tag if x.kind == "group" else [x]
    return o


def start_block(a, rest):
    b = Block(f"start role {a}")
    b.chainy = True
    b.pre = stage_read(3)
    ends = {2: qk_chain(b, 2)}
    G = 32 + 4 * (4 + a)
    idx, ops = add_first_tile(b, 3, need_by=G - 5)
    ends[3] = qk_chain(b, 3, zero=True)
    lu = {AVF + 4 * s: idx[s] for s in range(8)}
    done, pfirst = add_pv(b, a, [0], 0, [[FNEW[d]] for d in range(4)], {0: 0}, zero=True, tmajor=[0, 1, 2, 4, 3][:3] + ([4] if a else []) + [3], lastuse=dict(lu))
    assert G == len(b.mf)
    bar = OPT["bar0"]
    neg3 = ops()
    for d in range(4):
        for u in range(2):
            b.op(vread(0, 4 + d, u, FOLD[d]), "ds", lu[FOLD[d]], G + 30 + 2 * d + u)
    for t, ins in preads(0, a):
        if t == 4:
            b.op(ins, "ds", idx[8], pfirst[(0, t)] - 10, hard=pfirst[(0, t)] - 3)
    for s in range(8):
        b.op(kread(2, s), "ds", max(bar, ends[3] - 7 + s), G - 10 + s)
    pieces = rest + [("V", 2, i) for i in range(4)] + [("K", 4, i) for i in range(4)]
    if OPT["klead"] == 3 and not OPT["peel0"]:
        pieces += [("K", 5, i) for i in range(4)]
    nin = min(len(pieces), OPT["sdman"])
    add_dma(b, a, pieces[:nin], OPT["sdma0"], OPT["sdmas"], G)
    add_softmax(b, a, 1, ends, G + 12, deferred(a), soft=True, sub={3: neg3})
    b.barrier(bar, [("K", 2)], None)
    if OPT["stamps"] == 1:
        b.inserts[0] = stamp(12)
        b.inserts[bar - 2] = stamp(13)
        b.inserts[bar] = stamp(9)
        b.inserts[G - 1] = stamp(10)
    out, left = b.schedule(show=OPT["show"] == 0, leftover_ok=True)
    out = flush(out, left)
    for p in pieces[nin:]:
        out += dma_piece(*p)
    out.append(wait(vm=[("V", 1)] + ([("K", 3)] if OPT["peel0"] < 2 else []), lg=["w"] + [f"a{AKF + i}" for i in range(32)]))
    out.append(barrier())
    return prof_hooks(out)


def unit_instrs(a, t, h, n, packed):
    x = OO + 32 * t + 16 * h if t < 4 else OO
    mu = []
    for d in range(4):
        seq = []
        if t == 4:
            seq += [valu(f"v_accvgpr_read_b32 v{x + 4 * d + i}, a{AX + 16 * h + 4 * d + i}") for i in range(4)]
        if packed:
            seq += [valu(f"v_pk_mul_f32 {R('v', x + 4 * d + 2 * i, 2)}, {R('v', x + 4 * d + 2 * i, 2)}, {R('v', RL(t) + 2 * i, 2)}") for i in range(2)]
        else:
            seq += [valu(f"v_mul_f32 v{x + 4 * d + i}, v{x + 4 * d + i}, v{RL(t) + i}") for i in range(4)]
        mu.append(seq)
    cv = [[valu(f"v_cvt_pk_bf16_f32 v{x + 8 * e + r}, v{x + 8 * e + r}, v{x + 8 * e + 4 + r}") for r in range(4)] for e in range(2)]
    wr = []
    for r in range(4):
        w = ds_write("ds_write2_b32", vEw, f"v{x + r}, v{x + 8 + r}", f"offset0:{36 * r} offset1:{36 * r + 1}", (("K", 1), 99))
        w.rd |= {f"v{x + r}", f"v{x + 8 + r}"}
        wr.append(w)
    rd, st = [], []
    for i in range(2):
        q = ASP + 16 + 8 * (n % 2) + 4 * i
        rd += [ds_read("ds_read_b64_tr_b16", R("a", q + 2 * u, 2), vEr, f"offset:{8 * 144 * i + 32 * u}") for u in range(2)]
        st.append(vstore("buffer_store_dwordx4", R("a", q, 4), vO, sO, (sT, sT8)[i][t], 128 * h, OPT["pol_o"] if h == 0 or "pol_o1" not in OPT else OPT["pol_o1"]))
    return mu, cv, wr, rd, st


def final_block(a):
    NQ, NP = 5 - a, 4 + a
    b = Block(f"final role {a}")
    b.lazy = OPT["lazy"]
    b.chainy = True
    save = OPT["walign"]
    OPT["walign"] = 0
    barA, barB = OPT["bara"], OPT["barb"]
    F = lambda i: AVF + 4 * i
    KF = lambda i: AKF + 4 * i
    lo = {28: 0, 29: 0, 30: 0, 31: 0}
    lu = {}
    rest = list(range(2, NP))
    f30, f31 = [[F(d)] for d in range(4)], [[F(4 + d)] for d in range(4)]
    ends = {t: qk_chain(b, t) for t in (0, 1, 2)}
    _, pf = add_pv(b, a, [30], 0, f30, lo, lastuse=lu, ts=[0, 1])
    ends[3] = qk_chain(b, 3)
    if a == 0 and OPT["xearly"]:
        ends[4] = qk_chain(b, 4)
    done0, pf1 = add_pv(b, a, [31], 0, f31, lo, tmajor=True, lastuse=lu, ts=[0, 1])
    X1 = len(b.mf) - 1
    if a == 0 and not OPT["xearly"]:
        ends[4] = qk_chain(b, 4)
    lu.update({KF(s): ends[NQ - 1] - 7 + s for s in range(8)})
    pf.update(add_pv(b, a, [30], 0, f30, lo, lastuse=lu, ts=rest, have=[30])[1])
    add_pv(b, a, [28], 1, [[ASP + 4 * d if a == 0 else KF(d)] for d in range(4)], lo, lastuse=lu)
    d2, p2 = add_pv(b, a, [31], 0, f31, lo, tmajor=True, lastuse=lu, ts=rest, have=[31])
    done0.update(d2)
    pf1.update(p2)
    X = len(b.mf) - 1
    pool = [KF(i) for i in range(8)] + [F(i) for i in range(4)] if a == 0 else [KF(4 + i) for i in range(4)] + [F(i) for i in range(4)] + [KF(i) for i in range(4)]
    done1, _ = add_pv(b, a, [29, 30, 31], 1, [pool[3 * d:3 * d + 3] for d in range(4)], lo, lastuse=lu, tmajor=bool(OPT["tm1"]))
    G = len(b.mf)
    bar = lambda t: barA if t < 2 else barB
    for t, ins in preads(30, a):
        b.op(ins, "ds", 0, pf[(30, t)] - 10, hard=pf[(30, t)] - 3)
    for t, ins in preads(31, a):
        b.op(ins, "ds", bar(t), pf1[(31, t)] - 12, hard=pf1[(31, t)] - 3)
    add_deferred(b, a, ends, 30)
    adds = add_softmax(b, a, 31, {t: ends[t] for t in (0, 1)}, barA, [], adds_by=barA - 4)
    adds.update(add_softmax(b, a, 31, {t: ends[t] for t in range(2, NQ)}, barB, [], adds_by=barB - 6))
    L = lambda *t: [(("L", x), 0) for x in t]
    lw = {t: b.op(ds_write("ds_write_addtid_b32", None, f"v{vL[t]}", f"offset:{2 * PXA + t * 256}", L(t)), "ds", 0, bar(t) - 8, [adds[t]], hard=bar(t) - 3, m0="p", setter=msetter()) for t in range(NQ)}
    w1 = b.op(valu(f"v_max3_u32 v{TMP}, v{vL[0]}, v{vL[1]}, v{vL[2]}"), "valu", 0, barB - 12, [adds[0], adds[1], adds[2]], hard=barB - 5)
    w2 = b.op(valu(f"v_max3_u32 v{TMP}, v{TMP}, v{vL[3]}, v{vL[NQ - 1]}"), "valu", 0, barB - 11, [w1, adds[3], adds[NQ - 1]], hard=barB - 4)
    b.op(ds_write("ds_write_addtid_b32", None, f"v{TMP}", f"offset:{2 * PXA + 5 * 256}", L(5)), "ds", 0, barB - 9, [w2], hard=barB - 3, m0="p", setter=msetter())
    b.barrier(barA, None, ["w"])
    b.barrier(barB, None, ["w"])
    base = 80
    lr = {}
    for t in (0, 2):
        lr[t] = lr[t + 1] = b.op(ds_read("ds_read2st64_b32", R("v", LP + t, 2), vPr, f"offset0:{base + a * 20 + t} offset1:{base + a * 20 + t + 1}", L(t, t + 1)), "ds", bar(t), bar(t) - 5)
    f1 = b.op(ds_read("ds_read2st64_b32", R("v", FLG, 2), vPr, f"offset0:{base + 5} offset1:{base + 25}", L(5)), "ds", barB, barB + 8)
    f2 = b.op(ds_read("ds_read2st64_b32", R("v", FLG + 2, 2), vPr2, f"offset0:{base + 5} offset1:{base + 25}", L(5)), "ds", barB, barB + 9)
    if a == 1:
        x1 = b.op(ds_read("ds_read_b32", f"v{LP + 4}", vPr, f"offset:{(base + 4) * 256}", L(4)), "ds", barB, barB + 5)
        lr[4] = b.op(ds_read("ds_read_b32", f"v{vL[4]}", vPr2, f"offset:{(base + 4) * 256}", L(4)), "ds", barB, barB + 6, [x1])
    ck = chain_ops(b, [valu(f"v_max3_u32 v{FLG}, v{FLG}, v{FLG + 1}, v{FLG + 2}"), valu(f"v_max_u32 v{FLG}, v{FLG}, v{FLG + 3}"), valu(f"v_cmp_lt_u32 vcc, {sTHR}, v{FLG}")],
                   0, barB + 30, [(f1, 6), (f2, 6)], hard=G - 4)
    if not OPT["abl"]:
        b.scalar(salu(f"s_cbranch_vccnz L_fallback{a}"), (lambda: ck.gap + 1), G - 1)
    rl = {}
    for t in range(NP):
        A_, B_, C_ = RL(t), RL(t) + 1, LP + t
        lim = X1 if t < 2 else X
        seq = [valu(f"v_add_f32 v{A_}, v{vL[t]}, v{C_}"), valu(f"v_add_f32 v{B_}, v{vL[t]}, v{C_}"), valu(f"v_permlane32_swap_b32 v{A_}, v{B_}"),
               valu(f"v_add_f32 v{C_}, v{A_}, v{B_}"), valu(f"v_add_f32 v{B_}, v{A_}, v{B_}"), valu(f"v_permlane16_swap_b32 v{C_}, v{B_}"),
               valu(f"v_add_f32 v{A_}, v{C_}, v{B_}"), valu(f"v_rcp_f32 v{A_}, v{A_}")]
        rc = chain_ops(b, seq, 0, -400 + 10 * t, [(lr[t], 6)], hard=lim)
        pl = 2 * PXA + (6 + t % 4) * 256
        w = b.op(ds_write("ds_write_addtid_b32", None, f"v{A_}", f"offset:{pl}"), "ds", 0, -390 + 10 * t, [rc], hard=lim, m0="p", setter=msetter())
        rl[t] = b.op(ds_read("ds_read_b128", R("v", RL(t), 4), vRr, f"offset:{pl}"), "ds", 0, -389 + 10 * t, [w], hard=lim)
    units = [(t, 0) for t in range(NP)] + [(t, 1) for t in range(NP)]
    nfast = min(2 + OPT["nfast"], NP)
    nin = min(OPT["nin"], NP - nfast)

    def straight(lst, pend):
        o = []
        for n, (t, h) in lst:
            mu, cv, wr, rd, st = unit_instrs(a, t, h, n, True)
            for k in range(len(mu[0])):
                o += [mu[d][k] for d in range(4)]
            o += cv[0] + cv[1]
            o += pend
            o += wr + rd
            pend = st
        return o, pend
    en = list(enumerate(units))
    b.inserts[X1], pend = straight(en[:2], [])
    prev_rd, prev_st = [], {1: [b.op(x, "st", X1 + 6 + i, X1 - 50 + i, hard=X1 + 12) for i, x in enumerate(pend)]}
    if nfast > 2:
        b.inserts[X], pend = straight(en[2:nfast], [])
        prev_st[(nfast - 1) % 2] = [b.op(x, "st", X + 6 + i, X + i, hard=G - 1) for i, x in enumerate(pend)]
    if OPT["tm1"]:
        assert nfast == NP
        for x in prev_st[(nfast - 1) % 2]:
            x.hard = X + 12
        for t in range(NP - 1):
            at = max(done1[(t, 4)], done1[(t, 7)]) + 4
            if OPT["tm1"] == 1:
                b.inserts[at], pend = straight(en[NP + t:NP + t + 1], [])
            else:
                mu, cv, wr, rd, pend = unit_instrs(a, t, 1, NP + t, False)
                at = min(at + 7, G - 1)
                mo = [[b.op(x, "valu", done1[(t, 4 + d)] + 4, at - 20 + 3 * d + i // 2, hard=at) for i, x in enumerate(mu[d])] for d in range(4)]
                for e in range(2):
                    for r in range(4):
                        b.op(cv[e][r], "valu", 0, at - 15 + 6 * e, [mo[2 * e][r], mo[2 * e + 1][r]], hard=at)
                b.inserts[at] = wr + rd
            for i, x in enumerate(pend):
                b.op(x, "st", at + 6 + i, at - 50 + i, hard=at + 11)
        nin = 0
        nfast = 2 * NP - 1
    if OPT["stamps"] == 2:
        b.inserts[barA] = stamp(12)
        b.inserts[X1] = stamp(13) + b.inserts[X1]
        b.inserts[barB] = stamp(9)
        b.inserts[X] = stamp(10) + b.inserts.get(X, [])
    assert nin == 0
    out, left = b.schedule(show=OPT["show"] == 31, leftover_ok=True)
    OPT["walign"] = save
    out += stamp(5)
    pend = []
    for o in left:
        if o.ins.kind == "vst":
            pend.append(o.ins)
        else:
            if any(o.ins.wr & x.rd for x in pend):
                out += pend
                pend = []
            out.append(o.ins)
    o2, pend = straight(en[nfast + nin:], pend)
    return out + o2 + pend


def qload(k, i):
    return [vload("buffer_load_dwordx4", R("v", RAW(k, i), 4), vQl, sQ, sT[k], 512 * i, OPT["pol_q"], tag=("Q", k, i))]


def entry():
    o = []
    A = lambda t: o.append(salu(t))
    V = lambda t: o.append(valu(t))
    t0, t1, t2, t3, t4 = (f"v{TMP + i}" for i in range(5))
    A("s_cmp_ge_u32 s2, 256")
    A("s_cbranch_scc1 L_end")
    o.append(raw("s_load_dwordx8 s[4:11], s[0:1], 0"))
    if OPT["stamps"]:
        o.append(raw("s_load_dwordx2 s[56:57], s[0:1], 40"))
        o.append(raw("s_memrealtime s[58:59]"))
    o += stamp(0)
    o.append(raw("s_getpc_b64 s[44:45]"))
    o.append(label("L_pc"))
    A("s_and_b32 s45, s45, 0xffff")
    o.append(raw("s_mov_b32 s46, L_end-L_pc"))
    A("s_mov_b32 s47, 0x20000")
    A("s_lshr_b32 s54, s2, 3")
    A("s_lshl_b32 s55, s54, 7")
    V(f"v_lshl_add_u32 {t0}, v0, 12, s55")
    o.append(vload("buffer_load_dword", "v15", t0, sC, "0"))
    V(f"v_lshrrev_b32 {t1}, 6, v0")
    A(f"s_mov_b64 {sKEEP}, 0")
    V(f"v_readfirstlane_b32 {sW}, {t1}")
    A(f"s_mov_b32 {sTHR}, {(127 + OPT['thr']) << 23:#x}")
    if OPT["prof"]:
        A("s_mov_b32 s3, 0")
    A("s_and_b32 s53, s2, 7")
    A("s_lshl_b32 s53, s53, 3")
    A("s_lshr_b32 s55, s2, 5")
    A("s_add_u32 s53, s53, s55")
    A("s_and_b32 s54, s54, 3")
    A("s_lshl_b32 s55, s53, 2")
    A("s_add_u32 s55, s55, s54")
    A("s_mul_i32 s37, s55, 73728")
    A("s_lshl_b32 s53, s53, 19")
    A(f"s_lshr_b32 {sA}, {sW}, 1")
    A(f"s_and_b32 {sB}, {sW}, 1")
    A(f"s_add_u32 s54, {sW}, 1")
    A("s_and_b32 s55, s54, 1")
    A("s_lshl_b32 s55, s55, 3")
    A("s_lshr_b32 s54, s54, 1")
    A("s_and_b32 s54, s54, 1")
    A("s_add_u32 s54, s54, s55")
    A("s_mul_i32 s54, s54, 1040")
    A(f"s_add_u32 {sKm}, s54, {KRING}")
    A("s_mov_b32 s48, 8192")
    A("s_mov_b32 s49, 16384")
    A("s_mov_b32 s50, 24576")
    A(f"s_mov_b32 {sX}, 65536")
    for srd, n in ((16, 524288), (12, 73728), (20, 524288), (24, 73728)):
        A(f"s_mov_b32 s{srd + 2}, {n}")
        A(f"s_mov_b32 s{srd + 3}, 0x20000")

    def src_offsets():
        V(f"v_and_b32 {t0}, 31, v0")
        V(f"v_lshlrev_b32 {t0}, 4, {t0}")
        V(f"v_bfe_u32 {t2}, v0, 5, 1")
        A(f"s_lshl_b32 s54, {sW}, 11")
        V(f"v_add_u32 {t1}, s54, {t0}")
        V(f"v_lshl_add_u32 {vKd}, {t2}, 13, {t1}")
        V(f"v_lshl_add_u32 {vQl}, {t2}, 15, {t1}")
        V(f"v_lshl_add_u32 {vQlx}, {t2}, 9, {t1}")
        if OPT["rot"]:
            A("s_and_b32 s54, s2, 7")
            A(f"s_mul_i32 s54, s54, {OPT['rot'] // 100}")
            A("s_lshr_b32 s55, s2, 5")
            A(f"s_mul_i32 s55, s55, {OPT['rot'] % 100}")
            A("s_add_u32 s54, s54, s55")
            A("s_and_b32 s54, s54, 31")
            A(f"s_lshl_b32 {sKo}, s54, 14")
            A(f"s_mov_b32 {sVo}, {sKo}")
        else:
            A(f"s_mov_b32 {sKo}, 0")
            A(f"s_mov_b32 {sVo}, 0")
    src_offsets()
    o.append(raw("s_waitcnt lgkmcnt(0)"))
    o += stamp(8)
    for srd, ptr, off in ((16, 6, "s53"), (12, 4, "s37"), (20, 8, "s53"), (24, 10, "s37")):
        A(f"s_add_u32 s{srd}, s{ptr}, {off}")
        A(f"s_addc_u32 s{srd + 1}, s{ptr + 1}, 0")
        A(f"s_and_b32 s{srd + 1}, s{srd + 1}, 0xffff")
    o.append(label("L_restart"))
    if OPT["glds"]:
        A(f"s_mov_b64 {sKg}, s[16:17]")
        A(f"s_mov_b64 {sVg}, s[20:21]")
    for i in range(4):
        o += dma_piece("K", 0, i)
    for i in range(2):
        o.append(vload("buffer_load_dwordx4", R("v", RAWX + 4 * i, 4), vQlx, sQ, sX, 1024 * i, OPT["pol_q"], tag=("Q", 4, i)))
    if OPT["touch"] & 1:
        o.append(I("buffer_load_dword v14, off, s[20:23], 0", "vld", regs(sV), ["v14"]))
    if OPT["touch"] & 2:
        o.append(I("buffer_load_dword v14, off, s[24:27], 0", "vld", regs(sO), ["v14"]))
    if OPT["thr1"] or OPT["thr2"] or OPT["stamps"]:
        o.append(raw("s_getreg_b32 s37, hwreg(HW_REG_XCC_ID, 0, 4)" if not OPT.get("thrkey") else "s_lshr_b32 s37, s2, 5"))
    if OPT["thr1"]:
        o.append(raw(f"s_lshr_b32 s54, {OPT['thr1']}, s37\n    s_bitcmp1_b32 s54, 0\n    s_cbranch_scc1 L_thr1\nL_thr1b:"))
    o.append(barrier())
    for i in range(4):
        o += qload(0, i)
    if OPT["stamps"] == 4:
        o += stamp(9)
    A(f"s_lshl_b32 s54, {sB}, 11")
    A(f"s_lshl_b32 s55, {sA}, 13")
    A("s_add_u32 s54, s54, s55")
    V(f"v_lshl_add_u32 {vVd}, {t2}, 12, {t0}")
    V(f"v_add_u32 {vVd}, s54, {vVd}")
    A(f"s_add_u32 s54, {sKm}, {3 * SLOT}")
    V(f"v_lshl_add_u32 {vQw}, {t2}, 9, {t0}")
    V(f"v_add_u32 {vQw}, s54, {vQw}")
    V(f"v_add_u32 {vQw2}, {4 * SLOT}, {vQw}")
    A(f"s_sub_u32 s54, {sKm}, {KRING - PXA}")
    V(f"v_mul_u32_u24 {vQwx}, 2080, {t2}")
    V(f"v_add3_u32 {vQwx}, {vQwx}, {t0}, s54")
    A(f"s_mul_i32 s54, {sB}, 8320")
    A(f"s_lshl_b32 s55, {sA}, 10")
    A("s_add_u32 s54, s54, s55")
    A(f"s_add_u32 {sVm}, s54, {VRING}")
    A(f"s_mul_i32 {sPm}, {sW}, 2560")
    V(f"v_and_b32 {t0}, 15, v0")
    V(f"v_bfe_u32 {t1}, v0, 4, 1")
    V(f"v_lshlrev_b32 {t3}, 5, {t1}")
    V(f"v_lshl_add_u32 {t3}, {t2}, 4, {t3}")
    V(f"v_add_u32 {t4}, 4, {t0}")
    V(f"v_bfe_u32 {vKr0}, {t4}, 3, 1")
    V(f"v_and_b32 {t4}, 7, {t4}")
    V(f"v_lshl_add_u32 {vKr0}, {t4}, 1, {vKr0}")
    V(f"v_mul_u32_u24 {vKr0}, 1040, {vKr0}")
    V(f"v_add_u32 {vKr0}, {vKr0}, {t3}")
    V(f"v_add_u32 {vQrx}, {PXA}, {vKr0}")
    V(f"v_add_u32 {vKr0}, {KRING}, {vKr0}")
    A(f"s_lshl_b32 s54, {sB}, 9")
    V(f"v_add_u32 {vKr}, s54, {vKr0}")
    A(f"s_lshl_b32 s54, {sA}, 9")
    A(f"s_add_u32 s54, s54, {3 * SLOT}")
    V(f"v_add_u32 {vQr}, s54, {vKr0}")
    V(f"v_add_u32 {vQr2}, {4 * SLOT}, {vQr}")
    A(f"s_lshl_b32 s54, {sB}, 9")
    A("s_sub_u32 s54, 512, s54")
    V(f"v_add_u32 {vKr0}, s54, {vKr0}")
    V(f"v_bfe_u32 {t4}, v0, 2, 2")
    V(f"v_mul_u32_u24 {vV0}, 2064, {t4}")
    V(f"v_mul_u32_u24 {t4}, 8320, {t1}")
    V(f"v_add_u32 {vV0}, {vV0}, {t4}")
    V(f"v_lshl_add_u32 {vV0}, {t2}, 9, {vV0}")
    V(f"v_bfe_u32 {t4}, v0, 1, 1")
    V(f"v_lshl_add_u32 {vV0}, {t4}, 6, {vV0}")
    V(f"v_and_b32 {t4}, 1, v0")
    V(f"v_lshl_add_u32 {vV0}, {t4}, 3, {vV0}")
    A(f"s_mul_i32 s54, {sB}, {256 + 1024}")
    A(f"s_add_u32 s54, s54, {VRING}")
    A(f"s_mul_i32 s55, {sB}, {1024 - 256}")
    A(f"s_sub_u32 s55, {VRING + 1024}, s55")
    V(f"v_add_u32 {vV1}, s55, {vV0}")
    V(f"v_add_u32 {vV0}, s54, {vV0}")
    V(f"v_and_b32 {t4}, 63, v0")
    V(f"v_lshlrev_b32 {t4}, 2, {t4}")
    A(f"s_mul_i32 s54, {sB}, 2560")
    A("s_sub_u32 s55, 2560, s54")
    V(f"v_add_u32 {vPr2}, s54, {t4}")
    V(f"v_add_u32 {vPr}, s55, {t4}")
    A(f"s_mul_i32 s55, {sW}, 2304")
    A(f"s_add_u32 s55, s55, {KRING + SLOT}")
    V(f"v_bfe_u32 {t4}, v0, 4, 2")
    V(f"v_mul_u32_u24 {vEw}, {4 * 144}, {t4}")
    V(f"v_lshl_add_u32 {vEw}, {t0}, 3, {vEw}")
    V(f"v_add_u32 {vEw}, s55, {vEw}")
    V(f"v_lshl_add_u32 {vRr}, {t4}, 4, {sPm}")
    V(f"v_bfe_u32 {t1}, v0, 1, 1")
    V(f"v_lshl_add_u32 {t4}, {t4}, 1, {t1}")
    V(f"v_mul_u32_u24 {vEr}, 144, {t4}")
    V(f"v_and_b32 {t1}, 1, v0")
    V(f"v_lshl_add_u32 {vEr}, {t1}, 6, {vEr}")
    V(f"v_bfe_u32 {t1}, v0, 2, 2")
    V(f"v_lshl_add_u32 {vEr}, {t1}, 3, {vEr}")
    V(f"v_add_u32 {vEr}, s55, {vEr}")
    V(f"v_bfe_u32 {t4}, v0, 3, 3")
    V(f"v_and_b32 {t1}, 7, v0")
    V(f"v_lshlrev_b32 {t1}, 4, {t1}")
    A(f"s_lshl_b32 s54, {sA}, 15")
    A(f"s_lshl_b32 s55, {sB}, 8")
    A("s_add_u32 s55, s55, s54")
    A("s_sub_u32 s51, 65536, s54")
    V(f"v_lshl_add_u32 {vO}, {t4}, 9, {t1}")
    V(f"v_add_u32 {vO}, s55, {vO}")
    for t in range(5):
        A(f"s_add_u32 {sT8[t]}, {sT[t]}, 4096" if t else f"s_mov_b32 {sT8[0]}, 4096")
    c = struct.unpack("<I", struct.pack("<f", math.log2(math.e) / 16.0))[0]
    A(f"s_mov_b32 s40, {c:#x}")
    A(f"s_mov_b32 s41, {c:#x}")
    A(f"s_mov_b32 {sMASK}, 0xffff0000")
    for t in range(5):
        V(f"v_mov_b32 v{vL[t]}, 0")
    for t in range(4):
        for i in range(8):
            V(f"v_mov_b64 {R('v', OO + 32 * t + 16 + 2 * i, 2)}, 0")
    for i in range(16):
        V(f"v_accvgpr_write_b32 a{AX + 16 + i}, 0")
    if OPT["stamps"] == 4:
        o += stamp(10)
    A(f"s_cmp_eq_u32 {sA}, 1")
    A("s_cbranch_scc1 L_role1")
    o2 = []
    o, keep = o2, o
    src_offsets()
    return keep, o2


def scale4(src):
    o = []
    T = SCT
    for i in range(4):
        o.append(valu(f"v_lshlrev_b32 v{T + 2 * i}, 16, v{src + i}"))
        o.append(valu(f"v_and_b32 v{T + 2 * i + 1}, {sMASK}, v{src + i}"))
    for i in range(4):
        o.append(valu(f"v_pk_mul_f32 {R('v', T + 2 * i, 2)}, {R('v', T + 2 * i, 2)}, {sSC}"))
    for i in range(4):
        o.append(valu(f"v_cvt_pk_bf16_f32 v{src + i}, v{T + 2 * i}, v{T + 2 * i + 1}"))
    return o


QST = {0: (("V", 1), vQw, vQr, 2 * SLOT), 1: (("K", 3), vQw, vQr, 0), 2: (("V", 2), vQw, vQr, 3 * SLOT), 3: (("V", 3), vQw2, vQr2, 0)}


def stage_write(k, i):
    if k == 4:
        return ds_write("ds_write_b128", vQwx, R("v", RAWX + 4 * i, 4), f"offset:{4160 * i}", QXTAG)
    reg, wb, rb, off = QST[k]
    return ds_write("ds_write_b128", wb, R("v", RAW(k, i), 4), f"offset:{off + 2080 * i}", (reg, -1))


def stage_load(k, i, feed):
    src = RAWX + 4 * i if k == 4 else RAW(k, i)
    return [wait(vm=[("Q", k, i)])] + feed(("Q", k, i)) + scale4(src) + [stage_write(k, i)]


def stage_in(k, feed):
    o = []
    for i in range(2 if k == 4 else 4):
        o += stage_load(k, i, feed)
    return o


def stage_read(k):
    if k == 4:
        return [ds_read("ds_read_b128", Qf(4, s), vQrx, f"offset:{64 * s}", QXTAG) for s in range(8)]
    reg, wb, rb, off = QST[k]
    return [ds_read("ds_read_b128", Qf(k, s), rb, f"offset:{off + 64 * s}", (reg, -1)) for s in range(8)]


def stage_compute(t):
    mf, m1, m2, cm, sb, ex, cv, ad = first_tile_instrs(t)
    o = mf + m1 + m2 + cm + sb + ex + cv
    if t == 4:
        o += [msetter(), ad[0]] + [pwrite(0, t, h) for h in range(2)] + ad[1:]
    else:
        o += ad
    return o


def prologue(a):
    o = [label(f"L_role{a}")] + aux_setup(a) + [salu(f"s_mov_b32 {sCNT}, {(24 if OPT['early'] else 28) // 4 - (1 if OPT['peel0'] else 0)}")]
    seq = {0: "Q1 Q2 Q3 K1 V0 K2 V1 K3", 1: "Q1 K1 Q2 V0 Q3 K2 V1 K3", 2: "Q1 Q2 K1 Q3 V0 K2 V1 K3", 3: "K1 Q1 V0 Q2 K2 Q3 V1 K3", 4: "Q1 Q2 K1 V0 Q3 K2 V1 K3", 5: "K1 Q1 Q2 V0 Q3 K2 V1 K3"}[OPT["order"]]
    full = [("K", 0, i) for i in range(4)] + [("Q", 4, i) for i in range(2)] + [("Q", 0, i) for i in range(4)]
    order = [(x[0], int(x[1]), i) for x in seq.split() for i in range(4)]
    if OPT["split"]:
        n = 0
        while n + 8 <= len(order):
            if order[n][0] != "Q" and order[n + 4][0] == "Q":
                sp = OPT["split"]
                order[n:n + 8] = order[n + 4:n + 4 + sp] + order[n:n + 4] + order[n + 4 + sp:n + 8]
                n += 4
            n += 4
    full += order

    def feed(landed):
        r = []
        stage = -1 if landed[1] == 4 else landed[1]
        while order and full.index(order[0]) <= full.index(landed) + OPT["win"]:
            x = order[0]
            if (x[:2] == ("V", 1) and stage < 2) or (x[:2] == ("K", 3) and stage < 3) or (landed == ("Q", 3, 3) and not OPT["lastfeed"]):
                break
            order.pop(0)
            r += qload(x[1], x[2]) if x[0] == "Q" else dma_piece(*x)
        return r
    if OPT["thr2"]:
        o.append(raw(f"s_lshr_b32 s54, {OPT['thr2']}, s37\n    s_bitcmp1_b32 s54, 0\n    s_cbranch_scc1 L_thr2{a}\nL_thr2b{a}:"))
    o += stage_in(4, feed)
    o.append(wait(vm=[("K", 0)], lg="all"))
    o.append(barrier())
    o += stamp(1)
    for s in range(8):
        o.append(kread(0, s, vKr, R("a", AVF + 4 * s, 4)))
    if a == 0:
        o += stage_read(4)
    for s in range(8):
        o.append(kread(0, s, vKr0, R("a", ASP + 4 * s, 4)))
    ps = iter([3, 4, 5, 6, 7, 8, 9, 10, 11, 12, 13, 14])
    pst = lambda: stamp(next(ps), 3)
    o += pst()
    o += stage_in(0, feed)
    for k in range(4):
        o += pst()
        o.append(wait(vm={OPT["k1stage"]: [("K", 1)], 3: [("V", 0)]}.get(k), lg="all"))
        o.append(barrier())
        if k < 3:
            o += pst() + pst()
            o += stage_block(a, k, feed)
    o += stamp(2)
    return o, order


def aux_setup(a):
    o = []
    if OPT["pf31"]:
        n = (32 - OPT["pft0"]) * 8
        o.append(salu("s_lshr_b32 s54, s2, 3"))
        o.append(salu("s_and_b32 s54, s54, 3"))
        o.append(salu("s_lshl_b32 s54, s54, 2"))
        o.append(salu(f"s_add_u32 s54, s54, {sW}"))
        o.append(salu(f"s_mul_i32 s54, s54, {n * 128}"))
        o.append(salu(f"s_add_u32 s54, s54, {(OPT['pft0'] * 16384 - (0 if OPT['early'] else ((OPT['pf31'] - 1) // 4) << 24)) & 0xffffffff:#x}"))
        o.append(valu(f"v_and_b32 {vAuxT}, 63, v0"))
        o.append(valu(f"v_min_u32 {vAuxT}, {n - 1}, {vAuxT}"))
        o.append(valu(f"v_lshl_add_u32 {vAuxT}, {vAuxT}, 7, s54"))
    if OPT["aux"]:
        o.append(salu("s_lshr_b32 s54, s2, 3"))
        o.append(salu("s_lshl_b32 s55, s54, 7"))
        o.append(valu(f"v_lshl_add_u32 {vAuxC}, v0, 12, s55"))
    if OPT["aux"] & 2:
        piece = (32 - OPT["auxt0"]) * 16384 // OPT["auxn"]
        before = len([j for j in range(1, OPT["auxend"] + 1) if (j - OPT["auxend"]) % OPT["auxper"] == 0]) - OPT["auxn"]
        o.append(salu("s_and_b32 s54, s54, 3"))
        o.append(salu(f"s_mul_i32 s54, s54, {piece // 4}"))
        o.append(salu(f"s_add_u32 s54, s54, {(a * piece // 8 - before * piece) & 0xffffffff:#x}"))
        o.append(valu(f"v_and_b32 {vAuxT}, 63, v0"))
        o.append(valu(f"v_cmp_le_u32 vcc, {piece // 1024}, {vAuxT}"))
        o.append(valu(f"v_lshl_add_u32 {vAuxT}, {vAuxT}, 7, s54"))
        o.append(valu(f"v_cndmask_b32 {vAuxT}, {vAuxT}, 2.0, vcc"))
        o.append(salu(f"s_cmp_eq_u32 {sB}, 0"))
        o.append(salu("s_cselect_b32 s88, s16, s20"))
        o.append(salu("s_cselect_b32 s89, s17, s21"))
        o.append(salu(f"s_add_u32 s88, s88, {OPT['auxt0'] * 16384}"))
        o.append(salu("s_addc_u32 s89, s89, 0"))
        o.append(salu(f"s_mov_b32 s90, {(32 - OPT['auxt0']) * 16384}"))
        o.append(salu("s_mov_b32 s91, 0x20000"))
        if OPT["holes"]:
            o.append(salu("s_mov_b64 s[84:85], s[88:89]"))
            o.append(salu("s_mov_b32 s86, 0"))
            o.append(salu("s_mov_b32 s87, 0x20000"))
    return o


def finish(a):
    o = stamp(6)
    if OPT.get("amp"):
        lo, hi, base = OPT["amp"] // 100, OPT["amp"] % 100, OPT["ampbase"]
        o.append(raw("s_waitcnt vmcnt(0)"))
        o += stamp(7)
        o.append(raw(f"s_waitcnt lgkmcnt(0)\ns_and_b32 s95, s2, {OPT.get('ampmask', 255)}\ns_cmp_lg_u32 s95, {OPT.get('ampwg', 40)}\ns_cbranch_scc1 L_end\ns_sub_u32 s94, s{60 + 2 * hi}, s{60 + 2 * lo}\ns_sub_u32 s94, s94, {base}\ns_max_i32 s94, s94, 0\ns_mul_i32 s94, s94, {OPT.get('amprt', 1)}\ns_min_u32 s94, s94, 20000\ns_add_u32 s94, s94, 6000"))
        o.append(raw(f"L_amp{a}:\ns_memrealtime s[92:93]\ns_waitcnt lgkmcnt(0)\ns_sub_u32 s92, s92, s58\ns_cmp_lt_u32 s92, s94\ns_cbranch_scc1 L_amp{a}"))
    elif OPT["stamps"]:
        o.append(raw("s_waitcnt vmcnt(0)"))
        o += stamp(7)
        o.append(raw("s_memrealtime s[92:93]"))
        o.append(raw("s_waitcnt lgkmcnt(0)"))
        o.append(raw("s_mov_b32 s96, s56\ns_and_b32 s97, s57, 0xffff\ns_mov_b32 s98, 0x100000\ns_mov_b32 s99, 0x20000"))
        o.append(raw(f"s_lshl_b32 s94, s2, 2\ns_add_u32 s94, s94, {sW}\ns_lshl_b32 s94, s94, 7"))
        for i in range(16):
            o.append(raw(f"v_mov_b32 v{64 + i}, s{60 + 2 * i}"))
        o.append(raw("v_mov_b32 v80, s58\nv_mov_b32 v81, s92\nv_mov_b32 v82, s37\nv_mov_b32 v83, 0\nv_mov_b32 v84, 0"))
        if OPT["prof"]:
            o.append(raw("v_lshlrev_b32 v85, 2, v0\ns_lshl_b32 s95, s2, 10\ns_add_u32 s95, s95, 0x40000\nbuffer_store_dword v127, v85, s[96:99], s95 offen"))
        o.append(raw("s_mov_b64 exec, 1"))
        for i in range(5):
            o.append(raw(f"buffer_store_dwordx4 v[{64 + 4 * i}:{67 + 4 * i}], v84, s[96:99], s94 offen offset:{16 * i}"))
    o.append(raw("s_endpgm"))
    return o


def fallback(a, redo):
    NQ = 5 - a
    M, AD = PP, PP + 8
    o = [label(f"L_fallback{a}")]
    o.append(raw("s_waitcnt vmcnt(0) lgkmcnt(0)"))
    o.append(nop(7))
    o.append(salu("s_mov_b32 s18, 524288"))
    o.append(valu(f"v_and_b32 v{AD}, 15, v0"))
    o.append(valu(f"v_lshlrev_b32 v{AD}, 9, v{AD}"))
    o.append(valu(f"v_bfe_u32 v{AD + 1}, v0, 4, 1"))
    o.append(valu(f"v_lshl_add_u32 v{AD}, v{AD + 1}, 5, v{AD}"))
    o.append(valu(f"v_bfe_u32 v{AD + 1}, v0, 5, 1"))
    o.append(valu(f"v_lshl_add_u32 v{AD}, v{AD + 1}, 4, v{AD}"))
    for t in range(NQ):
        o.append(valu(f"v_mov_b32 v{M + t}, 0xff800000"))
    o.append(salu("s_mov_b32 s54, 0"))
    o.append(label(f"L_fbloop{a}"))
    for s in range(8):
        o.append(vload("buffer_load_dwordx4", Kf(s), f"v{AD}", sK, "s54", 64 * s))
    for t in range(NQ):
        for s in range(8):
            o.append(mfma(S(t), Kf(s), Qf(t, s), "0" if s == 0 else S(t)))
    for t in range(NQ):
        s0 = SS + 4 * t
        o.append(valu(f"v_max3_f32 v{M + t}, v{s0}, v{s0 + 1}, v{M + t}"))
        o.append(valu(f"v_max3_f32 v{M + t}, v{s0 + 2}, v{s0 + 3}, v{M + t}"))
    o.append(salu("s_add_u32 s54, s54, 8192"))
    o.append(salu("s_cmp_lt_u32 s54, 524288"))
    o.append(salu(f"s_cbranch_scc1 L_fbloop{a}"))
    for t in range(NQ):
        o += xlane("v_max_f32", M + t, AD + 1)
        for r in range(4):
            o.append(valu(f"v_sub_f32 v{NEGM + 4 * t + r}, 0, v{M + t}"))
    o.append(salu(f"s_mov_b64 {sKEEP}, -1"))
    o.append(salu(f"s_mov_b32 {sTHR}, -1"))
    o += redo
    o.append(barrier())
    o.append(salu("s_branch L_restart"))
    return o


def ablate(lines, lo, hi):
    ab = OPT["abl"]
    for n in range(lo, hi):
        l = lines[n]
        if (ab & 1 and l.endswith(" lds")) or (ab & 2 and l == "s_barrier") or (ab & 4 and l.startswith("ds_write")) or (ab & 8 and l.startswith("ds_read2")) \
           or (ab & 16 and l.startswith("ds_read_b64_tr")) or (ab & 32 and l.startswith("ds_read_b128")) or (ab & 64 and l.startswith("s_waitcnt")) \
           or (ab & 4096 and l.startswith("v_add_f32")):
            lines[n] = "; ablated"
        if ab & 8192 and l.startswith("v_add_f32") and not l.startswith("v_add_f32 v12"):
            lines[n] = "; ablated"
        if ab & 16384 and l.startswith("ds_read_b128 a[16") and l.split()[1] in ("a[160:163],", "a[168:171],"):
            k = n + 1
            while not lines[k].startswith("v_mfma"):
                k += 1
            pb = int(re.findall(r"v\[(\d+):", lines[k].split(",")[2] + " v[64:")[0]) & ~15
            off, acc = (2, 240) if "160" in l else (10, 244)
            lines[k] = f"v_mfma_f32_16x16x32_bf16 a[{acc}:{acc + 3}], a[248:251], v[{pb + off}:{pb + off + 3}], a[{acc}:{acc + 3}]\n    " + lines[k]
        if ab & 32768 and l.startswith("v_mfma"):
            p = [x.strip() for x in l.split(None, 1)[1].split(",")]
            if re.match(r"a\[(19[2-9]|2[01]\d|22[0-3]):", p[1]):
                lines[n] = f"v_mfma_f32_16x16x32_bf16 {p[0]}, {p[2]}, {p[1]}, {p[3]}"
        if ab & 65536 and l.startswith("v_mfma"):
            p = [x.strip() for x in l.split(None, 1)[1].split(",")]
            if re.match(r"a\[(1[678]\d):", p[1]):
                lines[n] = f"v_mfma_f32_16x16x32_bf16 {p[0]}, {p[2]}, {p[1]}, {p[3]}"
        if ab & 256 and l.startswith("s_waitcnt vmcnt"):
            lines[n] = re.sub(r"vmcnt\(\d+\) ", "", l)


def abl_init():
    if not OPT["abl"] & 16384:
        return []
    full = OPT.get("onesfull")
    return [raw("v_and_b32 v16, 15, v0\nv_mov_b32 v17, 0x3f803f80\nv_cmp_eq_u32 vcc, 0, v16\ns_nop 1\nv_cndmask_b32 v20, 0, v17, vcc\nv_cmp_eq_u32 vcc, 1, v16\ns_nop 1\nv_cndmask_b32 v16, 0, v17, vcc\n"
                + ("v_mov_b32 v20, v17\nv_mov_b32 v16, v17\n" if full else "")
                + "v_accvgpr_write_b32 a248, v20\nv_accvgpr_write_b32 a249, v20\nv_accvgpr_write_b32 a250, v16\nv_accvgpr_write_b32 a251, v16\n" + "\n".join(f"v_accvgpr_write_b32 a{240 + i}, 0" for i in range(8)))]


def build():
    j0, j1 = (5 if OPT["peel0"] else 1), (25 if OPT["early"] else 29)
    ent, redo = entry()
    text, evs = [], []
    for a in (0, 1):
        pro, rest = prologue(a)
        tr = list(ent) + [raw(";;ROLE")] + pro + [raw(";;IV 0")] + start_block(a, rest) + stamp(3) + abl_init()
        for j in range(1, 30):
            tr.append(raw(f";;IV {j}"))
            tr += interval(j, a, f"L_loop{a}" if (j0 <= j < j1 and (j - j0) % 4 == 3) else None)
        tr.append(raw(";;IV 30"))
        if OPT["prof"]:
            tr.append(raw("s_nop 4\n    v_mov_b32 v1, v17"))
        tr += stamp(4) + final_block(a)
        if OPT["prof"]:
            tr.append(raw("v_mov_b32 v127, v1"))
        tr += finish(a)
        out, ev, ins = resolve(tr)
        evs += ev
        lines = [x.text for x in out]
        k = lines.index(";;ROLE")
        if a == 0:
            text += lines[:k]
        idx = {j: lines.index(f";;IV {j}") for j in range(31)}
        for pos, w, c in ins:
            if idx[0] < pos and (OPT["show"] >= 0 or idx[1] < pos < idx[30]):
                print(f"; auto-inserted in role {a} @{pos - idx[0]}: {w} before {c}", file=sys.stderr)
        seg = lambda j: lines[idx[j] + 1: idx[j + 1]]
        for j in range(j0 + 4, j1):
            jb = j0 + (j - j0) % 4
            assert len(seg(j)) == len(seg(jb)), f"loop body not periodic at {j} role {a}"
            for n, (x, y) in enumerate(zip(seg(j), seg(jb))):
                if x != y:
                    assert re.sub(r"\d+", "", x) == re.sub(r"\d+", "", y) and x.startswith("s_waitcnt"), (j, a, x, y)
                    it = iter(min(int(p), int(q)) for p, q in zip(re.findall(r"\d+", x), re.findall(r"\d+", y)))
                    lines[idx[jb] + 1 + n] = re.sub(r"\d+", lambda m: str(next(it)), x)
        if OPT["abl"]:
            ablate(lines, idx[1], idx[30])
        text += lines[k + 1: idx[j0]]
        text.append(f".p2align {OPT['lalign']}")
        text.append(f"L_loop{a}:")
        text += lines[idx[j0]: idx[j0 + 4]]
        text += lines[idx[j1]:]
        fb, _, _ = resolve(fallback(a, redo))
        text += [x.text for x in fb]
        if OPT["thr2"]:
            text += [f"L_thr2{a}:", "s_waitcnt vmcnt(0)", f"s_branch L_thr2b{a}"]
    if OPT["thr1"]:
        text += ["L_thr1:", "s_waitcnt vmcnt(0)"] + [f"s_sleep {OPT.get('thrs')}"] * (1 if OPT.get("thrs") else 0) + ["s_branch L_thr1b"]
    assert check_lds(evs) == 0
    hdr = open("header.txt").read()
    body = "\n".join(("" if l.endswith(":") or l.startswith(".") else "    ") + l.replace(";;IV", "; interval") for l in text)
    return f"""{hdr}; @launch grid=(256,1,1) block=(256,1,1) lds={LDS_BYTES}
.amdgcn_target "amdgcn-amd-amdhsa--gfx950"
.text
.globl {KN}
.p2align 8
.type {KN},@function
{KN}:
{body}
L_end:
    s_endpgm
.section .rodata,"a"
.p2align 6
.amdhsa_kernel {KN}
  .amdhsa_next_free_vgpr 512
  .amdhsa_next_free_sgpr 102
  .amdhsa_accum_offset 256
  .amdhsa_group_segment_fixed_size 0
  .amdhsa_kernarg_size 48
  .amdhsa_user_sgpr_count 2
  .amdhsa_user_sgpr_kernarg_segment_ptr 1
  .amdhsa_system_sgpr_workgroup_id_x 1
.end_amdhsa_kernel
"""


if __name__ == "__main__":
    for kv in sys.argv[1:]:
        k, v = kv.split("=", 1)
        if k.startswith("pol"):
            OPT[k] = "".join(" " + x for x in v.split("+") if x and x != "d")
        else:
            OPT[k] = int(v)
    print(build())
```

```python
import sys, struct, math, re
from asmlib import *
from sched import Block

KN = "standalone__gqa_softmax__near_ridge_kernel"
OPT = dict(abl=0, pol_kv="", pol_q="", pol_o=" sc0 sc1", stamps=0, prof=0, show=-1, thr=30,
           dma0=1, dmastep=8, dmastag=4, klead=3, walign=0, wq=1, feed0=4, feedl=1, prefeed=3,
           bar0=26, bara=30, barb=69, lalign=3, lazy=16, order=1, win=11, aux=1, early=0, auxj=3, sdma0=1, sdmas=3, sdman=8, lastfeed=0, k1stage=2, touch=0, qfirst=1, ibar=0, stouch=0, pvt=0, defer=0, pvy=0, qkz=1, tm1=2, xearly=1, glds=0, peel0=0, bark=49, thr1=0, thr2=0, rot=0, nunder=0, prewait=0, ulo=2, ulo2=8, split=0, mergetail=1, rwin=1, pf31=25, pft0=29, pfgap=0, holes=0, holew=1, auxper=2, auxn=4, auxend=24, auxt0=28, nfast=3, nin=2)

PXA = 10240
KRING = 3 * PXA
SLOT = 16640
VRING = KRING + 4 * SLOT
LDS_BYTES = VRING + 4 * SLOT

sQ, sK, sV, sO, sC = "s[12:15]", "s[16:19]", "s[20:23]", "s[24:27]", "s[44:47]"
sW, sA, sB, sCNT, sKo, sVo, sKm, sVm, sPm, sMASK = "s28", "s29", "s30", "s31", "s32", "s33", "s34", "s35", "s36", "s39"
sSC, sKEEP = "s[40:41]", "s[42:43]"
sT = ["0", "s48", "s49", "s50", "s51"]
sT8 = ["s4", "s5", "s6", "s7", "s8"]
sX, sTHR = "s38", "s52"
sKg, sVg = "s[32:33]", "s[10:11]"
vKr, vV0, vV1, vKd, vVd, vPr, vPr2 = "v1", "v2", "v3", "v4", "v5", "v6", "v7"
vL = [8, 9, 10, 11, 12]
vO, vEw, vEr = "v13", "v22", "v23"
PXT = 14
TMP = 16
vAuxC, vAuxT, vAuxD, vAuxD2, sP = "v18", "v19", "v20", "v17", "s[88:91]"
NEGM, SS, PP, OO = 24, 44, 64, 128
SCT = 104
vQl, vQw, vQw2, vQwx, vQr, vQr2, vQrx, vKr0 = (f"v{96 + i}" for i in range(8))
vQlx = "v20"
vRr = "v21"
RAWX, SPRE0 = 112, 120
LP, FLG = 24, 30
RL = lambda t: SS + 4 * t
QXTAG = [(("P", 1, t), -1) for t in range(5)] + [(("L", t), -1) for t in range(6)]
AQ, AX, AKF, AVF, ASP = 0, 128, 160, 192, 224


def Qf(t, s):
    return R("a", (AQ + 32 * t if t < 4 else AX) + 4 * s, 4)


def Kf(s):
    return R("a", AKF + 4 * s, 4)


def S(t):
    return R("v", SS + 4 * t, 4)


def Ng(t):
    return R("v", NEGM + 4 * t, 4)


def Pown(j, t):
    return PP + 16 * (j % 4) + 4 * t if t < 4 else PXT


def Pop(j, t):
    return R("v", PP + 16 * (j % 4) + 4 * t, 4) if t < 4 else R("a", ASP + 4 * (j % 4), 4)


def O(t, dt):
    return R("v", OO + 32 * t + 4 * dt, 4) if t < 4 else R("a", AX + 4 * dt, 4)


def RAW(k, i):
    return OO + 32 * k + 4 * i


def where(kind, tile):
    if OPT["early"] and kind == "V" and tile >= 30:
        return (("K", 0), 32) if tile == 30 else (("V", 2), 31)
    return ((kind, tile % 4), tile)


def tdma(kind, tile, i):
    reg = where(kind, tile)
    off = reg[0][1] * SLOT + i * (1568 if kind == "K" else 1552) - (4 * SLOT if reg[0][0] != kind else 0)
    m, v, srd, so = (sKm, vKd, sK, sKo) if kind == "K" else (sVm, vVd, sV, sVo)
    d = dma(v, srd, so, 512 * i, OPT["pol_kv"], reg, (kind, tile))
    if OPT["glds"]:
        pair = sKg if kind == "K" else sVg
        d = I(f"global_load_lds_dwordx4 {v}, {pair}" + (f" offset:{512 * i}" if i else "") + OPT["pol_kv"], "dma", regs(v) + regs(pair) + ["m0"], [], lds_wr=reg, tag=(kind, tile))
    st = salu(f"s_add_u32 m0, {m}, {off}" if off >= 0 else f"s_sub_u32 m0, {m}, {-off}")
    d.note = (st.text, i)
    return (st, d)


def bump(kind):
    so = sKo if kind == "K" else sVo
    if OPT["glds"]:
        lo, hi = regs(sKg if kind == "K" else sVg)
        return raw(f"s_add_u32 {lo}, {lo}, s49\n    s_addc_u32 {hi}, {hi}, 0")
    return salu(f"s_add_u32 {so}, {so}, s49")


def wrap(kind):
    so = sKo if kind == "K" else sVo
    return [salu(f"s_bitset0_b32 {so}, 19")] if OPT["rot"] else []


def dma_piece(kind, tile, i):
    return list(tdma(kind, tile, i)) + ([bump(kind)] + wrap(kind) if i == 3 else [])


def kread(tile, s, addr=vKr, dst=None):
    slot = tile % 4
    return ds_read("ds_read_b128", dst or Kf(s), addr, f"offset:{slot * SLOT + 64 * s}", (("K", slot), tile))


def vread(tile, dt, u, frag):
    reg = where("V", tile)
    base = (vV0, vV1) if reg[0][0] == "V" else (vKd, vVd)
    return ds_read("ds_read_b64_tr_b16", R("a", frag + 2 * u, 2), base[u], f"offset:{reg[0][1] * SLOT + 128 * (dt // 4) + 16 * (dt % 4)}", reg)


def pwrite(j, t, h):
    par = j % 2
    return ds_write("ds_write_addtid_b32", None, f"v{Pown(j, t) + h}", f"offset:{par * PXA + (2 * t + h) * 256}", (("P", par, t), j))


def preads(j, a):
    par = j % 2
    o = []
    for t in range(4):
        n = par * 40 + a * 20 + 2 * t
        o.append((t, ds_read("ds_read2st64_b32", R("v", Pown(j, t) + 2, 2), vPr, f"offset0:{n} offset1:{n + 1}", (("P", par, t), j))))
    if a == 1:
        n = par * 40 + 8
        for u in range(2):
            o.append((4, ds_read("ds_read2st64_b32", R("a", ASP + 4 * (j % 4) + 2 * u, 2), (vPr2, vPr)[u], f"offset0:{n} offset1:{n + 1}", (("P", par, 4), j))))
    return o


def msetter():
    return salu(f"s_mov_b32 m0, {sPm}")


def stamp(idx, mode=0):
    if (OPT["stamps"] == 3) != (mode == 3) and idx > 2:
        return []
    return [raw(f"{'s_memrealtime' if OPT.get('amprt') else 's_memtime'} s[{60 + 2 * idx}:{61 + 2 * idx}]")] if OPT["stamps"] else []


def xlane(op, reg, tmp):
    o = []
    for sw in ("v_permlane32_swap_b32", "v_permlane16_swap_b32"):
        o.append(valu(f"v_mov_b32 v{tmp}, v{reg}"))
        o.append(valu(f"{sw} v{tmp}, v{reg}"))
        o.append(valu(f"{op} v{reg}, v{tmp}, v{reg}"))
    return o


def chain_ops(b, seq, lo, dl, first_deps=(), hard=None):
    prev = None
    for n, ins in enumerate(seq):
        deps = list(first_deps) if prev is None else [(prev, (1 if b.chainy else 2) if ins.kind == "perm" else (0 if b.chainy and prev.cls == "valu" else 1))]
        prev = b.op(ins, "exp" if ins.kind == "trans" else "valu", lo, dl + n, deps, hard=hard)
    return prev


def add_qk(b, a, j):
    ends = []
    for t in range(5 - a):
        for n, s in enumerate(range(8) if not (OPT["qkz"] and t % 2) else reversed(range(8))):
            k = b.mfma(mfma(S(t), Kf(s), Qf(t, s), Ng(t) if n == 0 else S(t)))
        ends.append(k)
    return ends


def add_pv(b, a, tiles, h, frags, lo, zero=False, tmajor=False, lastuse=None, have=(), ts=None):
    NP = 4 + a
    order = [(d, t) for t in (range(NP) if tmajor is True else tmajor) for d in range(4)] if tmajor else \
            [(d, t) for d in range(4) for t in (range(NP) if d % 2 == 0 else reversed(range(NP)))]
    if tmajor and OPT["pvt"] == 2:
        order = [(d if (n // 4) % 2 == 0 else 3 - d, t) for n, (d, t) in enumerate(order)]
    if ts is not None:
        order = [x for x in order if x[1] in ts]
    first, done, pfirst = {}, {}, {}
    war = dict(lastuse) if lastuse is not None else {}
    for ci, (d, t) in enumerate(order):
        seq = list(enumerate(tiles))
        if OPT["pvy"] and len(tiles) == 2 and (len(order) - 1 - ci) % 2 == 1 and not zero:
            seq.reverse()
        for n, j in seq:
            k = b.mfma(mfma(O(t, 4 * h + d), Pop(j, t), R("a", frags[d][n], 4), "0" if zero and n == 0 else O(t, 4 * h + d)))
            first.setdefault((d, n), k)
            pfirst.setdefault((j, t), k)
            done[(t, 4 * h + d)] = k
            if lastuse is not None:
                lastuse[frags[d][n]] = k
    for d in range(4):
        for n, j in enumerate(tiles):
            for u in range(2 if j not in have else 0):
                f = first[(d, n)]
                b.op(vread(j, 4 * h + d, u, frags[d][n]), "ds", max(lo[j], war.get(frags[d][n], 0)), f - 10 + u, hard=f - 3)
    return done, pfirst


def add_softmax(b, a, j, ends, pub, defer, adds_by=None, soft=False, sub=None):
    ends = dict(enumerate(ends)) if isinstance(ends, list) else ends
    wa = OPT["walign"]
    H = (lambda x: None) if soft else (lambda x: x)
    adds = {}
    for n, t in enumerate(ends):
        base = ends[t] + 4
        late = pub - 7 - 5 * (len(ends) - 1 - n)
        ex = []
        for r in range(4):
            dl = (base - 300 if wa else min(base + 10, late - 8)) + r
            dep = []
            if sub and t in sub:
                dep = [b.op(valu(f"v_add_f32 v{SS + 4 * t + r}, v{SS + 4 * t + r}, v{NEGM + 4 * t}"), "valu", base + 1, dl - 2, [sub[t]])]
            ex.append(b.op(valu(f"v_exp_f32 v{SS + 4 * t + r}, v{SS + 4 * t + r}"), "exp", base, dl, dep, hard=H(pub - 6)))
        for h in range(2):
            c = b.op(valu(f"v_cvt_pk_bf16_f32 v{Pown(j, t) + h}, v{SS + 4 * t + 2 * h}, v{SS + 4 * t + 2 * h + 1}"), "valu", 0, (base - 50 if wa else late - 3) + h, ex[2 * h:2 * h + 2], hard=H(pub - 4))
            b.op(pwrite(j, t, h), "ds", base + 6 + h if wa else 0, (base - 200 if wa else late - 1) + h, [c], hard=H(pub - 3), m0="p", setter=msetter())
        if t not in defer:
            for r in range(4):
                adds[t] = b.op(valu(f"v_add_f32 v{vL[t]}, v{SS + 4 * t + r}, v{vL[t]}"), "valu", 0, (pub if adds_by is None else min(base + 12, adds_by)) + r, [ex[r]] + ([(adds[t], 0)] if t in adds else []),
                               hard=H(pub if adds_by is None else adds_by))
    return adds


def add_deferred(b, a, ends, j=None):
    for t in deferred(a, j):
        for r in range(4):
            b.op(valu(f"v_add_f32 v{vL[t]}, v{SS + 4 * t + r}, v{vL[t]}"), "valu", 0, ends[t] - 16 + r, hard=ends[t] - 8)


def deferred(a, j=None):
    if OPT["defer"] or j == 30:
        return [3 - a, 4 - a]
    return []


def add_dma(b, a, pieces, g0, step, G, lo=None):
    dops = []
    for n, (kind, tile, i) in enumerate(pieces):
        st, d = tdma(kind, tile, i)
        e = int(g0 + step * n)
        if lo and (kind, tile) in lo:
            e = max(e, lo[(kind, tile)])
        o = b.op(d, "dma", e, e - 100, [(dops[-1][0], 2)] if dops else [], hard=G - 3, m0=("d", n), setter=st)
        dops.append((o, kind, tile, i))
    for o, kind, tile, i in dops:
        if i == 3:
            nxt = [x for x, k, tl, _ in dops if k == kind and tl > tile]
            bp = bump(kind)
            if OPT["rot"]:
                bp = raw(bp.text + "\n    " + wrap(kind)[0].text)
            b.scalar(bp, (lambda o=o: o.gap + 1), (lambda nxt=nxt: nxt[0].gap - 1) if nxt else G - 4)
    return dops


def prof_hooks(out):
    if OPT["prof"]:
        k = max(n for n, x in enumerate(out) if x.kind == "barrier")
        out.insert(k, raw("v_writelane_b32 v17, s100, m0"))
        out.insert(k - 1, raw("s_mov_b32 m0, s3"))
        mk = [n for n, x in enumerate(out[:k]) if x.kind == "mfma"]
        out.insert(mk[22] + 1, raw("s_memtime s[100:101]" if OPT["prof"] == 1 else "s_memrealtime s[100:101]"))
        out.insert(mk[2] + 1, raw("s_add_u32 s3, s3, 1"))
    return out


TMPL = {
    1: ["RDRRRRRR RRDRRRdE E.EDEWEE WEEDEWEW EEWEDEWE EWWEED.E EWW..RDR RRRRRRRD RRRRdRRR",
        "RRRRRDRR RRRRRRDR EE.EEWED EWEEWEEW .DEEWEEW E.DEW.W. d.D..RRR RRRDRRRR RdRDRRRR"],
    2: ["RDRRRRRR RRDRRRdE E.EDEWEE WEEDEWEW EEWEDEWE EWWEED.E EWW.RRDR RRRRRRRD RRRRd.RR",
        "RRRRRDRR RRRRRRDR EE.EEWED EWEEWEEW .DEEWEEW E.DEW.W. d.DRRRRR RRRDRRRR RdRD..RR"],
    3: ["RDRRRRRR RRDRRREE EE.DEWWE EE.DEWWE EE.DEWWE EE.EWWED EE.WW.DR RRRRRRRD RRRRRRRR",
        "RRRRRDRR RRRRRRDR EEEE.WWE DEEE.WWE EDEE.WWE E.DEE.WW d.D.d.RR RRRDRRRR RRRDRRRR"],
}
FOLD = [AVF + 8 * d for d in range(4)]
FNEW = [AVF + 8 * d + 4 for d in range(4)]


def fold(j):
    return FOLD if j % 2 or not OPT["pvt"] else [ASP + 16 + 4 * d for d in range(4)]


def add_old_reads(b, j, lu, lo, G):
    FOLD = fold(j + 1)
    for d in range(4):
        for u in range(2):
            b.op(vread(j, 4 * ((j + 1) % 2) + d, u, FOLD[d]), "ds", max(lo, lu.get(FOLD[d], 0)), G + 2 * d + u, hard=G - 1)


def interval(j, a, loop_end=None):
    b = Block(f"interval {j} role {a}", wq=OPT["wq"] if OPT["walign"] else 0, wprio=bool(OPT["walign"]))
    ends = add_qk(b, a, j + 1)
    lu = {}
    if j <= 28:
        done, pfirst = add_pv(b, a, [j - 1, j], j % 2, [[fold(j)[d], FNEW[d]] for d in range(4)], {j: 0}, lastuse=lu, have=[j - 1], tmajor=bool(OPT["pvt"]))
        b.carry = [f"a{x + i}" for x in fold(j) for i in range(4)]
    else:
        done, pfirst = add_pv(b, a, [j], 0, [[FNEW[d]] for d in range(4)], {j: 0})
    G = len(b.mf)
    if j <= (27 if OPT["early"] else 28):
        add_old_reads(b, j, lu, 40, G)
    for t, ins in preads(j, a):
        b.op(ins, "ds", 0, pfirst[(j, t)] - 10, hard=pfirst[(j, t)] - 3)
    for s in range(8):
        b.op(kread(j + 2, s), "ds", ends[-1] - (0 if OPT["qkz"] else 7 - s), G - 18 + s, hard=G - 3)
    kl = OPT["klead"]
    T = lambda kind, tile, r=range(4): [(kind, tile, i) for i in r]
    pieces = T("V", j + 2) + (T("K", j + 2 + kl) if j <= 28 else [])
    step = OPT["dmastep"]
    if j == 29:
        step = 4
    p0 = OPT["peel0"]
    if p0 and j <= 4:
        pieces = {1: T("V", 3) + T("K", 5) + T("K", 6, [0]), 2: T("V", 4) + T("K", 6, [1, 2, 3]) + T("K", 7, [0, 1]),
                  3: T("V", 5) + T("K", 7, [2, 3]) + T("K", 8, [0, 1, 2]), 4: T("V", 6) + T("K", 8, [3]) + T("K", 9)}[j]
    if OPT["early"] and j >= 25:
        if kl == 3:
            pieces = {25: T("V", 27) + T("K", 30), 26: T("V", 28) + T("K", 31), 27: T("V", 29) + T("V", 30), 28: T("V", 31), 29: []}[j]
        elif OPT["early"] == 1:
            pieces = {25: T("V", 27) + T("K", 29) + T("K", 30, [0]), 26: T("V", 28) + T("K", 30, [1, 2, 3]) + T("K", 31, [0, 1]),
                      27: T("V", 29) + T("K", 31, [2, 3]) + T("V", 30), 28: T("V", 31), 29: []}[j]
        elif OPT["early"] == 2:
            pieces = {25: T("V", 27) + T("K", 29), 26: T("V", 28) + T("K", 30), 27: T("V", 29) + T("K", 31), 28: T("V", 30) + T("V", 31), 29: []}[j]
        else:
            pieces = {25: T("V", 27) + T("K", 29) + T("K", 30, [0]), 26: T("V", 28) + T("K", 30, [1, 2, 3]) + T("K", 31, [0, 1]),
                      27: T("V", 29) + T("K", 31, [2, 3]) + T("V", 30, [0, 1, 2]), 28: T("V", 30, [3]) + T("V", 31), 29: []}[j]
        step = {25: 7, 26: 7, 27: 6, 28: 4, 29: 4}[j]
    dops = add_dma(b, a, pieces, OPT["dma0"] + a * min(OPT["dmastag"], step // 2), step, G)
    if OPT["early"] and j == 29:
        b.op(valu(f"v_subrev_u32 {vKd}, {4 * SLOT}, {vV0}"), "valu", 0, G, hard=G - 1)
        b.op(valu(f"v_subrev_u32 {vVd}, {4 * SLOT}, {vV1}"), "valu", 0, G, hard=G - 1)
    if OPT["pf31"] and (j == OPT["pf31"] if OPT["early"] else j <= 28 and j % 4 == OPT["pf31"] % 4):
        x = b.op(vload("buffer_load_dword", vAuxD, vAuxT, sV, "0"), "st", OPT["pfgap"], -90 + OPT["pfgap"], hard=G - 3)
        if not OPT["early"]:
            b.op(valu(f"v_add_u32 {vAuxT}, 0x1000000, {vAuxT}"), "valu", 0, G, [x], hard=G - 1)
    if not OPT["early"] and j <= 28 and j % 4 == (30 - kl) % 4:
        kf = [o for o, k, _, _ in dops if k == "K"][0]
        vl = [o for o, k, _, _ in dops if k == "V"][-2]
        pair = raw(f"s_cmp_eq_u32 {sCNT}, 1\n    s_cselect_b32 s18, 0, s18")
        b.scalar(pair, (lambda: vl.gap + 1), (lambda: kf.gap - 2))
    if (5 if p0 else 1) <= j <= (24 if OPT["early"] else 28) and j % 4 == OPT.get("auxj", 1) and OPT["aux"] & 1:
        b.op(vload("buffer_load_dword", vAuxD, vAuxC, sC, "0"), "st", 3, -90, hard=40)
    if j <= 24 and (j - OPT["auxend"]) % OPT["auxper"] == 0 and OPT["aux"] & 2:
        x = b.op(vload("buffer_load_dword", vAuxD2, vAuxT, sP, "0"), "st", 5 - 4 * a, -90, hard=40)
        b.op(valu(f"v_add_u32 {vAuxT}, {(32 - OPT['auxt0']) * 16384 // OPT['auxn']:#x}, {vAuxT}"), "valu", 0, G, [x], hard=G - 1)
    nh = OPT["holes"] % 10 if a == 0 else OPT["holes"] // 10
    for n in range(nh if j <= 28 else 0):
        ref = dops[min(6, (2 * n + 1) * 8 // (2 * nh) - 1 + (1 if nh < 4 else 0))][0]
        w = OPT["holew"]
        b.op(vload("buffer_load_dword" + ("" if w == 1 else f"x{w}"), "v20" if w == 1 else R("a", 252, w), vAuxT, "s[84:87]", "0"), "st", 0, -95, [(ref, 2)], hard=G - 12)
    add_deferred(b, a, ends)
    add_softmax(b, a, j + 1, ends, G - 1, deferred(a, j + 1))
    if OPT["rwin"] and j <= 28:
        tm = TMPL[OPT["rwin"]][a].replace(" ", "")
        assert len(tm) == 72, len(tm)
        nd = len([o for o in b.ops if o.cls in ("dma", "st")])
        b.tmpl = tm.replace("d", "D", max(0, nd - 8) if nd > 4 else 1).replace("d", ".")
        for o in b.ops:
            if o.cls == "dma" or o.ins.kind == "dsw":
                o.lo = 0
            if o.ins.text.startswith("v_cvt"):
                o.dl -= 200
    vm = [("V", j + 1)] + ([("K", j + 3)] if j + 3 <= 31 else [])
    if j == 29:
        vm.append(("V", 31))
    if j < p0:
        b.barrier(OPT["bark"] + 3, [("K", j + 2)], None)
        for o in b.ops:
            if o.ins.text.startswith("ds_read_b128"):
                o.lo = max(o.lo, OPT["bark"] + 3)
    if j + 1 < p0:
        vm = [("V", j + 1)]
    b.barrier(G - 1, vm, ["w"] + [f"a{AKF + i}" for i in range(32)])
    if loop_end:
        b.scalar(salu(f"s_sub_u32 {sCNT}, {sCNT}, 1"), 20, G - 4)
        b.scalar(salu(f"s_cmp_lg_u32 {sCNT}, 0"), G - 3, G - 3)
    out, _ = b.schedule(show=OPT["show"] == j)
    out = prof_hooks(out)
    if loop_end:
        out.append(salu(f"s_cbranch_scc1 {loop_end}"))
    return out


def first_tile_instrs(t):
    SPRE = RAWX if t == 4 else SPRE0
    own, oth = R("v", SPRE, 4), R("v", SPRE + 4, 4)
    mf = [mfma(own, R("a", AVF + 4 * s, 4), Qf(t, s), "0" if s == 0 else own) for s in range(8)]
    mf += [mfma(oth, R("a", ASP + 4 * s, 4), Qf(t, s), "0" if s == 0 else oth) for s in range(8)]
    A_, B_, C_ = TMP, TMP + 1, TMP + 4
    m1 = [valu(f"v_max3_f32 v{C_}, v{SPRE}, v{SPRE + 1}, v{SPRE + 2}"), valu(f"v_max_f32 v{C_}, v{C_}, v{SPRE + 3}")]
    m2 = [valu(f"v_max3_f32 v{C_}, v{C_}, v{SPRE + 4}, v{SPRE + 5}"),
          valu(f"v_max3_f32 v{A_}, v{C_}, v{SPRE + 6}, v{SPRE + 7}"), valu(f"v_max3_f32 v{B_}, v{C_}, v{SPRE + 6}, v{SPRE + 7}"),
          valu(f"v_permlane32_swap_b32 v{A_}, v{B_}"),
          valu(f"v_max_f32 v{C_}, v{A_}, v{B_}"), valu(f"v_max_f32 v{B_}, v{A_}, v{B_}"),
          valu(f"v_permlane16_swap_b32 v{C_}, v{B_}"),
          valu(f"v_max_f32 v{A_}, v{C_}, v{B_}")]
    cm = [valu(f"v_cndmask_b32 v{NEGM + 4 * t + r}, -v{TMP}, v{NEGM + 4 * t + r}, {sKEEP}") for r in range(4)]
    n = 8 if t < 4 else 4
    sb = [valu(f"v_add_f32 v{SPRE + r}, v{SPRE + r}, v{NEGM + 4 * t}") for r in range(n)]
    ex = [valu(f"v_exp_f32 v{SPRE + r}, v{SPRE + r}") for r in range(n)]
    cv = [valu(f"v_cvt_pk_bf16_f32 v{Pown(0, t) + h}, v{SPRE + 2 * h}, v{SPRE + 2 * h + 1}") for h in range(n // 2)]
    ad = [valu(f"v_add_f32 v{vL[t]}, v{SPRE + r}, v{vL[t]}") for r in range(4)]
    return mf, m1, m2, cm, sb, ex, cv, ad


def add_first_tile(b, t, need_by=None):
    mf, m1, m2, cm, sb, ex, cv, ad = first_tile_instrs(t)
    idx = [b.mfma(x) for x in mf]

    def ops(after=()):
        x = chain_ops(b, m1, idx[7] + 5, -510, after)
        last = chain_ops(b, m2, idx[15] + 5, -500, [x])
        c = [b.op(y, "valu", 0, -480 if r == 0 or t == 4 else 150, [(last, 0)]) for r, y in enumerate(cm)]
        ops.cm = c
        e = []
        for r in range(len(sb)):
            sbo = b.op(sb[r], "valu", 0, -478 + r, [(c[0], 0)], hard=need_by)
            e.append(b.op(ex[r], "exp", 0, -470 + r, [sbo], hard=need_by))
        for h, y in enumerate(cv):
            cvo = b.op(y, "valu", 0, -469 + 2 * h, e[2 * h:2 * h + 2], hard=need_by)
            if t == 4:
                b.op(pwrite(0, t, h), "ds", 0, 100 + h, [cvo], m0="p", setter=msetter())
        for r in range(4):
            b.op(ad[r], "valu", 0, 200 + r, [e[r]])
        return c[0]
    return idx, ops


def qk_chain(b, t, zero=False):
    for s in range(8):
        k = b.mfma(mfma(S(t), Kf(s), Qf(t, s), ("0" if zero else Ng(t)) if s == 0 else S(t)))
    return k


def flush(out, left):
    m0 = None
    left = list(left)
    while left:
        o = next(o for o in left if all(d not in left for d, _ in o.deps))
        left.remove(o)
        if o.m0 is not None and o.m0 != m0:
            out.append(o.setter)
            m0 = o.m0
        out.append(o.ins)
    return out


def merge(x, y):
    o = []
    for i in range(max(len(x), len(y))):
        o += x[i:i + 1] + y[i:i + 1]
    return o


def stage_block(a, k, feed):
    b = Block(f"stage {k} role {a}")
    b.chainy = True
    k1 = OPT["k1stage"]
    b.pre = ([kread(1, s) for s in range(8)] if k == k1 else []) + stage_read(k)
    c1 = {1: {1: [0, 4], 2: [1]}, 2: {2: [0, 1, 4]}}[k1].get(k, [])
    c1 = [t for t in c1 if t < 5 - a]
    ends, later = {}, []
    covered = (k == 0 and a == 0) or (k > k1)
    if k == 0 and a == 0:
        later.append(add_first_tile(b, 4)[1])
    if c1 and k == 2:
        ends[c1[0]] = qk_chain(b, c1[0])
    later.append(add_first_tile(b, k)[1])
    for t in c1:
        if t not in ends:
            ends[t] = qk_chain(b, t)
    G = len(b.mf)
    prev = ()
    for f in later:
        f(prev)
        prev = f.cm
    if ends:
        add_softmax(b, a, 1, ends, G + 16, deferred(a), soft=True)
    i = 0
    if not covered and OPT["prewait"]:
        b.pre += stage_load(k + 1, 0, feed)
        i = 1
    nun = OPT["nunder"]
    ulo = OPT["ulo"] if G <= 16 else OPT["ulo2"]
    prev = []
    for n in range(nun):
        src = RAW(k + 1, i)
        cv = []
        first = None
        for r in range(4):
            lo_ = b.op(valu(f"v_lshlrev_b32 v{SCT + 2 * r}, 16, v{src + r}"), "valu", ulo, 40 * n + 5 * r, prev)
            hi_ = b.op(valu(f"v_and_b32 v{SCT + 2 * r + 1}, {sMASK}, v{src + r}"), "valu", ulo, 40 * n + 5 * r + 1, prev)
            first = first or lo_
            m0_ = b.op(valu(f"v_mul_f32 v{SCT + 2 * r}, s40, v{SCT + 2 * r}"), "valu", 0, 40 * n + 5 * r + 2, [lo_])
            m1_ = b.op(valu(f"v_mul_f32 v{SCT + 2 * r + 1}, s40, v{SCT + 2 * r + 1}"), "valu", 0, 40 * n + 5 * r + 3, [hi_])
            cv.append(b.op(valu(f"v_cvt_pk_bf16_f32 v{src + r}, v{SCT + 2 * r}, v{SCT + 2 * r + 1}"), "valu", 0, 40 * n + 5 * r + 4, [m0_, m1_]))
        b.op(stage_write(k + 1, i), "solo", 0, 40 * n + 21, cv)
        fd = feed(("Q", k + 1, i))
        if fd:
            grp = I("\n    ".join(x.text for x in fd), "group")
            grp.tag = fd
            b.op(grp, "st", 0, 40 * n + 6, [first], m0=("g", n), setter=nop(0))
        prev = cv
        i += 1
    out, left = b.schedule(show=OPT["show"] == 0, leftover_ok=True)
    tail = flush([], left)
    if not any(x.wr & {f"v{SCT + r}" for r in range(8)} or x.rd & {f"v{SCT + r}" for r in range(8)} for x in tail) and i < 3 and OPT["mergetail"]:
        assert not any(x.kind == "group" for x in tail)
        nx = stage_load(k + 1, i, feed)
        i += 1
        p = max(n for n, x in enumerate(nx) if x.kind in ("dma", "vld", "salu") or n == 0)
        tail = nx[:p + 1] + merge(tail, nx[p + 1:])
    out += tail
    while i < 4:
        out += stage_load(k + 1, i, feed)
        i += 1
    o = []
    for x in out:
        o += x.tag if x.kind == "group" else [x]
    return o


def start_block(a, rest):
    b = Block(f"start role {a}")
    b.chainy = True
    b.pre = stage_read(3)
    ends = {2: qk_chain(b, 2)}
    G = 32 + 4 * (4 + a)
    idx, ops = add_first_tile(b, 3, need_by=G - 5)
    ends[3] = qk_chain(b, 3, zero=True)
    lu = {AVF + 4 * s: idx[s] for s in range(8)}
    done, pfirst = add_pv(b, a, [0], 0, [[FNEW[d]] for d in range(4)], {0: 0}, zero=True, tmajor=[0, 1, 2, 4, 3][:3] + ([4] if a else []) + [3], lastuse=dict(lu))
    assert G == len(b.mf)
    bar = OPT["bar0"]
    neg3 = ops()
    for d in range(4):
        for u in range(2):
            b.op(vread(0, 4 + d, u, FOLD[d]), "ds", lu[FOLD[d]], G + 30 + 2 * d + u)
    for t, ins in preads(0, a):
        if t == 4:
            b.op(ins, "ds", idx[8], pfirst[(0, t)] - 10, hard=pfirst[(0, t)] - 3)
    for s in range(8):
        b.op(kread(2, s), "ds", max(bar, ends[3] - 7 + s), G - 10 + s)
    pieces = rest + [("V", 2, i) for i in range(4)] + [("K", 4, i) for i in range(4)]
    if OPT["klead"] == 3 and not OPT["peel0"]:
        pieces += [("K", 5, i) for i in range(4)]
    nin = min(len(pieces), OPT["sdman"])
    add_dma(b, a, pieces[:nin], OPT["sdma0"], OPT["sdmas"], G)
    add_softmax(b, a, 1, ends, G + 12, deferred(a), soft=True, sub={3: neg3})
    b.barrier(bar, [("K", 2)], None)
    if OPT["stamps"] == 1:
        b.inserts[0] = stamp(12)
        b.inserts[bar - 2] = stamp(13)
        b.inserts[bar] = stamp(9)
        b.inserts[G - 1] = stamp(10)
    out, left = b.schedule(show=OPT["show"] == 0, leftover_ok=True)
    out = flush(out, left)
    for p in pieces[nin:]:
        out += dma_piece(*p)
    out.append(wait(vm=[("V", 1)] + ([("K", 3)] if OPT["peel0"] < 2 else []), lg=["w"] + [f"a{AKF + i}" for i in range(32)]))
    out.append(barrier())
    return prof_hooks(out)


def unit_instrs(a, t, h, n, packed):
    x = OO + 32 * t + 16 * h if t < 4 else OO
    mu = []
    for d in range(4):
        seq = []
        if t == 4:
            seq += [valu(f"v_accvgpr_read_b32 v{x + 4 * d + i}, a{AX + 16 * h + 4 * d + i}") for i in range(4)]
        if packed:
            seq += [valu(f"v_pk_mul_f32 {R('v', x + 4 * d + 2 * i, 2)}, {R('v', x + 4 * d + 2 * i, 2)}, {R('v', RL(t) + 2 * i, 2)}") for i in range(2)]
        else:
            seq += [valu(f"v_mul_f32 v{x + 4 * d + i}, v{x + 4 * d + i}, v{RL(t) + i}") for i in range(4)]
        mu.append(seq)
    cv = [[valu(f"v_cvt_pk_bf16_f32 v{x + 8 * e + r}, v{x + 8 * e + r}, v{x + 8 * e + 4 + r}") for r in range(4)] for e in range(2)]
    wr = []
    for r in range(4):
        w = ds_write("ds_write2_b32", vEw, f"v{x + r}, v{x + 8 + r}", f"offset0:{36 * r} offset1:{36 * r + 1}", (("K", 1), 99))
        w.rd |= {f"v{x + r}", f"v{x + 8 + r}"}
        wr.append(w)
    rd, st = [], []
    for i in range(2):
        q = ASP + 16 + 8 * (n % 2) + 4 * i
        rd += [ds_read("ds_read_b64_tr_b16", R("a", q + 2 * u, 2), vEr, f"offset:{8 * 144 * i + 32 * u}") for u in range(2)]
        st.append(vstore("buffer_store_dwordx4", R("a", q, 4), vO, sO, (sT, sT8)[i][t], 128 * h, OPT["pol_o"] if h == 0 or "pol_o1" not in OPT else OPT["pol_o1"]))
    return mu, cv, wr, rd, st


def final_block(a):
    NQ, NP = 5 - a, 4 + a
    b = Block(f"final role {a}")
    b.lazy = OPT["lazy"]
    b.chainy = True
    save = OPT["walign"]
    OPT["walign"] = 0
    barA, barB = OPT["bara"], OPT["barb"]
    F = lambda i: AVF + 4 * i
    KF = lambda i: AKF + 4 * i
    lo = {28: 0, 29: 0, 30: 0, 31: 0}
    lu = {}
    rest = list(range(2, NP))
    f30, f31 = [[F(d)] for d in range(4)], [[F(4 + d)] for d in range(4)]
    ends = {t: qk_chain(b, t) for t in (0, 1, 2)}
    _, pf = add_pv(b, a, [30], 0, f30, lo, lastuse=lu, ts=[0, 1])
    ends[3] = qk_chain(b, 3)
    if a == 0 and OPT["xearly"]:
        ends[4] = qk_chain(b, 4)
    done0, pf1 = add_pv(b, a, [31], 0, f31, lo, tmajor=True, lastuse=lu, ts=[0, 1])
    X1 = len(b.mf) - 1
    if a == 0 and not OPT["xearly"]:
        ends[4] = qk_chain(b, 4)
    lu.update({KF(s): ends[NQ - 1] - 7 + s for s in range(8)})
    pf.update(add_pv(b, a, [30], 0, f30, lo, lastuse=lu, ts=rest, have=[30])[1])
    add_pv(b, a, [28], 1, [[ASP + 4 * d if a == 0 else KF(d)] for d in range(4)], lo, lastuse=lu)
    d2, p2 = add_pv(b, a, [31], 0, f31, lo, tmajor=True, lastuse=lu, ts=rest, have=[31])
    done0.update(d2)
    pf1.update(p2)
    X = len(b.mf) - 1
    pool = [KF(i) for i in range(8)] + [F(i) for i in range(4)] if a == 0 else [KF(4 + i) for i in range(4)] + [F(i) for i in range(4)] + [KF(i) for i in range(4)]
    done1, _ = add_pv(b, a, [29, 30, 31], 1, [pool[3 * d:3 * d + 3] for d in range(4)], lo, lastuse=lu, tmajor=bool(OPT["tm1"]))
    G = len(b.mf)
    bar = lambda t: barA if t < 2 else barB
    for t, ins in preads(30, a):
        b.op(ins, "ds", 0, pf[(30, t)] - 10, hard=pf[(30, t)] - 3)
    for t, ins in preads(31, a):
        b.op(ins, "ds", bar(t), pf1[(31, t)] - 12, hard=pf1[(31, t)] - 3)
    add_deferred(b, a, ends, 30)
    adds = add_softmax(b, a, 31, {t: ends[t] for t in (0, 1)}, barA, [], adds_by=barA - 4)
    adds.update(add_softmax(b, a, 31, {t: ends[t] for t in range(2, NQ)}, barB, [], adds_by=barB - 6))
    L = lambda *t: [(("L", x), 0) for x in t]
    lw = {t: b.op(ds_write("ds_write_addtid_b32", None, f"v{vL[t]}", f"offset:{2 * PXA + t * 256}", L(t)), "ds", 0, bar(t) - 8, [adds[t]], hard=bar(t) - 3, m0="p", setter=msetter()) for t in range(NQ)}
    w1 = b.op(valu(f"v_max3_u32 v{TMP}, v{vL[0]}, v{vL[1]}, v{vL[2]}"), "valu", 0, barB - 12, [adds[0], adds[1], adds[2]], hard=barB - 5)
    w2 = b.op(valu(f"v_max3_u32 v{TMP}, v{TMP}, v{vL[3]}, v{vL[NQ - 1]}"), "valu", 0, barB - 11, [w1, adds[3], adds[NQ - 1]], hard=barB - 4)
    b.op(ds_write("ds_write_addtid_b32", None, f"v{TMP}", f"offset:{2 * PXA + 5 * 256}", L(5)), "ds", 0, barB - 9, [w2], hard=barB - 3, m0="p", setter=msetter())
    b.barrier(barA, None, ["w"])
    b.barrier(barB, None, ["w"])
    base = 80
    lr = {}
    for t in (0, 2):
        lr[t] = lr[t + 1] = b.op(ds_read("ds_read2st64_b32", R("v", LP + t, 2), vPr, f"offset0:{base + a * 20 + t} offset1:{base + a * 20 + t + 1}", L(t, t + 1)), "ds", bar(t), bar(t) - 5)
    f1 = b.op(ds_read("ds_read2st64_b32", R("v", FLG, 2), vPr, f"offset0:{base + 5} offset1:{base + 25}", L(5)), "ds", barB, barB + 8)
    f2 = b.op(ds_read("ds_read2st64_b32", R("v", FLG + 2, 2), vPr2, f"offset0:{base + 5} offset1:{base + 25}", L(5)), "ds", barB, barB + 9)
    if a == 1:
        x1 = b.op(ds_read("ds_read_b32", f"v{LP + 4}", vPr, f"offset:{(base + 4) * 256}", L(4)), "ds", barB, barB + 5)
        lr[4] = b.op(ds_read("ds_read_b32", f"v{vL[4]}", vPr2, f"offset:{(base + 4) * 256}", L(4)), "ds", barB, barB + 6, [x1])
    ck = chain_ops(b, [valu(f"v_max3_u32 v{FLG}, v{FLG}, v{FLG + 1}, v{FLG + 2}"), valu(f"v_max_u32 v{FLG}, v{FLG}, v{FLG + 3}"), valu(f"v_cmp_lt_u32 vcc, {sTHR}, v{FLG}")],
                   0, barB + 30, [(f1, 6), (f2, 6)], hard=G - 4)
    if not OPT["abl"]:
        b.scalar(salu(f"s_cbranch_vccnz L_fallback{a}"), (lambda: ck.gap + 1), G - 1)
    rl = {}
    for t in range(NP):
        A_, B_, C_ = RL(t), RL(t) + 1, LP + t
        lim = X1 if t < 2 else X
        seq = [valu(f"v_add_f32 v{A_}, v{vL[t]}, v{C_}"), valu(f"v_add_f32 v{B_}, v{vL[t]}, v{C_}"), valu(f"v_permlane32_swap_b32 v{A_}, v{B_}"),
               valu(f"v_add_f32 v{C_}, v{A_}, v{B_}"), valu(f"v_add_f32 v{B_}, v{A_}, v{B_}"), valu(f"v_permlane16_swap_b32 v{C_}, v{B_}"),
               valu(f"v_add_f32 v{A_}, v{C_}, v{B_}"), valu(f"v_rcp_f32 v{A_}, v{A_}")]
        rc = chain_ops(b, seq, 0, -400 + 10 * t, [(lr[t], 6)], hard=lim)
        pl = 2 * PXA + (6 + t % 4) * 256
        w = b.op(ds_write("ds_write_addtid_b32", None, f"v{A_}", f"offset:{pl}"), "ds", 0, -390 + 10 * t, [rc], hard=lim, m0="p", setter=msetter())
        rl[t] = b.op(ds_read("ds_read_b128", R("v", RL(t), 4), vRr, f"offset:{pl}"), "ds", 0, -389 + 10 * t, [w], hard=lim)
    units = [(t, 0) for t in range(NP)] + [(t, 1) for t in range(NP)]
    nfast = min(2 + OPT["nfast"], NP)
    nin = min(OPT["nin"], NP - nfast)

    def straight(lst, pend):
        o = []
        for n, (t, h) in lst:
            mu, cv, wr, rd, st = unit_instrs(a, t, h, n, True)
            for k in range(len(mu[0])):
                o += [mu[d][k] for d in range(4)]
            o += cv[0] + cv[1]
            o += pend
            o += wr + rd
            pend = st
        return o, pend
    en = list(enumerate(units))
    b.inserts[X1], pend = straight(en[:2], [])
    prev_rd, prev_st = [], {1: [b.op(x, "st", X1 + 6 + i, X1 - 50 + i, hard=X1 + 12) for i, x in enumerate(pend)]}
    if nfast > 2:
        b.inserts[X], pend = straight(en[2:nfast], [])
        prev_st[(nfast - 1) % 2] = [b.op(x, "st", X + 6 + i, X + i, hard=G - 1) for i, x in enumerate(pend)]
    if OPT["tm1"]:
        assert nfast == NP
        for x in prev_st[(nfast - 1) % 2]:
            x.hard = X + 12
        for t in range(NP - 1):
            at = max(done1[(t, 4)], done1[(t, 7)]) + 4
            if OPT["tm1"] == 1:
                b.inserts[at], pend = straight(en[NP + t:NP + t + 1], [])
            else:
                mu, cv, wr, rd, pend = unit_instrs(a, t, 1, NP + t, False)
                at = min(at + 7, G - 1)
                mo = [[b.op(x, "valu", done1[(t, 4 + d)] + 4, at - 20 + 3 * d + i // 2, hard=at) for i, x in enumerate(mu[d])] for d in range(4)]
                for e in range(2):
                    for r in range(4):
                        b.op(cv[e][r], "valu", 0, at - 15 + 6 * e, [mo[2 * e][r], mo[2 * e + 1][r]], hard=at)
                b.inserts[at] = wr + rd
            for i, x in enumerate(pend):
                b.op(x, "st", at + 6 + i, at - 50 + i, hard=at + 11)
        nin = 0
        nfast = 2 * NP - 1
    if OPT["stamps"] == 2:
        b.inserts[barA] = stamp(12)
        b.inserts[X1] = stamp(13) + b.inserts[X1]
        b.inserts[barB] = stamp(9)
        b.inserts[X] = stamp(10) + b.inserts.get(X, [])
    assert nin == 0
    out, left = b.schedule(show=OPT["show"] == 31, leftover_ok=True)
    OPT["walign"] = save
    out += stamp(5)
    pend = []
    for o in left:
        if o.ins.kind == "vst":
            pend.append(o.ins)
        else:
            if any(o.ins.wr & x.rd for x in pend):
                out += pend
                pend = []
            out.append(o.ins)
    o2, pend = straight(en[nfast + nin:], pend)
    return out + o2 + pend


def qload(k, i):
    return [vload("buffer_load_dwordx4", R("v", RAW(k, i), 4), vQl, sQ, sT[k], 512 * i, OPT["pol_q"], tag=("Q", k, i))]


def entry():
    o = []
    A = lambda t: o.append(salu(t))
    V = lambda t: o.append(valu(t))
    t0, t1, t2, t3, t4 = (f"v{TMP + i}" for i in range(5))
    A("s_cmp_ge_u32 s2, 256")
    A("s_cbranch_scc1 L_end")
    o.append(raw("s_load_dwordx8 s[4:11], s[0:1], 0"))
    if OPT["stamps"]:
        o.append(raw("s_load_dwordx2 s[56:57], s[0:1], 40"))
        o.append(raw("s_memrealtime s[58:59]"))
    o += stamp(0)
    o.append(raw("s_getpc_b64 s[44:45]"))
    o.append(label("L_pc"))
    A("s_and_b32 s45, s45, 0xffff")
    o.append(raw("s_mov_b32 s46, L_end-L_pc"))
    A("s_mov_b32 s47, 0x20000")
    A("s_lshr_b32 s54, s2, 3")
    A("s_lshl_b32 s55, s54, 7")
    V(f"v_lshl_add_u32 {t0}, v0, 12, s55")
    o.append(vload("buffer_load_dword", "v15", t0, sC, "0"))
    V(f"v_lshrrev_b32 {t1}, 6, v0")
    A(f"s_mov_b64 {sKEEP}, 0")
    V(f"v_readfirstlane_b32 {sW}, {t1}")
    A(f"s_mov_b32 {sTHR}, {(127 + OPT['thr']) << 23:#x}")
    if OPT["prof"]:
        A("s_mov_b32 s3, 0")
    A("s_and_b32 s53, s2, 7")
    A("s_lshl_b32 s53, s53, 3")
    A("s_lshr_b32 s55, s2, 5")
    A("s_add_u32 s53, s53, s55")
    A("s_and_b32 s54, s54, 3")
    A("s_lshl_b32 s55, s53, 2")
    A("s_add_u32 s55, s55, s54")
    A("s_mul_i32 s37, s55, 73728")
    A("s_lshl_b32 s53, s53, 19")
    A(f"s_lshr_b32 {sA}, {sW}, 1")
    A(f"s_and_b32 {sB}, {sW}, 1")
    A(f"s_add_u32 s54, {sW}, 1")
    A("s_and_b32 s55, s54, 1")
    A("s_lshl_b32 s55, s55, 3")
    A("s_lshr_b32 s54, s54, 1")
    A("s_and_b32 s54, s54, 1")
    A("s_add_u32 s54, s54, s55")
    A("s_mul_i32 s54, s54, 1040")
    A(f"s_add_u32 {sKm}, s54, {KRING}")
    A("s_mov_b32 s48, 8192")
    A("s_mov_b32 s49, 16384")
    A("s_mov_b32 s50, 24576")
    A(f"s_mov_b32 {sX}, 65536")
    for srd, n in ((16, 524288), (12, 73728), (20, 524288), (24, 73728)):
        A(f"s_mov_b32 s{srd + 2}, {n}")
        A(f"s_mov_b32 s{srd + 3}, 0x20000")

    def src_offsets():
        V(f"v_and_b32 {t0}, 31, v0")
        V(f"v_lshlrev_b32 {t0}, 4, {t0}")
        V(f"v_bfe_u32 {t2}, v0, 5, 1")
        A(f"s_lshl_b32 s54, {sW}, 11")
        V(f"v_add_u32 {t1}, s54, {t0}")
        V(f"v_lshl_add_u32 {vKd}, {t2}, 13, {t1}")
        V(f"v_lshl_add_u32 {vQl}, {t2}, 15, {t1}")
        V(f"v_lshl_add_u32 {vQlx}, {t2}, 9, {t1}")
        if OPT["rot"]:
            A("s_and_b32 s54, s2, 7")
            A(f"s_mul_i32 s54, s54, {OPT['rot'] // 100}")
            A("s_lshr_b32 s55, s2, 5")
            A(f"s_mul_i32 s55, s55, {OPT['rot'] % 100}")
            A("s_add_u32 s54, s54, s55")
            A("s_and_b32 s54, s54, 31")
            A(f"s_lshl_b32 {sKo}, s54, 14")
            A(f"s_mov_b32 {sVo}, {sKo}")
        else:
            A(f"s_mov_b32 {sKo}, 0")
            A(f"s_mov_b32 {sVo}, 0")
    src_offsets()
    o.append(raw("s_waitcnt lgkmcnt(0)"))
    o += stamp(8)
    for srd, ptr, off in ((16, 6, "s53"), (12, 4, "s37"), (20, 8, "s53"), (24, 10, "s37")):
        A(f"s_add_u32 s{srd}, s{ptr}, {off}")
        A(f"s_addc_u32 s{srd + 1}, s{ptr + 1}, 0")
        A(f"s_and_b32 s{srd + 1}, s{srd + 1}, 0xffff")
    o.append(label("L_restart"))
    if OPT["glds"]:
        A(f"s_mov_b64 {sKg}, s[16:17]")
        A(f"s_mov_b64 {sVg}, s[20:21]")
    for i in range(4):
        o += dma_piece("K", 0, i) if not OPT["qfirst"] else []
    for i in range(2):
        o.append(vload("buffer_load_dwordx4", R("v", RAWX + 4 * i, 4), vQlx, sQ, sX, 1024 * i, OPT["pol_q"], tag=("Q", 4, i)))
    for i in range(4):
        o += qload(0, i) if OPT["qfirst"] else []
    if OPT["touch"] & 1:
        o.append(I("buffer_load_dword v14, off, s[20:23], 0", "vld", regs(sV), ["v14"]))
    if OPT["touch"] & 2:
        o.append(I("buffer_load_dword v14, off, s[24:27], 0", "vld", regs(sO), ["v14"]))
    if OPT["thr1"] or OPT["thr2"] or OPT["stamps"]:
        o.append(raw("s_getreg_b32 s37, hwreg(HW_REG_XCC_ID, 0, 4)" if not OPT.get("thrkey") else "s_lshr_b32 s37, s2, 5"))
    if OPT["thr1"]:
        o.append(raw(f"s_lshr_b32 s54, {OPT['thr1']}, s37\n    s_bitcmp1_b32 s54, 0\n    s_cbranch_scc1 L_thr1\nL_thr1b:"))
    if OPT["ibar"]:
        o.append(barrier())
    for i in range(4):
        o += qload(0, i) if not OPT["qfirst"] else dma_piece("K", 0, i)
    if OPT["stamps"] == 4:
        o += stamp(9)
    if OPT["stouch"]:
        for i in range(1, OPT["stouch"] + 1):
            o.append(raw(f"s_load_dword s9, s[44:45], {i * 4096 - 128}"))
    A(f"s_lshl_b32 s54, {sB}, 11")
    A(f"s_lshl_b32 s55, {sA}, 13")
    A("s_add_u32 s54, s54, s55")
    V(f"v_lshl_add_u32 {vVd}, {t2}, 12, {t0}")
    V(f"v_add_u32 {vVd}, s54, {vVd}")
    A(f"s_add_u32 s54, {sKm}, {3 * SLOT}")
    V(f"v_lshl_add_u32 {vQw}, {t2}, 9, {t0}")
    V(f"v_add_u32 {vQw}, s54, {vQw}")
    V(f"v_add_u32 {vQw2}, {4 * SLOT}, {vQw}")
    A(f"s_sub_u32 s54, {sKm}, {KRING - PXA}")
    V(f"v_mul_u32_u24 {vQwx}, 2080, {t2}")
    V(f"v_add3_u32 {vQwx}, {vQwx}, {t0}, s54")
    A(f"s_mul_i32 s54, {sB}, 8320")
    A(f"s_lshl_b32 s55, {sA}, 10")
    A("s_add_u32 s54, s54, s55")
    A(f"s_add_u32 {sVm}, s54, {VRING}")
    A(f"s_mul_i32 {sPm}, {sW}, 2560")
    V(f"v_and_b32 {t0}, 15, v0")
    V(f"v_bfe_u32 {t1}, v0, 4, 1")
    V(f"v_lshlrev_b32 {t3}, 5, {t1}")
    V(f"v_lshl_add_u32 {t3}, {t2}, 4, {t3}")
    V(f"v_add_u32 {t4}, 4, {t0}")
    V(f"v_bfe_u32 {vKr0}, {t4}, 3, 1")
    V(f"v_and_b32 {t4}, 7, {t4}")
    V(f"v_lshl_add_u32 {vKr0}, {t4}, 1, {vKr0}")
    V(f"v_mul_u32_u24 {vKr0}, 1040, {vKr0}")
    V(f"v_add_u32 {vKr0}, {vKr0}, {t3}")
    V(f"v_add_u32 {vQrx}, {PXA}, {vKr0}")
    V(f"v_add_u32 {vKr0}, {KRING}, {vKr0}")
    A(f"s_lshl_b32 s54, {sB}, 9")
    V(f"v_add_u32 {vKr}, s54, {vKr0}")
    A(f"s_lshl_b32 s54, {sA}, 9")
    A(f"s_add_u32 s54, s54, {3 * SLOT}")
    V(f"v_add_u32 {vQr}, s54, {vKr0}")
    V(f"v_add_u32 {vQr2}, {4 * SLOT}, {vQr}")
    A(f"s_lshl_b32 s54, {sB}, 9")
    A("s_sub_u32 s54, 512, s54")
    V(f"v_add_u32 {vKr0}, s54, {vKr0}")
    V(f"v_bfe_u32 {t4}, v0, 2, 2")
    V(f"v_mul_u32_u24 {vV0}, 2064, {t4}")
    V(f"v_mul_u32_u24 {t4}, 8320, {t1}")
    V(f"v_add_u32 {vV0}, {vV0}, {t4}")
    V(f"v_lshl_add_u32 {vV0}, {t2}, 9, {vV0}")
    V(f"v_bfe_u32 {t4}, v0, 1, 1")
    V(f"v_lshl_add_u32 {vV0}, {t4}, 6, {vV0}")
    V(f"v_and_b32 {t4}, 1, v0")
    V(f"v_lshl_add_u32 {vV0}, {t4}, 3, {vV0}")
    A(f"s_mul_i32 s54, {sB}, {256 + 1024}")
    A(f"s_add_u32 s54, s54, {VRING}")
    A(f"s_mul_i32 s55, {sB}, {1024 - 256}")
    A(f"s_sub_u32 s55, {VRING + 1024}, s55")
    V(f"v_add_u32 {vV1}, s55, {vV0}")
    V(f"v_add_u32 {vV0}, s54, {vV0}")
    V(f"v_and_b32 {t4}, 63, v0")
    V(f"v_lshlrev_b32 {t4}, 2, {t4}")
    A(f"s_mul_i32 s54, {sB}, 2560")
    A("s_sub_u32 s55, 2560, s54")
    V(f"v_add_u32 {vPr2}, s54, {t4}")
    V(f"v_add_u32 {vPr}, s55, {t4}")
    A(f"s_mul_i32 s55, {sW}, 2304")
    A(f"s_add_u32 s55, s55, {KRING + SLOT}")
    V(f"v_bfe_u32 {t4}, v0, 4, 2")
    V(f"v_mul_u32_u24 {vEw}, {4 * 144}, {t4}")
    V(f"v_lshl_add_u32 {vEw}, {t0}, 3, {vEw}")
    V(f"v_add_u32 {vEw}, s55, {vEw}")
    V(f"v_lshl_add_u32 {vRr}, {t4}, 4, {sPm}")
    V(f"v_bfe_u32 {t1}, v0, 1, 1")
    V(f"v_lshl_add_u32 {t4}, {t4}, 1, {t1}")
    V(f"v_mul_u32_u24 {vEr}, 144, {t4}")
    V(f"v_and_b32 {t1}, 1, v0")
    V(f"v_lshl_add_u32 {vEr}, {t1}, 6, {vEr}")
    V(f"v_bfe_u32 {t1}, v0, 2, 2")
    V(f"v_lshl_add_u32 {vEr}, {t1}, 3, {vEr}")
    V(f"v_add_u32 {vEr}, s55, {vEr}")
    V(f"v_bfe_u32 {t4}, v0, 3, 3")
    V(f"v_and_b32 {t1}, 7, v0")
    V(f"v_lshlrev_b32 {t1}, 4, {t1}")
    A(f"s_lshl_b32 s54, {sA}, 15")
    A(f"s_lshl_b32 s55, {sB}, 8")
    A("s_add_u32 s55, s55, s54")
    A("s_sub_u32 s51, 65536, s54")
    V(f"v_lshl_add_u32 {vO}, {t4}, 9, {t1}")
    V(f"v_add_u32 {vO}, s55, {vO}")
    for t in range(5):
        A(f"s_add_u32 {sT8[t]}, {sT[t]}, 4096" if t else f"s_mov_b32 {sT8[0]}, 4096")
    c = struct.unpack("<I", struct.pack("<f", math.log2(math.e) / 16.0))[0]
    A(f"s_mov_b32 s40, {c:#x}")
    A(f"s_mov_b32 s41, {c:#x}")
    A(f"s_mov_b32 {sMASK}, 0xffff0000")
    for t in range(5):
        V(f"v_mov_b32 v{vL[t]}, 0")
    for t in range(4):
        for i in range(8):
            V(f"v_mov_b64 {R('v', OO + 32 * t + 16 + 2 * i, 2)}, 0")
    for i in range(16):
        V(f"v_accvgpr_write_b32 a{AX + 16 + i}, 0")
    if OPT["stamps"] == 4:
        o += stamp(10)
    A(f"s_cmp_eq_u32 {sA}, 1")
    A("s_cbranch_scc1 L_role1")
    o2 = []
    o, keep = o2, o
    src_offsets()
    return keep, o2


def scale4(src):
    o = []
    T = SCT
    for i in range(4):
        o.append(valu(f"v_lshlrev_b32 v{T + 2 * i}, 16, v{src + i}"))
        o.append(valu(f"v_and_b32 v{T + 2 * i + 1}, {sMASK}, v{src + i}"))
    for i in range(4):
        o.append(valu(f"v_pk_mul_f32 {R('v', T + 2 * i, 2)}, {R('v', T + 2 * i, 2)}, {sSC}"))
    for i in range(4):
        o.append(valu(f"v_cvt_pk_bf16_f32 v{src + i}, v{T + 2 * i}, v{T + 2 * i + 1}"))
    return o


QST = {0: (("V", 1), vQw, vQr, 2 * SLOT), 1: (("K", 3), vQw, vQr, 0), 2: (("V", 2), vQw, vQr, 3 * SLOT), 3: (("V", 3), vQw2, vQr2, 0)}


def stage_write(k, i):
    if k == 4:
        return ds_write("ds_write_b128", vQwx, R("v", RAWX + 4 * i, 4), f"offset:{4160 * i}", QXTAG)
    reg, wb, rb, off = QST[k]
    return ds_write("ds_write_b128", wb, R("v", RAW(k, i), 4), f"offset:{off + 2080 * i}", (reg, -1))


def stage_load(k, i, feed):
    src = RAWX + 4 * i if k == 4 else RAW(k, i)
    return [wait(vm=[("Q", k, i)])] + feed(("Q", k, i)) + scale4(src) + [stage_write(k, i)]


def stage_in(k, feed):
    o = []
    for i in range(2 if k == 4 else 4):
        o += stage_load(k, i, feed)
    return o


def stage_read(k):
    if k == 4:
        return [ds_read("ds_read_b128", Qf(4, s), vQrx, f"offset:{64 * s}", QXTAG) for s in range(8)]
    reg, wb, rb, off = QST[k]
    return [ds_read("ds_read_b128", Qf(k, s), rb, f"offset:{off + 64 * s}", (reg, -1)) for s in range(8)]


def stage_compute(t):
    mf, m1, m2, cm, sb, ex, cv, ad = first_tile_instrs(t)
    o = mf + m1 + m2 + cm + sb + ex + cv
    if t == 4:
        o += [msetter(), ad[0]] + [pwrite(0, t, h) for h in range(2)] + ad[1:]
    else:
        o += ad
    return o


def prologue(a):
    o = [label(f"L_role{a}")] + aux_setup(a) + [salu(f"s_mov_b32 {sCNT}, {(24 if OPT['early'] else 28) // 4 - (1 if OPT['peel0'] else 0)}")]
    seq = {0: "Q1 Q2 Q3 K1 V0 K2 V1 K3", 1: "Q1 K1 Q2 V0 Q3 K2 V1 K3", 2: "Q1 Q2 K1 Q3 V0 K2 V1 K3", 3: "K1 Q1 V0 Q2 K2 Q3 V1 K3", 4: "Q1 Q2 K1 V0 Q3 K2 V1 K3", 5: "K1 Q1 Q2 V0 Q3 K2 V1 K3"}[OPT["order"]]
    full = [("K", 0, i) for i in range(4)] + [("Q", 4, i) for i in range(2)] + [("Q", 0, i) for i in range(4)]
    if OPT["qfirst"]:
        full = full[4:] + full[:4]
    order = [(x[0], int(x[1]), i) for x in seq.split() for i in range(4)]
    if OPT["split"]:
        n = 0
        while n + 8 <= len(order):
            if order[n][0] != "Q" and order[n + 4][0] == "Q":
                sp = OPT["split"]
                order[n:n + 8] = order[n + 4:n + 4 + sp] + order[n:n + 4] + order[n + 4 + sp:n + 8]
                n += 4
            n += 4
    full += order

    def feed(landed):
        r = []
        stage = -1 if landed[1] == 4 else landed[1]
        while order and full.index(order[0]) <= full.index(landed) + OPT["win"]:
            x = order[0]
            if (x[:2] == ("V", 1) and stage < 2) or (x[:2] == ("K", 3) and stage < 3) or (landed == ("Q", 3, 3) and not OPT["lastfeed"]):
                break
            order.pop(0)
            r += qload(x[1], x[2]) if x[0] == "Q" else dma_piece(*x)
        return r
    if OPT["thr2"]:
        o.append(raw(f"s_lshr_b32 s54, {OPT['thr2']}, s37\n    s_bitcmp1_b32 s54, 0\n    s_cbranch_scc1 L_thr2{a}\nL_thr2b{a}:"))
    o += stage_in(4, feed)
    if OPT["qfirst"]:
        o += stage_in(0, feed) + [wait(vm=[("K", 0)])] + feed(("K", 0, 3))
    o.append(wait(vm=[("K", 0)], lg="all"))
    o.append(barrier())
    o += stamp(1)
    for s in range(8):
        o.append(kread(0, s, vKr, R("a", AVF + 4 * s, 4)))
    if a == 0:
        o += stage_read(4)
    for s in range(8):
        o.append(kread(0, s, vKr0, R("a", ASP + 4 * s, 4)))
    ps = iter([3, 4, 5, 6, 7, 8, 9, 10, 11, 12, 13, 14])
    pst = lambda: stamp(next(ps), 3)
    o += pst()
    if not OPT["qfirst"]:
        o += stage_in(0, feed)
    for k in range(4):
        o += pst()
        if k or not OPT["qfirst"]:
            o.append(wait(vm={OPT["k1stage"]: [("K", 1)], 3: [("V", 0)]}.get(k), lg="all"))
            o.append(barrier())
        if k < 3:
            o += pst() + pst()
            o += stage_block(a, k, feed)
    o += stamp(2)
    return o, order


def aux_setup(a):
    o = []
    if OPT["pf31"]:
        n = (32 - OPT["pft0"]) * 8
        o.append(salu("s_lshr_b32 s54, s2, 3"))
        o.append(salu("s_and_b32 s54, s54, 3"))
        o.append(salu("s_lshl_b32 s54, s54, 2"))
        o.append(salu(f"s_add_u32 s54, s54, {sW}"))
        o.append(salu(f"s_mul_i32 s54, s54, {n * 128}"))
        o.append(salu(f"s_add_u32 s54, s54, {(OPT['pft0'] * 16384 - (0 if OPT['early'] else ((OPT['pf31'] - 1) // 4) << 24)) & 0xffffffff:#x}"))
        o.append(valu(f"v_and_b32 {vAuxT}, 63, v0"))
        o.append(valu(f"v_min_u32 {vAuxT}, {n - 1}, {vAuxT}"))
        o.append(valu(f"v_lshl_add_u32 {vAuxT}, {vAuxT}, 7, s54"))
    if OPT["aux"]:
        o.append(salu("s_lshr_b32 s54, s2, 3"))
        o.append(salu("s_lshl_b32 s55, s54, 7"))
        o.append(valu(f"v_lshl_add_u32 {vAuxC}, v0, 12, s55"))
    if OPT["aux"] & 2:
        piece = (32 - OPT["auxt0"]) * 16384 // OPT["auxn"]
        before = len([j for j in range(1, OPT["auxend"] + 1) if (j - OPT["auxend"]) % OPT["auxper"] == 0]) - OPT["auxn"]
        o.append(salu("s_and_b32 s54, s54, 3"))
        o.append(salu(f"s_mul_i32 s54, s54, {piece // 4}"))
        o.append(salu(f"s_add_u32 s54, s54, {(a * piece // 8 - before * piece) & 0xffffffff:#x}"))
        o.append(valu(f"v_and_b32 {vAuxT}, 63, v0"))
        o.append(valu(f"v_cmp_le_u32 vcc, {piece // 1024}, {vAuxT}"))
        o.append(valu(f"v_lshl_add_u32 {vAuxT}, {vAuxT}, 7, s54"))
        o.append(valu(f"v_cndmask_b32 {vAuxT}, {vAuxT}, 2.0, vcc"))
        o.append(salu(f"s_cmp_eq_u32 {sB}, 0"))
        o.append(salu("s_cselect_b32 s88, s16, s20"))
        o.append(salu("s_cselect_b32 s89, s17, s21"))
        o.append(salu(f"s_add_u32 s88, s88, {OPT['auxt0'] * 16384}"))
        o.append(salu("s_addc_u32 s89, s89, 0"))
        o.append(salu(f"s_mov_b32 s90, {(32 - OPT['auxt0']) * 16384}"))
        o.append(salu("s_mov_b32 s91, 0x20000"))
        if OPT["holes"]:
            o.append(salu("s_mov_b64 s[84:85], s[88:89]"))
            o.append(salu("s_mov_b32 s86, 0"))
            o.append(salu("s_mov_b32 s87, 0x20000"))
    return o


def finish(a):
    o = stamp(6)
    if OPT.get("amp"):
        lo, hi, base = OPT["amp"] // 100, OPT["amp"] % 100, OPT["ampbase"]
        o.append(raw("s_waitcnt vmcnt(0)"))
        o += stamp(7)
        o.append(raw(f"s_waitcnt lgkmcnt(0)\ns_and_b32 s95, s2, {OPT.get('ampmask', 255)}\ns_cmp_lg_u32 s95, {OPT.get('ampwg', 40)}\ns_cbranch_scc1 L_end\ns_sub_u32 s94, s{60 + 2 * hi}, s{60 + 2 * lo}\ns_sub_u32 s94, s94, {base}\ns_max_i32 s94, s94, 0\ns_mul_i32 s94, s94, {OPT.get('amprt', 1)}\ns_min_u32 s94, s94, 20000\ns_add_u32 s94, s94, 6000"))
        o.append(raw(f"L_amp{a}:\ns_memrealtime s[92:93]\ns_waitcnt lgkmcnt(0)\ns_sub_u32 s92, s92, s58\ns_cmp_lt_u32 s92, s94\ns_cbranch_scc1 L_amp{a}"))
    elif OPT["stamps"]:
        o.append(raw("s_waitcnt vmcnt(0)"))
        o += stamp(7)
        o.append(raw("s_memrealtime s[92:93]"))
        o.append(raw("s_waitcnt lgkmcnt(0)"))
        o.append(raw("s_mov_b32 s96, s56\ns_and_b32 s97, s57, 0xffff\ns_mov_b32 s98, 0x100000\ns_mov_b32 s99, 0x20000"))
        o.append(raw(f"s_lshl_b32 s94, s2, 2\ns_add_u32 s94, s94, {sW}\ns_lshl_b32 s94, s94, 7"))
        for i in range(16):
            o.append(raw(f"v_mov_b32 v{64 + i}, s{60 + 2 * i}"))
        o.append(raw("v_mov_b32 v80, s58\nv_mov_b32 v81, s92\nv_mov_b32 v82, s37\nv_mov_b32 v83, 0\nv_mov_b32 v84, 0"))
        if OPT["prof"]:
            o.append(raw("v_lshlrev_b32 v85, 2, v0\ns_lshl_b32 s95, s2, 10\ns_add_u32 s95, s95, 0x40000\nbuffer_store_dword v127, v85, s[96:99], s95 offen"))
        o.append(raw("s_mov_b64 exec, 1"))
        for i in range(5):
            o.append(raw(f"buffer_store_dwordx4 v[{64 + 4 * i}:{67 + 4 * i}], v84, s[96:99], s94 offen offset:{16 * i}"))
    o.append(raw("s_endpgm"))
    return o


def fallback(a, redo):
    NQ = 5 - a
    M, AD = PP, PP + 8
    o = [label(f"L_fallback{a}")]
    o.append(raw("s_waitcnt vmcnt(0) lgkmcnt(0)"))
    o.append(nop(7))
    o.append(salu("s_mov_b32 s18, 524288"))
    o.append(valu(f"v_and_b32 v{AD}, 15, v0"))
    o.append(valu(f"v_lshlrev_b32 v{AD}, 9, v{AD}"))
    o.append(valu(f"v_bfe_u32 v{AD + 1}, v0, 4, 1"))
    o.append(valu(f"v_lshl_add_u32 v{AD}, v{AD + 1}, 5, v{AD}"))
    o.append(valu(f"v_bfe_u32 v{AD + 1}, v0, 5, 1"))
    o.append(valu(f"v_lshl_add_u32 v{AD}, v{AD + 1}, 4, v{AD}"))
    for t in range(NQ):
        o.append(valu(f"v_mov_b32 v{M + t}, 0xff800000"))
    o.append(salu("s_mov_b32 s54, 0"))
    o.append(label(f"L_fbloop{a}"))
    for s in range(8):
        o.append(vload("buffer_load_dwordx4", Kf(s), f"v{AD}", sK, "s54", 64 * s))
    for t in range(NQ):
        for s in range(8):
            o.append(mfma(S(t), Kf(s), Qf(t, s), "0" if s == 0 else S(t)))
    for t in range(NQ):
        s0 = SS + 4 * t
        o.append(valu(f"v_max3_f32 v{M + t}, v{s0}, v{s0 + 1}, v{M + t}"))
        o.append(valu(f"v_max3_f32 v{M + t}, v{s0 + 2}, v{s0 + 3}, v{M + t}"))
    o.append(salu("s_add_u32 s54, s54, 8192"))
    o.append(salu("s_cmp_lt_u32 s54, 524288"))
    o.append(salu(f"s_cbranch_scc1 L_fbloop{a}"))
    for t in range(NQ):
        o += xlane("v_max_f32", M + t, AD + 1)
        for r in range(4):
            o.append(valu(f"v_sub_f32 v{NEGM + 4 * t + r}, 0, v{M + t}"))
    o.append(salu(f"s_mov_b64 {sKEEP}, -1"))
    o.append(salu(f"s_mov_b32 {sTHR}, -1"))
    o += redo
    o.append(barrier())
    o.append(salu("s_branch L_restart"))
    return o


def check_scalars(out):
    m0, cnt, seen, scc = None, {"K": 0, "V": 0}, set(), None
    for x in out:
        for ln in x.text.split("\n"):
            ln = ln.strip()
            if re.match(r"s_\w+ m0,", ln):
                m0 = ln
            for kind in "KV":
                if ln == bump(kind).text.split("\n")[0]:
                    cnt[kind] += 1
            if re.match(r"s_(cmp|add|sub|and|or|lshl|lshr|bitcmp|min|max)", ln):
                scc = ln
            if re.match(r"s_cbranch_scc|s_cselect", ln):
                assert scc.startswith(("s_cmp", "s_bitcmp")), (ln, scc)
        if x.kind == "dma":
            assert m0 == x.note[0], (x.text, m0, x.note)
            assert cnt[x.tag[0]] == x.tag[1], (x.text, x.tag, cnt)
            assert (x.tag, x.note[1]) not in seen
            seen.add((x.tag, x.note[1]))
        if x.text.startswith("ds_write_addtid"):
            assert m0 == msetter().text or OPT["prof"], (x.text, m0)
    for kind in "KV":
        for t in range(32):
            for i in range(4):
                assert ((kind, t), i) in seen, (kind, t, i)


def ablate(lines, lo, hi):
    ab = OPT["abl"]
    for n in range(lo, hi):
        l = lines[n]
        if (ab & 1 and l.endswith(" lds")) or (ab & 2 and l == "s_barrier") or (ab & 4 and l.startswith("ds_write")) or (ab & 8 and l.startswith("ds_read2")) \
           or (ab & 16 and l.startswith("ds_read_b64_tr")) or (ab & 32 and l.startswith("ds_read_b128")) or (ab & 64 and l.startswith("s_waitcnt")) \
           or (ab & 4096 and l.startswith("v_add_f32")):
            lines[n] = "; ablated"
        if ab & 8192 and l.startswith("v_add_f32") and not l.startswith("v_add_f32 v12"):
            lines[n] = "; ablated"
        if ab & 16384 and l.startswith("ds_read_b128 a[16") and l.split()[1] in ("a[160:163],", "a[168:171],"):
            k = n + 1
            while not lines[k].startswith("v_mfma"):
                k += 1
            pb = int(re.findall(r"v\[(\d+):", lines[k].split(",")[2] + " v[64:")[0]) & ~15
            off, acc = (2, 240) if "160" in l else (10, 244)
            lines[k] = f"v_mfma_f32_16x16x32_bf16 a[{acc}:{acc + 3}], a[248:251], v[{pb + off}:{pb + off + 3}], a[{acc}:{acc + 3}]\n    " + lines[k]
        if ab & 32768 and l.startswith("v_mfma"):
            p = [x.strip() for x in l.split(None, 1)[1].split(",")]
            if re.match(r"a\[(19[2-9]|2[01]\d|22[0-3]):", p[1]):
                lines[n] = f"v_mfma_f32_16x16x32_bf16 {p[0]}, {p[2]}, {p[1]}, {p[3]}"
        if ab & 65536 and l.startswith("v_mfma"):
            p = [x.strip() for x in l.split(None, 1)[1].split(",")]
            if re.match(r"a\[(1[678]\d):", p[1]):
                lines[n] = f"v_mfma_f32_16x16x32_bf16 {p[0]}, {p[2]}, {p[1]}, {p[3]}"
        if ab & 256 and l.startswith("s_waitcnt vmcnt"):
            lines[n] = re.sub(r"vmcnt\(\d+\) ", "", l)


def abl_init():
    if not OPT["abl"] & 16384:
        return []
    full = OPT.get("onesfull")
    return [raw("v_and_b32 v16, 15, v0\nv_mov_b32 v17, 0x3f803f80\nv_cmp_eq_u32 vcc, 0, v16\ns_nop 1\nv_cndmask_b32 v20, 0, v17, vcc\nv_cmp_eq_u32 vcc, 1, v16\ns_nop 1\nv_cndmask_b32 v16, 0, v17, vcc\n"
                + ("v_mov_b32 v20, v17\nv_mov_b32 v16, v17\n" if full else "")
                + "v_accvgpr_write_b32 a248, v20\nv_accvgpr_write_b32 a249, v20\nv_accvgpr_write_b32 a250, v16\nv_accvgpr_write_b32 a251, v16\n" + "\n".join(f"v_accvgpr_write_b32 a{240 + i}, 0" for i in range(8)))]


def build():
    assert OPT["early"] or OPT["klead"] == 3
    j0, j1 = (5 if OPT["peel0"] else 1), (25 if OPT["early"] else 29)
    ent, redo = entry()
    text, evs = [], []
    for a in (0, 1):
        pro, rest = prologue(a)
        tr = list(ent) + [raw(";;ROLE")] + pro + [raw(";;IV 0")] + start_block(a, rest) + stamp(3) + abl_init()
        for j in range(1, 30):
            tr.append(raw(f";;IV {j}"))
            tr += interval(j, a, f"L_loop{a}" if (j0 <= j < j1 and (j - j0) % 4 == 3) else None)
        tr.append(raw(";;IV 30"))
        if OPT["prof"]:
            tr.append(raw("s_nop 4\n    v_mov_b32 v1, v17"))
        tr += stamp(4) + final_block(a)
        if OPT["prof"]:
            tr.append(raw("v_mov_b32 v127, v1"))
        tr += finish(a)
        out, ev, ins = resolve(tr)
        evs += ev
        check_scalars(out)
        lines = [x.text for x in out]
        k = lines.index(";;ROLE")
        if a == 0:
            text += lines[:k]
        idx = {j: lines.index(f";;IV {j}") for j in range(31)}
        for pos, w, c in ins:
            if idx[0] < pos and (OPT["show"] >= 0 or idx[1] < pos < idx[30]):
                print(f"; auto-inserted in role {a} @{pos - idx[0]}: {w} before {c}", file=sys.stderr)
        seg = lambda j: lines[idx[j] + 1: idx[j + 1]]
        for j in range(j0 + 4, j1):
            jb = j0 + (j - j0) % 4
            assert len(seg(j)) == len(seg(jb)), f"loop body not periodic at {j} role {a}"
            for n, (x, y) in enumerate(zip(seg(j), seg(jb))):
                if x != y:
                    assert re.sub(r"\d+", "", x) == re.sub(r"\d+", "", y) and x.startswith("s_waitcnt"), (j, a, x, y)
                    it = iter(min(int(p), int(q)) for p, q in zip(re.findall(r"\d+", x), re.findall(r"\d+", y)))
                    lines[idx[jb] + 1 + n] = re.sub(r"\d+", lambda m: str(next(it)), x)
        if OPT["abl"]:
            ablate(lines, idx[1], idx[30])
        text += lines[k + 1: idx[j0]]
        text.append(f".p2align {OPT['lalign']}")
        text.append(f"L_loop{a}:")
        text += lines[idx[j0]: idx[j0 + 4]]
        text += lines[idx[j1]:]
        fb, _, _ = resolve(fallback(a, redo))
        text += [x.text for x in fb]
        if OPT["thr2"]:
            text += [f"L_thr2{a}:", "s_waitcnt vmcnt(0)", f"s_branch L_thr2b{a}"]
    if OPT["thr1"]:
        text += ["L_thr1:", "s_waitcnt vmcnt(0)"] + [f"s_sleep {OPT.get('thrs')}"] * (1 if OPT.get("thrs") else 0) + ["s_branch L_thr1b"]
    assert check_lds(evs) == 0
    hdr = open("header.txt").read()
    body = "\n".join(("" if l.endswith(":") or l.startswith(".") else "    ") + l.replace(";;IV", "; interval") for l in text)
    return f"""{hdr}; @launch grid=(256,1,1) block=(256,1,1) lds={LDS_BYTES}
.amdgcn_target "amdgcn-amd-amdhsa--gfx950"
.text
.globl {KN}
.p2align 8
.type {KN},@function
{KN}:
{body}
L_end:
    s_endpgm
.section .rodata,"a"
.p2align 6
.amdhsa_kernel {KN}
  .amdhsa_next_free_vgpr 512
  .amdhsa_next_free_sgpr 102
  .amdhsa_accum_offset 256
  .amdhsa_group_segment_fixed_size 0
  .amdhsa_kernarg_size 48
  .amdhsa_user_sgpr_count 2
  .amdhsa_user_sgpr_kernarg_segment_ptr 1
  .amdhsa_system_sgpr_workgroup_id_x 1
.end_amdhsa_kernel
"""


if __name__ == "__main__":
    for kv in sys.argv[1:]:
        k, v = kv.split("=", 1)
        if k.startswith("pol"):
            OPT[k] = "".join(" " + x for x in v.split("+") if x and x != "d")
        else:
            OPT[k] = int(v)
    print(build())
```

```python
import sys, struct, math, re
from asmlib import *
from sched import Block

KN = "standalone__gqa_softmax__near_ridge_kernel"
OPT = dict(abl=0, pol_kv="", pol_q="", pol_o=" sc0 sc1", stamps=0, prof=0, show=-1, thr=30,
           dma0=1, dmastep=8, dmastag=4, klead=3, walign=0, wq=1, feed0=4, feedl=1, prefeed=3,
           bar0=26, bara=30, barb=69, lalign=3, lazy=16, order=1, win=11, aux=1, early=0, auxj=3, sdma0=1, sdmas=3, sdman=8, lastfeed=0, k1stage=2, touch=0, xbal=0, hflip=0, qfirst=1, ibar=0, stouch=0, pvt=0, defer=0, pvy=0, qkz=1, tm1=2, xearly=1, glds=0, peel0=0, bark=49, thr1=0, thr2=0, rot=0, nunder=0, prewait=0, ulo=2, ulo2=8, split=0, mergetail=1, rwin=1, pf31=25, pft0=29, pfgap=0, holes=0, holew=1, auxper=2, auxn=4, auxend=24, auxt0=28, nfast=3, nin=2)

PXA = 10240
KRING = 3 * PXA
SLOT = 16640
VRING = KRING + 4 * SLOT
LDS_BYTES = VRING + 4 * SLOT

sQ, sK, sV, sO, sC = "s[12:15]", "s[16:19]", "s[20:23]", "s[24:27]", "s[44:47]"
sW, sA, sB, sCNT, sKo, sVo, sKm, sVm, sPm, sMASK = "s28", "s29", "s30", "s31", "s32", "s33", "s34", "s35", "s36", "s39"
sSC, sKEEP = "s[40:41]", "s[42:43]"
sT = ["0", "s48", "s49", "s50", "s51"]
sT8 = ["s4", "s5", "s6", "s7", "s8"]
sX, sTHR = "s38", "s52"
sKg, sVg = "s[32:33]", "s[10:11]"
vKr, vV0, vV1, vKd, vVd, vPr, vPr2 = "v1", "v2", "v3", "v4", "v5", "v6", "v7"
vL = [8, 9, 10, 11, 12]
vO, vEw, vEr = "v13", "v22", "v23"
PXT = 14
TMP = 16
vAuxC, vAuxT, vAuxD, vAuxD2, sP = "v18", "v19", "v20", "v17", "s[88:91]"
NEGM, SS, PP, OO = 24, 44, 64, 128
SCT = 104
vQl, vQw, vQw2, vQwx, vQr, vQr2, vQrx, vKr0 = (f"v{96 + i}" for i in range(8))
vQlx = "v20"
vRr = "v21"
RAWX, SPRE0 = 112, 120
LP, FLG = 24, 30
RL = lambda t: SS + 4 * t
QXTAG = [(("P", 1, t), -1) for t in range(5)] + [(("L", t), -1) for t in range(6)]
AQ, AX, AKF, AVF, ASP = 0, 128, 160, 192, 224


def Qf(t, s):
    return R("a", (AQ + 32 * t if t < 4 else AX) + 4 * s, 4)


def Kf(s):
    return R("a", AKF + 4 * s, 4)


def S(t):
    return R("v", SS + 4 * t, 4)


def Ng(t):
    return R("v", NEGM + 4 * t, 4)


def Pown(j, t):
    return PP + 16 * (j % 4) + 4 * t if t < 4 else PXT


def Pop(j, t):
    return R("v", PP + 16 * (j % 4) + 4 * t, 4) if t < 4 else R("a", ASP + 4 * (j % 4), 4)


def O(t, dt):
    return R("v", OO + 32 * t + 4 * dt, 4) if t < 4 else R("a", AX + 4 * dt, 4)


def RAW(k, i):
    return OO + 32 * k + 4 * i


FLIP = [0]


def where(kind, tile):
    if OPT["early"] and kind == "V" and tile >= 30:
        return (("K", 0), 32) if tile == 30 else (("V", 2), 31)
    return ((kind, tile % 4), tile)


def tdma(kind, tile, i):
    reg = where(kind, tile)
    off = reg[0][1] * SLOT + i * (1568 if kind == "K" else 1552) - (4 * SLOT if reg[0][0] != kind else 0)
    m, v, srd, so = (sKm, vKd, sK, sKo) if kind == "K" else (sVm, vVd, sV, sVo)
    d = dma(v, srd, so, 512 * i, OPT["pol_kv"], reg, (kind, tile))
    if OPT["glds"]:
        pair = sKg if kind == "K" else sVg
        d = I(f"global_load_lds_dwordx4 {v}, {pair}" + (f" offset:{512 * i}" if i else "") + OPT["pol_kv"], "dma", regs(v) + regs(pair) + ["m0"], [], lds_wr=reg, tag=(kind, tile))
    st = salu(f"s_add_u32 m0, {m}, {off}" if off >= 0 else f"s_sub_u32 m0, {m}, {-off}")
    d.note = (st.text, i)
    return (st, d)


def bump(kind):
    so = sKo if kind == "K" else sVo
    if OPT["glds"]:
        lo, hi = regs(sKg if kind == "K" else sVg)
        return raw(f"s_add_u32 {lo}, {lo}, s49\n    s_addc_u32 {hi}, {hi}, 0")
    return salu(f"s_add_u32 {so}, {so}, s49")


def wrap(kind):
    so = sKo if kind == "K" else sVo
    return [salu(f"s_bitset0_b32 {so}, 19")] if OPT["rot"] else []


def dma_piece(kind, tile, i):
    return list(tdma(kind, tile, i)) + ([bump(kind)] + wrap(kind) if i == 3 else [])


def kread(tile, s, addr=vKr, dst=None):
    slot = tile % 4
    return ds_read("ds_read_b128", dst or Kf(s), addr, f"offset:{slot * SLOT + 64 * s}", (("K", slot), tile))


def vread(tile, dt, u, frag):
    reg = where("V", tile)
    base = (vV0, vV1) if reg[0][0] == "V" else (vKd, vVd)
    return ds_read("ds_read_b64_tr_b16", R("a", frag + 2 * u, 2), base[u], f"offset:{reg[0][1] * SLOT + 128 * ((dt // 4) ^ FLIP[0]) + 16 * (dt % 4)}", reg)


def pwrite(j, t, h):
    par = j % 2
    return ds_write("ds_write_addtid_b32", None, f"v{Pown(j, t) + h}", f"offset:{par * PXA + (2 * t + h) * 256}", (("P", par, t), j))


def preads(j, a):
    par = j % 2
    o = []
    for t in range(4):
        n = par * 40 + a * 20 + 2 * t
        o.append((t, ds_read("ds_read2st64_b32", R("v", Pown(j, t) + 2, 2), vPr, f"offset0:{n} offset1:{n + 1}", (("P", par, t), j))))
    if a == 1:
        n = par * 40 + 8
        for u in range(2):
            o.append((4, ds_read("ds_read2st64_b32", R("a", ASP + 4 * (j % 4) + 2 * u, 2), (vPr2, vPr)[u], f"offset0:{n} offset1:{n + 1}", (("P", par, 4), j))))
    return o


def msetter():
    return salu(f"s_mov_b32 m0, {sPm}")


def stamp(idx, mode=0):
    if (OPT["stamps"] == 3) != (mode == 3) and idx > 2:
        return []
    return [raw(f"{'s_memrealtime' if OPT.get('amprt') else 's_memtime'} s[{60 + 2 * idx}:{61 + 2 * idx}]")] if OPT["stamps"] else []


def xlane(op, reg, tmp):
    o = []
    for sw in ("v_permlane32_swap_b32", "v_permlane16_swap_b32"):
        o.append(valu(f"v_mov_b32 v{tmp}, v{reg}"))
        o.append(valu(f"{sw} v{tmp}, v{reg}"))
        o.append(valu(f"{op} v{reg}, v{tmp}, v{reg}"))
    return o


def chain_ops(b, seq, lo, dl, first_deps=(), hard=None):
    prev = None
    for n, ins in enumerate(seq):
        deps = list(first_deps) if prev is None else [(prev, (1 if b.chainy else 2) if ins.kind == "perm" else (0 if b.chainy and prev.cls == "valu" else 1))]
        prev = b.op(ins, "exp" if ins.kind == "trans" else "valu", lo, dl + n, deps, hard=hard)
    return prev


def add_qk(b, a, j):
    ends = []
    for t in range(5 - a):
        for n, s in enumerate(range(8) if not (OPT["qkz"] and t % 2) else reversed(range(8))):
            k = b.mfma(mfma(S(t), Kf(s), Qf(t, s), Ng(t) if n == 0 else S(t)))
        ends.append(k)
    return ends


def add_pv(b, a, tiles, h, frags, lo, zero=False, tmajor=False, lastuse=None, have=(), ts=None):
    NP = 4 + a
    order = [(d, t) for t in (range(NP) if tmajor is True else tmajor) for d in range(4)] if tmajor else \
            [(d, t) for d in range(4) for t in (range(NP) if d % 2 == 0 else reversed(range(NP)))]
    if tmajor and OPT["pvt"] == 2:
        order = [(d if (n // 4) % 2 == 0 else 3 - d, t) for n, (d, t) in enumerate(order)]
    if ts is not None:
        order = [x for x in order if x[1] in ts]
    first, done, pfirst = {}, {}, {}
    war = dict(lastuse) if lastuse is not None else {}
    for ci, (d, t) in enumerate(order):
        seq = list(enumerate(tiles))
        if OPT["pvy"] and len(tiles) == 2 and (len(order) - 1 - ci) % 2 == 1 and not zero:
            seq.reverse()
        for n, j in seq:
            k = b.mfma(mfma(O(t, 4 * h + d), Pop(j, t), R("a", frags[d][n], 4), "0" if zero and n == 0 else O(t, 4 * h + d)))
            first.setdefault((d, n), k)
            pfirst.setdefault((j, t), k)
            done[(t, 4 * h + d)] = k
            if lastuse is not None:
                lastuse[frags[d][n]] = k
    for d in range(4):
        for n, j in enumerate(tiles):
            for u in range(2 if j not in have else 0):
                f = first[(d, n)]
                b.op(vread(j, 4 * h + d, u, frags[d][n]), "ds", max(lo[j], war.get(frags[d][n], 0)), f - 10 + u, hard=f - 3)
    return done, pfirst


def add_softmax(b, a, j, ends, pub, defer, adds_by=None, soft=False, sub=None):
    ends = dict(enumerate(ends)) if isinstance(ends, list) else ends
    wa = OPT["walign"]
    H = (lambda x: None) if soft else (lambda x: x)
    adds = {}
    for n, t in enumerate(ends):
        base = ends[t] + 4
        late = pub - 7 - 5 * (len(ends) - 1 - n)
        ex = []
        for r in range(4):
            dl = (base - 300 if wa else min(base + 10, late - 8)) + r
            dep = []
            if sub and t in sub:
                dep = [b.op(valu(f"v_add_f32 v{SS + 4 * t + r}, v{SS + 4 * t + r}, v{NEGM + 4 * t}"), "valu", base + 1, dl - 2, [sub[t]])]
            ex.append(b.op(valu(f"v_exp_f32 v{SS + 4 * t + r}, v{SS + 4 * t + r}"), "exp", base, dl, dep, hard=H(pub - 6)))
        for h in range(2):
            c = b.op(valu(f"v_cvt_pk_bf16_f32 v{Pown(j, t) + h}, v{SS + 4 * t + 2 * h}, v{SS + 4 * t + 2 * h + 1}"), "valu", 0, (base - 50 if wa else late - 3) + h, ex[2 * h:2 * h + 2], hard=H(pub - 4))
            b.op(pwrite(j, t, h), "ds", base + 6 + h if wa else 0, (base - 200 if wa else late - 1) + h, [c], hard=H(pub - 3), m0="p", setter=msetter())
        if t not in defer:
            for r in range(4):
                adds[t] = b.op(valu(f"v_add_f32 v{vL[t]}, v{SS + 4 * t + r}, v{vL[t]}"), "valu", 0, (pub if adds_by is None else min(base + 12, adds_by)) + r, [ex[r]] + ([(adds[t], 0)] if t in adds else []),
                               hard=H(pub if adds_by is None else adds_by))
    return adds


def add_deferred(b, a, ends, j=None):
    for t in deferred(a, j):
        for r in range(4):
            b.op(valu(f"v_add_f32 v{vL[t]}, v{SS + 4 * t + r}, v{vL[t]}"), "valu", 0, ends[t] - 16 + r, hard=ends[t] - 8)


def deferred(a, j=None):
    if OPT["defer"] or j == 30:
        return [3 - a, 4 - a]
    return []


def add_dma(b, a, pieces, g0, step, G, lo=None):
    dops = []
    for n, (kind, tile, i) in enumerate(pieces):
        st, d = tdma(kind, tile, i)
        e = int(g0 + step * n)
        if lo and (kind, tile) in lo:
            e = max(e, lo[(kind, tile)])
        o = b.op(d, "dma", e, e - 100, [(dops[-1][0], 2)] if dops else [], hard=G - 3, m0=("d", n), setter=st)
        dops.append((o, kind, tile, i))
    for o, kind, tile, i in dops:
        if i == 3:
            nxt = [x for x, k, tl, _ in dops if k == kind and tl > tile]
            bp = bump(kind)
            if OPT["rot"]:
                bp = raw(bp.text + "\n    " + wrap(kind)[0].text)
            b.scalar(bp, (lambda o=o: o.gap + 1), (lambda nxt=nxt: nxt[0].gap - 1) if nxt else G - 4)
    return dops


def prof_hooks(out):
    if OPT["prof"]:
        k = max(n for n, x in enumerate(out) if x.kind == "barrier")
        out.insert(k, raw("v_writelane_b32 v17, s100, m0"))
        out.insert(k - 1, raw("s_mov_b32 m0, s3"))
        mk = [n for n, x in enumerate(out[:k]) if x.kind == "mfma"]
        out.insert(mk[22] + 1, raw("s_memtime s[100:101]" if OPT["prof"] == 1 else "s_memrealtime s[100:101]"))
        out.insert(mk[2] + 1, raw("s_add_u32 s3, s3, 1"))
    return out


TMPL = {
    1: ["RDRRRRRR RRDRRRdE E.EDEWEE WEEDEWEW EEWEDEWE EWWEED.E EWW..RDR RRRRRRRD RRRRdRRR",
        "RRRRRDRR RRRRRRDR EE.EEWED EWEEWEEW .DEEWEEW E.DEW.W. d.D..RRR RRRDRRRR RdRDRRRR"],
    2: ["RDRRRRRR RRDRRRdE E.EDEWEE WEEDEWEW EEWEDEWE EWWEED.E EWW.RRDR RRRRRRRD RRRRd.RR",
        "RRRRRDRR RRRRRRDR EE.EEWED EWEEWEEW .DEEWEEW E.DEW.W. d.DRRRRR RRRDRRRR RdRD..RR"],
    3: ["RDRRRRRR RRDRRREE EE.DEWWE EE.DEWWE EE.DEWWE EE.EWWED EE.WW.DR RRRRRRRD RRRRRRRR",
        "RRRRRDRR RRRRRRDR EEEE.WWE DEEE.WWE EDEE.WWE E.DEE.WW d.D.d.RR RRRDRRRR RRRDRRRR"],
}
FOLD = [AVF + 8 * d for d in range(4)]
FNEW = [AVF + 8 * d + 4 for d in range(4)]


def fold(j):
    return FOLD if j % 2 or not OPT["pvt"] else [ASP + 16 + 4 * d for d in range(4)]


def add_old_reads(b, j, lu, lo, G):
    FOLD = fold(j + 1)
    for d in range(4):
        for u in range(2):
            b.op(vread(j, 4 * ((j + 1) % 2) + d, u, FOLD[d]), "ds", max(lo, lu.get(FOLD[d], 0)), G + 2 * d + u, hard=G - 1)


def interval(j, a, loop_end=None):
    b = Block(f"interval {j} role {a}", wq=OPT["wq"] if OPT["walign"] else 0, wprio=bool(OPT["walign"]))
    ends = add_qk(b, a, j + 1)
    lu = {}
    if j <= 28:
        done, pfirst = add_pv(b, a, [j - 1, j], j % 2, [[fold(j)[d], FNEW[d]] for d in range(4)], {j: 0}, lastuse=lu, have=[j - 1], tmajor=bool(OPT["pvt"]))
        b.carry = [f"a{x + i}" for x in fold(j) for i in range(4)]
    else:
        if a == 1 and OPT["xbal"] & 1:
            assert not OPT["early"]
            add_pv(b, a, [28], 1, [[fold(29)[d]] for d in range(4)], {}, have=[28], ts=[4])
            b.carry = [f"a{x + i}" for x in fold(29) for i in range(4)]
        done, pfirst = add_pv(b, a, [j], 0, [[FNEW[d]] for d in range(4)], {j: 0})
    G = len(b.mf)
    if j <= (27 if OPT["early"] else 28):
        add_old_reads(b, j, lu, 40, G)
    for t, ins in preads(j, a):
        b.op(ins, "ds", 0, pfirst[(j, t)] - 10, hard=pfirst[(j, t)] - 3)
    for s in range(8):
        b.op(kread(j + 2, s), "ds", ends[-1] - (0 if OPT["qkz"] else 7 - s), G - 18 + s, hard=G - 3)
    kl = OPT["klead"]
    T = lambda kind, tile, r=range(4): [(kind, tile, i) for i in r]
    pieces = T("V", j + 2) + (T("K", j + 2 + kl) if j <= 28 else [])
    step = OPT["dmastep"]
    if j == 29:
        step = 4
    p0 = OPT["peel0"]
    if p0 and j <= 4:
        pieces = {1: T("V", 3) + T("K", 5) + T("K", 6, [0]), 2: T("V", 4) + T("K", 6, [1, 2, 3]) + T("K", 7, [0, 1]),
                  3: T("V", 5) + T("K", 7, [2, 3]) + T("K", 8, [0, 1, 2]), 4: T("V", 6) + T("K", 8, [3]) + T("K", 9)}[j]
    if OPT["early"] and j >= 25:
        if kl == 3:
            pieces = {25: T("V", 27) + T("K", 30), 26: T("V", 28) + T("K", 31), 27: T("V", 29) + T("V", 30), 28: T("V", 31), 29: []}[j]
        elif OPT["early"] == 1:
            pieces = {25: T("V", 27) + T("K", 29) + T("K", 30, [0]), 26: T("V", 28) + T("K", 30, [1, 2, 3]) + T("K", 31, [0, 1]),
                      27: T("V", 29) + T("K", 31, [2, 3]) + T("V", 30), 28: T("V", 31), 29: []}[j]
        elif OPT["early"] == 2:
            pieces = {25: T("V", 27) + T("K", 29), 26: T("V", 28) + T("K", 30), 27: T("V", 29) + T("K", 31), 28: T("V", 30) + T("V", 31), 29: []}[j]
        else:
            pieces = {25: T("V", 27) + T("K", 29) + T("K", 30, [0]), 26: T("V", 28) + T("K", 30, [1, 2, 3]) + T("K", 31, [0, 1]),
                      27: T("V", 29) + T("K", 31, [2, 3]) + T("V", 30, [0, 1, 2]), 28: T("V", 30, [3]) + T("V", 31), 29: []}[j]
        step = {25: 7, 26: 7, 27: 6, 28: 4, 29: 4}[j]
    dops = add_dma(b, a, pieces, OPT["dma0"] + a * min(OPT["dmastag"], step // 2), step, G)
    if OPT["early"] and j == 29:
        b.op(valu(f"v_subrev_u32 {vKd}, {4 * SLOT}, {vV0}"), "valu", 0, G, hard=G - 1)
        b.op(valu(f"v_subrev_u32 {vVd}, {4 * SLOT}, {vV1}"), "valu", 0, G, hard=G - 1)
    if OPT["pf31"] and (j == OPT["pf31"] if OPT["early"] else j <= 28 and j % 4 == OPT["pf31"] % 4):
        x = b.op(vload("buffer_load_dword", vAuxD, vAuxT, sV, "0"), "st", OPT["pfgap"], -90 + OPT["pfgap"], hard=G - 3)
        if not OPT["early"]:
            b.op(valu(f"v_add_u32 {vAuxT}, 0x1000000, {vAuxT}"), "valu", 0, G, [x], hard=G - 1)
    if not OPT["early"] and j <= 28 and j % 4 == (30 - kl) % 4:
        kf = [o for o, k, _, _ in dops if k == "K"][0]
        vl = [o for o, k, _, _ in dops if k == "V"][-2]
        pair = raw(f"s_cmp_eq_u32 {sCNT}, 1\n    s_cselect_b32 s18, 0, s18")
        b.scalar(pair, (lambda: vl.gap + 1), (lambda: kf.gap - 2))
    if (5 if p0 else 1) <= j <= (24 if OPT["early"] else 28) and j % 4 == OPT.get("auxj", 1) and OPT["aux"] & 1:
        b.op(vload("buffer_load_dword", vAuxD, vAuxC, sC, "0"), "st", 3, -90, hard=40)
    if j <= 24 and (j - OPT["auxend"]) % OPT["auxper"] == 0 and OPT["aux"] & 2:
        x = b.op(vload("buffer_load_dword", vAuxD2, vAuxT, sP, "0"), "st", 5 - 4 * a, -90, hard=40)
        b.op(valu(f"v_add_u32 {vAuxT}, {(32 - OPT['auxt0']) * 16384 // OPT['auxn']:#x}, {vAuxT}"), "valu", 0, G, [x], hard=G - 1)
    nh = OPT["holes"] % 10 if a == 0 else OPT["holes"] // 10
    for n in range(nh if j <= 28 else 0):
        ref = dops[min(6, (2 * n + 1) * 8 // (2 * nh) - 1 + (1 if nh < 4 else 0))][0]
        w = OPT["holew"]
        b.op(vload("buffer_load_dword" + ("" if w == 1 else f"x{w}"), "v20" if w == 1 else R("a", 252, w), vAuxT, "s[84:87]", "0"), "st", 0, -95, [(ref, 2)], hard=G - 12)
    add_deferred(b, a, ends)
    add_softmax(b, a, j + 1, ends, G - 1, deferred(a, j + 1))
    if OPT["rwin"] and j <= 28:
        tm = TMPL[OPT["rwin"]][a].replace(" ", "")
        assert len(tm) == 72, len(tm)
        nd = len([o for o in b.ops if o.cls in ("dma", "st")])
        b.tmpl = tm.replace("d", "D", max(0, nd - 8) if nd > 4 else 1).replace("d", ".")
        for o in b.ops:
            if o.cls == "dma" or o.ins.kind == "dsw":
                o.lo = 0
            if o.ins.text.startswith("v_cvt"):
                o.dl -= 200
    vm = [("V", j + 1)] + ([("K", j + 3)] if j + 3 <= 31 else [])
    if j == 29:
        vm.append(("V", 31))
    if j < p0:
        b.barrier(OPT["bark"] + 3, [("K", j + 2)], None)
        for o in b.ops:
            if o.ins.text.startswith("ds_read_b128"):
                o.lo = max(o.lo, OPT["bark"] + 3)
    if j + 1 < p0:
        vm = [("V", j + 1)]
    b.barrier(G - 1, vm, ["w"] + [f"a{AKF + i}" for i in range(32)])
    if loop_end:
        b.scalar(salu(f"s_sub_u32 {sCNT}, {sCNT}, 1"), 20, G - 4)
        b.scalar(salu(f"s_cmp_lg_u32 {sCNT}, 0"), G - 3, G - 3)
    out, _ = b.schedule(show=OPT["show"] == j)
    out = prof_hooks(out)
    if loop_end:
        out.append(salu(f"s_cbranch_scc1 {loop_end}"))
    return out


def first_tile_instrs(t):
    SPRE = RAWX if t == 4 else SPRE0
    own, oth = R("v", SPRE, 4), R("v", SPRE + 4, 4)
    mf = [mfma(own, R("a", AVF + 4 * s, 4), Qf(t, s), "0" if s == 0 else own) for s in range(8)]
    mf += [mfma(oth, R("a", ASP + 4 * s, 4), Qf(t, s), "0" if s == 0 else oth) for s in range(8)]
    A_, B_, C_ = TMP, TMP + 1, TMP + 4
    m1 = [valu(f"v_max3_f32 v{C_}, v{SPRE}, v{SPRE + 1}, v{SPRE + 2}"), valu(f"v_max_f32 v{C_}, v{C_}, v{SPRE + 3}")]
    m2 = [valu(f"v_max3_f32 v{C_}, v{C_}, v{SPRE + 4}, v{SPRE + 5}"),
          valu(f"v_max3_f32 v{A_}, v{C_}, v{SPRE + 6}, v{SPRE + 7}"), valu(f"v_max3_f32 v{B_}, v{C_}, v{SPRE + 6}, v{SPRE + 7}"),
          valu(f"v_permlane32_swap_b32 v{A_}, v{B_}"),
          valu(f"v_max_f32 v{C_}, v{A_}, v{B_}"), valu(f"v_max_f32 v{B_}, v{A_}, v{B_}"),
          valu(f"v_permlane16_swap_b32 v{C_}, v{B_}"),
          valu(f"v_max_f32 v{A_}, v{C_}, v{B_}")]
    cm = [valu(f"v_cndmask_b32 v{NEGM + 4 * t + r}, -v{TMP}, v{NEGM + 4 * t + r}, {sKEEP}") for r in range(4)]
    n = 8 if t < 4 else 4
    sb = [valu(f"v_add_f32 v{SPRE + r}, v{SPRE + r}, v{NEGM + 4 * t}") for r in range(n)]
    ex = [valu(f"v_exp_f32 v{SPRE + r}, v{SPRE + r}") for r in range(n)]
    cv = [valu(f"v_cvt_pk_bf16_f32 v{Pown(0, t) + h}, v{SPRE + 2 * h}, v{SPRE + 2 * h + 1}") for h in range(n // 2)]
    ad = [valu(f"v_add_f32 v{vL[t]}, v{SPRE + r}, v{vL[t]}") for r in range(4)]
    return mf, m1, m2, cm, sb, ex, cv, ad


def add_first_tile(b, t, need_by=None):
    mf, m1, m2, cm, sb, ex, cv, ad = first_tile_instrs(t)
    idx = [b.mfma(x) for x in mf]

    def ops(after=()):
        x = chain_ops(b, m1, idx[7] + 5, -510, after)
        last = chain_ops(b, m2, idx[15] + 5, -500, [x])
        c = [b.op(y, "valu", 0, -480 if r == 0 or t == 4 else 150, [(last, 0)]) for r, y in enumerate(cm)]
        ops.cm = c
        e = []
        for r in range(len(sb)):
            sbo = b.op(sb[r], "valu", 0, -478 + r, [(c[0], 0)], hard=need_by)
            e.append(b.op(ex[r], "exp", 0, -470 + r, [sbo], hard=need_by))
        for h, y in enumerate(cv):
            cvo = b.op(y, "valu", 0, -469 + 2 * h, e[2 * h:2 * h + 2], hard=need_by)
            if t == 4:
                b.op(pwrite(0, t, h), "ds", 0, 100 + h, [cvo], m0="p", setter=msetter())
        for r in range(4):
            b.op(ad[r], "valu", 0, 200 + r, [e[r]])
        return c[0]
    return idx, ops


def qk_chain(b, t, zero=False):
    for s in range(8):
        k = b.mfma(mfma(S(t), Kf(s), Qf(t, s), ("0" if zero else Ng(t)) if s == 0 else S(t)))
    return k


def flush(out, left):
    m0 = None
    left = list(left)
    while left:
        o = next(o for o in left if all(d not in left for d, _ in o.deps))
        left.remove(o)
        if o.m0 is not None and o.m0 != m0:
            out.append(o.setter)
            m0 = o.m0
        out.append(o.ins)
    return out


def merge(x, y):
    o = []
    for i in range(max(len(x), len(y))):
        o += x[i:i + 1] + y[i:i + 1]
    return o


def stage_block(a, k, feed):
    b = Block(f"stage {k} role {a}")
    b.chainy = True
    k1 = OPT["k1stage"]
    b.pre = ([kread(1, s) for s in range(8)] if k == k1 else []) + stage_read(k)
    c1 = {1: {1: [0, 4], 2: [1]}, 2: {2: [0, 1, 4]}}[k1].get(k, [])
    c1 = [t for t in c1 if t < 5 - a]
    ends, later = {}, []
    covered = (k == 0 and a == 0) or (k > k1)
    if k == 0 and a == 0:
        later.append(add_first_tile(b, 4)[1])
    if c1 and k == 2:
        ends[c1[0]] = qk_chain(b, c1[0])
    later.append(add_first_tile(b, k)[1])
    for t in c1:
        if t not in ends:
            ends[t] = qk_chain(b, t)
    G = len(b.mf)
    prev = ()
    for f in later:
        f(prev)
        prev = f.cm
    if ends:
        add_softmax(b, a, 1, ends, G + 16, deferred(a), soft=True)
    i = 0
    if not covered and OPT["prewait"]:
        b.pre += stage_load(k + 1, 0, feed)
        i = 1
    nun = OPT["nunder"]
    ulo = OPT["ulo"] if G <= 16 else OPT["ulo2"]
    prev = []
    for n in range(nun):
        src = RAW(k + 1, i)
        cv = []
        first = None
        for r in range(4):
            lo_ = b.op(valu(f"v_lshlrev_b32 v{SCT + 2 * r}, 16, v{src + r}"), "valu", ulo, 40 * n + 5 * r, prev)
            hi_ = b.op(valu(f"v_and_b32 v{SCT + 2 * r + 1}, {sMASK}, v{src + r}"), "valu", ulo, 40 * n + 5 * r + 1, prev)
            first = first or lo_
            m0_ = b.op(valu(f"v_mul_f32 v{SCT + 2 * r}, s40, v{SCT + 2 * r}"), "valu", 0, 40 * n + 5 * r + 2, [lo_])
            m1_ = b.op(valu(f"v_mul_f32 v{SCT + 2 * r + 1}, s40, v{SCT + 2 * r + 1}"), "valu", 0, 40 * n + 5 * r + 3, [hi_])
            cv.append(b.op(valu(f"v_cvt_pk_bf16_f32 v{src + r}, v{SCT + 2 * r}, v{SCT + 2 * r + 1}"), "valu", 0, 40 * n + 5 * r + 4, [m0_, m1_]))
        b.op(stage_write(k + 1, i), "solo", 0, 40 * n + 21, cv)
        fd = feed(("Q", k + 1, i))
        if fd:
            grp = I("\n    ".join(x.text for x in fd), "group")
            grp.tag = fd
            b.op(grp, "st", 0, 40 * n + 6, [first], m0=("g", n), setter=nop(0))
        prev = cv
        i += 1
    out, left = b.schedule(show=OPT["show"] == 0, leftover_ok=True)
    tail = flush([], left)
    if not any(x.wr & {f"v{SCT + r}" for r in range(8)} or x.rd & {f"v{SCT + r}" for r in range(8)} for x in tail) and i < 3 and OPT["mergetail"]:
        assert not any(x.kind == "group" for x in tail)
        nx = stage_load(k + 1, i, feed)
        i += 1
        p = max(n for n, x in enumerate(nx) if x.kind in ("dma", "vld", "salu") or n == 0)
        tail = nx[:p + 1] + merge(tail, nx[p + 1:])
    out += tail
    while i < 4:
        out += stage_load(k + 1, i, feed)
        i += 1
    o = []
    for x in out:
        o += x.tag if x.kind == "group" else [x]
    return o


def start_block(a, rest):
    b = Block(f"start role {a}")
    b.chainy = True
    b.pre = stage_read(3)
    ends = {2: qk_chain(b, 2)}
    G = 32 + 4 * (4 + a)
    idx, ops = add_first_tile(b, 3, need_by=G - 5)
    ends[3] = qk_chain(b, 3, zero=True)
    lu = {AVF + 4 * s: idx[s] for s in range(8)}
    done, pfirst = add_pv(b, a, [0], 0, [[FNEW[d]] for d in range(4)], {0: 0}, zero=True, tmajor=[0, 1, 2, 4, 3][:3] + ([4] if a else []) + [3], lastuse=dict(lu))
    assert G == len(b.mf)
    bar = OPT["bar0"]
    neg3 = ops()
    for d in range(4):
        for u in range(2):
            b.op(vread(0, 4 + d, u, FOLD[d]), "ds", lu[FOLD[d]], G + 30 + 2 * d + u)
    for t, ins in preads(0, a):
        if t == 4:
            b.op(ins, "ds", idx[8], pfirst[(0, t)] - 10, hard=pfirst[(0, t)] - 3)
    for s in range(8):
        b.op(kread(2, s), "ds", max(bar, ends[3] - 7 + s), G - 10 + s)
    pieces = rest + [("V", 2, i) for i in range(4)] + [("K", 4, i) for i in range(4)]
    if OPT["klead"] == 3 and not OPT["peel0"]:
        pieces += [("K", 5, i) for i in range(4)]
    nin = min(len(pieces), OPT["sdman"])
    add_dma(b, a, pieces[:nin], OPT["sdma0"], OPT["sdmas"], G)
    add_softmax(b, a, 1, ends, G + 12, deferred(a), soft=True, sub={3: neg3})
    b.barrier(bar, [("K", 2)], None)
    if OPT["stamps"] == 1:
        b.inserts[0] = stamp(12)
        b.inserts[bar - 2] = stamp(13)
        b.inserts[bar] = stamp(9)
        b.inserts[G - 1] = stamp(10)
    out, left = b.schedule(show=OPT["show"] == 0, leftover_ok=True)
    out = flush(out, left)
    for p in pieces[nin:]:
        out += dma_piece(*p)
    out.append(wait(vm=[("V", 1)] + ([("K", 3)] if OPT["peel0"] < 2 else []), lg=["w"] + [f"a{AKF + i}" for i in range(32)]))
    out.append(barrier())
    return prof_hooks(out)


def unit_instrs(a, t, h, n, packed):
    x = OO + 32 * t + 16 * h if t < 4 else OO
    mu = []
    for d in range(4):
        seq = []
        if t == 4:
            seq += [valu(f"v_accvgpr_read_b32 v{x + 4 * d + i}, a{AX + 16 * h + 4 * d + i}") for i in range(4)]
        if packed:
            seq += [valu(f"v_pk_mul_f32 {R('v', x + 4 * d + 2 * i, 2)}, {R('v', x + 4 * d + 2 * i, 2)}, {R('v', RL(t) + 2 * i, 2)}") for i in range(2)]
        else:
            seq += [valu(f"v_mul_f32 v{x + 4 * d + i}, v{x + 4 * d + i}, v{RL(t) + i}") for i in range(4)]
        mu.append(seq)
    cv = [[valu(f"v_cvt_pk_bf16_f32 v{x + 8 * e + r}, v{x + 8 * e + r}, v{x + 8 * e + 4 + r}") for r in range(4)] for e in range(2)]
    wr = []
    for r in range(4):
        w = ds_write("ds_write2_b32", vEw, f"v{x + r}, v{x + 8 + r}", f"offset0:{36 * r} offset1:{36 * r + 1}", (("K", 1), 99))
        w.rd |= {f"v{x + r}", f"v{x + 8 + r}"}
        wr.append(w)
    rd, st = [], []
    for i in range(2):
        q = ASP + 16 + 8 * (n % 2) + 4 * i
        rd += [ds_read("ds_read_b64_tr_b16", R("a", q + 2 * u, 2), vEr, f"offset:{8 * 144 * i + 32 * u}") for u in range(2)]
        st.append(vstore("buffer_store_dwordx4", R("a", q, 4), vO, sO, (sT, sT8)[i][t], 128 * (h ^ FLIP[0]), OPT["pol_o"] if h == 0 or "pol_o1" not in OPT else OPT["pol_o1"]))
    return mu, cv, wr, rd, st


def final_block(a):
    NQ, NP = 5 - a, 4 + a
    b = Block(f"final role {a}")
    b.lazy = OPT["lazy"]
    b.chainy = True
    save = OPT["walign"]
    OPT["walign"] = 0
    barA, barB = OPT["bara"], OPT["barb"]
    F = lambda i: AVF + 4 * i
    KF = lambda i: AKF + 4 * i
    lo = {28: 0, 29: 0, 30: 0, 31: 0}
    lu = {}
    rest = list(range(2, NP))
    tord = [0, 1, 2, 4, 3] if a == 1 and OPT["xbal"] & 2 else list(range(NP))
    f30, f31 = [[F(d)] for d in range(4)], [[F(4 + d)] for d in range(4)]
    ends = {t: qk_chain(b, t) for t in (0, 1, 2)}
    _, pf = add_pv(b, a, [30], 0, f30, lo, lastuse=lu, ts=[0, 1])
    ends[3] = qk_chain(b, 3)
    if a == 0 and OPT["xearly"]:
        ends[4] = qk_chain(b, 4)
    done0, pf1 = add_pv(b, a, [31], 0, f31, lo, tmajor=True, lastuse=lu, ts=[0, 1])
    X1 = len(b.mf) - 1
    if a == 0 and not OPT["xearly"]:
        ends[4] = qk_chain(b, 4)
    lu.update({KF(s): ends[NQ - 1] - 7 + s for s in range(8)})
    pf.update(add_pv(b, a, [30], 0, f30, lo, lastuse=lu, ts=rest, have=[30])[1])
    add_pv(b, a, [28], 1, [[ASP + 4 * d if a == 0 else KF(d)] for d in range(4)], lo, lastuse=lu, ts=[0, 1, 2, 3] if OPT["xbal"] & 1 else None)
    d2, p2 = add_pv(b, a, [31], 0, f31, lo, tmajor=True, lastuse=lu, ts=rest, have=[31])
    done0.update(d2)
    pf1.update(p2)
    X = len(b.mf) - 1
    pool = [KF(i) for i in range(8)] + [F(i) for i in range(4)] if a == 0 else [KF(4 + i) for i in range(4)] + [F(i) for i in range(4)] + [KF(i) for i in range(4)]
    done1, _ = add_pv(b, a, [29, 30, 31], 1, [pool[3 * d:3 * d + 3] for d in range(4)], lo, lastuse=lu, tmajor=tord if OPT["tm1"] else False)
    G = len(b.mf)
    bar = lambda t: barA if t < 2 else barB
    for t, ins in preads(30, a):
        b.op(ins, "ds", 0, pf[(30, t)] - 10, hard=pf[(30, t)] - 3)
    for t, ins in preads(31, a):
        b.op(ins, "ds", bar(t), pf1[(31, t)] - 12, hard=pf1[(31, t)] - 3)
    add_deferred(b, a, ends, 30)
    adds = add_softmax(b, a, 31, {t: ends[t] for t in (0, 1)}, barA, [], adds_by=barA - 4)
    adds.update(add_softmax(b, a, 31, {t: ends[t] for t in range(2, NQ)}, barB, [], adds_by=barB - 6))
    L = lambda *t: [(("L", x), 0) for x in t]
    lw = {t: b.op(ds_write("ds_write_addtid_b32", None, f"v{vL[t]}", f"offset:{2 * PXA + t * 256}", L(t)), "ds", 0, bar(t) - 8, [adds[t]], hard=bar(t) - 3, m0="p", setter=msetter()) for t in range(NQ)}
    w1 = b.op(valu(f"v_max3_u32 v{TMP}, v{vL[0]}, v{vL[1]}, v{vL[2]}"), "valu", 0, barB - 12, [adds[0], adds[1], adds[2]], hard=barB - 5)
    w2 = b.op(valu(f"v_max3_u32 v{TMP}, v{TMP}, v{vL[3]}, v{vL[NQ - 1]}"), "valu", 0, barB - 11, [w1, adds[3], adds[NQ - 1]], hard=barB - 4)
    b.op(ds_write("ds_write_addtid_b32", None, f"v{TMP}", f"offset:{2 * PXA + 5 * 256}", L(5)), "ds", 0, barB - 9, [w2], hard=barB - 3, m0="p", setter=msetter())
    b.barrier(barA, None, ["w"])
    b.barrier(barB, None, ["w"])
    base = 80
    lr = {}
    for t in (0, 2):
        lr[t] = lr[t + 1] = b.op(ds_read("ds_read2st64_b32", R("v", LP + t, 2), vPr, f"offset0:{base + a * 20 + t} offset1:{base + a * 20 + t + 1}", L(t, t + 1)), "ds", bar(t), bar(t) - 5)
    f1 = b.op(ds_read("ds_read2st64_b32", R("v", FLG, 2), vPr, f"offset0:{base + 5} offset1:{base + 25}", L(5)), "ds", barB, barB + 8)
    f2 = b.op(ds_read("ds_read2st64_b32", R("v", FLG + 2, 2), vPr2, f"offset0:{base + 5} offset1:{base + 25}", L(5)), "ds", barB, barB + 9)
    if a == 1:
        x1 = b.op(ds_read("ds_read_b32", f"v{LP + 4}", vPr, f"offset:{(base + 4) * 256}", L(4)), "ds", barB, barB + 5)
        lr[4] = b.op(ds_read("ds_read_b32", f"v{vL[4]}", vPr2, f"offset:{(base + 4) * 256}", L(4)), "ds", barB, barB + 6, [x1])
    ck = chain_ops(b, [valu(f"v_max3_u32 v{FLG}, v{FLG}, v{FLG + 1}, v{FLG + 2}"), valu(f"v_max_u32 v{FLG}, v{FLG}, v{FLG + 3}"), valu(f"v_cmp_lt_u32 vcc, {sTHR}, v{FLG}")],
                   0, barB + 30, [(f1, 6), (f2, 6)], hard=G - 4)
    if not OPT["abl"]:
        b.scalar(salu(f"s_cbranch_vccnz L_fallback{a}"), (lambda: ck.gap + 1), G - 1)
    rl = {}
    for t in range(NP):
        A_, B_, C_ = RL(t), RL(t) + 1, LP + t
        lim = X1 if t < 2 else X
        seq = [valu(f"v_add_f32 v{A_}, v{vL[t]}, v{C_}"), valu(f"v_add_f32 v{B_}, v{vL[t]}, v{C_}"), valu(f"v_permlane32_swap_b32 v{A_}, v{B_}"),
               valu(f"v_add_f32 v{C_}, v{A_}, v{B_}"), valu(f"v_add_f32 v{B_}, v{A_}, v{B_}"), valu(f"v_permlane16_swap_b32 v{C_}, v{B_}"),
               valu(f"v_add_f32 v{A_}, v{C_}, v{B_}"), valu(f"v_rcp_f32 v{A_}, v{A_}")]
        rc = chain_ops(b, seq, 0, -400 + 10 * t, [(lr[t], 6)], hard=lim)
        pl = 2 * PXA + (6 + t % 4) * 256
        w = b.op(ds_write("ds_write_addtid_b32", None, f"v{A_}", f"offset:{pl}"), "ds", 0, -390 + 10 * t, [rc], hard=lim, m0="p", setter=msetter())
        rl[t] = b.op(ds_read("ds_read_b128", R("v", RL(t), 4), vRr, f"offset:{pl}"), "ds", 0, -389 + 10 * t, [w], hard=lim)
    units = [(t, 0) for t in range(NP)] + [(t, 1) for t in tord]
    nfast = min(2 + OPT["nfast"], NP)
    nin = min(OPT["nin"], NP - nfast)

    def straight(lst, pend):
        o = []
        for n, (t, h) in lst:
            mu, cv, wr, rd, st = unit_instrs(a, t, h, n, True)
            for k in range(len(mu[0])):
                o += [mu[d][k] for d in range(4)]
            o += cv[0] + cv[1]
            o += pend
            o += wr + rd
            pend = st
        return o, pend
    en = list(enumerate(units))
    b.inserts[X1], pend = straight(en[:2], [])
    prev_rd, prev_st = [], {1: [b.op(x, "st", X1 + 6 + i, X1 - 50 + i, hard=X1 + 12) for i, x in enumerate(pend)]}
    if nfast > 2:
        b.inserts[X], pend = straight(en[2:nfast], [])
        prev_st[(nfast - 1) % 2] = [b.op(x, "st", X + 6 + i, X + i, hard=G - 1) for i, x in enumerate(pend)]
    if OPT["tm1"]:
        assert nfast == NP
        for x in prev_st[(nfast - 1) % 2]:
            x.hard = X + 12
        for n, t in enumerate(tord[:-1]):
            at = max(done1[(t, 4)], done1[(t, 7)]) + 4
            if OPT["tm1"] == 1:
                b.inserts[at], pend = straight(en[NP + n:NP + n + 1], [])
            else:
                mu, cv, wr, rd, pend = unit_instrs(a, t, 1, NP + n, False)
                at = min(at + 7, G - 1)
                mo = []
                for d in range(4):
                    pre = [b.op(x, "valu", done1[(t, 4 + d)] + 4, at - 21 + 3 * d, hard=at) for x in mu[d][:-4]]
                    mo.append([b.op(x, "valu", done1[(t, 4 + d)] + 4, at - 20 + 3 * d + i // 2, [(y, 0) for y in pre[i:i + 1]], hard=at) for i, x in enumerate(mu[d][-4:])])
                for e in range(2):
                    for r in range(4):
                        b.op(cv[e][r], "valu", 0, at - 15 + 6 * e, [mo[2 * e][r], mo[2 * e + 1][r]], hard=at)
                b.inserts[at] = wr + rd
            for i, x in enumerate(pend):
                b.op(x, "st", at + 6 + i, at - 50 + i, hard=at + 11)
        nin = 0
        nfast = 2 * NP - 1
    if OPT["stamps"] == 2:
        b.inserts[barA] = stamp(12)
        b.inserts[X1] = stamp(13) + b.inserts[X1]
        b.inserts[barB] = stamp(9)
        b.inserts[X] = stamp(10) + b.inserts.get(X, [])
    assert nin == 0
    out, left = b.schedule(show=OPT["show"] == 31, leftover_ok=True)
    OPT["walign"] = save
    out += stamp(5)
    pend = []
    for o in left:
        if o.ins.kind == "vst":
            pend.append(o.ins)
        else:
            if any(o.ins.wr & x.rd for x in pend):
                out += pend
                pend = []
            out.append(o.ins)
    o2, pend = straight(en[nfast + nin:], pend)
    return out + o2 + pend


def qload(k, i):
    return [vload("buffer_load_dwordx4", R("v", RAW(k, i), 4), vQl, sQ, sT[k], 512 * i, OPT["pol_q"], tag=("Q", k, i))]


def entry():
    o = []
    A = lambda t: o.append(salu(t))
    V = lambda t: o.append(valu(t))
    t0, t1, t2, t3, t4 = (f"v{TMP + i}" for i in range(5))
    A("s_cmp_ge_u32 s2, 256")
    A("s_cbranch_scc1 L_end")
    o.append(raw("s_load_dwordx8 s[4:11], s[0:1], 0"))
    if OPT["stamps"]:
        o.append(raw("s_load_dwordx2 s[56:57], s[0:1], 40"))
        o.append(raw("s_memrealtime s[58:59]"))
    o += stamp(0)
    o.append(raw("s_getpc_b64 s[44:45]"))
    o.append(label("L_pc"))
    A("s_and_b32 s45, s45, 0xffff")
    o.append(raw("s_mov_b32 s46, L_end-L_pc"))
    A("s_mov_b32 s47, 0x20000")
    A("s_lshr_b32 s54, s2, 3")
    A("s_lshl_b32 s55, s54, 7")
    V(f"v_lshl_add_u32 {t0}, v0, 12, s55")
    o.append(vload("buffer_load_dword", "v15", t0, sC, "0"))
    V(f"v_lshrrev_b32 {t1}, 6, v0")
    A(f"s_mov_b64 {sKEEP}, 0")
    V(f"v_readfirstlane_b32 {sW}, {t1}")
    A(f"s_mov_b32 {sTHR}, {(127 + OPT['thr']) << 23:#x}")
    if OPT["prof"]:
        A("s_mov_b32 s3, 0")
    A("s_and_b32 s53, s2, 7")
    A("s_lshl_b32 s53, s53, 3")
    A("s_lshr_b32 s55, s2, 5")
    A("s_add_u32 s53, s53, s55")
    A("s_and_b32 s54, s54, 3")
    A("s_lshl_b32 s55, s53, 2")
    A("s_add_u32 s55, s55, s54")
    A("s_mul_i32 s37, s55, 73728")
    A("s_lshl_b32 s53, s53, 19")
    A(f"s_lshr_b32 {sA}, {sW}, 1")
    A(f"s_and_b32 {sB}, {sW}, 1")
    A(f"s_add_u32 s54, {sW}, 1")
    A("s_and_b32 s55, s54, 1")
    A("s_lshl_b32 s55, s55, 3")
    A("s_lshr_b32 s54, s54, 1")
    A("s_and_b32 s54, s54, 1")
    A("s_add_u32 s54, s54, s55")
    A("s_mul_i32 s54, s54, 1040")
    A(f"s_add_u32 {sKm}, s54, {KRING}")
    A("s_mov_b32 s48, 8192")
    A("s_mov_b32 s49, 16384")
    A("s_mov_b32 s50, 24576")
    A(f"s_mov_b32 {sX}, 65536")
    for srd, n in ((16, 524288), (12, 73728), (20, 524288), (24, 73728)):
        A(f"s_mov_b32 s{srd + 2}, {n}")
        A(f"s_mov_b32 s{srd + 3}, 0x20000")

    def src_offsets():
        V(f"v_and_b32 {t0}, 31, v0")
        V(f"v_lshlrev_b32 {t0}, 4, {t0}")
        V(f"v_bfe_u32 {t2}, v0, 5, 1")
        A(f"s_lshl_b32 s54, {sW}, 11")
        V(f"v_add_u32 {t1}, s54, {t0}")
        V(f"v_lshl_add_u32 {vKd}, {t2}, 13, {t1}")
        V(f"v_lshl_add_u32 {vQl}, {t2}, 15, {t1}")
        V(f"v_lshl_add_u32 {vQlx}, {t2}, 9, {t1}")
        if OPT["rot"]:
            A("s_and_b32 s54, s2, 7")
            A(f"s_mul_i32 s54, s54, {OPT['rot'] // 100}")
            A("s_lshr_b32 s55, s2, 5")
            A(f"s_mul_i32 s55, s55, {OPT['rot'] % 100}")
            A("s_add_u32 s54, s54, s55")
            A("s_and_b32 s54, s54, 31")
            A(f"s_lshl_b32 {sKo}, s54, 14")
            A(f"s_mov_b32 {sVo}, {sKo}")
        else:
            A(f"s_mov_b32 {sKo}, 0")
            A(f"s_mov_b32 {sVo}, 0")
    src_offsets()
    o.append(raw("s_waitcnt lgkmcnt(0)"))
    o += stamp(8)
    for srd, ptr, off in ((16, 6, "s53"), (12, 4, "s37"), (20, 8, "s53"), (24, 10, "s37")):
        A(f"s_add_u32 s{srd}, s{ptr}, {off}")
        A(f"s_addc_u32 s{srd + 1}, s{ptr + 1}, 0")
        A(f"s_and_b32 s{srd + 1}, s{srd + 1}, 0xffff")
    o.append(label("L_restart"))
    if OPT["glds"]:
        A(f"s_mov_b64 {sKg}, s[16:17]")
        A(f"s_mov_b64 {sVg}, s[20:21]")
    for i in range(4):
        o += dma_piece("K", 0, i) if not OPT["qfirst"] else []
    for i in range(2):
        o.append(vload("buffer_load_dwordx4", R("v", RAWX + 4 * i, 4), vQlx, sQ, sX, 1024 * i, OPT["pol_q"], tag=("Q", 4, i)))
    for i in range(4):
        o += qload(0, i) if OPT["qfirst"] else []
    if OPT["touch"] & 1:
        o.append(I("buffer_load_dword v14, off, s[20:23], 0", "vld", regs(sV), ["v14"]))
    if OPT["touch"] & 2:
        o.append(I("buffer_load_dword v14, off, s[24:27], 0", "vld", regs(sO), ["v14"]))
    if OPT["thr1"] or OPT["thr2"] or OPT["stamps"]:
        o.append(raw("s_getreg_b32 s37, hwreg(HW_REG_XCC_ID, 0, 4)" if not OPT.get("thrkey") else "s_lshr_b32 s37, s2, 5"))
    if OPT["thr1"]:
        o.append(raw(f"s_lshr_b32 s54, {OPT['thr1']}, s37\n    s_bitcmp1_b32 s54, 0\n    s_cbranch_scc1 L_thr1\nL_thr1b:"))
    if OPT["ibar"]:
        o.append(barrier())
    for i in range(4):
        o += qload(0, i) if not OPT["qfirst"] else dma_piece("K", 0, i)
    if OPT["stamps"] == 4:
        o += stamp(9)
    if OPT["stouch"]:
        for i in range(1, OPT["stouch"] + 1):
            o.append(raw(f"s_load_dword s9, s[44:45], {i * 4096 - 128}"))
    A(f"s_lshl_b32 s54, {sB}, 11")
    A(f"s_lshl_b32 s55, {sA}, 13")
    A("s_add_u32 s54, s54, s55")
    V(f"v_lshl_add_u32 {vVd}, {t2}, 12, {t0}")
    V(f"v_add_u32 {vVd}, s54, {vVd}")
    A(f"s_add_u32 s54, {sKm}, {3 * SLOT}")
    V(f"v_lshl_add_u32 {vQw}, {t2}, 9, {t0}")
    V(f"v_add_u32 {vQw}, s54, {vQw}")
    V(f"v_add_u32 {vQw2}, {4 * SLOT}, {vQw}")
    A(f"s_sub_u32 s54, {sKm}, {KRING - PXA}")
    V(f"v_mul_u32_u24 {vQwx}, 2080, {t2}")
    V(f"v_add3_u32 {vQwx}, {vQwx}, {t0}, s54")
    A(f"s_mul_i32 s54, {sB}, 8320")
    A(f"s_lshl_b32 s55, {sA}, 10")
    A("s_add_u32 s54, s54, s55")
    A(f"s_add_u32 {sVm}, s54, {VRING}")
    A(f"s_mul_i32 {sPm}, {sW}, 2560")
    V(f"v_and_b32 {t0}, 15, v0")
    V(f"v_bfe_u32 {t1}, v0, 4, 1")
    V(f"v_lshlrev_b32 {t3}, 5, {t1}")
    V(f"v_lshl_add_u32 {t3}, {t2}, 4, {t3}")
    V(f"v_add_u32 {t4}, 4, {t0}")
    V(f"v_bfe_u32 {vKr0}, {t4}, 3, 1")
    V(f"v_and_b32 {t4}, 7, {t4}")
    V(f"v_lshl_add_u32 {vKr0}, {t4}, 1, {vKr0}")
    V(f"v_mul_u32_u24 {vKr0}, 1040, {vKr0}")
    V(f"v_add_u32 {vKr0}, {vKr0}, {t3}")
    V(f"v_add_u32 {vQrx}, {PXA}, {vKr0}")
    V(f"v_add_u32 {vKr0}, {KRING}, {vKr0}")
    A(f"s_lshl_b32 s54, {sB}, 9")
    V(f"v_add_u32 {vKr}, s54, {vKr0}")
    A(f"s_lshl_b32 s54, {sA}, 9")
    A(f"s_add_u32 s54, s54, {3 * SLOT}")
    V(f"v_add_u32 {vQr}, s54, {vKr0}")
    V(f"v_add_u32 {vQr2}, {4 * SLOT}, {vQr}")
    A(f"s_lshl_b32 s54, {sB}, 9")
    A("s_sub_u32 s54, 512, s54")
    V(f"v_add_u32 {vKr0}, s54, {vKr0}")
    V(f"v_bfe_u32 {t4}, v0, 2, 2")
    V(f"v_mul_u32_u24 {vV0}, 2064, {t4}")
    V(f"v_mul_u32_u24 {t4}, 8320, {t1}")
    V(f"v_add_u32 {vV0}, {vV0}, {t4}")
    V(f"v_lshl_add_u32 {vV0}, {t2}, 9, {vV0}")
    V(f"v_bfe_u32 {t4}, v0, 1, 1")
    V(f"v_lshl_add_u32 {vV0}, {t4}, 6, {vV0}")
    V(f"v_and_b32 {t4}, 1, v0")
    V(f"v_lshl_add_u32 {vV0}, {t4}, 3, {vV0}")
    A(f"s_mul_i32 s54, {sB}, {256 + 1024}")
    A(f"s_add_u32 s54, s54, {VRING}")
    A(f"s_mul_i32 s55, {sB}, {1024 - 256}")
    A(f"s_sub_u32 s55, {VRING + 1024}, s55")
    V(f"v_add_u32 {vV1}, s55, {vV0}")
    V(f"v_add_u32 {vV0}, s54, {vV0}")
    V(f"v_and_b32 {t4}, 63, v0")
    V(f"v_lshlrev_b32 {t4}, 2, {t4}")
    A(f"s_mul_i32 s54, {sB}, 2560")
    A("s_sub_u32 s55, 2560, s54")
    V(f"v_add_u32 {vPr2}, s54, {t4}")
    V(f"v_add_u32 {vPr}, s55, {t4}")
    A(f"s_mul_i32 s55, {sW}, 2304")
    A(f"s_add_u32 s55, s55, {KRING + SLOT}")
    V(f"v_bfe_u32 {t4}, v0, 4, 2")
    V(f"v_mul_u32_u24 {vEw}, {4 * 144}, {t4}")
    V(f"v_lshl_add_u32 {vEw}, {t0}, 3, {vEw}")
    V(f"v_add_u32 {vEw}, s55, {vEw}")
    V(f"v_lshl_add_u32 {vRr}, {t4}, 4, {sPm}")
    V(f"v_bfe_u32 {t1}, v0, 1, 1")
    V(f"v_lshl_add_u32 {t4}, {t4}, 1, {t1}")
    V(f"v_mul_u32_u24 {vEr}, 144, {t4}")
    V(f"v_and_b32 {t1}, 1, v0")
    V(f"v_lshl_add_u32 {vEr}, {t1}, 6, {vEr}")
    V(f"v_bfe_u32 {t1}, v0, 2, 2")
    V(f"v_lshl_add_u32 {vEr}, {t1}, 3, {vEr}")
    V(f"v_add_u32 {vEr}, s55, {vEr}")
    V(f"v_bfe_u32 {t4}, v0, 3, 3")
    V(f"v_and_b32 {t1}, 7, v0")
    V(f"v_lshlrev_b32 {t1}, 4, {t1}")
    A(f"s_lshl_b32 s54, {sA}, 15")
    A(f"s_lshl_b32 s55, {sB}, 8")
    A("s_add_u32 s55, s55, s54")
    A("s_sub_u32 s51, 65536, s54")
    V(f"v_lshl_add_u32 {vO}, {t4}, 9, {t1}")
    V(f"v_add_u32 {vO}, s55, {vO}")
    for t in range(5):
        A(f"s_add_u32 {sT8[t]}, {sT[t]}, 4096" if t else f"s_mov_b32 {sT8[0]}, 4096")
    c = struct.unpack("<I", struct.pack("<f", math.log2(math.e) / 16.0))[0]
    A(f"s_mov_b32 s40, {c:#x}")
    A(f"s_mov_b32 s41, {c:#x}")
    A(f"s_mov_b32 {sMASK}, 0xffff0000")
    for t in range(5):
        V(f"v_mov_b32 v{vL[t]}, 0")
    for t in range(4):
        for i in range(8):
            V(f"v_mov_b64 {R('v', OO + 32 * t + 16 + 2 * i, 2)}, 0")
    for i in range(16):
        V(f"v_accvgpr_write_b32 a{AX + 16 + i}, 0")
    if OPT["stamps"] == 4:
        o += stamp(10)
    A(f"s_cmp_eq_u32 {sA}, 1")
    A("s_cbranch_scc1 L_role1")
    o2 = []
    o, keep = o2, o
    src_offsets()
    return keep, o2


def scale4(src):
    o = []
    T = SCT
    for i in range(4):
        o.append(valu(f"v_lshlrev_b32 v{T + 2 * i}, 16, v{src + i}"))
        o.append(valu(f"v_and_b32 v{T + 2 * i + 1}, {sMASK}, v{src + i}"))
    for i in range(4):
        o.append(valu(f"v_pk_mul_f32 {R('v', T + 2 * i, 2)}, {R('v', T + 2 * i, 2)}, {sSC}"))
    for i in range(4):
        o.append(valu(f"v_cvt_pk_bf16_f32 v{src + i}, v{T + 2 * i}, v{T + 2 * i + 1}"))
    return o


QST = {0: (("V", 1), vQw, vQr, 2 * SLOT), 1: (("K", 3), vQw, vQr, 0), 2: (("V", 2), vQw, vQr, 3 * SLOT), 3: (("V", 3), vQw2, vQr2, 0)}


def stage_write(k, i):
    if k == 4:
        return ds_write("ds_write_b128", vQwx, R("v", RAWX + 4 * i, 4), f"offset:{4160 * i}", QXTAG)
    reg, wb, rb, off = QST[k]
    return ds_write("ds_write_b128", wb, R("v", RAW(k, i), 4), f"offset:{off + 2080 * i}", (reg, -1))


def stage_load(k, i, feed):
    src = RAWX + 4 * i if k == 4 else RAW(k, i)
    return [wait(vm=[("Q", k, i)])] + feed(("Q", k, i)) + scale4(src) + [stage_write(k, i)]


def stage_in(k, feed):
    o = []
    for i in range(2 if k == 4 else 4):
        o += stage_load(k, i, feed)
    return o


def stage_read(k):
    if k == 4:
        return [ds_read("ds_read_b128", Qf(4, s), vQrx, f"offset:{64 * s}", QXTAG) for s in range(8)]
    reg, wb, rb, off = QST[k]
    return [ds_read("ds_read_b128", Qf(k, s), rb, f"offset:{off + 64 * s}", (reg, -1)) for s in range(8)]


def stage_compute(t):
    mf, m1, m2, cm, sb, ex, cv, ad = first_tile_instrs(t)
    o = mf + m1 + m2 + cm + sb + ex + cv
    if t == 4:
        o += [msetter(), ad[0]] + [pwrite(0, t, h) for h in range(2)] + ad[1:]
    else:
        o += ad
    return o


def prologue(a):
    o = [label(f"L_role{a}")] + aux_setup(a) + [salu(f"s_mov_b32 {sCNT}, {(24 if OPT['early'] else 28) // 4 - (1 if OPT['peel0'] else 0)}")]
    seq = {0: "Q1 Q2 Q3 K1 V0 K2 V1 K3", 1: "Q1 K1 Q2 V0 Q3 K2 V1 K3", 2: "Q1 Q2 K1 Q3 V0 K2 V1 K3", 3: "K1 Q1 V0 Q2 K2 Q3 V1 K3", 4: "Q1 Q2 K1 V0 Q3 K2 V1 K3", 5: "K1 Q1 Q2 V0 Q3 K2 V1 K3"}[OPT["order"]]
    full = [("K", 0, i) for i in range(4)] + [("Q", 4, i) for i in range(2)] + [("Q", 0, i) for i in range(4)]
    if OPT["qfirst"]:
        full = full[4:] + full[:4]
    order = [(x[0], int(x[1]), i) for x in seq.split() for i in range(4)]
    if OPT["split"]:
        n = 0
        while n + 8 <= len(order):
            if order[n][0] != "Q" and order[n + 4][0] == "Q":
                sp = OPT["split"]
                order[n:n + 8] = order[n + 4:n + 4 + sp] + order[n:n + 4] + order[n + 4 + sp:n + 8]
                n += 4
            n += 4
    full += order

    def feed(landed):
        r = []
        stage = -1 if landed[1] == 4 else landed[1]
        while order and full.index(order[0]) <= full.index(landed) + OPT["win"]:
            x = order[0]
            if (x[:2] == ("V", 1) and stage < 2) or (x[:2] == ("K", 3) and stage < 3) or (landed == ("Q", 3, 3) and not OPT["lastfeed"]):
                break
            order.pop(0)
            r += qload(x[1], x[2]) if x[0] == "Q" else dma_piece(*x)
        return r
    if OPT["thr2"]:
        o.append(raw(f"s_lshr_b32 s54, {OPT['thr2']}, s37\n    s_bitcmp1_b32 s54, 0\n    s_cbranch_scc1 L_thr2{a}\nL_thr2b{a}:"))
    o += stage_in(4, feed)
    if OPT["qfirst"]:
        o += stage_in(0, feed) + [wait(vm=[("K", 0)])] + feed(("K", 0, 3))
    o.append(wait(vm=[("K", 0)], lg="all"))
    o.append(barrier())
    o += stamp(1)
    for s in range(8):
        o.append(kread(0, s, vKr, R("a", AVF + 4 * s, 4)))
    if a == 0:
        o += stage_read(4)
    for s in range(8):
        o.append(kread(0, s, vKr0, R("a", ASP + 4 * s, 4)))
    ps = iter([3, 4, 5, 6, 7, 8, 9, 10, 11, 12, 13, 14])
    pst = lambda: stamp(next(ps), 3)
    o += pst()
    if not OPT["qfirst"]:
        o += stage_in(0, feed)
    for k in range(4):
        o += pst()
        if k or not OPT["qfirst"]:
            o.append(wait(vm={OPT["k1stage"]: [("K", 1)], 3: [("V", 0)]}.get(k), lg="all"))
            o.append(barrier())
        if k < 3:
            o += pst() + pst()
            o += stage_block(a, k, feed)
    o += stamp(2)
    return o, order


def aux_setup(a):
    o = []
    if OPT["pf31"]:
        n = (32 - OPT["pft0"]) * 8
        o.append(salu("s_lshr_b32 s54, s2, 3"))
        o.append(salu("s_and_b32 s54, s54, 3"))
        o.append(salu("s_lshl_b32 s54, s54, 2"))
        o.append(salu(f"s_add_u32 s54, s54, {sW}"))
        o.append(salu(f"s_mul_i32 s54, s54, {n * 128}"))
        o.append(salu(f"s_add_u32 s54, s54, {(OPT['pft0'] * 16384 - (0 if OPT['early'] else ((OPT['pf31'] - 1) // 4) << 24)) & 0xffffffff:#x}"))
        o.append(valu(f"v_and_b32 {vAuxT}, 63, v0"))
        o.append(valu(f"v_min_u32 {vAuxT}, {n - 1}, {vAuxT}"))
        o.append(valu(f"v_lshl_add_u32 {vAuxT}, {vAuxT}, 7, s54"))
    if OPT["aux"]:
        o.append(salu("s_lshr_b32 s54, s2, 3"))
        o.append(salu("s_lshl_b32 s55, s54, 7"))
        o.append(valu(f"v_lshl_add_u32 {vAuxC}, v0, 12, s55"))
    if OPT["aux"] & 2:
        piece = (32 - OPT["auxt0"]) * 16384 // OPT["auxn"]
        before = len([j for j in range(1, OPT["auxend"] + 1) if (j - OPT["auxend"]) % OPT["auxper"] == 0]) - OPT["auxn"]
        o.append(salu("s_and_b32 s54, s54, 3"))
        o.append(salu(f"s_mul_i32 s54, s54, {piece // 4}"))
        o.append(salu(f"s_add_u32 s54, s54, {(a * piece // 8 - before * piece) & 0xffffffff:#x}"))
        o.append(valu(f"v_and_b32 {vAuxT}, 63, v0"))
        o.append(valu(f"v_cmp_le_u32 vcc, {piece // 1024}, {vAuxT}"))
        o.append(valu(f"v_lshl_add_u32 {vAuxT}, {vAuxT}, 7, s54"))
        o.append(valu(f"v_cndmask_b32 {vAuxT}, {vAuxT}, 2.0, vcc"))
        o.append(salu(f"s_cmp_eq_u32 {sB}, 0"))
        o.append(salu("s_cselect_b32 s88, s16, s20"))
        o.append(salu("s_cselect_b32 s89, s17, s21"))
        o.append(salu(f"s_add_u32 s88, s88, {OPT['auxt0'] * 16384}"))
        o.append(salu("s_addc_u32 s89, s89, 0"))
        o.append(salu(f"s_mov_b32 s90, {(32 - OPT['auxt0']) * 16384}"))
        o.append(salu("s_mov_b32 s91, 0x20000"))
        if OPT["holes"]:
            o.append(salu("s_mov_b64 s[84:85], s[88:89]"))
            o.append(salu("s_mov_b32 s86, 0"))
            o.append(salu("s_mov_b32 s87, 0x20000"))
    return o


def finish(a):
    o = stamp(6)
    if OPT.get("amp"):
        lo, hi, base = OPT["amp"] // 100, OPT["amp"] % 100, OPT["ampbase"]
        o.append(raw("s_waitcnt vmcnt(0)"))
        o += stamp(7)
        o.append(raw(f"s_waitcnt lgkmcnt(0)\ns_and_b32 s95, s2, {OPT.get('ampmask', 255)}\ns_cmp_lg_u32 s95, {OPT.get('ampwg', 40)}\ns_cbranch_scc1 L_end\ns_sub_u32 s94, s{60 + 2 * hi}, s{60 + 2 * lo}\ns_sub_u32 s94, s94, {base}\ns_max_i32 s94, s94, 0\ns_mul_i32 s94, s94, {OPT.get('amprt', 1)}\ns_min_u32 s94, s94, 20000\ns_add_u32 s94, s94, 6000"))
        o.append(raw(f"L_amp{a}:\ns_memrealtime s[92:93]\ns_waitcnt lgkmcnt(0)\ns_sub_u32 s92, s92, s58\ns_cmp_lt_u32 s92, s94\ns_cbranch_scc1 L_amp{a}"))
    elif OPT["stamps"]:
        o.append(raw("s_waitcnt vmcnt(0)"))
        o += stamp(7)
        o.append(raw("s_memrealtime s[92:93]"))
        o.append(raw("s_waitcnt lgkmcnt(0)"))
        o.append(raw("s_mov_b32 s96, s56\ns_and_b32 s97, s57, 0xffff\ns_mov_b32 s98, 0x100000\ns_mov_b32 s99, 0x20000"))
        o.append(raw(f"s_lshl_b32 s94, s2, 2\ns_add_u32 s94, s94, {sW}\ns_lshl_b32 s94, s94, 7"))
        for i in range(16):
            o.append(raw(f"v_mov_b32 v{64 + i}, s{60 + 2 * i}"))
        o.append(raw("v_mov_b32 v80, s58\nv_mov_b32 v81, s92\nv_mov_b32 v82, s37\nv_mov_b32 v83, 0\nv_mov_b32 v84, 0"))
        if OPT["prof"]:
            o.append(raw("v_lshlrev_b32 v85, 2, v0\ns_lshl_b32 s95, s2, 10\ns_add_u32 s95, s95, 0x40000\nbuffer_store_dword v127, v85, s[96:99], s95 offen"))
        o.append(raw("s_mov_b64 exec, 1"))
        for i in range(5):
            o.append(raw(f"buffer_store_dwordx4 v[{64 + 4 * i}:{67 + 4 * i}], v84, s[96:99], s94 offen offset:{16 * i}"))
    o.append(raw("s_endpgm"))
    return o


def fallback(a, redo):
    NQ = 5 - a
    M, AD = PP, PP + 8
    o = [label(f"L_fallback{a}")]
    o.append(raw("s_waitcnt vmcnt(0) lgkmcnt(0)"))
    o.append(nop(7))
    o.append(salu("s_mov_b32 s18, 524288"))
    o.append(valu(f"v_and_b32 v{AD}, 15, v0"))
    o.append(valu(f"v_lshlrev_b32 v{AD}, 9, v{AD}"))
    o.append(valu(f"v_bfe_u32 v{AD + 1}, v0, 4, 1"))
    o.append(valu(f"v_lshl_add_u32 v{AD}, v{AD + 1}, 5, v{AD}"))
    o.append(valu(f"v_bfe_u32 v{AD + 1}, v0, 5, 1"))
    o.append(valu(f"v_lshl_add_u32 v{AD}, v{AD + 1}, 4, v{AD}"))
    for t in range(NQ):
        o.append(valu(f"v_mov_b32 v{M + t}, 0xff800000"))
    o.append(salu("s_mov_b32 s54, 0"))
    o.append(label(f"L_fbloop{a}"))
    for s in range(8):
        o.append(vload("buffer_load_dwordx4", Kf(s), f"v{AD}", sK, "s54", 64 * s))
    for t in range(NQ):
        for s in range(8):
            o.append(mfma(S(t), Kf(s), Qf(t, s), "0" if s == 0 else S(t)))
    for t in range(NQ):
        s0 = SS + 4 * t
        o.append(valu(f"v_max3_f32 v{M + t}, v{s0}, v{s0 + 1}, v{M + t}"))
        o.append(valu(f"v_max3_f32 v{M + t}, v{s0 + 2}, v{s0 + 3}, v{M + t}"))
    o.append(salu("s_add_u32 s54, s54, 8192"))
    o.append(salu("s_cmp_lt_u32 s54, 524288"))
    o.append(salu(f"s_cbranch_scc1 L_fbloop{a}"))
    for t in range(NQ):
        o += xlane("v_max_f32", M + t, AD + 1)
        for r in range(4):
            o.append(valu(f"v_sub_f32 v{NEGM + 4 * t + r}, 0, v{M + t}"))
    o.append(salu(f"s_mov_b64 {sKEEP}, -1"))
    o.append(salu(f"s_mov_b32 {sTHR}, -1"))
    o += redo
    o.append(barrier())
    o.append(salu("s_branch L_restart"))
    return o


def check_scalars(out):
    m0, cnt, seen, scc = None, {"K": 0, "V": 0}, set(), None
    for x in out:
        for ln in x.text.split("\n"):
            ln = ln.strip()
            if re.match(r"s_\w+ m0,", ln):
                m0 = ln
            for kind in "KV":
                if ln == bump(kind).text.split("\n")[0]:
                    cnt[kind] += 1
            if re.match(r"s_(cmp|add|sub|and|or|lshl|lshr|bitcmp|min|max)", ln):
                scc = ln
            if re.match(r"s_cbranch_scc|s_cselect", ln):
                assert scc.startswith(("s_cmp", "s_bitcmp")), (ln, scc)
        if x.kind == "dma":
            assert m0 == x.note[0], (x.text, m0, x.note)
            assert cnt[x.tag[0]] == x.tag[1], (x.text, x.tag, cnt)
            assert (x.tag, x.note[1]) not in seen
            seen.add((x.tag, x.note[1]))
        if x.text.startswith("ds_write_addtid"):
            assert m0 == msetter().text or OPT["prof"], (x.text, m0)
    for kind in "KV":
        for t in range(32):
            for i in range(4):
                assert ((kind, t), i) in seen, (kind, t, i)


def ablate(lines, lo, hi):
    ab = OPT["abl"]
    for n in range(lo, hi):
        l = lines[n]
        if (ab & 1 and l.endswith(" lds")) or (ab & 2 and l == "s_barrier") or (ab & 4 and l.startswith("ds_write")) or (ab & 8 and l.startswith("ds_read2")) \
           or (ab & 16 and l.startswith("ds_read_b64_tr")) or (ab & 32 and l.startswith("ds_read_b128")) or (ab & 64 and l.startswith("s_waitcnt")) \
           or (ab & 4096 and l.startswith("v_add_f32")):
            lines[n] = "; ablated"
        if ab & 8192 and l.startswith("v_add_f32") and not l.startswith("v_add_f32 v12"):
            lines[n] = "; ablated"
        if ab & 16384 and l.startswith("ds_read_b128 a[16") and l.split()[1] in ("a[160:163],", "a[168:171],"):
            k = n + 1
            while not lines[k].startswith("v_mfma"):
                k += 1
            pb = int(re.findall(r"v\[(\d+):", lines[k].split(",")[2] + " v[64:")[0]) & ~15
            off, acc = (2, 240) if "160" in l else (10, 244)
            lines[k] = f"v_mfma_f32_16x16x32_bf16 a[{acc}:{acc + 3}], a[248:251], v[{pb + off}:{pb + off + 3}], a[{acc}:{acc + 3}]\n    " + lines[k]
        if ab & 32768 and l.startswith("v_mfma"):
            p = [x.strip() for x in l.split(None, 1)[1].split(",")]
            if re.match(r"a\[(19[2-9]|2[01]\d|22[0-3]):", p[1]):
                lines[n] = f"v_mfma_f32_16x16x32_bf16 {p[0]}, {p[2]}, {p[1]}, {p[3]}"
        if ab & 65536 and l.startswith("v_mfma"):
            p = [x.strip() for x in l.split(None, 1)[1].split(",")]
            if re.match(r"a\[(1[678]\d):", p[1]):
                lines[n] = f"v_mfma_f32_16x16x32_bf16 {p[0]}, {p[2]}, {p[1]}, {p[3]}"
        if ab & 256 and l.startswith("s_waitcnt vmcnt"):
            lines[n] = re.sub(r"vmcnt\(\d+\) ", "", l)


def abl_init():
    if not OPT["abl"] & 16384:
        return []
    full = OPT.get("onesfull")
    return [raw("v_and_b32 v16, 15, v0\nv_mov_b32 v17, 0x3f803f80\nv_cmp_eq_u32 vcc, 0, v16\ns_nop 1\nv_cndmask_b32 v20, 0, v17, vcc\nv_cmp_eq_u32 vcc, 1, v16\ns_nop 1\nv_cndmask_b32 v16, 0, v17, vcc\n"
                + ("v_mov_b32 v20, v17\nv_mov_b32 v16, v17\n" if full else "")
                + "v_accvgpr_write_b32 a248, v20\nv_accvgpr_write_b32 a249, v20\nv_accvgpr_write_b32 a250, v16\nv_accvgpr_write_b32 a251, v16\n" + "\n".join(f"v_accvgpr_write_b32 a{240 + i}, 0" for i in range(8)))]


def build():
    assert OPT["early"] or OPT["klead"] == 3
    j0, j1 = (5 if OPT["peel0"] else 1), (25 if OPT["early"] else 29)
    ent, redo = entry()
    text, evs = [], []
    for a in (0, 1):
        FLIP[0] = a if OPT["hflip"] else 0
        pro, rest = prologue(a)
        tr = list(ent) + [raw(";;ROLE")] + pro + [raw(";;IV 0")] + start_block(a, rest) + stamp(3) + abl_init()
        for j in range(1, 30):
            tr.append(raw(f";;IV {j}"))
            tr += interval(j, a, f"L_loop{a}" if (j0 <= j < j1 and (j - j0) % 4 == 3) else None)
        tr.append(raw(";;IV 30"))
        if OPT["prof"]:
            tr.append(raw("s_nop 4\n    v_mov_b32 v1, v17"))
        tr += stamp(4) + final_block(a)
        if OPT["prof"]:
            tr.append(raw("v_mov_b32 v127, v1"))
        tr += finish(a)
        out, ev, ins = resolve(tr)
        evs += ev
        check_scalars(out)
        lines = [x.text for x in out]
        k = lines.index(";;ROLE")
        if a == 0:
            text += lines[:k]
        idx = {j: lines.index(f";;IV {j}") for j in range(31)}
        for pos, w, c in ins:
            if idx[0] < pos and (OPT["show"] >= 0 or idx[1] < pos < idx[30]):
                print(f"; auto-inserted in role {a} @{pos - idx[0]}: {w} before {c}", file=sys.stderr)
        seg = lambda j: lines[idx[j] + 1: idx[j + 1]]
        for j in range(j0 + 4, j1):
            jb = j0 + (j - j0) % 4
            assert len(seg(j)) == len(seg(jb)), f"loop body not periodic at {j} role {a}"
            for n, (x, y) in enumerate(zip(seg(j), seg(jb))):
                if x != y:
                    assert re.sub(r"\d+", "", x) == re.sub(r"\d+", "", y) and x.startswith("s_waitcnt"), (j, a, x, y)
                    it = iter(min(int(p), int(q)) for p, q in zip(re.findall(r"\d+", x), re.findall(r"\d+", y)))
                    lines[idx[jb] + 1 + n] = re.sub(r"\d+", lambda m: str(next(it)), x)
        if OPT["abl"]:
            ablate(lines, idx[1], idx[30])
        text += lines[k + 1: idx[j0]]
        text.append(f".p2align {OPT['lalign']}")
        text.append(f"L_loop{a}:")
        text += lines[idx[j0]: idx[j0 + 4]]
        text += lines[idx[j1]:]
        fb, _, _ = resolve(fallback(a, redo))
        text += [x.text for x in fb]
        if OPT["thr2"]:
            text += [f"L_thr2{a}:", "s_waitcnt vmcnt(0)", f"s_branch L_thr2b{a}"]
    if OPT["thr1"]:
        text += ["L_thr1:", "s_waitcnt vmcnt(0)"] + [f"s_sleep {OPT.get('thrs')}"] * (1 if OPT.get("thrs") else 0) + ["s_branch L_thr1b"]
    assert check_lds(evs) == 0
    hdr = open("header.txt").read()
    body = "\n".join(("" if l.endswith(":") or l.startswith(".") else "    ") + l.replace(";;IV", "; interval") for l in text)
    return f"""{hdr}; @launch grid=(256,1,1) block=(256,1,1) lds={LDS_BYTES}
{open("design.txt").read()}.amdgcn_target "amdgcn-amd-amdhsa--gfx950"
.text
.globl {KN}
.p2align 8
.type {KN},@function
{KN}:
{body}
L_end:
    s_endpgm
.section .rodata,"a"
.p2align 6
.amdhsa_kernel {KN}
  .amdhsa_next_free_vgpr 512
  .amdhsa_next_free_sgpr 102
  .amdhsa_accum_offset 256
  .amdhsa_group_segment_fixed_size 0
  .amdhsa_kernarg_size 48
  .amdhsa_user_sgpr_count 2
  .amdhsa_user_sgpr_kernarg_segment_ptr 1
  .amdhsa_system_sgpr_workgroup_id_x 1
.end_amdhsa_kernel
"""


if __name__ == "__main__":
    for kv in sys.argv[1:]:
        k, v = kv.split("=", 1)
        if k.startswith("pol"):
            OPT[k] = "".join(" " + x for x in v.split("+") if x and x != "d")
        else:
            OPT[k] = int(v)
    print(build())
```

```python
import sys, struct, math, re
from asmlib import *
from sched import Block

KN = "standalone__gqa_softmax__near_ridge_kernel"
OPT = dict(abl=0, pol_kv="", pol_q="", pol_o=" sc0 sc1", stamps=0, prof=0, show=-1, thr=30,
           dma0=1, dmastep=8, dmastag=4, klead=3, walign=0, wq=1, feed0=4, feedl=1, prefeed=3,
           bar0=26, bara=30, barb=69, lalign=3, lazy=16, order=1, win=11, aux=0, early=0, auxj=3, sdma0=1, sdmas=3, sdman=8, lastfeed=0, k1stage=2, touch=0, xbal=0, hflip=0, qfirst=1, ibar=0, stouch=0, pvt=0, defer=0, pvy=0, qkz=1, tm1=2, xearly=1, glds=0, peel0=0, bark=49, thr1=0, thr2=0, rot=0, nunder=0, prewait=0, ulo=2, ulo2=8, split=0, mergetail=1, rwin=1, pf31=25, pft0=29, pfgap=0, holes=0, holew=1, auxper=2, auxn=4, auxend=24, auxt0=28, nfast=3, nin=2)

PXA = 10240
KRING = 3 * PXA
SLOT = 16640
VRING = KRING + 4 * SLOT
LDS_BYTES = VRING + 4 * SLOT

sQ, sK, sV, sO, sC = "s[12:15]", "s[16:19]", "s[20:23]", "s[24:27]", "s[44:47]"
sW, sA, sB, sCNT, sKo, sVo, sKm, sVm, sPm, sMASK = "s28", "s29", "s30", "s31", "s32", "s33", "s34", "s35", "s36", "s39"
sSC, sKEEP = "s[40:41]", "s[42:43]"
sT = ["0", "s48", "s49", "s50", "s51"]
sT8 = ["s4", "s5", "s6", "s7", "s8"]
sX, sTHR = "s38", "s52"
sKg, sVg = "s[32:33]", "s[10:11]"
vKr, vV0, vV1, vKd, vVd, vPr, vPr2 = "v1", "v2", "v3", "v4", "v5", "v6", "v7"
vL = [8, 9, 10, 11, 12]
vO, vEw, vEr = "v13", "v22", "v23"
PXT = 14
TMP = 16
vAuxC, vAuxT, vAuxD, vAuxD2, sP = "v18", "v19", "v20", "v17", "s[88:91]"
NEGM, SS, PP, OO = 24, 44, 64, 128
SCT = 104
vQl, vQw, vQw2, vQwx, vQr, vQr2, vQrx, vKr0 = (f"v{96 + i}" for i in range(8))
vQlx = "v20"
vRr = "v21"
RAWX, SPRE0 = 112, 120
LP, FLG = 24, 30
RL = lambda t: SS + 4 * t
QXTAG = [(("P", 1, t), -1) for t in range(5)] + [(("L", t), -1) for t in range(6)]
AQ, AX, AKF, AVF, ASP = 0, 128, 160, 192, 224


def Qf(t, s):
    return R("a", (AQ + 32 * t if t < 4 else AX) + 4 * s, 4)


def Kf(s):
    return R("a", AKF + 4 * s, 4)


def S(t):
    return R("v", SS + 4 * t, 4)


def Ng(t):
    return R("v", NEGM + 4 * t, 4)


def Pown(j, t):
    return PP + 16 * (j % 4) + 4 * t if t < 4 else PXT


def Pop(j, t):
    return R("v", PP + 16 * (j % 4) + 4 * t, 4) if t < 4 else R("a", ASP + 4 * (j % 4), 4)


def O(t, dt):
    return R("v", OO + 32 * t + 4 * dt, 4) if t < 4 else R("a", AX + 4 * dt, 4)


def RAW(k, i):
    return OO + 32 * k + 4 * i


FLIP = [0]


def where(kind, tile):
    if OPT["early"] and kind == "V" and tile >= 30:
        return (("K", 0), 32) if tile == 30 else (("V", 2), 31)
    return ((kind, tile % 4), tile)


def tdma(kind, tile, i):
    reg = where(kind, tile)
    off = reg[0][1] * SLOT + i * (1568 if kind == "K" else 1552) - (4 * SLOT if reg[0][0] != kind else 0)
    m, v, srd, so = (sKm, vKd, sK, sKo) if kind == "K" else (sVm, vVd, sV, sVo)
    d = dma(v, srd, so, 512 * i, OPT["pol_kv"], reg, (kind, tile))
    if OPT["glds"]:
        pair = sKg if kind == "K" else sVg
        d = I(f"global_load_lds_dwordx4 {v}, {pair}" + (f" offset:{512 * i}" if i else "") + OPT["pol_kv"], "dma", regs(v) + regs(pair) + ["m0"], [], lds_wr=reg, tag=(kind, tile))
    st = salu(f"s_add_u32 m0, {m}, {off}" if off >= 0 else f"s_sub_u32 m0, {m}, {-off}")
    d.note = (st.text, i)
    return (st, d)


def bump(kind):
    so = sKo if kind == "K" else sVo
    if OPT["glds"]:
        lo, hi = regs(sKg if kind == "K" else sVg)
        return raw(f"s_add_u32 {lo}, {lo}, s49\n    s_addc_u32 {hi}, {hi}, 0")
    return salu(f"s_add_u32 {so}, {so}, s49")


def wrap(kind):
    so = sKo if kind == "K" else sVo
    return [salu(f"s_bitset0_b32 {so}, 19")] if OPT["rot"] else []


def dma_piece(kind, tile, i):
    return list(tdma(kind, tile, i)) + ([bump(kind)] + wrap(kind) if i == 3 else [])


def kread(tile, s, addr=vKr, dst=None):
    slot = tile % 4
    return ds_read("ds_read_b128", dst or Kf(s), addr, f"offset:{slot * SLOT + 64 * s}", (("K", slot), tile))


def vread(tile, dt, u, frag):
    reg = where("V", tile)
    base = (vV0, vV1) if reg[0][0] == "V" else (vKd, vVd)
    return ds_read("ds_read_b64_tr_b16", R("a", frag + 2 * u, 2), base[u], f"offset:{reg[0][1] * SLOT + 128 * ((dt // 4) ^ FLIP[0]) + 16 * (dt % 4)}", reg)


def pwrite(j, t, h):
    par = j % 2
    return ds_write("ds_write_addtid_b32", None, f"v{Pown(j, t) + h}", f"offset:{par * PXA + (2 * t + h) * 256}", (("P", par, t), j))


def preads(j, a):
    par = j % 2
    o = []
    for t in range(4):
        n = par * 40 + a * 20 + 2 * t
        o.append((t, ds_read("ds_read2st64_b32", R("v", Pown(j, t) + 2, 2), vPr, f"offset0:{n} offset1:{n + 1}", (("P", par, t), j))))
    if a == 1:
        n = par * 40 + 8
        for u in range(2):
            o.append((4, ds_read("ds_read2st64_b32", R("a", ASP + 4 * (j % 4) + 2 * u, 2), (vPr2, vPr)[u], f"offset0:{n} offset1:{n + 1}", (("P", par, 4), j))))
    return o


def msetter():
    return salu(f"s_mov_b32 m0, {sPm}")


def stamp(idx, mode=0):
    if (OPT["stamps"] == 3) != (mode == 3) and idx > 2:
        return []
    return [raw(f"{'s_memrealtime' if OPT.get('amprt') else 's_memtime'} s[{60 + 2 * idx}:{61 + 2 * idx}]")] if OPT["stamps"] else []


def xlane(op, reg, tmp):
    o = []
    for sw in ("v_permlane32_swap_b32", "v_permlane16_swap_b32"):
        o.append(valu(f"v_mov_b32 v{tmp}, v{reg}"))
        o.append(valu(f"{sw} v{tmp}, v{reg}"))
        o.append(valu(f"{op} v{reg}, v{tmp}, v{reg}"))
    return o


def chain_ops(b, seq, lo, dl, first_deps=(), hard=None):
    prev = None
    for n, ins in enumerate(seq):
        deps = list(first_deps) if prev is None else [(prev, (1 if b.chainy else 2) if ins.kind == "perm" else (0 if b.chainy and prev.cls == "valu" else 1))]
        prev = b.op(ins, "exp" if ins.kind == "trans" else "valu", lo, dl + n, deps, hard=hard)
    return prev


def add_qk(b, a, j):
    ends = []
    for t in range(5 - a):
        for n, s in enumerate(range(8) if not (OPT["qkz"] and t % 2) else reversed(range(8))):
            k = b.mfma(mfma(S(t), Kf(s), Qf(t, s), Ng(t) if n == 0 else S(t)))
        ends.append(k)
    return ends


def add_pv(b, a, tiles, h, frags, lo, zero=False, tmajor=False, lastuse=None, have=(), ts=None):
    NP = 4 + a
    order = [(d, t) for t in (range(NP) if tmajor is True else tmajor) for d in range(4)] if tmajor else \
            [(d, t) for d in range(4) for t in (range(NP) if d % 2 == 0 else reversed(range(NP)))]
    if tmajor and OPT["pvt"] == 2:
        order = [(d if (n // 4) % 2 == 0 else 3 - d, t) for n, (d, t) in enumerate(order)]
    if ts is not None:
        order = [x for x in order if x[1] in ts]
    first, done, pfirst = {}, {}, {}
    war = dict(lastuse) if lastuse is not None else {}
    for ci, (d, t) in enumerate(order):
        seq = list(enumerate(tiles))
        if OPT["pvy"] and len(tiles) == 2 and (len(order) - 1 - ci) % 2 == 1 and not zero:
            seq.reverse()
        for n, j in seq:
            k = b.mfma(mfma(O(t, 4 * h + d), Pop(j, t), R("a", frags[d][n], 4), "0" if zero and n == 0 else O(t, 4 * h + d)))
            first.setdefault((d, n), k)
            pfirst.setdefault((j, t), k)
            done[(t, 4 * h + d)] = k
            if lastuse is not None:
                lastuse[frags[d][n]] = k
    for d in range(4):
        for n, j in enumerate(tiles):
            for u in range(2 if j not in have else 0):
                f = first[(d, n)]
                b.op(vread(j, 4 * h + d, u, frags[d][n]), "ds", max(lo[j], war.get(frags[d][n], 0)), f - 10 + u, hard=f - 3)
    return done, pfirst


def add_softmax(b, a, j, ends, pub, defer, adds_by=None, soft=False, sub=None):
    ends = dict(enumerate(ends)) if isinstance(ends, list) else ends
    wa = OPT["walign"]
    H = (lambda x: None) if soft else (lambda x: x)
    adds = {}
    for n, t in enumerate(ends):
        base = ends[t] + 4
        late = pub - 7 - 5 * (len(ends) - 1 - n)
        ex = []
        for r in range(4):
            dl = (base - 300 if wa else min(base + 10, late - 8)) + r
            dep = []
            if sub and t in sub:
                dep = [b.op(valu(f"v_add_f32 v{SS + 4 * t + r}, v{SS + 4 * t + r}, v{NEGM + 4 * t}"), "valu", base + 1, dl - 2, [sub[t]])]
            ex.append(b.op(valu(f"v_exp_f32 v{SS + 4 * t + r}, v{SS + 4 * t + r}"), "exp", base, dl, dep, hard=H(pub - 6)))
        for h in range(2):
            c = b.op(valu(f"v_cvt_pk_bf16_f32 v{Pown(j, t) + h}, v{SS + 4 * t + 2 * h}, v{SS + 4 * t + 2 * h + 1}"), "valu", 0, (base - 50 if wa else late - 3) + h, ex[2 * h:2 * h + 2], hard=H(pub - 4))
            b.op(pwrite(j, t, h), "ds", base + 6 + h if wa else 0, (base - 200 if wa else late - 1) + h, [c], hard=H(pub - 3), m0="p", setter=msetter())
        if t not in defer:
            for r in range(4):
                adds[t] = b.op(valu(f"v_add_f32 v{vL[t]}, v{SS + 4 * t + r}, v{vL[t]}"), "valu", 0, (pub if adds_by is None else min(base + 12, adds_by)) + r, [ex[r]] + ([(adds[t], 0)] if t in adds else []),
                               hard=H(pub if adds_by is None else adds_by))
    return adds


def add_deferred(b, a, ends, j=None):
    for t in deferred(a, j):
        for r in range(4):
            b.op(valu(f"v_add_f32 v{vL[t]}, v{SS + 4 * t + r}, v{vL[t]}"), "valu", 0, ends[t] - 16 + r, hard=ends[t] - 8)


def deferred(a, j=None):
    if OPT["defer"] or j == 30:
        return [3 - a, 4 - a]
    return []


def add_dma(b, a, pieces, g0, step, G, lo=None):
    dops = []
    for n, (kind, tile, i) in enumerate(pieces):
        st, d = tdma(kind, tile, i)
        e = int(g0 + step * n)
        if lo and (kind, tile) in lo:
            e = max(e, lo[(kind, tile)])
        o = b.op(d, "dma", e, e - 100, [(dops[-1][0], 2)] if dops else [], hard=G - 3, m0=("d", n), setter=st)
        dops.append((o, kind, tile, i))
    for o, kind, tile, i in dops:
        if i == 3:
            nxt = [x for x, k, tl, _ in dops if k == kind and tl > tile]
            bp = bump(kind)
            if OPT["rot"]:
                bp = raw(bp.text + "\n    " + wrap(kind)[0].text)
            b.scalar(bp, (lambda o=o: o.gap + 1), (lambda nxt=nxt: nxt[0].gap - 1) if nxt else G - 4)
    return dops


def prof_hooks(out):
    if OPT["prof"]:
        k = max(n for n, x in enumerate(out) if x.kind == "barrier")
        out.insert(k, raw("v_writelane_b32 v17, s100, m0"))
        out.insert(k - 1, raw("s_mov_b32 m0, s3"))
        mk = [n for n, x in enumerate(out[:k]) if x.kind == "mfma"]
        out.insert(mk[22] + 1, raw("s_memtime s[100:101]" if OPT["prof"] == 1 else "s_memrealtime s[100:101]"))
        out.insert(mk[2] + 1, raw("s_add_u32 s3, s3, 1"))
    return out


TMPL = {
    1: ["RDRRRRRR RRDRRRdE E.EDEWEE WEEDEWEW EEWEDEWE EWWEED.E EWW..RDR RRRRRRRD RRRRdRRR",
        "RRRRRDRR RRRRRRDR EE.EEWED EWEEWEEW .DEEWEEW E.DEW.W. d.D..RRR RRRDRRRR RdRDRRRR"],
    2: ["RDRRRRRR RRDRRRdE E.EDEWEE WEEDEWEW EEWEDEWE EWWEED.E EWW.RRDR RRRRRRRD RRRRd.RR",
        "RRRRRDRR RRRRRRDR EE.EEWED EWEEWEEW .DEEWEEW E.DEW.W. d.DRRRRR RRRDRRRR RdRD..RR"],
    3: ["RDRRRRRR RRDRRREE EE.DEWWE EE.DEWWE EE.DEWWE EE.EWWED EE.WW.DR RRRRRRRD RRRRRRRR",
        "RRRRRDRR RRRRRRDR EEEE.WWE DEEE.WWE EDEE.WWE E.DEE.WW d.D.d.RR RRRDRRRR RRRDRRRR"],
}
FOLD = [AVF + 8 * d for d in range(4)]
FNEW = [AVF + 8 * d + 4 for d in range(4)]


def fold(j):
    return FOLD if j % 2 or not OPT["pvt"] else [ASP + 16 + 4 * d for d in range(4)]


def add_old_reads(b, j, lu, lo, G):
    FOLD = fold(j + 1)
    for d in range(4):
        for u in range(2):
            b.op(vread(j, 4 * ((j + 1) % 2) + d, u, FOLD[d]), "ds", max(lo, lu.get(FOLD[d], 0)), G + 2 * d + u, hard=G - 1)


def interval(j, a, loop_end=None):
    b = Block(f"interval {j} role {a}", wq=OPT["wq"] if OPT["walign"] else 0, wprio=bool(OPT["walign"]))
    ends = add_qk(b, a, j + 1)
    lu = {}
    if j <= 28:
        done, pfirst = add_pv(b, a, [j - 1, j], j % 2, [[fold(j)[d], FNEW[d]] for d in range(4)], {j: 0}, lastuse=lu, have=[j - 1], tmajor=bool(OPT["pvt"]))
        b.carry = [f"a{x + i}" for x in fold(j) for i in range(4)]
    else:
        if a == 1 and OPT["xbal"] & 1:
            assert not OPT["early"]
            add_pv(b, a, [28], 1, [[fold(29)[d]] for d in range(4)], {}, have=[28], ts=[4])
            b.carry = [f"a{x + i}" for x in fold(29) for i in range(4)]
        done, pfirst = add_pv(b, a, [j], 0, [[FNEW[d]] for d in range(4)], {j: 0})
    G = len(b.mf)
    if j <= (27 if OPT["early"] else 28):
        add_old_reads(b, j, lu, 40, G)
    for t, ins in preads(j, a):
        b.op(ins, "ds", 0, pfirst[(j, t)] - 10, hard=pfirst[(j, t)] - 3)
    for s in range(8):
        b.op(kread(j + 2, s), "ds", ends[-1] - (0 if OPT["qkz"] else 7 - s), G - 18 + s, hard=G - 3)
    kl = OPT["klead"]
    T = lambda kind, tile, r=range(4): [(kind, tile, i) for i in r]
    pieces = T("V", j + 2) + (T("K", j + 2 + kl) if j <= 28 else [])
    step = OPT["dmastep"]
    if j == 29:
        step = 4
    p0 = OPT["peel0"]
    if p0 and j <= 4:
        pieces = {1: T("V", 3) + T("K", 5) + T("K", 6, [0]), 2: T("V", 4) + T("K", 6, [1, 2, 3]) + T("K", 7, [0, 1]),
                  3: T("V", 5) + T("K", 7, [2, 3]) + T("K", 8, [0, 1, 2]), 4: T("V", 6) + T("K", 8, [3]) + T("K", 9)}[j]
    if OPT["early"] and j >= 25:
        if kl == 3:
            pieces = {25: T("V", 27) + T("K", 30), 26: T("V", 28) + T("K", 31), 27: T("V", 29) + T("V", 30), 28: T("V", 31), 29: []}[j]
        elif OPT["early"] == 1:
            pieces = {25: T("V", 27) + T("K", 29) + T("K", 30, [0]), 26: T("V", 28) + T("K", 30, [1, 2, 3]) + T("K", 31, [0, 1]),
                      27: T("V", 29) + T("K", 31, [2, 3]) + T("V", 30), 28: T("V", 31), 29: []}[j]
        elif OPT["early"] == 2:
            pieces = {25: T("V", 27) + T("K", 29), 26: T("V", 28) + T("K", 30), 27: T("V", 29) + T("K", 31), 28: T("V", 30) + T("V", 31), 29: []}[j]
        else:
            pieces = {25: T("V", 27) + T("K", 29) + T("K", 30, [0]), 26: T("V", 28) + T("K", 30, [1, 2, 3]) + T("K", 31, [0, 1]),
                      27: T("V", 29) + T("K", 31, [2, 3]) + T("V", 30, [0, 1, 2]), 28: T("V", 30, [3]) + T("V", 31), 29: []}[j]
        step = {25: 7, 26: 7, 27: 6, 28: 4, 29: 4}[j]
    dops = add_dma(b, a, pieces, OPT["dma0"] + a * min(OPT["dmastag"], step // 2), step, G)
    if OPT["early"] and j == 29:
        b.op(valu(f"v_subrev_u32 {vKd}, {4 * SLOT}, {vV0}"), "valu", 0, G, hard=G - 1)
        b.op(valu(f"v_subrev_u32 {vVd}, {4 * SLOT}, {vV1}"), "valu", 0, G, hard=G - 1)
    if OPT["pf31"] and (j == OPT["pf31"] if OPT["early"] else j <= 28 and j % 4 == OPT["pf31"] % 4):
        x = b.op(vload("buffer_load_dword", vAuxD, vAuxT, sV, "0"), "st", OPT["pfgap"], -90 + OPT["pfgap"], hard=G - 3)
        if not OPT["early"]:
            b.op(valu(f"v_add_u32 {vAuxT}, 0x1000000, {vAuxT}"), "valu", 0, G, [x], hard=G - 1)
    if not OPT["early"] and j <= 28 and j % 4 == (30 - kl) % 4:
        kf = [o for o, k, _, _ in dops if k == "K"][0]
        vl = [o for o, k, _, _ in dops if k == "V"][-2]
        pair = raw(f"s_cmp_eq_u32 {sCNT}, 1\n    s_cselect_b32 s18, 0, s18")
        b.scalar(pair, (lambda: vl.gap + 1), (lambda: kf.gap - 2))
    if (5 if p0 else 1) <= j <= (24 if OPT["early"] else 28) and j % 4 == OPT.get("auxj", 1) and OPT["aux"] & 1:
        b.op(vload("buffer_load_dword", vAuxD, vAuxC, sC, "0"), "st", 3, -90, hard=40)
    if j <= 24 and (j - OPT["auxend"]) % OPT["auxper"] == 0 and OPT["aux"] & 2:
        x = b.op(vload("buffer_load_dword", vAuxD2, vAuxT, sP, "0"), "st", 5 - 4 * a, -90, hard=40)
        b.op(valu(f"v_add_u32 {vAuxT}, {(32 - OPT['auxt0']) * 16384 // OPT['auxn']:#x}, {vAuxT}"), "valu", 0, G, [x], hard=G - 1)
    nh = OPT["holes"] % 10 if a == 0 else OPT["holes"] // 10
    for n in range(nh if j <= 28 else 0):
        ref = dops[min(6, (2 * n + 1) * 8 // (2 * nh) - 1 + (1 if nh < 4 else 0))][0]
        w = OPT["holew"]
        b.op(vload("buffer_load_dword" + ("" if w == 1 else f"x{w}"), "v20" if w == 1 else R("a", 252, w), vAuxT, "s[84:87]", "0"), "st", 0, -95, [(ref, 2)], hard=G - 12)
    add_deferred(b, a, ends)
    add_softmax(b, a, j + 1, ends, G - 1, deferred(a, j + 1))
    if OPT["rwin"] and j <= 28:
        tm = TMPL[OPT["rwin"]][a].replace(" ", "")
        assert len(tm) == 72, len(tm)
        nd = len([o for o in b.ops if o.cls in ("dma", "st")])
        b.tmpl = tm.replace("d", "D", max(0, nd - 8) if nd > 4 else 1).replace("d", ".")
        for o in b.ops:
            if o.cls == "dma" or o.ins.kind == "dsw":
                o.lo = 0
            if o.ins.text.startswith("v_cvt"):
                o.dl -= 200
    vm = [("V", j + 1)] + ([("K", j + 3)] if j + 3 <= 31 else [])
    if j == 29:
        vm.append(("V", 31))
    if j < p0:
        b.barrier(OPT["bark"] + 3, [("K", j + 2)], None)
        for o in b.ops:
            if o.ins.text.startswith("ds_read_b128"):
                o.lo = max(o.lo, OPT["bark"] + 3)
    if j + 1 < p0:
        vm = [("V", j + 1)]
    b.barrier(G - 1, vm, ["w"] + [f"a{AKF + i}" for i in range(32)])
    if loop_end:
        b.scalar(salu(f"s_sub_u32 {sCNT}, {sCNT}, 1"), 20, G - 4)
        b.scalar(salu(f"s_cmp_lg_u32 {sCNT}, 0"), G - 3, G - 3)
    out, _ = b.schedule(show=OPT["show"] == j)
    out = prof_hooks(out)
    if loop_end:
        out.append(salu(f"s_cbranch_scc1 {loop_end}"))
    return out


def first_tile_instrs(t):
    SPRE = RAWX if t == 4 else SPRE0
    own, oth = R("v", SPRE, 4), R("v", SPRE + 4, 4)
    mf = [mfma(own, R("a", AVF + 4 * s, 4), Qf(t, s), "0" if s == 0 else own) for s in range(8)]
    mf += [mfma(oth, R("a", ASP + 4 * s, 4), Qf(t, s), "0" if s == 0 else oth) for s in range(8)]
    A_, B_, C_ = TMP, TMP + 1, TMP + 4
    m1 = [valu(f"v_max3_f32 v{C_}, v{SPRE}, v{SPRE + 1}, v{SPRE + 2}"), valu(f"v_max_f32 v{C_}, v{C_}, v{SPRE + 3}")]
    m2 = [valu(f"v_max3_f32 v{C_}, v{C_}, v{SPRE + 4}, v{SPRE + 5}"),
          valu(f"v_max3_f32 v{A_}, v{C_}, v{SPRE + 6}, v{SPRE + 7}"), valu(f"v_max3_f32 v{B_}, v{C_}, v{SPRE + 6}, v{SPRE + 7}"),
          valu(f"v_permlane32_swap_b32 v{A_}, v{B_}"),
          valu(f"v_max_f32 v{C_}, v{A_}, v{B_}"), valu(f"v_max_f32 v{B_}, v{A_}, v{B_}"),
          valu(f"v_permlane16_swap_b32 v{C_}, v{B_}"),
          valu(f"v_max_f32 v{A_}, v{C_}, v{B_}")]
    cm = [valu(f"v_cndmask_b32 v{NEGM + 4 * t + r}, -v{TMP}, v{NEGM + 4 * t + r}, {sKEEP}") for r in range(4)]
    n = 8 if t < 4 else 4
    sb = [valu(f"v_add_f32 v{SPRE + r}, v{SPRE + r}, v{NEGM + 4 * t}") for r in range(n)]
    ex = [valu(f"v_exp_f32 v{SPRE + r}, v{SPRE + r}") for r in range(n)]
    cv = [valu(f"v_cvt_pk_bf16_f32 v{Pown(0, t) + h}, v{SPRE + 2 * h}, v{SPRE + 2 * h + 1}") for h in range(n // 2)]
    ad = [valu(f"v_add_f32 v{vL[t]}, v{SPRE + r}, v{vL[t]}") for r in range(4)]
    return mf, m1, m2, cm, sb, ex, cv, ad


def add_first_tile(b, t, need_by=None):
    mf, m1, m2, cm, sb, ex, cv, ad = first_tile_instrs(t)
    idx = [b.mfma(x) for x in mf]

    def ops(after=()):
        x = chain_ops(b, m1, idx[7] + 5, -510, after)
        last = chain_ops(b, m2, idx[15] + 5, -500, [x])
        c = [b.op(y, "valu", 0, -480 if r == 0 or t == 4 else 150, [(last, 0)]) for r, y in enumerate(cm)]
        ops.cm = c
        e = []
        for r in range(len(sb)):
            sbo = b.op(sb[r], "valu", 0, -478 + r, [(c[0], 0)], hard=need_by)
            e.append(b.op(ex[r], "exp", 0, -470 + r, [sbo], hard=need_by))
        for h, y in enumerate(cv):
            cvo = b.op(y, "valu", 0, -469 + 2 * h, e[2 * h:2 * h + 2], hard=need_by)
            if t == 4:
                b.op(pwrite(0, t, h), "ds", 0, 100 + h, [cvo], m0="p", setter=msetter())
        for r in range(4):
            b.op(ad[r], "valu", 0, 200 + r, [e[r]])
        return c[0]
    return idx, ops


def qk_chain(b, t, zero=False):
    for s in range(8):
        k = b.mfma(mfma(S(t), Kf(s), Qf(t, s), ("0" if zero else Ng(t)) if s == 0 else S(t)))
    return k


def flush(out, left):
    m0 = None
    left = list(left)
    while left:
        o = next(o for o in left if all(d not in left for d, _ in o.deps))
        left.remove(o)
        if o.m0 is not None and o.m0 != m0:
            out.append(o.setter)
            m0 = o.m0
        out.append(o.ins)
    return out


def merge(x, y):
    o = []
    for i in range(max(len(x), len(y))):
        o += x[i:i + 1] + y[i:i + 1]
    return o


def stage_block(a, k, feed):
    b = Block(f"stage {k} role {a}")
    b.chainy = True
    k1 = OPT["k1stage"]
    b.pre = ([kread(1, s) for s in range(8)] if k == k1 else []) + stage_read(k)
    c1 = {1: {1: [0, 4], 2: [1]}, 2: {2: [0, 1, 4]}}[k1].get(k, [])
    c1 = [t for t in c1 if t < 5 - a]
    ends, later = {}, []
    covered = (k == 0 and a == 0) or (k > k1)
    if k == 0 and a == 0:
        later.append(add_first_tile(b, 4)[1])
    if c1 and k == 2:
        ends[c1[0]] = qk_chain(b, c1[0])
    later.append(add_first_tile(b, k)[1])
    for t in c1:
        if t not in ends:
            ends[t] = qk_chain(b, t)
    G = len(b.mf)
    prev = ()
    for f in later:
        f(prev)
        prev = f.cm
    if ends:
        add_softmax(b, a, 1, ends, G + 16, deferred(a), soft=True)
    i = 0
    if not covered and OPT["prewait"]:
        b.pre += stage_load(k + 1, 0, feed)
        i = 1
    nun = OPT["nunder"]
    ulo = OPT["ulo"] if G <= 16 else OPT["ulo2"]
    prev = []
    for n in range(nun):
        src = RAW(k + 1, i)
        cv = []
        first = None
        for r in range(4):
            lo_ = b.op(valu(f"v_lshlrev_b32 v{SCT + 2 * r}, 16, v{src + r}"), "valu", ulo, 40 * n + 5 * r, prev)
            hi_ = b.op(valu(f"v_and_b32 v{SCT + 2 * r + 1}, {sMASK}, v{src + r}"), "valu", ulo, 40 * n + 5 * r + 1, prev)
            first = first or lo_
            m0_ = b.op(valu(f"v_mul_f32 v{SCT + 2 * r}, s40, v{SCT + 2 * r}"), "valu", 0, 40 * n + 5 * r + 2, [lo_])
            m1_ = b.op(valu(f"v_mul_f32 v{SCT + 2 * r + 1}, s40, v{SCT + 2 * r + 1}"), "valu", 0, 40 * n + 5 * r + 3, [hi_])
            cv.append(b.op(valu(f"v_cvt_pk_bf16_f32 v{src + r}, v{SCT + 2 * r}, v{SCT + 2 * r + 1}"), "valu", 0, 40 * n + 5 * r + 4, [m0_, m1_]))
        b.op(stage_write(k + 1, i), "solo", 0, 40 * n + 21, cv)
        fd = feed(("Q", k + 1, i))
        if fd:
            grp = I("\n    ".join(x.text for x in fd), "group")
            grp.tag = fd
            b.op(grp, "st", 0, 40 * n + 6, [first], m0=("g", n), setter=nop(0))
        prev = cv
        i += 1
    out, left = b.schedule(show=OPT["show"] == 0, leftover_ok=True)
    tail = flush([], left)
    if not any(x.wr & {f"v{SCT + r}" for r in range(8)} or x.rd & {f"v{SCT + r}" for r in range(8)} for x in tail) and i < 3 and OPT["mergetail"]:
        assert not any(x.kind == "group" for x in tail)
        nx = stage_load(k + 1, i, feed)
        i += 1
        p = max(n for n, x in enumerate(nx) if x.kind in ("dma", "vld", "salu") or n == 0)
        tail = nx[:p + 1] + merge(tail, nx[p + 1:])
    out += tail
    while i < 4:
        out += stage_load(k + 1, i, feed)
        i += 1
    o = []
    for x in out:
        o += x.tag if x.kind == "group" else [x]
    return o


def start_block(a, rest):
    b = Block(f"start role {a}")
    b.chainy = True
    b.pre = stage_read(3)
    ends = {2: qk_chain(b, 2)}
    G = 32 + 4 * (4 + a)
    idx, ops = add_first_tile(b, 3, need_by=G - 5)
    ends[3] = qk_chain(b, 3, zero=True)
    lu = {AVF + 4 * s: idx[s] for s in range(8)}
    done, pfirst = add_pv(b, a, [0], 0, [[FNEW[d]] for d in range(4)], {0: 0}, zero=True, tmajor=[0, 1, 2, 4, 3][:3] + ([4] if a else []) + [3], lastuse=dict(lu))
    assert G == len(b.mf)
    bar = OPT["bar0"]
    neg3 = ops()
    for d in range(4):
        for u in range(2):
            b.op(vread(0, 4 + d, u, FOLD[d]), "ds", lu[FOLD[d]], G + 30 + 2 * d + u)
    for t, ins in preads(0, a):
        if t == 4:
            b.op(ins, "ds", idx[8], pfirst[(0, t)] - 10, hard=pfirst[(0, t)] - 3)
    for s in range(8):
        b.op(kread(2, s), "ds", max(bar, ends[3] - 7 + s), G - 10 + s)
    pieces = rest + [("V", 2, i) for i in range(4)] + [("K", 4, i) for i in range(4)]
    if OPT["klead"] == 3 and not OPT["peel0"]:
        pieces += [("K", 5, i) for i in range(4)]
    nin = min(len(pieces), OPT["sdman"])
    add_dma(b, a, pieces[:nin], OPT["sdma0"], OPT["sdmas"], G)
    add_softmax(b, a, 1, ends, G + 12, deferred(a), soft=True, sub={3: neg3})
    b.barrier(bar, [("K", 2)], None)
    if OPT["stamps"] == 1:
        b.inserts[0] = stamp(12)
        b.inserts[bar - 2] = stamp(13)
        b.inserts[bar] = stamp(9)
        b.inserts[G - 1] = stamp(10)
    out, left = b.schedule(show=OPT["show"] == 0, leftover_ok=True)
    out = flush(out, left)
    for p in pieces[nin:]:
        out += dma_piece(*p)
    out.append(wait(vm=[("V", 1)] + ([("K", 3)] if OPT["peel0"] < 2 else []), lg=["w"] + [f"a{AKF + i}" for i in range(32)]))
    out.append(barrier())
    return prof_hooks(out)


def unit_instrs(a, t, h, n, packed):
    x = OO + 32 * t + 16 * h if t < 4 else OO
    mu = []
    for d in range(4):
        seq = []
        if t == 4:
            seq += [valu(f"v_accvgpr_read_b32 v{x + 4 * d + i}, a{AX + 16 * h + 4 * d + i}") for i in range(4)]
        if packed:
            seq += [valu(f"v_pk_mul_f32 {R('v', x + 4 * d + 2 * i, 2)}, {R('v', x + 4 * d + 2 * i, 2)}, {R('v', RL(t) + 2 * i, 2)}") for i in range(2)]
        else:
            seq += [valu(f"v_mul_f32 v{x + 4 * d + i}, v{x + 4 * d + i}, v{RL(t) + i}") for i in range(4)]
        mu.append(seq)
    cv = [[valu(f"v_cvt_pk_bf16_f32 v{x + 8 * e + r}, v{x + 8 * e + r}, v{x + 8 * e + 4 + r}") for r in range(4)] for e in range(2)]
    wr = []
    for r in range(4):
        w = ds_write("ds_write2_b32", vEw, f"v{x + r}, v{x + 8 + r}", f"offset0:{36 * r} offset1:{36 * r + 1}", (("K", 1), 99))
        w.rd |= {f"v{x + r}", f"v{x + 8 + r}"}
        wr.append(w)
    rd, st = [], []
    for i in range(2):
        q = ASP + 16 + 8 * (n % 2) + 4 * i
        rd += [ds_read("ds_read_b64_tr_b16", R("a", q + 2 * u, 2), vEr, f"offset:{8 * 144 * i + 32 * u}") for u in range(2)]
        st.append(vstore("buffer_store_dwordx4", R("a", q, 4), vO, sO, (sT, sT8)[i][t], 128 * (h ^ FLIP[0]), OPT["pol_o"] if h == 0 or "pol_o1" not in OPT else OPT["pol_o1"]))
    return mu, cv, wr, rd, st


def final_block(a):
    NQ, NP = 5 - a, 4 + a
    b = Block(f"final role {a}")
    b.lazy = OPT["lazy"]
    b.chainy = True
    save = OPT["walign"]
    OPT["walign"] = 0
    barA, barB = OPT["bara"], OPT["barb"]
    F = lambda i: AVF + 4 * i
    KF = lambda i: AKF + 4 * i
    lo = {28: 0, 29: 0, 30: 0, 31: 0}
    lu = {}
    rest = list(range(2, NP))
    tord = [0, 1, 2, 4, 3] if a == 1 and OPT["xbal"] & 2 else list(range(NP))
    f30, f31 = [[F(d)] for d in range(4)], [[F(4 + d)] for d in range(4)]
    ends = {t: qk_chain(b, t) for t in (0, 1, 2)}
    _, pf = add_pv(b, a, [30], 0, f30, lo, lastuse=lu, ts=[0, 1])
    ends[3] = qk_chain(b, 3)
    if a == 0 and OPT["xearly"]:
        ends[4] = qk_chain(b, 4)
    done0, pf1 = add_pv(b, a, [31], 0, f31, lo, tmajor=True, lastuse=lu, ts=[0, 1])
    X1 = len(b.mf) - 1
    if a == 0 and not OPT["xearly"]:
        ends[4] = qk_chain(b, 4)
    lu.update({KF(s): ends[NQ - 1] - 7 + s for s in range(8)})
    pf.update(add_pv(b, a, [30], 0, f30, lo, lastuse=lu, ts=rest, have=[30])[1])
    add_pv(b, a, [28], 1, [[ASP + 4 * d if a == 0 else KF(d)] for d in range(4)], lo, lastuse=lu, ts=[0, 1, 2, 3] if OPT["xbal"] & 1 else None)
    d2, p2 = add_pv(b, a, [31], 0, f31, lo, tmajor=True, lastuse=lu, ts=rest, have=[31])
    done0.update(d2)
    pf1.update(p2)
    X = len(b.mf) - 1
    pool = [KF(i) for i in range(8)] + [F(i) for i in range(4)] if a == 0 else [KF(4 + i) for i in range(4)] + [F(i) for i in range(4)] + [KF(i) for i in range(4)]
    done1, _ = add_pv(b, a, [29, 30, 31], 1, [pool[3 * d:3 * d + 3] for d in range(4)], lo, lastuse=lu, tmajor=tord if OPT["tm1"] else False)
    G = len(b.mf)
    bar = lambda t: barA if t < 2 else barB
    for t, ins in preads(30, a):
        b.op(ins, "ds", 0, pf[(30, t)] - 10, hard=pf[(30, t)] - 3)
    for t, ins in preads(31, a):
        b.op(ins, "ds", bar(t), pf1[(31, t)] - 12, hard=pf1[(31, t)] - 3)
    add_deferred(b, a, ends, 30)
    adds = add_softmax(b, a, 31, {t: ends[t] for t in (0, 1)}, barA, [], adds_by=barA - 4)
    adds.update(add_softmax(b, a, 31, {t: ends[t] for t in range(2, NQ)}, barB, [], adds_by=barB - 6))
    L = lambda *t: [(("L", x), 0) for x in t]
    lw = {t: b.op(ds_write("ds_write_addtid_b32", None, f"v{vL[t]}", f"offset:{2 * PXA + t * 256}", L(t)), "ds", 0, bar(t) - 8, [adds[t]], hard=bar(t) - 3, m0="p", setter=msetter()) for t in range(NQ)}
    w1 = b.op(valu(f"v_max3_u32 v{TMP}, v{vL[0]}, v{vL[1]}, v{vL[2]}"), "valu", 0, barB - 12, [adds[0], adds[1], adds[2]], hard=barB - 5)
    w2 = b.op(valu(f"v_max3_u32 v{TMP}, v{TMP}, v{vL[3]}, v{vL[NQ - 1]}"), "valu", 0, barB - 11, [w1, adds[3], adds[NQ - 1]], hard=barB - 4)
    b.op(ds_write("ds_write_addtid_b32", None, f"v{TMP}", f"offset:{2 * PXA + 5 * 256}", L(5)), "ds", 0, barB - 9, [w2], hard=barB - 3, m0="p", setter=msetter())
    b.barrier(barA, None, ["w"])
    b.barrier(barB, None, ["w"])
    base = 80
    lr = {}
    for t in (0, 2):
        lr[t] = lr[t + 1] = b.op(ds_read("ds_read2st64_b32", R("v", LP + t, 2), vPr, f"offset0:{base + a * 20 + t} offset1:{base + a * 20 + t + 1}", L(t, t + 1)), "ds", bar(t), bar(t) - 5)
    f1 = b.op(ds_read("ds_read2st64_b32", R("v", FLG, 2), vPr, f"offset0:{base + 5} offset1:{base + 25}", L(5)), "ds", barB, barB + 8)
    f2 = b.op(ds_read("ds_read2st64_b32", R("v", FLG + 2, 2), vPr2, f"offset0:{base + 5} offset1:{base + 25}", L(5)), "ds", barB, barB + 9)
    if a == 1:
        x1 = b.op(ds_read("ds_read_b32", f"v{LP + 4}", vPr, f"offset:{(base + 4) * 256}", L(4)), "ds", barB, barB + 5)
        lr[4] = b.op(ds_read("ds_read_b32", f"v{vL[4]}", vPr2, f"offset:{(base + 4) * 256}", L(4)), "ds", barB, barB + 6, [x1])
    ck = chain_ops(b, [valu(f"v_max3_u32 v{FLG}, v{FLG}, v{FLG + 1}, v{FLG + 2}"), valu(f"v_max_u32 v{FLG}, v{FLG}, v{FLG + 3}"), valu(f"v_cmp_lt_u32 vcc, {sTHR}, v{FLG}")],
                   0, barB + 30, [(f1, 6), (f2, 6)], hard=G - 4)
    if not OPT["abl"]:
        b.scalar(salu(f"s_cbranch_vccnz L_fallback{a}"), (lambda: ck.gap + 1), G - 1)
    rl = {}
    for t in range(NP):
        A_, B_, C_ = RL(t), RL(t) + 1, LP + t
        lim = X1 if t < 2 else X
        seq = [valu(f"v_add_f32 v{A_}, v{vL[t]}, v{C_}"), valu(f"v_add_f32 v{B_}, v{vL[t]}, v{C_}"), valu(f"v_permlane32_swap_b32 v{A_}, v{B_}"),
               valu(f"v_add_f32 v{C_}, v{A_}, v{B_}"), valu(f"v_add_f32 v{B_}, v{A_}, v{B_}"), valu(f"v_permlane16_swap_b32 v{C_}, v{B_}"),
               valu(f"v_add_f32 v{A_}, v{C_}, v{B_}"), valu(f"v_rcp_f32 v{A_}, v{A_}")]
        rc = chain_ops(b, seq, 0, -400 + 10 * t, [(lr[t], 6)], hard=lim)
        pl = 2 * PXA + (6 + t % 4) * 256
        w = b.op(ds_write("ds_write_addtid_b32", None, f"v{A_}", f"offset:{pl}"), "ds", 0, -390 + 10 * t, [rc], hard=lim, m0="p", setter=msetter())
        rl[t] = b.op(ds_read("ds_read_b128", R("v", RL(t), 4), vRr, f"offset:{pl}"), "ds", 0, -389 + 10 * t, [w], hard=lim)
    units = [(t, 0) for t in range(NP)] + [(t, 1) for t in tord]
    nfast = min(2 + OPT["nfast"], NP)
    nin = min(OPT["nin"], NP - nfast)

    def straight(lst, pend):
        o = []
        for n, (t, h) in lst:
            mu, cv, wr, rd, st = unit_instrs(a, t, h, n, True)
            for k in range(len(mu[0])):
                o += [mu[d][k] for d in range(4)]
            o += cv[0] + cv[1]
            o += pend
            o += wr + rd
            pend = st
        return o, pend
    en = list(enumerate(units))
    b.inserts[X1], pend = straight(en[:2], [])
    prev_rd, prev_st = [], {1: [b.op(x, "st", X1 + 6 + i, X1 - 50 + i, hard=X1 + 12) for i, x in enumerate(pend)]}
    if nfast > 2:
        b.inserts[X], pend = straight(en[2:nfast], [])
        prev_st[(nfast - 1) % 2] = [b.op(x, "st", X + 6 + i, X + i, hard=G - 1) for i, x in enumerate(pend)]
    if OPT["tm1"]:
        assert nfast == NP
        for x in prev_st[(nfast - 1) % 2]:
            x.hard = X + 12
        for n, t in enumerate(tord[:-1]):
            at = max(done1[(t, 4)], done1[(t, 7)]) + 4
            if OPT["tm1"] == 1:
                b.inserts[at], pend = straight(en[NP + n:NP + n + 1], [])
            else:
                mu, cv, wr, rd, pend = unit_instrs(a, t, 1, NP + n, False)
                at = min(at + 7, G - 1)
                mo = []
                for d in range(4):
                    pre = [b.op(x, "valu", done1[(t, 4 + d)] + 4, at - 21 + 3 * d, hard=at) for x in mu[d][:-4]]
                    mo.append([b.op(x, "valu", done1[(t, 4 + d)] + 4, at - 20 + 3 * d + i // 2, [(y, 0) for y in pre[i:i + 1]], hard=at) for i, x in enumerate(mu[d][-4:])])
                for e in range(2):
                    for r in range(4):
                        b.op(cv[e][r], "valu", 0, at - 15 + 6 * e, [mo[2 * e][r], mo[2 * e + 1][r]], hard=at)
                b.inserts[at] = wr + rd
            for i, x in enumerate(pend):
                b.op(x, "st", at + 6 + i, at - 50 + i, hard=at + 11)
        nin = 0
        nfast = 2 * NP - 1
    if OPT["stamps"] == 2:
        b.inserts[barA] = stamp(12)
        b.inserts[X1] = stamp(13) + b.inserts[X1]
        b.inserts[barB] = stamp(9)
        b.inserts[X] = stamp(10) + b.inserts.get(X, [])
    assert nin == 0
    out, left = b.schedule(show=OPT["show"] == 31, leftover_ok=True)
    OPT["walign"] = save
    out += stamp(5)
    pend = []
    for o in left:
        if o.ins.kind == "vst":
            pend.append(o.ins)
        else:
            if any(o.ins.wr & x.rd for x in pend):
                out += pend
                pend = []
            out.append(o.ins)
    o2, pend = straight(en[nfast + nin:], pend)
    return out + o2 + pend


def qload(k, i):
    return [vload("buffer_load_dwordx4", R("v", RAW(k, i), 4), vQl, sQ, sT[k], 512 * i, OPT["pol_q"], tag=("Q", k, i))]


def entry():
    o = []
    A = lambda t: o.append(salu(t))
    V = lambda t: o.append(valu(t))
    t0, t1, t2, t3, t4 = (f"v{TMP + i}" for i in range(5))
    A("s_cmp_ge_u32 s2, 256")
    A("s_cbranch_scc1 L_end")
    o.append(raw("s_load_dwordx8 s[4:11], s[0:1], 0"))
    if OPT["stamps"]:
        o.append(raw("s_load_dwordx2 s[56:57], s[0:1], 40"))
        o.append(raw("s_memrealtime s[58:59]"))
    o += stamp(0)
    o.append(raw("s_getpc_b64 s[44:45]"))
    o.append(label("L_pc"))
    A("s_lshr_b32 s54, s2, 3")
    A("s_lshl_b32 s55, s54, 7")
    V(f"v_lshl_add_u32 {t2}, v0, 12, s55")
    if OPT["aux"] & 1:
        A("s_and_b32 s45, s45, 0xffff")
        o.append(raw("s_mov_b32 s46, L_end-L_pc"))
        A("s_mov_b32 s47, 0x20000")
        o.append(vload("buffer_load_dword", "v15", t2, sC, "0"))
    else:
        o.append(I(f"v_min_u32 {t2}, L_end-L_pc, {t2}", "valu", [t2], [t2]))
        V(f"v_mov_b32 {t3}, 0")
        V(f"v_lshl_add_u64 {R('v', TMP + 2, 2)}, {R('v', TMP + 2, 2)}, 0, s[44:45]")
        o.append(I(f"global_load_dword v15, {R('v', TMP + 2, 2)}, off", "vld", [t2, t3], ["v15"]))
    V(f"v_lshrrev_b32 {t1}, 6, v0")
    A(f"s_mov_b64 {sKEEP}, 0")
    V(f"v_readfirstlane_b32 {sW}, {t1}")
    A(f"s_mov_b32 {sTHR}, {(127 + OPT['thr']) << 23:#x}")
    if OPT["prof"]:
        A("s_mov_b32 s3, 0")
    A("s_and_b32 s53, s2, 7")
    A("s_lshl_b32 s53, s53, 3")
    A("s_lshr_b32 s55, s2, 5")
    A("s_add_u32 s53, s53, s55")
    A("s_and_b32 s54, s54, 3")
    A("s_lshl_b32 s55, s53, 2")
    A("s_add_u32 s55, s55, s54")
    A("s_mul_i32 s37, s55, 73728")
    A("s_lshl_b32 s53, s53, 19")
    A(f"s_lshr_b32 {sA}, {sW}, 1")
    A(f"s_and_b32 {sB}, {sW}, 1")
    A(f"s_add_u32 s54, {sW}, 1")
    A("s_and_b32 s55, s54, 1")
    A("s_lshl_b32 s55, s55, 3")
    A("s_lshr_b32 s54, s54, 1")
    A("s_and_b32 s54, s54, 1")
    A("s_add_u32 s54, s54, s55")
    A("s_mul_i32 s54, s54, 1040")
    A(f"s_add_u32 {sKm}, s54, {KRING}")
    A("s_mov_b32 s48, 8192")
    A("s_mov_b32 s49, 16384")
    A("s_mov_b32 s50, 24576")
    A(f"s_mov_b32 {sX}, 65536")
    for srd, n in ((16, 524288), (12, 73728), (20, 524288), (24, 73728)):
        A(f"s_mov_b32 s{srd + 2}, {n}")
        A(f"s_mov_b32 s{srd + 3}, 0x20000")

    def src_offsets():
        V(f"v_and_b32 {t0}, 31, v0")
        V(f"v_lshlrev_b32 {t0}, 4, {t0}")
        V(f"v_bfe_u32 {t2}, v0, 5, 1")
        A(f"s_lshl_b32 s54, {sW}, 11")
        V(f"v_add_u32 {t1}, s54, {t0}")
        V(f"v_lshl_add_u32 {vKd}, {t2}, 13, {t1}")
        V(f"v_lshl_add_u32 {vQl}, {t2}, 15, {t1}")
        V(f"v_lshl_add_u32 {vQlx}, {t2}, 9, {t1}")
        if OPT["rot"]:
            A("s_and_b32 s54, s2, 7")
            A(f"s_mul_i32 s54, s54, {OPT['rot'] // 100}")
            A("s_lshr_b32 s55, s2, 5")
            A(f"s_mul_i32 s55, s55, {OPT['rot'] % 100}")
            A("s_add_u32 s54, s54, s55")
            A("s_and_b32 s54, s54, 31")
            A(f"s_lshl_b32 {sKo}, s54, 14")
            A(f"s_mov_b32 {sVo}, {sKo}")
        else:
            A(f"s_mov_b32 {sKo}, 0")
            A(f"s_mov_b32 {sVo}, 0")
    src_offsets()
    o.append(raw("s_waitcnt lgkmcnt(0)"))
    o += stamp(8)
    for srd, ptr, off in ((16, 6, "s53"), (12, 4, "s37"), (20, 8, "s53"), (24, 10, "s37")):
        A(f"s_add_u32 s{srd}, s{ptr}, {off}")
        A(f"s_addc_u32 s{srd + 1}, s{ptr + 1}, 0")
        A(f"s_and_b32 s{srd + 1}, s{srd + 1}, 0xffff")
    o.append(label("L_restart"))
    if OPT["glds"]:
        A(f"s_mov_b64 {sKg}, s[16:17]")
        A(f"s_mov_b64 {sVg}, s[20:21]")
    for i in range(4):
        o += dma_piece("K", 0, i) if not OPT["qfirst"] else []
    for i in range(2):
        o.append(vload("buffer_load_dwordx4", R("v", RAWX + 4 * i, 4), vQlx, sQ, sX, 1024 * i, OPT["pol_q"], tag=("Q", 4, i)))
    for i in range(4):
        o += qload(0, i) if OPT["qfirst"] else []
    if OPT["touch"] & 1:
        o.append(I("buffer_load_dword v14, off, s[20:23], 0", "vld", regs(sV), ["v14"]))
    if OPT["touch"] & 2:
        o.append(I("buffer_load_dword v14, off, s[24:27], 0", "vld", regs(sO), ["v14"]))
    if OPT["thr1"] or OPT["thr2"] or OPT["stamps"]:
        o.append(raw("s_getreg_b32 s37, hwreg(HW_REG_XCC_ID, 0, 4)" if not OPT.get("thrkey") else "s_lshr_b32 s37, s2, 5"))
    if OPT["thr1"]:
        o.append(raw(f"s_lshr_b32 s54, {OPT['thr1']}, s37\n    s_bitcmp1_b32 s54, 0\n    s_cbranch_scc1 L_thr1\nL_thr1b:"))
    if OPT["ibar"]:
        o.append(barrier())
    for i in range(4):
        o += qload(0, i) if not OPT["qfirst"] else dma_piece("K", 0, i)
    if OPT["stamps"] == 4:
        o += stamp(9)
    if OPT["stouch"]:
        for i in range(1, OPT["stouch"] + 1):
            o.append(raw(f"s_load_dword s9, s[44:45], {i * 4096 - 128}"))
    A(f"s_lshl_b32 s54, {sB}, 11")
    A(f"s_lshl_b32 s55, {sA}, 13")
    A("s_add_u32 s54, s54, s55")
    V(f"v_lshl_add_u32 {vVd}, {t2}, 12, {t0}")
    V(f"v_add_u32 {vVd}, s54, {vVd}")
    A(f"s_add_u32 s54, {sKm}, {3 * SLOT}")
    V(f"v_lshl_add_u32 {vQw}, {t2}, 9, {t0}")
    V(f"v_add_u32 {vQw}, s54, {vQw}")
    V(f"v_add_u32 {vQw2}, {4 * SLOT}, {vQw}")
    A(f"s_sub_u32 s54, {sKm}, {KRING - PXA}")
    V(f"v_mul_u32_u24 {vQwx}, 2080, {t2}")
    V(f"v_add3_u32 {vQwx}, {vQwx}, {t0}, s54")
    A(f"s_mul_i32 s54, {sB}, 8320")
    A(f"s_lshl_b32 s55, {sA}, 10")
    A("s_add_u32 s54, s54, s55")
    A(f"s_add_u32 {sVm}, s54, {VRING}")
    A(f"s_mul_i32 {sPm}, {sW}, 2560")
    V(f"v_and_b32 {t0}, 15, v0")
    V(f"v_bfe_u32 {t1}, v0, 4, 1")
    V(f"v_lshlrev_b32 {t3}, 5, {t1}")
    V(f"v_lshl_add_u32 {t3}, {t2}, 4, {t3}")
    V(f"v_add_u32 {t4}, 4, {t0}")
    V(f"v_bfe_u32 {vKr0}, {t4}, 3, 1")
    V(f"v_and_b32 {t4}, 7, {t4}")
    V(f"v_lshl_add_u32 {vKr0}, {t4}, 1, {vKr0}")
    V(f"v_mul_u32_u24 {vKr0}, 1040, {vKr0}")
    V(f"v_add_u32 {vKr0}, {vKr0}, {t3}")
    V(f"v_add_u32 {vQrx}, {PXA}, {vKr0}")
    V(f"v_add_u32 {vKr0}, {KRING}, {vKr0}")
    A(f"s_lshl_b32 s54, {sB}, 9")
    V(f"v_add_u32 {vKr}, s54, {vKr0}")
    A(f"s_lshl_b32 s54, {sA}, 9")
    A(f"s_add_u32 s54, s54, {3 * SLOT}")
    V(f"v_add_u32 {vQr}, s54, {vKr0}")
    V(f"v_add_u32 {vQr2}, {4 * SLOT}, {vQr}")
    A(f"s_lshl_b32 s54, {sB}, 9")
    A("s_sub_u32 s54, 512, s54")
    V(f"v_add_u32 {vKr0}, s54, {vKr0}")
    V(f"v_bfe_u32 {t4}, v0, 2, 2")
    V(f"v_mul_u32_u24 {vV0}, 2064, {t4}")
    V(f"v_mul_u32_u24 {t4}, 8320, {t1}")
    V(f"v_add_u32 {vV0}, {vV0}, {t4}")
    V(f"v_lshl_add_u32 {vV0}, {t2}, 9, {vV0}")
    V(f"v_bfe_u32 {t4}, v0, 1, 1")
    V(f"v_lshl_add_u32 {vV0}, {t4}, 6, {vV0}")
    V(f"v_and_b32 {t4}, 1, v0")
    V(f"v_lshl_add_u32 {vV0}, {t4}, 3, {vV0}")
    A(f"s_mul_i32 s54, {sB}, {256 + 1024}")
    A(f"s_add_u32 s54, s54, {VRING}")
    A(f"s_mul_i32 s55, {sB}, {1024 - 256}")
    A(f"s_sub_u32 s55, {VRING + 1024}, s55")
    V(f"v_add_u32 {vV1}, s55, {vV0}")
    V(f"v_add_u32 {vV0}, s54, {vV0}")
    V(f"v_and_b32 {t4}, 63, v0")
    V(f"v_lshlrev_b32 {t4}, 2, {t4}")
    A(f"s_mul_i32 s54, {sB}, 2560")
    A("s_sub_u32 s55, 2560, s54")
    V(f"v_add_u32 {vPr2}, s54, {t4}")
    V(f"v_add_u32 {vPr}, s55, {t4}")
    A(f"s_mul_i32 s55, {sW}, 2304")
    A(f"s_add_u32 s55, s55, {KRING + SLOT}")
    V(f"v_bfe_u32 {t4}, v0, 4, 2")
    V(f"v_mul_u32_u24 {vEw}, {4 * 144}, {t4}")
    V(f"v_lshl_add_u32 {vEw}, {t0}, 3, {vEw}")
    V(f"v_add_u32 {vEw}, s55, {vEw}")
    V(f"v_lshl_add_u32 {vRr}, {t4}, 4, {sPm}")
    V(f"v_bfe_u32 {t1}, v0, 1, 1")
    V(f"v_lshl_add_u32 {t4}, {t4}, 1, {t1}")
    V(f"v_mul_u32_u24 {vEr}, 144, {t4}")
    V(f"v_and_b32 {t1}, 1, v0")
    V(f"v_lshl_add_u32 {vEr}, {t1}, 6, {vEr}")
    V(f"v_bfe_u32 {t1}, v0, 2, 2")
    V(f"v_lshl_add_u32 {vEr}, {t1}, 3, {vEr}")
    V(f"v_add_u32 {vEr}, s55, {vEr}")
    V(f"v_bfe_u32 {t4}, v0, 3, 3")
    V(f"v_and_b32 {t1}, 7, v0")
    V(f"v_lshlrev_b32 {t1}, 4, {t1}")
    A(f"s_lshl_b32 s54, {sA}, 15")
    A(f"s_lshl_b32 s55, {sB}, 8")
    A("s_add_u32 s55, s55, s54")
    A("s_sub_u32 s51, 65536, s54")
    V(f"v_lshl_add_u32 {vO}, {t4}, 9, {t1}")
    V(f"v_add_u32 {vO}, s55, {vO}")
    for t in range(5):
        A(f"s_add_u32 {sT8[t]}, {sT[t]}, 4096" if t else f"s_mov_b32 {sT8[0]}, 4096")
    c = struct.unpack("<I", struct.pack("<f", math.log2(math.e) / 16.0))[0]
    A(f"s_mov_b32 s40, {c:#x}")
    A(f"s_mov_b32 s41, {c:#x}")
    A(f"s_mov_b32 {sMASK}, 0xffff0000")
    for t in range(5):
        V(f"v_mov_b32 v{vL[t]}, 0")
    for t in range(4):
        for i in range(8):
            V(f"v_mov_b64 {R('v', OO + 32 * t + 16 + 2 * i, 2)}, 0")
    for i in range(16):
        V(f"v_accvgpr_write_b32 a{AX + 16 + i}, 0")
    if OPT["stamps"] == 4:
        o += stamp(10)
    A(f"s_cmp_eq_u32 {sA}, 1")
    A("s_cbranch_scc1 L_role1")
    o2 = []
    o, keep = o2, o
    src_offsets()
    return keep, o2


def scale4(src):
    o = []
    T = SCT
    for i in range(4):
        o.append(valu(f"v_lshlrev_b32 v{T + 2 * i}, 16, v{src + i}"))
        o.append(valu(f"v_and_b32 v{T + 2 * i + 1}, {sMASK}, v{src + i}"))
    for i in range(4):
        o.append(valu(f"v_pk_mul_f32 {R('v', T + 2 * i, 2)}, {R('v', T + 2 * i, 2)}, {sSC}"))
    for i in range(4):
        o.append(valu(f"v_cvt_pk_bf16_f32 v{src + i}, v{T + 2 * i}, v{T + 2 * i + 1}"))
    return o


QST = {0: (("V", 1), vQw, vQr, 2 * SLOT), 1: (("K", 3), vQw, vQr, 0), 2: (("V", 2), vQw, vQr, 3 * SLOT), 3: (("V", 3), vQw2, vQr2, 0)}


def stage_write(k, i):
    if k == 4:
        return ds_write("ds_write_b128", vQwx, R("v", RAWX + 4 * i, 4), f"offset:{4160 * i}", QXTAG)
    reg, wb, rb, off = QST[k]
    return ds_write("ds_write_b128", wb, R("v", RAW(k, i), 4), f"offset:{off + 2080 * i}", (reg, -1))


def stage_load(k, i, feed):
    src = RAWX + 4 * i if k == 4 else RAW(k, i)
    return [wait(vm=[("Q", k, i)])] + feed(("Q", k, i)) + scale4(src) + [stage_write(k, i)]


def stage_in(k, feed):
    o = []
    for i in range(2 if k == 4 else 4):
        o += stage_load(k, i, feed)
    return o


def stage_read(k):
    if k == 4:
        return [ds_read("ds_read_b128", Qf(4, s), vQrx, f"offset:{64 * s}", QXTAG) for s in range(8)]
    reg, wb, rb, off = QST[k]
    return [ds_read("ds_read_b128", Qf(k, s), rb, f"offset:{off + 64 * s}", (reg, -1)) for s in range(8)]


def stage_compute(t):
    mf, m1, m2, cm, sb, ex, cv, ad = first_tile_instrs(t)
    o = mf + m1 + m2 + cm + sb + ex + cv
    if t == 4:
        o += [msetter(), ad[0]] + [pwrite(0, t, h) for h in range(2)] + ad[1:]
    else:
        o += ad
    return o


def prologue(a):
    o = [label(f"L_role{a}")] + aux_setup(a) + [salu(f"s_mov_b32 {sCNT}, {(24 if OPT['early'] else 28) // 4 - (1 if OPT['peel0'] else 0)}")]
    seq = {0: "Q1 Q2 Q3 K1 V0 K2 V1 K3", 1: "Q1 K1 Q2 V0 Q3 K2 V1 K3", 2: "Q1 Q2 K1 Q3 V0 K2 V1 K3", 3: "K1 Q1 V0 Q2 K2 Q3 V1 K3", 4: "Q1 Q2 K1 V0 Q3 K2 V1 K3", 5: "K1 Q1 Q2 V0 Q3 K2 V1 K3"}[OPT["order"]]
    full = [("K", 0, i) for i in range(4)] + [("Q", 4, i) for i in range(2)] + [("Q", 0, i) for i in range(4)]
    if OPT["qfirst"]:
        full = full[4:] + full[:4]
    order = [(x[0], int(x[1]), i) for x in seq.split() for i in range(4)]
    if OPT["split"]:
        n = 0
        while n + 8 <= len(order):
            if order[n][0] != "Q" and order[n + 4][0] == "Q":
                sp = OPT["split"]
                order[n:n + 8] = order[n + 4:n + 4 + sp] + order[n:n + 4] + order[n + 4 + sp:n + 8]
                n += 4
            n += 4
    full += order

    def feed(landed):
        r = []
        stage = -1 if landed[1] == 4 else landed[1]
        while order and full.index(order[0]) <= full.index(landed) + OPT["win"]:
            x = order[0]
            if (x[:2] == ("V", 1) and stage < 2) or (x[:2] == ("K", 3) and stage < 3) or (landed == ("Q", 3, 3) and not OPT["lastfeed"]):
                break
            order.pop(0)
            r += qload(x[1], x[2]) if x[0] == "Q" else dma_piece(*x)
        return r
    if OPT["thr2"]:
        o.append(raw(f"s_lshr_b32 s54, {OPT['thr2']}, s37\n    s_bitcmp1_b32 s54, 0\n    s_cbranch_scc1 L_thr2{a}\nL_thr2b{a}:"))
    o += stage_in(4, feed)
    if OPT["qfirst"]:
        o += stage_in(0, feed) + [wait(vm=[("K", 0)])] + feed(("K", 0, 3))
    o.append(wait(vm=[("K", 0)], lg="all"))
    o.append(barrier())
    o += stamp(1)
    for s in range(8):
        o.append(kread(0, s, vKr, R("a", AVF + 4 * s, 4)))
    if a == 0:
        o += stage_read(4)
    for s in range(8):
        o.append(kread(0, s, vKr0, R("a", ASP + 4 * s, 4)))
    ps = iter([3, 4, 5, 6, 7, 8, 9, 10, 11, 12, 13, 14])
    pst = lambda: stamp(next(ps), 3)
    o += pst()
    if not OPT["qfirst"]:
        o += stage_in(0, feed)
    for k in range(4):
        o += pst()
        if k or not OPT["qfirst"]:
            o.append(wait(vm={OPT["k1stage"]: [("K", 1)], 3: [("V", 0)]}.get(k), lg="all"))
            o.append(barrier())
        if k < 3:
            o += pst() + pst()
            o += stage_block(a, k, feed)
    o += stamp(2)
    return o, order


def aux_setup(a):
    o = []
    if OPT["pf31"]:
        n = (32 - OPT["pft0"]) * 8
        o.append(salu("s_lshr_b32 s54, s2, 3"))
        o.append(salu("s_and_b32 s54, s54, 3"))
        o.append(salu("s_lshl_b32 s54, s54, 2"))
        o.append(salu(f"s_add_u32 s54, s54, {sW}"))
        o.append(salu(f"s_mul_i32 s54, s54, {n * 128}"))
        o.append(salu(f"s_add_u32 s54, s54, {(OPT['pft0'] * 16384 - (0 if OPT['early'] else ((OPT['pf31'] - 1) // 4) << 24)) & 0xffffffff:#x}"))
        o.append(valu(f"v_and_b32 {vAuxT}, 63, v0"))
        o.append(valu(f"v_min_u32 {vAuxT}, {n - 1}, {vAuxT}"))
        o.append(valu(f"v_lshl_add_u32 {vAuxT}, {vAuxT}, 7, s54"))
    if OPT["aux"]:
        o.append(salu("s_lshr_b32 s54, s2, 3"))
        o.append(salu("s_lshl_b32 s55, s54, 7"))
        o.append(valu(f"v_lshl_add_u32 {vAuxC}, v0, 12, s55"))
    if OPT["aux"] & 2:
        piece = (32 - OPT["auxt0"]) * 16384 // OPT["auxn"]
        before = len([j for j in range(1, OPT["auxend"] + 1) if (j - OPT["auxend"]) % OPT["auxper"] == 0]) - OPT["auxn"]
        o.append(salu("s_and_b32 s54, s54, 3"))
        o.append(salu(f"s_mul_i32 s54, s54, {piece // 4}"))
        o.append(salu(f"s_add_u32 s54, s54, {(a * piece // 8 - before * piece) & 0xffffffff:#x}"))
        o.append(valu(f"v_and_b32 {vAuxT}, 63, v0"))
        o.append(valu(f"v_cmp_le_u32 vcc, {piece // 1024}, {vAuxT}"))
        o.append(valu(f"v_lshl_add_u32 {vAuxT}, {vAuxT}, 7, s54"))
        o.append(valu(f"v_cndmask_b32 {vAuxT}, {vAuxT}, 2.0, vcc"))
        o.append(salu(f"s_cmp_eq_u32 {sB}, 0"))
        o.append(salu("s_cselect_b32 s88, s16, s20"))
        o.append(salu("s_cselect_b32 s89, s17, s21"))
        o.append(salu(f"s_add_u32 s88, s88, {OPT['auxt0'] * 16384}"))
        o.append(salu("s_addc_u32 s89, s89, 0"))
        o.append(salu(f"s_mov_b32 s90, {(32 - OPT['auxt0']) * 16384}"))
        o.append(salu("s_mov_b32 s91, 0x20000"))
        if OPT["holes"]:
            o.append(salu("s_mov_b64 s[84:85], s[88:89]"))
            o.append(salu("s_mov_b32 s86, 0"))
            o.append(salu("s_mov_b32 s87, 0x20000"))
    return o


def finish(a):
    o = stamp(6)
    if OPT.get("amp"):
        lo, hi, base = OPT["amp"] // 100, OPT["amp"] % 100, OPT["ampbase"]
        o.append(raw("s_waitcnt vmcnt(0)"))
        o += stamp(7)
        o.append(raw(f"s_waitcnt lgkmcnt(0)\ns_and_b32 s95, s2, {OPT.get('ampmask', 255)}\ns_cmp_lg_u32 s95, {OPT.get('ampwg', 40)}\ns_cbranch_scc1 L_end\ns_sub_u32 s94, s{60 + 2 * hi}, s{60 + 2 * lo}\ns_sub_u32 s94, s94, {base}\ns_max_i32 s94, s94, 0\ns_mul_i32 s94, s94, {OPT.get('amprt', 1)}\ns_min_u32 s94, s94, 20000\ns_add_u32 s94, s94, 6000"))
        o.append(raw(f"L_amp{a}:\ns_memrealtime s[92:93]\ns_waitcnt lgkmcnt(0)\ns_sub_u32 s92, s92, s58\ns_cmp_lt_u32 s92, s94\ns_cbranch_scc1 L_amp{a}"))
    elif OPT["stamps"]:
        o.append(raw("s_waitcnt vmcnt(0)"))
        o += stamp(7)
        o.append(raw("s_memrealtime s[92:93]"))
        o.append(raw("s_waitcnt lgkmcnt(0)"))
        o.append(raw("s_mov_b32 s96, s56\ns_and_b32 s97, s57, 0xffff\ns_mov_b32 s98, 0x100000\ns_mov_b32 s99, 0x20000"))
        o.append(raw(f"s_lshl_b32 s94, s2, 2\ns_add_u32 s94, s94, {sW}\ns_lshl_b32 s94, s94, 7"))
        for i in range(16):
            o.append(raw(f"v_mov_b32 v{64 + i}, s{60 + 2 * i}"))
        o.append(raw("v_mov_b32 v80, s58\nv_mov_b32 v81, s92\nv_mov_b32 v82, s37\nv_mov_b32 v83, 0\nv_mov_b32 v84, 0"))
        if OPT["prof"]:
            o.append(raw("v_lshlrev_b32 v85, 2, v0\ns_lshl_b32 s95, s2, 10\ns_add_u32 s95, s95, 0x40000\nbuffer_store_dword v127, v85, s[96:99], s95 offen"))
        o.append(raw("s_mov_b64 exec, 1"))
        for i in range(5):
            o.append(raw(f"buffer_store_dwordx4 v[{64 + 4 * i}:{67 + 4 * i}], v84, s[96:99], s94 offen offset:{16 * i}"))
    o.append(raw("s_endpgm"))
    return o


def fallback(a, redo):
    NQ = 5 - a
    M, AD = PP, PP + 8
    o = [label(f"L_fallback{a}")]
    o.append(raw("s_waitcnt vmcnt(0) lgkmcnt(0)"))
    o.append(nop(7))
    o.append(salu("s_mov_b32 s18, 524288"))
    o.append(valu(f"v_and_b32 v{AD}, 15, v0"))
    o.append(valu(f"v_lshlrev_b32 v{AD}, 9, v{AD}"))
    o.append(valu(f"v_bfe_u32 v{AD + 1}, v0, 4, 1"))
    o.append(valu(f"v_lshl_add_u32 v{AD}, v{AD + 1}, 5, v{AD}"))
    o.append(valu(f"v_bfe_u32 v{AD + 1}, v0, 5, 1"))
    o.append(valu(f"v_lshl_add_u32 v{AD}, v{AD + 1}, 4, v{AD}"))
    for t in range(NQ):
        o.append(valu(f"v_mov_b32 v{M + t}, 0xff800000"))
    o.append(salu("s_mov_b32 s54, 0"))
    o.append(label(f"L_fbloop{a}"))
    for s in range(8):
        o.append(vload("buffer_load_dwordx4", Kf(s), f"v{AD}", sK, "s54", 64 * s))
    for t in range(NQ):
        for s in range(8):
            o.append(mfma(S(t), Kf(s), Qf(t, s), "0" if s == 0 else S(t)))
    for t in range(NQ):
        s0 = SS + 4 * t
        o.append(valu(f"v_max3_f32 v{M + t}, v{s0}, v{s0 + 1}, v{M + t}"))
        o.append(valu(f"v_max3_f32 v{M + t}, v{s0 + 2}, v{s0 + 3}, v{M + t}"))
    o.append(salu("s_add_u32 s54, s54, 8192"))
    o.append(salu("s_cmp_lt_u32 s54, 524288"))
    o.append(salu(f"s_cbranch_scc1 L_fbloop{a}"))
    for t in range(NQ):
        o += xlane("v_max_f32", M + t, AD + 1)
        for r in range(4):
            o.append(valu(f"v_sub_f32 v{NEGM + 4 * t + r}, 0, v{M + t}"))
    o.append(salu(f"s_mov_b64 {sKEEP}, -1"))
    o.append(salu(f"s_mov_b32 {sTHR}, -1"))
    o += redo
    o.append(barrier())
    o.append(salu("s_branch L_restart"))
    return o


def check_scalars(out):
    m0, cnt, seen, scc = None, {"K": 0, "V": 0}, set(), None
    for x in out:
        for ln in x.text.split("\n"):
            ln = ln.strip()
            if re.match(r"s_\w+ m0,", ln):
                m0 = ln
            for kind in "KV":
                if ln == bump(kind).text.split("\n")[0]:
                    cnt[kind] += 1
            if re.match(r"s_(cmp|add|sub|and|or|lshl|lshr|bitcmp|min|max)", ln):
                scc = ln
            if re.match(r"s_cbranch_scc|s_cselect", ln):
                assert scc.startswith(("s_cmp", "s_bitcmp")), (ln, scc)
        if x.kind == "dma":
            assert m0 == x.note[0], (x.text, m0, x.note)
            assert cnt[x.tag[0]] == x.tag[1], (x.text, x.tag, cnt)
            assert (x.tag, x.note[1]) not in seen
            seen.add((x.tag, x.note[1]))
        if x.text.startswith("ds_write_addtid"):
            assert m0 == msetter().text or OPT["prof"], (x.text, m0)
    for kind in "KV":
        for t in range(32):
            for i in range(4):
                assert ((kind, t), i) in seen, (kind, t, i)


def ablate(lines, lo, hi):
    ab = OPT["abl"]
    for n in range(lo, hi):
        l = lines[n]
        if (ab & 1 and l.endswith(" lds")) or (ab & 2 and l == "s_barrier") or (ab & 4 and l.startswith("ds_write")) or (ab & 8 and l.startswith("ds_read2")) \
           or (ab & 16 and l.startswith("ds_read_b64_tr")) or (ab & 32 and l.startswith("ds_read_b128")) or (ab & 64 and l.startswith("s_waitcnt")) \
           or (ab & 4096 and l.startswith("v_add_f32")):
            lines[n] = "; ablated"
        if ab & 8192 and l.startswith("v_add_f32") and not l.startswith("v_add_f32 v12"):
            lines[n] = "; ablated"
        if ab & 16384 and l.startswith("ds_read_b128 a[16") and l.split()[1] in ("a[160:163],", "a[168:171],"):
            k = n + 1
            while not lines[k].startswith("v_mfma"):
                k += 1
            pb = int(re.findall(r"v\[(\d+):", lines[k].split(",")[2] + " v[64:")[0]) & ~15
            off, acc = (2, 240) if "160" in l else (10, 244)
            lines[k] = f"v_mfma_f32_16x16x32_bf16 a[{acc}:{acc + 3}], a[248:251], v[{pb + off}:{pb + off + 3}], a[{acc}:{acc + 3}]\n    " + lines[k]
        if ab & 32768 and l.startswith("v_mfma"):
            p = [x.strip() for x in l.split(None, 1)[1].split(",")]
            if re.match(r"a\[(19[2-9]|2[01]\d|22[0-3]):", p[1]):
                lines[n] = f"v_mfma_f32_16x16x32_bf16 {p[0]}, {p[2]}, {p[1]}, {p[3]}"
        if ab & 65536 and l.startswith("v_mfma"):
            p = [x.strip() for x in l.split(None, 1)[1].split(",")]
            if re.match(r"a\[(1[678]\d):", p[1]):
                lines[n] = f"v_mfma_f32_16x16x32_bf16 {p[0]}, {p[2]}, {p[1]}, {p[3]}"
        if ab & 256 and l.startswith("s_waitcnt vmcnt"):
            lines[n] = re.sub(r"vmcnt\(\d+\) ", "", l)


def abl_init():
    if not OPT["abl"] & 16384:
        return []
    full = OPT.get("onesfull")
    return [raw("v_and_b32 v16, 15, v0\nv_mov_b32 v17, 0x3f803f80\nv_cmp_eq_u32 vcc, 0, v16\ns_nop 1\nv_cndmask_b32 v20, 0, v17, vcc\nv_cmp_eq_u32 vcc, 1, v16\ns_nop 1\nv_cndmask_b32 v16, 0, v17, vcc\n"
                + ("v_mov_b32 v20, v17\nv_mov_b32 v16, v17\n" if full else "")
                + "v_accvgpr_write_b32 a248, v20\nv_accvgpr_write_b32 a249, v20\nv_accvgpr_write_b32 a250, v16\nv_accvgpr_write_b32 a251, v16\n" + "\n".join(f"v_accvgpr_write_b32 a{240 + i}, 0" for i in range(8)))]


def build():
    assert OPT["early"] or OPT["klead"] == 3
    j0, j1 = (5 if OPT["peel0"] else 1), (25 if OPT["early"] else 29)
    ent, redo = entry()
    text, evs = [], []
    for a in (0, 1):
        FLIP[0] = a if OPT["hflip"] else 0
        pro, rest = prologue(a)
        tr = list(ent) + [raw(";;ROLE")] + pro + [raw(";;IV 0")] + start_block(a, rest) + stamp(3) + abl_init()
        for j in range(1, 30):
            tr.append(raw(f";;IV {j}"))
            tr += interval(j, a, f"L_loop{a}" if (j0 <= j < j1 and (j - j0) % 4 == 3) else None)
        tr.append(raw(";;IV 30"))
        if OPT["prof"]:
            tr.append(raw("s_nop 4\n    v_mov_b32 v1, v17"))
        tr += stamp(4) + final_block(a)
        if OPT["prof"]:
            tr.append(raw("v_mov_b32 v127, v1"))
        tr += finish(a)
        out, ev, ins = resolve(tr)
        evs += ev
        check_scalars(out)
        lines = [x.text for x in out]
        k = lines.index(";;ROLE")
        if a == 0:
            text += lines[:k]
        idx = {j: lines.index(f";;IV {j}") for j in range(31)}
        for pos, w, c in ins:
            if idx[0] < pos and (OPT["show"] >= 0 or idx[1] < pos < idx[30]):
                print(f"; auto-inserted in role {a} @{pos - idx[0]}: {w} before {c}", file=sys.stderr)
        seg = lambda j: lines[idx[j] + 1: idx[j + 1]]
        for j in range(j0 + 4, j1):
            jb = j0 + (j - j0) % 4
            assert len(seg(j)) == len(seg(jb)), f"loop body not periodic at {j} role {a}"
            for n, (x, y) in enumerate(zip(seg(j), seg(jb))):
                if x != y:
                    assert re.sub(r"\d+", "", x) == re.sub(r"\d+", "", y) and x.startswith("s_waitcnt"), (j, a, x, y)
                    it = iter(min(int(p), int(q)) for p, q in zip(re.findall(r"\d+", x), re.findall(r"\d+", y)))
                    lines[idx[jb] + 1 + n] = re.sub(r"\d+", lambda m: str(next(it)), x)
        if OPT["abl"]:
            ablate(lines, idx[1], idx[30])
        text += lines[k + 1: idx[j0]]
        text.append(f".p2align {OPT['lalign']}")
        text.append(f"L_loop{a}:")
        text += lines[idx[j0]: idx[j0 + 4]]
        text += lines[idx[j1]:]
        fb, _, _ = resolve(fallback(a, redo))
        text += [x.text for x in fb]
        if OPT["thr2"]:
            text += [f"L_thr2{a}:", "s_waitcnt vmcnt(0)", f"s_branch L_thr2b{a}"]
    if OPT["thr1"]:
        text += ["L_thr1:", "s_waitcnt vmcnt(0)"] + [f"s_sleep {OPT.get('thrs')}"] * (1 if OPT.get("thrs") else 0) + ["s_branch L_thr1b"]
    assert check_lds(evs) == 0
    hdr = open("header.txt").read()
    body = "\n".join(("" if l.endswith(":") or l.startswith(".") else "    ") + l.replace(";;IV", "; interval") for l in text)
    return f"""{hdr}; @launch grid=(256,1,1) block=(256,1,1) lds={LDS_BYTES}
{open("design.txt").read()}.amdgcn_target "amdgcn-amd-amdhsa--gfx950"
.text
.globl {KN}
.p2align 8
.type {KN},@function
{KN}:
{body}
L_end:
    s_endpgm
.section .rodata,"a"
.p2align 6
.amdhsa_kernel {KN}
  .amdhsa_next_free_vgpr 512
  .amdhsa_next_free_sgpr 102
  .amdhsa_accum_offset 256
  .amdhsa_group_segment_fixed_size 0
  .amdhsa_kernarg_size 48
  .amdhsa_user_sgpr_count 2
  .amdhsa_user_sgpr_kernarg_segment_ptr 1
  .amdhsa_system_sgpr_workgroup_id_x 1
.end_amdhsa_kernel
"""


if __name__ == "__main__":
    for kv in sys.argv[1:]:
        k, v = kv.split("=", 1)
        if k.startswith("pol"):
            OPT[k] = "".join(" " + x for x in v.split("+") if x and x != "d")
        else:
            OPT[k] = int(v)
    print(build())
```

```python
import sys, struct, math, re
from asmlib import *
from sched import Block

KN = "standalone__gqa_softmax__near_ridge_kernel"
OPT = dict(abl=0, pol_kv="", pol_q="", pol_o=" sc0 sc1", stamps=0, prof=0, show=-1, thr=30,
           dma0=1, dmastep=8, dmastag=4, klead=3, walign=0, wq=1, feed0=4, feedl=1, prefeed=3,
           bar0=26, bara=30, barb=69, lalign=3, lazy=16, order=1, win=11, aux=0, early=0, auxj=3, sdma0=1, sdmas=3, sdman=8, lastfeed=0, k1stage=2, touch=0, spf=0, spfk=4, spfv=2, spfat=0, xbal=0, hflip=0, qfirst=1, ibar=0, stouch=0, pvt=0, defer=0, pvy=0, qkz=1, tm1=2, xearly=1, glds=0, peel0=0, bark=49, thr1=0, thr2=0, rot=0, nunder=0, prewait=0, ulo=2, ulo2=8, split=0, mergetail=1, rwin=1, pf31=25, pft0=29, pfgap=0, holes=0, holew=1, auxper=2, auxn=4, auxend=24, auxt0=28, nfast=3, nin=2)

PXA = 10240
KRING = 3 * PXA
SLOT = 16640
VRING = KRING + 4 * SLOT
LDS_BYTES = VRING + 4 * SLOT

sQ, sK, sV, sO, sC = "s[12:15]", "s[16:19]", "s[20:23]", "s[24:27]", "s[44:47]"
sW, sA, sB, sCNT, sKo, sVo, sKm, sVm, sPm, sMASK = "s28", "s29", "s30", "s31", "s32", "s33", "s34", "s35", "s36", "s39"
sSC, sKEEP = "s[40:41]", "s[42:43]"
sT = ["0", "s48", "s49", "s50", "s51"]
sT8 = ["s4", "s5", "s6", "s7", "s8"]
sX, sTHR = "s38", "s52"
sKg, sVg = "s[32:33]", "s[10:11]"
vKr, vV0, vV1, vKd, vVd, vPr, vPr2 = "v1", "v2", "v3", "v4", "v5", "v6", "v7"
vL = [8, 9, 10, 11, 12]
vO, vEw, vEr = "v13", "v22", "v23"
PXT = 14
TMP = 16
vAuxC, vAuxT, vAuxD, vAuxD2, sP = "v18", "v19", "v20", "v17", "s[88:91]"
NEGM, SS, PP, OO = 24, 44, 64, 128
SCT = 104
vQl, vQw, vQw2, vQwx, vQr, vQr2, vQrx, vKr0 = (f"v{96 + i}" for i in range(8))
vQlx = "v20"
vRr = "v21"
RAWX, SPRE0 = 112, 120
LP, FLG = 24, 30
RL = lambda t: SS + 4 * t
QXTAG = [(("P", 1, t), -1) for t in range(5)] + [(("L", t), -1) for t in range(6)]
AQ, AX, AKF, AVF, ASP = 0, 128, 160, 192, 224


def Qf(t, s):
    return R("a", (AQ + 32 * t if t < 4 else AX) + 4 * s, 4)


def Kf(s):
    return R("a", AKF + 4 * s, 4)


def S(t):
    return R("v", SS + 4 * t, 4)


def Ng(t):
    return R("v", NEGM + 4 * t, 4)


def Pown(j, t):
    return PP + 16 * (j % 4) + 4 * t if t < 4 else PXT


def Pop(j, t):
    return R("v", PP + 16 * (j % 4) + 4 * t, 4) if t < 4 else R("a", ASP + 4 * (j % 4), 4)


def O(t, dt):
    return R("v", OO + 32 * t + 4 * dt, 4) if t < 4 else R("a", AX + 4 * dt, 4)


def RAW(k, i):
    return OO + 32 * k + 4 * i


FLIP = [0]


def where(kind, tile):
    if OPT["early"] and kind == "V" and tile >= 30:
        return (("K", 0), 32) if tile == 30 else (("V", 2), 31)
    return ((kind, tile % 4), tile)


def tdma(kind, tile, i):
    reg = where(kind, tile)
    off = reg[0][1] * SLOT + i * (1568 if kind == "K" else 1552) - (4 * SLOT if reg[0][0] != kind else 0)
    m, v, srd, so = (sKm, vKd, sK, sKo) if kind == "K" else (sVm, vVd, sV, sVo)
    d = dma(v, srd, so, 512 * i, OPT["pol_kv"], reg, (kind, tile))
    if OPT["glds"]:
        pair = sKg if kind == "K" else sVg
        d = I(f"global_load_lds_dwordx4 {v}, {pair}" + (f" offset:{512 * i}" if i else "") + OPT["pol_kv"], "dma", regs(v) + regs(pair) + ["m0"], [], lds_wr=reg, tag=(kind, tile))
    st = salu(f"s_add_u32 m0, {m}, {off}" if off >= 0 else f"s_sub_u32 m0, {m}, {-off}")
    d.note = (st.text, i)
    return (st, d)


def bump(kind):
    so = sKo if kind == "K" else sVo
    if OPT["glds"]:
        lo, hi = regs(sKg if kind == "K" else sVg)
        return raw(f"s_add_u32 {lo}, {lo}, s49\n    s_addc_u32 {hi}, {hi}, 0")
    return salu(f"s_add_u32 {so}, {so}, s49")


def wrap(kind):
    so = sKo if kind == "K" else sVo
    return [salu(f"s_bitset0_b32 {so}, 19")] if OPT["rot"] else []


def dma_piece(kind, tile, i):
    return list(tdma(kind, tile, i)) + ([bump(kind)] + wrap(kind) if i == 3 else [])


def kread(tile, s, addr=vKr, dst=None):
    slot = tile % 4
    return ds_read("ds_read_b128", dst or Kf(s), addr, f"offset:{slot * SLOT + 64 * s}", (("K", slot), tile))


def vread(tile, dt, u, frag):
    reg = where("V", tile)
    base = (vV0, vV1) if reg[0][0] == "V" else (vKd, vVd)
    return ds_read("ds_read_b64_tr_b16", R("a", frag + 2 * u, 2), base[u], f"offset:{reg[0][1] * SLOT + 128 * ((dt // 4) ^ FLIP[0]) + 16 * (dt % 4)}", reg)


def pwrite(j, t, h):
    par = j % 2
    return ds_write("ds_write_addtid_b32", None, f"v{Pown(j, t) + h}", f"offset:{par * PXA + (2 * t + h) * 256}", (("P", par, t), j))


def preads(j, a):
    par = j % 2
    o = []
    for t in range(4):
        n = par * 40 + a * 20 + 2 * t
        o.append((t, ds_read("ds_read2st64_b32", R("v", Pown(j, t) + 2, 2), vPr, f"offset0:{n} offset1:{n + 1}", (("P", par, t), j))))
    if a == 1:
        n = par * 40 + 8
        for u in range(2):
            o.append((4, ds_read("ds_read2st64_b32", R("a", ASP + 4 * (j % 4) + 2 * u, 2), (vPr2, vPr)[u], f"offset0:{n} offset1:{n + 1}", (("P", par, 4), j))))
    return o


def msetter():
    return salu(f"s_mov_b32 m0, {sPm}")


def stamp(idx, mode=0):
    if (OPT["stamps"] == 3) != (mode == 3) and idx > 2:
        return []
    return [raw(f"{'s_memrealtime' if OPT.get('amprt') else 's_memtime'} s[{60 + 2 * idx}:{61 + 2 * idx}]")] if OPT["stamps"] else []


def xlane(op, reg, tmp):
    o = []
    for sw in ("v_permlane32_swap_b32", "v_permlane16_swap_b32"):
        o.append(valu(f"v_mov_b32 v{tmp}, v{reg}"))
        o.append(valu(f"{sw} v{tmp}, v{reg}"))
        o.append(valu(f"{op} v{reg}, v{tmp}, v{reg}"))
    return o


def chain_ops(b, seq, lo, dl, first_deps=(), hard=None):
    prev = None
    for n, ins in enumerate(seq):
        deps = list(first_deps) if prev is None else [(prev, (1 if b.chainy else 2) if ins.kind == "perm" else (0 if b.chainy and prev.cls == "valu" else 1))]
        prev = b.op(ins, "exp" if ins.kind == "trans" else "valu", lo, dl + n, deps, hard=hard)
    return prev


def add_qk(b, a, j):
    ends = []
    for t in range(5 - a):
        for n, s in enumerate(range(8) if not (OPT["qkz"] and t % 2) else reversed(range(8))):
            k = b.mfma(mfma(S(t), Kf(s), Qf(t, s), Ng(t) if n == 0 else S(t)))
        ends.append(k)
    return ends


def add_pv(b, a, tiles, h, frags, lo, zero=False, tmajor=False, lastuse=None, have=(), ts=None):
    NP = 4 + a
    order = [(d, t) for t in (range(NP) if tmajor is True else tmajor) for d in range(4)] if tmajor else \
            [(d, t) for d in range(4) for t in (range(NP) if d % 2 == 0 else reversed(range(NP)))]
    if tmajor and OPT["pvt"] == 2:
        order = [(d if (n // 4) % 2 == 0 else 3 - d, t) for n, (d, t) in enumerate(order)]
    if ts is not None:
        order = [x for x in order if x[1] in ts]
    first, done, pfirst = {}, {}, {}
    war = dict(lastuse) if lastuse is not None else {}
    for ci, (d, t) in enumerate(order):
        seq = list(enumerate(tiles))
        if OPT["pvy"] and len(tiles) == 2 and (len(order) - 1 - ci) % 2 == 1 and not zero:
            seq.reverse()
        for n, j in seq:
            k = b.mfma(mfma(O(t, 4 * h + d), Pop(j, t), R("a", frags[d][n], 4), "0" if zero and n == 0 else O(t, 4 * h + d)))
            first.setdefault((d, n), k)
            pfirst.setdefault((j, t), k)
            done[(t, 4 * h + d)] = k
            if lastuse is not None:
                lastuse[frags[d][n]] = k
    for d in range(4):
        for n, j in enumerate(tiles):
            for u in range(2 if j not in have else 0):
                f = first[(d, n)]
                b.op(vread(j, 4 * h + d, u, frags[d][n]), "ds", max(lo[j], war.get(frags[d][n], 0)), f - 10 + u, hard=f - 3)
    return done, pfirst


def add_softmax(b, a, j, ends, pub, defer, adds_by=None, soft=False, sub=None):
    ends = dict(enumerate(ends)) if isinstance(ends, list) else ends
    wa = OPT["walign"]
    H = (lambda x: None) if soft else (lambda x: x)
    adds = {}
    for n, t in enumerate(ends):
        base = ends[t] + 4
        late = pub - 7 - 5 * (len(ends) - 1 - n)
        ex = []
        for r in range(4):
            dl = (base - 300 if wa else min(base + 10, late - 8)) + r
            dep = []
            if sub and t in sub:
                dep = [b.op(valu(f"v_add_f32 v{SS + 4 * t + r}, v{SS + 4 * t + r}, v{NEGM + 4 * t}"), "valu", base + 1, dl - 2, [sub[t]])]
            ex.append(b.op(valu(f"v_exp_f32 v{SS + 4 * t + r}, v{SS + 4 * t + r}"), "exp", base, dl, dep, hard=H(pub - 6)))
        for h in range(2):
            c = b.op(valu(f"v_cvt_pk_bf16_f32 v{Pown(j, t) + h}, v{SS + 4 * t + 2 * h}, v{SS + 4 * t + 2 * h + 1}"), "valu", 0, (base - 50 if wa else late - 3) + h, ex[2 * h:2 * h + 2], hard=H(pub - 4))
            b.op(pwrite(j, t, h), "ds", base + 6 + h if wa else 0, (base - 200 if wa else late - 1) + h, [c], hard=H(pub - 3), m0="p", setter=msetter())
        if t not in defer:
            for r in range(4):
                adds[t] = b.op(valu(f"v_add_f32 v{vL[t]}, v{SS + 4 * t + r}, v{vL[t]}"), "valu", 0, (pub if adds_by is None else min(base + 12, adds_by)) + r, [ex[r]] + ([(adds[t], 0)] if t in adds else []),
                               hard=H(pub if adds_by is None else adds_by))
    return adds


def add_deferred(b, a, ends, j=None):
    for t in deferred(a, j):
        for r in range(4):
            b.op(valu(f"v_add_f32 v{vL[t]}, v{SS + 4 * t + r}, v{vL[t]}"), "valu", 0, ends[t] - 16 + r, hard=ends[t] - 8)


def deferred(a, j=None):
    if OPT["defer"] or j == 30:
        return [3 - a, 4 - a]
    return []


def add_dma(b, a, pieces, g0, step, G, lo=None):
    dops = []
    for n, (kind, tile, i) in enumerate(pieces):
        st, d = tdma(kind, tile, i)
        e = int(g0 + step * n)
        if lo and (kind, tile) in lo:
            e = max(e, lo[(kind, tile)])
        o = b.op(d, "dma", e, e - 100, [(dops[-1][0], 2)] if dops else [], hard=G - 3, m0=("d", n), setter=st)
        dops.append((o, kind, tile, i))
    for o, kind, tile, i in dops:
        if i == 3:
            nxt = [x for x, k, tl, _ in dops if k == kind and tl > tile]
            bp = bump(kind)
            if OPT["rot"]:
                bp = raw(bp.text + "\n    " + wrap(kind)[0].text)
            b.scalar(bp, (lambda o=o: o.gap + 1), (lambda nxt=nxt: nxt[0].gap - 1) if nxt else G - 4)
    return dops


def prof_hooks(out):
    if OPT["prof"]:
        k = max(n for n, x in enumerate(out) if x.kind == "barrier")
        out.insert(k, raw("v_writelane_b32 v17, s100, m0"))
        out.insert(k - 1, raw("s_mov_b32 m0, s3"))
        mk = [n for n, x in enumerate(out[:k]) if x.kind == "mfma"]
        out.insert(mk[22] + 1, raw("s_memtime s[100:101]" if OPT["prof"] == 1 else "s_memrealtime s[100:101]"))
        out.insert(mk[2] + 1, raw("s_add_u32 s3, s3, 1"))
    return out


TMPL = {
    1: ["RDRRRRRR RRDRRRdE E.EDEWEE WEEDEWEW EEWEDEWE EWWEED.E EWW..RDR RRRRRRRD RRRRdRRR",
        "RRRRRDRR RRRRRRDR EE.EEWED EWEEWEEW .DEEWEEW E.DEW.W. d.D..RRR RRRDRRRR RdRDRRRR"],
    2: ["RDRRRRRR RRDRRRdE E.EDEWEE WEEDEWEW EEWEDEWE EWWEED.E EWW.RRDR RRRRRRRD RRRRd.RR",
        "RRRRRDRR RRRRRRDR EE.EEWED EWEEWEEW .DEEWEEW E.DEW.W. d.DRRRRR RRRDRRRR RdRD..RR"],
    3: ["RDRRRRRR RRDRRREE EE.DEWWE EE.DEWWE EE.DEWWE EE.EWWED EE.WW.DR RRRRRRRD RRRRRRRR",
        "RRRRRDRR RRRRRRDR EEEE.WWE DEEE.WWE EDEE.WWE E.DEE.WW d.D.d.RR RRRDRRRR RRRDRRRR"],
}
FOLD = [AVF + 8 * d for d in range(4)]
FNEW = [AVF + 8 * d + 4 for d in range(4)]


def fold(j):
    return FOLD if j % 2 or not OPT["pvt"] else [ASP + 16 + 4 * d for d in range(4)]


def add_old_reads(b, j, lu, lo, G):
    FOLD = fold(j + 1)
    for d in range(4):
        for u in range(2):
            b.op(vread(j, 4 * ((j + 1) % 2) + d, u, FOLD[d]), "ds", max(lo, lu.get(FOLD[d], 0)), G + 2 * d + u, hard=G - 1)


def interval(j, a, loop_end=None):
    b = Block(f"interval {j} role {a}", wq=OPT["wq"] if OPT["walign"] else 0, wprio=bool(OPT["walign"]))
    ends = add_qk(b, a, j + 1)
    lu = {}
    if j <= 28:
        done, pfirst = add_pv(b, a, [j - 1, j], j % 2, [[fold(j)[d], FNEW[d]] for d in range(4)], {j: 0}, lastuse=lu, have=[j - 1], tmajor=bool(OPT["pvt"]))
        b.carry = [f"a{x + i}" for x in fold(j) for i in range(4)]
    else:
        if a == 1 and OPT["xbal"] & 1:
            assert not OPT["early"]
            add_pv(b, a, [28], 1, [[fold(29)[d]] for d in range(4)], {}, have=[28], ts=[4])
            b.carry = [f"a{x + i}" for x in fold(29) for i in range(4)]
        done, pfirst = add_pv(b, a, [j], 0, [[FNEW[d]] for d in range(4)], {j: 0})
    G = len(b.mf)
    if j <= (27 if OPT["early"] else 28):
        add_old_reads(b, j, lu, 40, G)
    for t, ins in preads(j, a):
        b.op(ins, "ds", 0, pfirst[(j, t)] - 10, hard=pfirst[(j, t)] - 3)
    for s in range(8):
        b.op(kread(j + 2, s), "ds", ends[-1] - (0 if OPT["qkz"] else 7 - s), G - 18 + s, hard=G - 3)
    kl = OPT["klead"]
    T = lambda kind, tile, r=range(4): [(kind, tile, i) for i in r]
    pieces = T("V", j + 2) + (T("K", j + 2 + kl) if j <= 28 else [])
    step = OPT["dmastep"]
    if j == 29:
        step = 4
    p0 = OPT["peel0"]
    if p0 and j <= 4:
        pieces = {1: T("V", 3) + T("K", 5) + T("K", 6, [0]), 2: T("V", 4) + T("K", 6, [1, 2, 3]) + T("K", 7, [0, 1]),
                  3: T("V", 5) + T("K", 7, [2, 3]) + T("K", 8, [0, 1, 2]), 4: T("V", 6) + T("K", 8, [3]) + T("K", 9)}[j]
    if OPT["early"] and j >= 25:
        if kl == 3:
            pieces = {25: T("V", 27) + T("K", 30), 26: T("V", 28) + T("K", 31), 27: T("V", 29) + T("V", 30), 28: T("V", 31), 29: []}[j]
        elif OPT["early"] == 1:
            pieces = {25: T("V", 27) + T("K", 29) + T("K", 30, [0]), 26: T("V", 28) + T("K", 30, [1, 2, 3]) + T("K", 31, [0, 1]),
                      27: T("V", 29) + T("K", 31, [2, 3]) + T("V", 30), 28: T("V", 31), 29: []}[j]
        elif OPT["early"] == 2:
            pieces = {25: T("V", 27) + T("K", 29), 26: T("V", 28) + T("K", 30), 27: T("V", 29) + T("K", 31), 28: T("V", 30) + T("V", 31), 29: []}[j]
        else:
            pieces = {25: T("V", 27) + T("K", 29) + T("K", 30, [0]), 26: T("V", 28) + T("K", 30, [1, 2, 3]) + T("K", 31, [0, 1]),
                      27: T("V", 29) + T("K", 31, [2, 3]) + T("V", 30, [0, 1, 2]), 28: T("V", 30, [3]) + T("V", 31), 29: []}[j]
        step = {25: 7, 26: 7, 27: 6, 28: 4, 29: 4}[j]
    dops = add_dma(b, a, pieces, OPT["dma0"] + a * min(OPT["dmastag"], step // 2), step, G)
    if OPT["early"] and j == 29:
        b.op(valu(f"v_subrev_u32 {vKd}, {4 * SLOT}, {vV0}"), "valu", 0, G, hard=G - 1)
        b.op(valu(f"v_subrev_u32 {vVd}, {4 * SLOT}, {vV1}"), "valu", 0, G, hard=G - 1)
    if OPT["pf31"] and (j == OPT["pf31"] if OPT["early"] else j <= 28 and j % 4 == OPT["pf31"] % 4):
        x = b.op(vload("buffer_load_dword", vAuxD, vAuxT, sV, "0"), "st", OPT["pfgap"], -90 + OPT["pfgap"], hard=G - 3)
        if not OPT["early"]:
            b.op(valu(f"v_add_u32 {vAuxT}, 0x1000000, {vAuxT}"), "valu", 0, G, [x], hard=G - 1)
    if not OPT["early"] and j <= 28 and j % 4 == (30 - kl) % 4:
        kf = [o for o, k, _, _ in dops if k == "K"][0]
        vl = [o for o, k, _, _ in dops if k == "V"][-2]
        pair = raw(f"s_cmp_eq_u32 {sCNT}, 1\n    s_cselect_b32 s18, 0, s18")
        b.scalar(pair, (lambda: vl.gap + 1), (lambda: kf.gap - 2))
    if (5 if p0 else 1) <= j <= (24 if OPT["early"] else 28) and j % 4 == OPT.get("auxj", 1) and OPT["aux"] & 1:
        b.op(vload("buffer_load_dword", vAuxD, vAuxC, sC, "0"), "st", 3, -90, hard=40)
    if j <= 24 and (j - OPT["auxend"]) % OPT["auxper"] == 0 and OPT["aux"] & 2:
        x = b.op(vload("buffer_load_dword", vAuxD2, vAuxT, sP, "0"), "st", 5 - 4 * a, -90, hard=40)
        b.op(valu(f"v_add_u32 {vAuxT}, {(32 - OPT['auxt0']) * 16384 // OPT['auxn']:#x}, {vAuxT}"), "valu", 0, G, [x], hard=G - 1)
    nh = OPT["holes"] % 10 if a == 0 else OPT["holes"] // 10
    for n in range(nh if j <= 28 else 0):
        ref = dops[min(6, (2 * n + 1) * 8 // (2 * nh) - 1 + (1 if nh < 4 else 0))][0]
        w = OPT["holew"]
        b.op(vload("buffer_load_dword" + ("" if w == 1 else f"x{w}"), "v20" if w == 1 else R("a", 252, w), vAuxT, "s[84:87]", "0"), "st", 0, -95, [(ref, 2)], hard=G - 12)
    add_deferred(b, a, ends)
    add_softmax(b, a, j + 1, ends, G - 1, deferred(a, j + 1))
    if OPT["rwin"] and j <= 28:
        tm = TMPL[OPT["rwin"]][a].replace(" ", "")
        assert len(tm) == 72, len(tm)
        nd = len([o for o in b.ops if o.cls in ("dma", "st")])
        b.tmpl = tm.replace("d", "D", max(0, nd - 8) if nd > 4 else 1).replace("d", ".")
        for o in b.ops:
            if o.cls == "dma" or o.ins.kind == "dsw":
                o.lo = 0
            if o.ins.text.startswith("v_cvt"):
                o.dl -= 200
    vm = [("V", j + 1)] + ([("K", j + 3)] if j + 3 <= 31 else [])
    if j == 29:
        vm.append(("V", 31))
    if j < p0:
        b.barrier(OPT["bark"] + 3, [("K", j + 2)], None)
        for o in b.ops:
            if o.ins.text.startswith("ds_read_b128"):
                o.lo = max(o.lo, OPT["bark"] + 3)
    if j + 1 < p0:
        vm = [("V", j + 1)]
    b.barrier(G - 1, vm, ["w"] + [f"a{AKF + i}" for i in range(32)])
    if loop_end:
        b.scalar(salu(f"s_sub_u32 {sCNT}, {sCNT}, 1"), 51, G - 4)
        b.scalar(salu(f"s_cmp_lg_u32 {sCNT}, 0"), G - 3, G - 3)
    out, _ = b.schedule(show=OPT["show"] == j)
    out = prof_hooks(out)
    if loop_end:
        out.append(salu(f"s_cbranch_scc1 {loop_end}"))
    return out


def first_tile_instrs(t):
    SPRE = RAWX if t == 4 else SPRE0
    own, oth = R("v", SPRE, 4), R("v", SPRE + 4, 4)
    mf = [mfma(own, R("a", AVF + 4 * s, 4), Qf(t, s), "0" if s == 0 else own) for s in range(8)]
    mf += [mfma(oth, R("a", ASP + 4 * s, 4), Qf(t, s), "0" if s == 0 else oth) for s in range(8)]
    A_, B_, C_ = TMP, TMP + 1, TMP + 4
    m1 = [valu(f"v_max3_f32 v{C_}, v{SPRE}, v{SPRE + 1}, v{SPRE + 2}"), valu(f"v_max_f32 v{C_}, v{C_}, v{SPRE + 3}")]
    m2 = [valu(f"v_max3_f32 v{C_}, v{C_}, v{SPRE + 4}, v{SPRE + 5}"),
          valu(f"v_max3_f32 v{A_}, v{C_}, v{SPRE + 6}, v{SPRE + 7}"), valu(f"v_max3_f32 v{B_}, v{C_}, v{SPRE + 6}, v{SPRE + 7}"),
          valu(f"v_permlane32_swap_b32 v{A_}, v{B_}"),
          valu(f"v_max_f32 v{C_}, v{A_}, v{B_}"), valu(f"v_max_f32 v{B_}, v{A_}, v{B_}"),
          valu(f"v_permlane16_swap_b32 v{C_}, v{B_}"),
          valu(f"v_max_f32 v{A_}, v{C_}, v{B_}")]
    cm = [valu(f"v_cndmask_b32 v{NEGM + 4 * t + r}, -v{TMP}, v{NEGM + 4 * t + r}, {sKEEP}") for r in range(4)]
    n = 8 if t < 4 else 4
    sb = [valu(f"v_add_f32 v{SPRE + r}, v{SPRE + r}, v{NEGM + 4 * t}") for r in range(n)]
    ex = [valu(f"v_exp_f32 v{SPRE + r}, v{SPRE + r}") for r in range(n)]
    cv = [valu(f"v_cvt_pk_bf16_f32 v{Pown(0, t) + h}, v{SPRE + 2 * h}, v{SPRE + 2 * h + 1}") for h in range(n // 2)]
    ad = [valu(f"v_add_f32 v{vL[t]}, v{SPRE + r}, v{vL[t]}") for r in range(4)]
    return mf, m1, m2, cm, sb, ex, cv, ad


def add_first_tile(b, t, need_by=None):
    mf, m1, m2, cm, sb, ex, cv, ad = first_tile_instrs(t)
    idx = [b.mfma(x) for x in mf]

    def ops(after=()):
        x = chain_ops(b, m1, idx[7] + 5, -510, after)
        last = chain_ops(b, m2, idx[15] + 5, -500, [x])
        c = [b.op(y, "valu", 0, -480 if r == 0 or t == 4 else 150, [(last, 0)]) for r, y in enumerate(cm)]
        ops.cm = c
        e = []
        for r in range(len(sb)):
            sbo = b.op(sb[r], "valu", 0, -478 + r, [(c[0], 0)], hard=need_by)
            e.append(b.op(ex[r], "exp", 0, -470 + r, [sbo], hard=need_by))
        for h, y in enumerate(cv):
            cvo = b.op(y, "valu", 0, -469 + 2 * h, e[2 * h:2 * h + 2], hard=need_by)
            if t == 4:
                b.op(pwrite(0, t, h), "ds", 0, 100 + h, [cvo], m0="p", setter=msetter())
        for r in range(4):
            b.op(ad[r], "valu", 0, 200 + r, [e[r]])
        return c[0]
    return idx, ops


def qk_chain(b, t, zero=False):
    for s in range(8):
        k = b.mfma(mfma(S(t), Kf(s), Qf(t, s), ("0" if zero else Ng(t)) if s == 0 else S(t)))
    return k


def flush(out, left):
    m0 = None
    left = list(left)
    while left:
        o = next(o for o in left if all(d not in left for d, _ in o.deps))
        left.remove(o)
        if o.m0 is not None and o.m0 != m0:
            out.append(o.setter)
            m0 = o.m0
        out.append(o.ins)
    return out


def merge(x, y):
    o = []
    for i in range(max(len(x), len(y))):
        o += x[i:i + 1] + y[i:i + 1]
    return o


def stage_block(a, k, feed):
    b = Block(f"stage {k} role {a}")
    b.chainy = True
    k1 = OPT["k1stage"]
    b.pre = ([kread(1, s) for s in range(8)] if k == k1 else []) + stage_read(k)
    c1 = {1: {1: [0, 4], 2: [1]}, 2: {2: [0, 1, 4]}}[k1].get(k, [])
    c1 = [t for t in c1 if t < 5 - a]
    ends, later = {}, []
    covered = (k == 0 and a == 0) or (k > k1)
    if k == 0 and a == 0:
        later.append(add_first_tile(b, 4)[1])
    if c1 and k == 2:
        ends[c1[0]] = qk_chain(b, c1[0])
    later.append(add_first_tile(b, k)[1])
    for t in c1:
        if t not in ends:
            ends[t] = qk_chain(b, t)
    G = len(b.mf)
    prev = ()
    for f in later:
        f(prev)
        prev = f.cm
    if ends:
        add_softmax(b, a, 1, ends, G + 16, deferred(a), soft=True)
    i = 0
    if not covered and OPT["prewait"]:
        b.pre += stage_load(k + 1, 0, feed)
        i = 1
    nun = OPT["nunder"]
    ulo = OPT["ulo"] if G <= 16 else OPT["ulo2"]
    prev = []
    for n in range(nun):
        src = RAW(k + 1, i)
        cv = []
        first = None
        for r in range(4):
            lo_ = b.op(valu(f"v_lshlrev_b32 v{SCT + 2 * r}, 16, v{src + r}"), "valu", ulo, 40 * n + 5 * r, prev)
            hi_ = b.op(valu(f"v_and_b32 v{SCT + 2 * r + 1}, {sMASK}, v{src + r}"), "valu", ulo, 40 * n + 5 * r + 1, prev)
            first = first or lo_
            m0_ = b.op(valu(f"v_mul_f32 v{SCT + 2 * r}, s40, v{SCT + 2 * r}"), "valu", 0, 40 * n + 5 * r + 2, [lo_])
            m1_ = b.op(valu(f"v_mul_f32 v{SCT + 2 * r + 1}, s40, v{SCT + 2 * r + 1}"), "valu", 0, 40 * n + 5 * r + 3, [hi_])
            cv.append(b.op(valu(f"v_cvt_pk_bf16_f32 v{src + r}, v{SCT + 2 * r}, v{SCT + 2 * r + 1}"), "valu", 0, 40 * n + 5 * r + 4, [m0_, m1_]))
        b.op(stage_write(k + 1, i), "solo", 0, 40 * n + 21, cv)
        fd = feed(("Q", k + 1, i))
        if fd:
            grp = I("\n    ".join(x.text for x in fd), "group")
            grp.tag = fd
            b.op(grp, "st", 0, 40 * n + 6, [first], m0=("g", n), setter=nop(0))
        prev = cv
        i += 1
    out, left = b.schedule(show=OPT["show"] == 0, leftover_ok=True)
    tail = flush([], left)
    if not any(x.wr & {f"v{SCT + r}" for r in range(8)} or x.rd & {f"v{SCT + r}" for r in range(8)} for x in tail) and i < 3 and OPT["mergetail"]:
        assert not any(x.kind == "group" for x in tail)
        nx = stage_load(k + 1, i, feed)
        i += 1
        p = max(n for n, x in enumerate(nx) if x.kind in ("dma", "vld", "salu") or n == 0)
        tail = nx[:p + 1] + merge(tail, nx[p + 1:])
    out += tail
    while i < 4:
        out += stage_load(k + 1, i, feed)
        i += 1
    o = []
    for x in out:
        o += x.tag if x.kind == "group" else [x]
    return o


def start_block(a, rest):
    b = Block(f"start role {a}")
    b.chainy = True
    b.pre = stage_read(3)
    ends = {2: qk_chain(b, 2)}
    G = 32 + 4 * (4 + a)
    idx, ops = add_first_tile(b, 3, need_by=G - 5)
    ends[3] = qk_chain(b, 3, zero=True)
    lu = {AVF + 4 * s: idx[s] for s in range(8)}
    done, pfirst = add_pv(b, a, [0], 0, [[FNEW[d]] for d in range(4)], {0: 0}, zero=True, tmajor=[0, 1, 2, 4, 3][:3] + ([4] if a else []) + [3], lastuse=dict(lu))
    assert G == len(b.mf)
    bar = OPT["bar0"]
    neg3 = ops()
    for d in range(4):
        for u in range(2):
            b.op(vread(0, 4 + d, u, FOLD[d]), "ds", lu[FOLD[d]], G + 30 + 2 * d + u)
    for t, ins in preads(0, a):
        if t == 4:
            b.op(ins, "ds", idx[8], pfirst[(0, t)] - 10, hard=pfirst[(0, t)] - 3)
    for s in range(8):
        b.op(kread(2, s), "ds", max(bar, ends[3] - 7 + s), G - 10 + s)
    pieces = rest + [("V", 2, i) for i in range(4)] + [("K", 4, i) for i in range(4)]
    if OPT["klead"] == 3 and not OPT["peel0"]:
        pieces += [("K", 5, i) for i in range(4)]
    nin = min(len(pieces), OPT["sdman"])
    add_dma(b, a, pieces[:nin], OPT["sdma0"], OPT["sdmas"], G)
    add_softmax(b, a, 1, ends, G + 12, deferred(a), soft=True, sub={3: neg3})
    b.barrier(bar, [("K", 2)], None)
    if OPT["stamps"] == 1:
        b.inserts[0] = stamp(12)
        b.inserts[bar - 2] = stamp(13)
        b.inserts[bar] = stamp(9)
        b.inserts[G - 1] = stamp(10)
    out, left = b.schedule(show=OPT["show"] == 0, leftover_ok=True)
    out = flush(out, left)
    for p in pieces[nin:]:
        out += dma_piece(*p)
    out.append(wait(vm=[("V", 1)] + ([("K", 3)] if OPT["peel0"] < 2 else []), lg=["w"] + [f"a{AKF + i}" for i in range(32)]))
    out.append(barrier())
    return prof_hooks(out)


def unit_instrs(a, t, h, n, packed):
    x = OO + 32 * t + 16 * h if t < 4 else OO
    mu = []
    for d in range(4):
        seq = []
        if t == 4:
            seq += [valu(f"v_accvgpr_read_b32 v{x + 4 * d + i}, a{AX + 16 * h + 4 * d + i}") for i in range(4)]
        if packed:
            seq += [valu(f"v_pk_mul_f32 {R('v', x + 4 * d + 2 * i, 2)}, {R('v', x + 4 * d + 2 * i, 2)}, {R('v', RL(t) + 2 * i, 2)}") for i in range(2)]
        else:
            seq += [valu(f"v_mul_f32 v{x + 4 * d + i}, v{x + 4 * d + i}, v{RL(t) + i}") for i in range(4)]
        mu.append(seq)
    cv = [[valu(f"v_cvt_pk_bf16_f32 v{x + 8 * e + r}, v{x + 8 * e + r}, v{x + 8 * e + 4 + r}") for r in range(4)] for e in range(2)]
    wr = []
    for r in range(4):
        w = ds_write("ds_write2_b32", vEw, f"v{x + r}, v{x + 8 + r}", f"offset0:{36 * r} offset1:{36 * r + 1}", (("K", 1), 99))
        w.rd |= {f"v{x + r}", f"v{x + 8 + r}"}
        wr.append(w)
    rd, st = [], []
    for i in range(2):
        q = ASP + 16 + 8 * (n % 2) + 4 * i
        rd += [ds_read("ds_read_b64_tr_b16", R("a", q + 2 * u, 2), vEr, f"offset:{8 * 144 * i + 32 * u}") for u in range(2)]
        st.append(vstore("buffer_store_dwordx4", R("a", q, 4), vO, sO, (sT, sT8)[i][t], 128 * (h ^ FLIP[0]), OPT["pol_o"] if h == 0 or "pol_o1" not in OPT else OPT["pol_o1"]))
    return mu, cv, wr, rd, st


def final_block(a):
    NQ, NP = 5 - a, 4 + a
    b = Block(f"final role {a}")
    b.lazy = OPT["lazy"]
    b.chainy = True
    save = OPT["walign"]
    OPT["walign"] = 0
    barA, barB = OPT["bara"], OPT["barb"]
    F = lambda i: AVF + 4 * i
    KF = lambda i: AKF + 4 * i
    lo = {28: 0, 29: 0, 30: 0, 31: 0}
    lu = {}
    rest = list(range(2, NP))
    tord = [0, 1, 2, 4, 3] if a == 1 and OPT["xbal"] & 2 else list(range(NP))
    f30, f31 = [[F(d)] for d in range(4)], [[F(4 + d)] for d in range(4)]
    ends = {t: qk_chain(b, t) for t in (0, 1, 2)}
    _, pf = add_pv(b, a, [30], 0, f30, lo, lastuse=lu, ts=[0, 1])
    ends[3] = qk_chain(b, 3)
    if a == 0 and OPT["xearly"]:
        ends[4] = qk_chain(b, 4)
    done0, pf1 = add_pv(b, a, [31], 0, f31, lo, tmajor=True, lastuse=lu, ts=[0, 1])
    X1 = len(b.mf) - 1
    if a == 0 and not OPT["xearly"]:
        ends[4] = qk_chain(b, 4)
    lu.update({KF(s): ends[NQ - 1] - 7 + s for s in range(8)})
    pf.update(add_pv(b, a, [30], 0, f30, lo, lastuse=lu, ts=rest, have=[30])[1])
    add_pv(b, a, [28], 1, [[ASP + 4 * d if a == 0 else KF(d)] for d in range(4)], lo, lastuse=lu, ts=[0, 1, 2, 3] if OPT["xbal"] & 1 else None)
    d2, p2 = add_pv(b, a, [31], 0, f31, lo, tmajor=True, lastuse=lu, ts=rest, have=[31])
    done0.update(d2)
    pf1.update(p2)
    X = len(b.mf) - 1
    pool = [KF(i) for i in range(8)] + [F(i) for i in range(4)] if a == 0 else [KF(4 + i) for i in range(4)] + [F(i) for i in range(4)] + [KF(i) for i in range(4)]
    done1, _ = add_pv(b, a, [29, 30, 31], 1, [pool[3 * d:3 * d + 3] for d in range(4)], lo, lastuse=lu, tmajor=tord if OPT["tm1"] else False)
    G = len(b.mf)
    bar = lambda t: barA if t < 2 else barB
    for t, ins in preads(30, a):
        b.op(ins, "ds", 0, pf[(30, t)] - 10, hard=pf[(30, t)] - 3)
    for t, ins in preads(31, a):
        b.op(ins, "ds", bar(t), pf1[(31, t)] - 12, hard=pf1[(31, t)] - 3)
    add_deferred(b, a, ends, 30)
    adds = add_softmax(b, a, 31, {t: ends[t] for t in (0, 1)}, barA, [], adds_by=barA - 4)
    adds.update(add_softmax(b, a, 31, {t: ends[t] for t in range(2, NQ)}, barB, [], adds_by=barB - 6))
    L = lambda *t: [(("L", x), 0) for x in t]
    lw = {t: b.op(ds_write("ds_write_addtid_b32", None, f"v{vL[t]}", f"offset:{2 * PXA + t * 256}", L(t)), "ds", 0, bar(t) - 8, [adds[t]], hard=bar(t) - 3, m0="p", setter=msetter()) for t in range(NQ)}
    w1 = b.op(valu(f"v_max3_u32 v{TMP}, v{vL[0]}, v{vL[1]}, v{vL[2]}"), "valu", 0, barB - 12, [adds[0], adds[1], adds[2]], hard=barB - 5)
    w2 = b.op(valu(f"v_max3_u32 v{TMP}, v{TMP}, v{vL[3]}, v{vL[NQ - 1]}"), "valu", 0, barB - 11, [w1, adds[3], adds[NQ - 1]], hard=barB - 4)
    b.op(ds_write("ds_write_addtid_b32", None, f"v{TMP}", f"offset:{2 * PXA + 5 * 256}", L(5)), "ds", 0, barB - 9, [w2], hard=barB - 3, m0="p", setter=msetter())
    b.barrier(barA, None, ["w"])
    b.barrier(barB, None, ["w"])
    base = 80
    lr = {}
    for t in (0, 2):
        lr[t] = lr[t + 1] = b.op(ds_read("ds_read2st64_b32", R("v", LP + t, 2), vPr, f"offset0:{base + a * 20 + t} offset1:{base + a * 20 + t + 1}", L(t, t + 1)), "ds", bar(t), bar(t) - 5)
    f1 = b.op(ds_read("ds_read2st64_b32", R("v", FLG, 2), vPr, f"offset0:{base + 5} offset1:{base + 25}", L(5)), "ds", barB, barB + 8)
    f2 = b.op(ds_read("ds_read2st64_b32", R("v", FLG + 2, 2), vPr2, f"offset0:{base + 5} offset1:{base + 25}", L(5)), "ds", barB, barB + 9)
    if a == 1:
        x1 = b.op(ds_read("ds_read_b32", f"v{LP + 4}", vPr, f"offset:{(base + 4) * 256}", L(4)), "ds", barB, barB + 5)
        lr[4] = b.op(ds_read("ds_read_b32", f"v{vL[4]}", vPr2, f"offset:{(base + 4) * 256}", L(4)), "ds", barB, barB + 6, [x1])
    ck = chain_ops(b, [valu(f"v_max3_u32 v{FLG}, v{FLG}, v{FLG + 1}, v{FLG + 2}"), valu(f"v_max_u32 v{FLG}, v{FLG}, v{FLG + 3}"), valu(f"v_cmp_lt_u32 vcc, {sTHR}, v{FLG}")],
                   0, barB + 30, [(f1, 6), (f2, 6)], hard=G - 4)
    if not OPT["abl"]:
        b.scalar(salu(f"s_cbranch_vccnz L_fallback{a}"), (lambda: ck.gap + 1), G - 1)
    rl = {}
    for t in range(NP):
        A_, B_, C_ = RL(t), RL(t) + 1, LP + t
        lim = X1 if t < 2 else X
        seq = [valu(f"v_add_f32 v{A_}, v{vL[t]}, v{C_}"), valu(f"v_add_f32 v{B_}, v{vL[t]}, v{C_}"), valu(f"v_permlane32_swap_b32 v{A_}, v{B_}"),
               valu(f"v_add_f32 v{C_}, v{A_}, v{B_}"), valu(f"v_add_f32 v{B_}, v{A_}, v{B_}"), valu(f"v_permlane16_swap_b32 v{C_}, v{B_}"),
               valu(f"v_add_f32 v{A_}, v{C_}, v{B_}"), valu(f"v_rcp_f32 v{A_}, v{A_}")]
        rc = chain_ops(b, seq, 0, -400 + 10 * t, [(lr[t], 6)], hard=lim)
        pl = 2 * PXA + (6 + t % 4) * 256
        w = b.op(ds_write("ds_write_addtid_b32", None, f"v{A_}", f"offset:{pl}"), "ds", 0, -390 + 10 * t, [rc], hard=lim, m0="p", setter=msetter())
        rl[t] = b.op(ds_read("ds_read_b128", R("v", RL(t), 4), vRr, f"offset:{pl}"), "ds", 0, -389 + 10 * t, [w], hard=lim)
    units = [(t, 0) for t in range(NP)] + [(t, 1) for t in tord]
    nfast = min(2 + OPT["nfast"], NP)
    nin = min(OPT["nin"], NP - nfast)

    def straight(lst, pend):
        o = []
        for n, (t, h) in lst:
            mu, cv, wr, rd, st = unit_instrs(a, t, h, n, True)
            for k in range(len(mu[0])):
                o += [mu[d][k] for d in range(4)]
            o += cv[0] + cv[1]
            o += pend
            o += wr + rd
            pend = st
        return o, pend
    en = list(enumerate(units))
    b.inserts[X1], pend = straight(en[:2], [])
    prev_rd, prev_st = [], {1: [b.op(x, "st", X1 + 6 + i, X1 - 50 + i, hard=X1 + 12) for i, x in enumerate(pend)]}
    if nfast > 2:
        b.inserts[X], pend = straight(en[2:nfast], [])
        prev_st[(nfast - 1) % 2] = [b.op(x, "st", X + 6 + i, X + i, hard=G - 1) for i, x in enumerate(pend)]
    if OPT["tm1"]:
        assert nfast == NP
        for x in prev_st[(nfast - 1) % 2]:
            x.hard = X + 12
        for n, t in enumerate(tord[:-1]):
            at = max(done1[(t, 4)], done1[(t, 7)]) + 4
            if OPT["tm1"] == 1:
                b.inserts[at], pend = straight(en[NP + n:NP + n + 1], [])
            else:
                mu, cv, wr, rd, pend = unit_instrs(a, t, 1, NP + n, False)
                at = min(at + 7, G - 1)
                mo = []
                for d in range(4):
                    pre = [b.op(x, "valu", done1[(t, 4 + d)] + 4, at - 21 + 3 * d, hard=at) for x in mu[d][:-4]]
                    mo.append([b.op(x, "valu", done1[(t, 4 + d)] + 4, at - 20 + 3 * d + i // 2, [(y, 0) for y in pre[i:i + 1]], hard=at) for i, x in enumerate(mu[d][-4:])])
                for e in range(2):
                    for r in range(4):
                        b.op(cv[e][r], "valu", 0, at - 15 + 6 * e, [mo[2 * e][r], mo[2 * e + 1][r]], hard=at)
                b.inserts[at] = wr + rd
            for i, x in enumerate(pend):
                b.op(x, "st", at + 6 + i, at - 50 + i, hard=at + 11)
        nin = 0
        nfast = 2 * NP - 1
    if OPT["stamps"] == 2:
        b.inserts[barA] = stamp(12)
        b.inserts[X1] = stamp(13) + b.inserts[X1]
        b.inserts[barB] = stamp(9)
        b.inserts[X] = stamp(10) + b.inserts.get(X, [])
    assert nin == 0
    out, left = b.schedule(show=OPT["show"] == 31, leftover_ok=True)
    OPT["walign"] = save
    out += stamp(5)
    pend = []
    for o in left:
        if o.ins.kind == "vst":
            pend.append(o.ins)
        else:
            if any(o.ins.wr & x.rd for x in pend):
                out += pend
                pend = []
            out.append(o.ins)
    o2, pend = straight(en[nfast + nin:], pend)
    return out + o2 + pend


def qload(k, i):
    return [vload("buffer_load_dwordx4", R("v", RAW(k, i), 4), vQl, sQ, sT[k], 512 * i, OPT["pol_q"], tag=("Q", k, i))]


def entry():
    o = []
    A = lambda t: o.append(salu(t))
    V = lambda t: o.append(valu(t))
    t0, t1, t2, t3, t4 = (f"v{TMP + i}" for i in range(5))
    A("s_cmp_ge_u32 s2, 256")
    A("s_cbranch_scc1 L_end")
    o.append(raw("s_load_dwordx8 s[4:11], s[0:1], 0"))
    if OPT["stamps"]:
        o.append(raw("s_load_dwordx2 s[56:57], s[0:1], 40"))
        o.append(raw("s_memrealtime s[58:59]"))
    o += stamp(0)
    o.append(raw("s_getpc_b64 s[44:45]"))
    o.append(label("L_pc"))
    A("s_lshr_b32 s54, s2, 3")
    A("s_lshl_b32 s55, s54, 7")
    V(f"v_lshl_add_u32 {t2}, v0, 12, s55")
    if OPT["aux"] & 1:
        A("s_and_b32 s45, s45, 0xffff")
        o.append(raw("s_mov_b32 s46, L_end-L_pc"))
        A("s_mov_b32 s47, 0x20000")
        o.append(vload("buffer_load_dword", "v15", t2, sC, "0"))
    else:
        o.append(I(f"v_min_u32 {t2}, L_end-L_pc, {t2}", "valu", [t2], [t2]))
        V(f"v_mov_b32 {t3}, 0")
        V(f"v_lshl_add_u64 {R('v', TMP + 2, 2)}, {R('v', TMP + 2, 2)}, 0, s[44:45]")
        o.append(I(f"global_load_dword v15, {R('v', TMP + 2, 2)}, off", "vld", [t2, t3], ["v15"]))
    V(f"v_lshrrev_b32 {t1}, 6, v0")
    A(f"s_mov_b64 {sKEEP}, 0")
    V(f"v_readfirstlane_b32 {sW}, {t1}")
    A(f"s_mov_b32 {sTHR}, {(127 + OPT['thr']) << 23:#x}")
    if OPT["prof"]:
        A("s_mov_b32 s3, 0")
    A("s_and_b32 s53, s2, 7")
    A("s_lshl_b32 s53, s53, 3")
    A("s_lshr_b32 s55, s2, 5")
    A("s_add_u32 s53, s53, s55")
    A("s_and_b32 s54, s54, 3")
    A("s_lshl_b32 s55, s53, 2")
    A("s_add_u32 s55, s55, s54")
    A("s_mul_i32 s37, s55, 73728")
    A("s_lshl_b32 s53, s53, 19")
    A(f"s_lshr_b32 {sA}, {sW}, 1")
    A(f"s_and_b32 {sB}, {sW}, 1")
    A(f"s_add_u32 s54, {sW}, 1")
    A("s_and_b32 s55, s54, 1")
    A("s_lshl_b32 s55, s55, 3")
    A("s_lshr_b32 s54, s54, 1")
    A("s_and_b32 s54, s54, 1")
    A("s_add_u32 s54, s54, s55")
    A("s_mul_i32 s54, s54, 1040")
    A(f"s_add_u32 {sKm}, s54, {KRING}")
    A("s_mov_b32 s48, 8192")
    A("s_mov_b32 s49, 16384")
    A("s_mov_b32 s50, 24576")
    A(f"s_mov_b32 {sX}, 65536")
    for srd, n in ((16, 524288), (12, 73728), (20, 524288), (24, 73728)):
        A(f"s_mov_b32 s{srd + 2}, {n}")
        A(f"s_mov_b32 s{srd + 3}, 0x20000")

    def src_offsets():
        V(f"v_and_b32 {t0}, 31, v0")
        V(f"v_lshlrev_b32 {t0}, 4, {t0}")
        V(f"v_bfe_u32 {t2}, v0, 5, 1")
        A(f"s_lshl_b32 s54, {sW}, 11")
        V(f"v_add_u32 {t1}, s54, {t0}")
        V(f"v_lshl_add_u32 {vKd}, {t2}, 13, {t1}")
        V(f"v_lshl_add_u32 {vQl}, {t2}, 15, {t1}")
        V(f"v_lshl_add_u32 {vQlx}, {t2}, 9, {t1}")
        if OPT["rot"]:
            A("s_and_b32 s54, s2, 7")
            A(f"s_mul_i32 s54, s54, {OPT['rot'] // 100}")
            A("s_lshr_b32 s55, s2, 5")
            A(f"s_mul_i32 s55, s55, {OPT['rot'] % 100}")
            A("s_add_u32 s54, s54, s55")
            A("s_and_b32 s54, s54, 31")
            A(f"s_lshl_b32 {sKo}, s54, 14")
            A(f"s_mov_b32 {sVo}, {sKo}")
        else:
            A(f"s_mov_b32 {sKo}, 0")
            A(f"s_mov_b32 {sVo}, 0")
    src_offsets()
    o.append(raw("s_waitcnt lgkmcnt(0)"))
    o += stamp(8)
    for srd, ptr, off in ((16, 6, "s53"), (12, 4, "s37"), (20, 8, "s53"), (24, 10, "s37")):
        A(f"s_add_u32 s{srd}, s{ptr}, {off}")
        A(f"s_addc_u32 s{srd + 1}, s{ptr + 1}, 0")
        A(f"s_and_b32 s{srd + 1}, s{srd + 1}, 0xffff")
    o.append(label("L_restart"))
    if OPT["glds"]:
        A(f"s_mov_b64 {sKg}, s[16:17]")
        A(f"s_mov_b64 {sVg}, s[20:21]")
    for i in range(4):
        o += dma_piece("K", 0, i) if not OPT["qfirst"] else []
    for i in range(2):
        o.append(vload("buffer_load_dwordx4", R("v", RAWX + 4 * i, 4), vQlx, sQ, sX, 1024 * i, OPT["pol_q"], tag=("Q", 4, i)))
    for i in range(4):
        o += qload(0, i) if OPT["qfirst"] else []
    if OPT["touch"] & 1:
        o.append(I("buffer_load_dword v14, off, s[20:23], 0", "vld", regs(sV), ["v14"]))
    if OPT["touch"] & 2:
        o.append(I("buffer_load_dword v14, off, s[24:27], 0", "vld", regs(sO), ["v14"]))
    if OPT["thr1"] or OPT["thr2"] or OPT["stamps"]:
        o.append(raw("s_getreg_b32 s37, hwreg(HW_REG_XCC_ID, 0, 4)" if not OPT.get("thrkey") else "s_lshr_b32 s37, s2, 5"))
    if OPT["thr1"]:
        o.append(raw(f"s_lshr_b32 s54, {OPT['thr1']}, s37\n    s_bitcmp1_b32 s54, 0\n    s_cbranch_scc1 L_thr1\nL_thr1b:"))
    if OPT["ibar"]:
        o.append(barrier())
    for i in range(4):
        o += qload(0, i) if not OPT["qfirst"] else dma_piece("K", 0, i)
    if OPT["stamps"] == 4:
        o += stamp(9)
    if OPT["stouch"]:
        for i in range(1, OPT["stouch"] + 1):
            o.append(raw(f"s_load_dword s9, s[44:45], {i * 4096 - 128}"))
    A(f"s_lshl_b32 s54, {sB}, 11")
    A(f"s_lshl_b32 s55, {sA}, 13")
    A("s_add_u32 s54, s54, s55")
    V(f"v_lshl_add_u32 {vVd}, {t2}, 12, {t0}")
    V(f"v_add_u32 {vVd}, s54, {vVd}")
    A(f"s_add_u32 s54, {sKm}, {3 * SLOT}")
    V(f"v_lshl_add_u32 {vQw}, {t2}, 9, {t0}")
    V(f"v_add_u32 {vQw}, s54, {vQw}")
    V(f"v_add_u32 {vQw2}, {4 * SLOT}, {vQw}")
    A(f"s_sub_u32 s54, {sKm}, {KRING - PXA}")
    V(f"v_mul_u32_u24 {vQwx}, 2080, {t2}")
    V(f"v_add3_u32 {vQwx}, {vQwx}, {t0}, s54")
    A(f"s_mul_i32 s54, {sB}, 8320")
    A(f"s_lshl_b32 s55, {sA}, 10")
    A("s_add_u32 s54, s54, s55")
    A(f"s_add_u32 {sVm}, s54, {VRING}")
    A(f"s_mul_i32 {sPm}, {sW}, 2560")
    V(f"v_and_b32 {t0}, 15, v0")
    V(f"v_bfe_u32 {t1}, v0, 4, 1")
    V(f"v_lshlrev_b32 {t3}, 5, {t1}")
    V(f"v_lshl_add_u32 {t3}, {t2}, 4, {t3}")
    V(f"v_add_u32 {t4}, 4, {t0}")
    V(f"v_bfe_u32 {vKr0}, {t4}, 3, 1")
    V(f"v_and_b32 {t4}, 7, {t4}")
    V(f"v_lshl_add_u32 {vKr0}, {t4}, 1, {vKr0}")
    V(f"v_mul_u32_u24 {vKr0}, 1040, {vKr0}")
    V(f"v_add_u32 {vKr0}, {vKr0}, {t3}")
    V(f"v_add_u32 {vQrx}, {PXA}, {vKr0}")
    V(f"v_add_u32 {vKr0}, {KRING}, {vKr0}")
    A(f"s_lshl_b32 s54, {sB}, 9")
    V(f"v_add_u32 {vKr}, s54, {vKr0}")
    A(f"s_lshl_b32 s54, {sA}, 9")
    A(f"s_add_u32 s54, s54, {3 * SLOT}")
    V(f"v_add_u32 {vQr}, s54, {vKr0}")
    V(f"v_add_u32 {vQr2}, {4 * SLOT}, {vQr}")
    A(f"s_lshl_b32 s54, {sB}, 9")
    A("s_sub_u32 s54, 512, s54")
    V(f"v_add_u32 {vKr0}, s54, {vKr0}")
    V(f"v_bfe_u32 {t4}, v0, 2, 2")
    V(f"v_mul_u32_u24 {vV0}, 2064, {t4}")
    V(f"v_mul_u32_u24 {t4}, 8320, {t1}")
    V(f"v_add_u32 {vV0}, {vV0}, {t4}")
    V(f"v_lshl_add_u32 {vV0}, {t2}, 9, {vV0}")
    V(f"v_bfe_u32 {t4}, v0, 1, 1")
    V(f"v_lshl_add_u32 {vV0}, {t4}, 6, {vV0}")
    V(f"v_and_b32 {t4}, 1, v0")
    V(f"v_lshl_add_u32 {vV0}, {t4}, 3, {vV0}")
    A(f"s_mul_i32 s54, {sB}, {256 + 1024}")
    A(f"s_add_u32 s54, s54, {VRING}")
    A(f"s_mul_i32 s55, {sB}, {1024 - 256}")
    A(f"s_sub_u32 s55, {VRING + 1024}, s55")
    V(f"v_add_u32 {vV1}, s55, {vV0}")
    V(f"v_add_u32 {vV0}, s54, {vV0}")
    V(f"v_and_b32 {t4}, 63, v0")
    V(f"v_lshlrev_b32 {t4}, 2, {t4}")
    A(f"s_mul_i32 s54, {sB}, 2560")
    A("s_sub_u32 s55, 2560, s54")
    V(f"v_add_u32 {vPr2}, s54, {t4}")
    V(f"v_add_u32 {vPr}, s55, {t4}")
    A(f"s_mul_i32 s55, {sW}, 2304")
    A(f"s_add_u32 s55, s55, {KRING + SLOT}")
    V(f"v_bfe_u32 {t4}, v0, 4, 2")
    V(f"v_mul_u32_u24 {vEw}, {4 * 144}, {t4}")
    V(f"v_lshl_add_u32 {vEw}, {t0}, 3, {vEw}")
    V(f"v_add_u32 {vEw}, s55, {vEw}")
    V(f"v_lshl_add_u32 {vRr}, {t4}, 4, {sPm}")
    V(f"v_bfe_u32 {t1}, v0, 1, 1")
    V(f"v_lshl_add_u32 {t4}, {t4}, 1, {t1}")
    V(f"v_mul_u32_u24 {vEr}, 144, {t4}")
    V(f"v_and_b32 {t1}, 1, v0")
    V(f"v_lshl_add_u32 {vEr}, {t1}, 6, {vEr}")
    V(f"v_bfe_u32 {t1}, v0, 2, 2")
    V(f"v_lshl_add_u32 {vEr}, {t1}, 3, {vEr}")
    V(f"v_add_u32 {vEr}, s55, {vEr}")
    V(f"v_bfe_u32 {t4}, v0, 3, 3")
    V(f"v_and_b32 {t1}, 7, v0")
    V(f"v_lshlrev_b32 {t1}, 4, {t1}")
    A(f"s_lshl_b32 s54, {sA}, 15")
    A(f"s_lshl_b32 s55, {sB}, 8")
    A("s_add_u32 s55, s55, s54")
    A("s_sub_u32 s51, 65536, s54")
    V(f"v_lshl_add_u32 {vO}, {t4}, 9, {t1}")
    V(f"v_add_u32 {vO}, s55, {vO}")
    for t in range(5):
        A(f"s_add_u32 {sT8[t]}, {sT[t]}, 4096" if t else f"s_mov_b32 {sT8[0]}, 4096")
    c = struct.unpack("<I", struct.pack("<f", math.log2(math.e) / 16.0))[0]
    A(f"s_mov_b32 s40, {c:#x}")
    A(f"s_mov_b32 s41, {c:#x}")
    A(f"s_mov_b32 {sMASK}, 0xffff0000")
    for t in range(5):
        V(f"v_mov_b32 v{vL[t]}, 0")
    for t in range(4):
        for i in range(8):
            V(f"v_mov_b64 {R('v', OO + 32 * t + 16 + 2 * i, 2)}, 0")
    for i in range(16):
        V(f"v_accvgpr_write_b32 a{AX + 16 + i}, 0")
    if OPT["stamps"] == 4:
        o += stamp(10)
    A(f"s_cmp_eq_u32 {sA}, 1")
    A("s_cbranch_scc1 L_role1")
    o2 = []
    o, keep = o2, o
    src_offsets()
    return keep, o2


def scale4(src):
    o = []
    T = SCT
    for i in range(4):
        o.append(valu(f"v_lshlrev_b32 v{T + 2 * i}, 16, v{src + i}"))
        o.append(valu(f"v_and_b32 v{T + 2 * i + 1}, {sMASK}, v{src + i}"))
    for i in range(4):
        o.append(valu(f"v_pk_mul_f32 {R('v', T + 2 * i, 2)}, {R('v', T + 2 * i, 2)}, {sSC}"))
    for i in range(4):
        o.append(valu(f"v_cvt_pk_bf16_f32 v{src + i}, v{T + 2 * i}, v{T + 2 * i + 1}"))
    return o


QST = {0: (("V", 1), vQw, vQr, 2 * SLOT), 1: (("K", 3), vQw, vQr, 0), 2: (("V", 2), vQw, vQr, 3 * SLOT), 3: (("V", 3), vQw2, vQr2, 0)}


def stage_write(k, i):
    if k == 4:
        return ds_write("ds_write_b128", vQwx, R("v", RAWX + 4 * i, 4), f"offset:{4160 * i}", QXTAG)
    reg, wb, rb, off = QST[k]
    return ds_write("ds_write_b128", wb, R("v", RAW(k, i), 4), f"offset:{off + 2080 * i}", (reg, -1))


def stage_load(k, i, feed):
    src = RAWX + 4 * i if k == 4 else RAW(k, i)
    return [wait(vm=[("Q", k, i)])] + feed(("Q", k, i)) + scale4(src) + [stage_write(k, i)]


def stage_in(k, feed):
    o = []
    for i in range(2 if k == 4 else 4):
        o += stage_load(k, i, feed)
    return o


def stage_read(k):
    if k == 4:
        return [ds_read("ds_read_b128", Qf(4, s), vQrx, f"offset:{64 * s}", QXTAG) for s in range(8)]
    reg, wb, rb, off = QST[k]
    return [ds_read("ds_read_b128", Qf(k, s), rb, f"offset:{off + 64 * s}", (reg, -1)) for s in range(8)]


def stage_compute(t):
    mf, m1, m2, cm, sb, ex, cv, ad = first_tile_instrs(t)
    o = mf + m1 + m2 + cm + sb + ex + cv
    if t == 4:
        o += [msetter(), ad[0]] + [pwrite(0, t, h) for h in range(2)] + ad[1:]
    else:
        o += ad
    return o


def prologue(a):
    o = [label(f"L_role{a}")] + aux_setup(a) + [salu(f"s_mov_b32 {sCNT}, {(24 if OPT['early'] else 28) // 4 - (1 if OPT['peel0'] else 0)}")]
    seq = {0: "Q1 Q2 Q3 K1 V0 K2 V1 K3", 1: "Q1 K1 Q2 V0 Q3 K2 V1 K3", 2: "Q1 Q2 K1 Q3 V0 K2 V1 K3", 3: "K1 Q1 V0 Q2 K2 Q3 V1 K3", 4: "Q1 Q2 K1 V0 Q3 K2 V1 K3", 5: "K1 Q1 Q2 V0 Q3 K2 V1 K3"}[OPT["order"]]
    full = [("K", 0, i) for i in range(4)] + [("Q", 4, i) for i in range(2)] + [("Q", 0, i) for i in range(4)]
    if OPT["qfirst"]:
        full = full[4:] + full[:4]
    order = [(x[0], int(x[1]), i) for x in seq.split() for i in range(4)]
    if OPT["split"]:
        n = 0
        while n + 8 <= len(order):
            if order[n][0] != "Q" and order[n + 4][0] == "Q":
                sp = OPT["split"]
                order[n:n + 8] = order[n + 4:n + 4 + sp] + order[n:n + 4] + order[n + 4 + sp:n + 8]
                n += 4
            n += 4
    full += order

    def feed(landed):
        r = []
        stage = -1 if landed[1] == 4 else landed[1]
        while order and full.index(order[0]) <= full.index(landed) + OPT["win"]:
            x = order[0]
            if (x[:2] == ("V", 1) and stage < 2) or (x[:2] == ("K", 3) and stage < 3) or (landed == ("Q", 3, 3) and not OPT["lastfeed"]):
                break
            order.pop(0)
            r += qload(x[1], x[2]) if x[0] == "Q" else dma_piece(*x)
            if OPT["spf"] and x == [("Q", 3, 3), ("K", 2, 3), ("V", 1, 3), ("Q", 2, 3), ("V", 0, 3)][OPT["spfat"]]:
                r.append(vload("buffer_load_dword", vAuxC, vAuxC, sP, "0"))
        return r
    if OPT["thr2"]:
        o.append(raw(f"s_lshr_b32 s54, {OPT['thr2']}, s37\n    s_bitcmp1_b32 s54, 0\n    s_cbranch_scc1 L_thr2{a}\nL_thr2b{a}:"))
    o += stage_in(4, feed)
    if OPT["qfirst"]:
        o += stage_in(0, feed) + [wait(vm=[("K", 0)])] + feed(("K", 0, 3))
    o.append(wait(vm=[("K", 0)], lg="all"))
    o.append(barrier())
    o += stamp(1)
    for s in range(8):
        o.append(kread(0, s, vKr, R("a", AVF + 4 * s, 4)))
    if a == 0:
        o += stage_read(4)
    for s in range(8):
        o.append(kread(0, s, vKr0, R("a", ASP + 4 * s, 4)))
    ps = iter([3, 4, 5, 6, 7, 8, 9, 10, 11, 12, 13, 14])
    pst = lambda: stamp(next(ps), 3)
    o += pst()
    if not OPT["qfirst"]:
        o += stage_in(0, feed)
    for k in range(4):
        o += pst()
        if k or not OPT["qfirst"]:
            o.append(wait(vm={OPT["k1stage"]: [("K", 1)], 3: [("V", 0)]}.get(k), lg="all"))
            o.append(barrier())
        if k < 3:
            o += pst() + pst()
            o += stage_block(a, k, feed)
    o += stamp(2)
    return o, order


def aux_setup(a):
    o = []
    if OPT["spf"]:
        n = OPT["spf"] * 16
        o.append(salu("s_lshr_b32 s54, s2, 3"))
        o.append(salu("s_and_b32 s54, s54, 3"))
        o.append(salu(f"s_mul_i32 s54, s54, {2 * n * 128}"))
        o.append(salu(f"s_cmp_eq_u32 {sB}, 0"))
        o.append(salu(f"s_cselect_b32 s55, {OPT['spfk']}, {OPT['spfv']}"))
        o.append(salu("s_cselect_b32 s88, s16, s20"))
        o.append(salu("s_cselect_b32 s89, s17, s21"))
        o.append(salu("s_lshl_b32 s55, s55, 14"))
        o.append(salu("s_add_u32 s54, s54, s55"))
        o.append(salu(f"s_add_u32 s54, s54, {a * n * 128}"))
        o.append(salu("s_mov_b32 s90, 524288"))
        o.append(salu("s_mov_b32 s91, 0x20000"))
        o.append(valu(f"v_and_b32 {vAuxC}, 63, v0"))
        o.append(valu(f"v_min_u32 {vAuxC}, {n - 1}, {vAuxC}"))
        o.append(valu(f"v_lshl_add_u32 {vAuxC}, {vAuxC}, 7, s54"))
    if OPT["pf31"]:
        n = (32 - OPT["pft0"]) * 8
        o.append(salu("s_lshr_b32 s54, s2, 3"))
        o.append(salu("s_and_b32 s54, s54, 3"))
        o.append(salu("s_lshl_b32 s54, s54, 2"))
        o.append(salu(f"s_add_u32 s54, s54, {sW}"))
        o.append(salu(f"s_mul_i32 s54, s54, {n * 128}"))
        o.append(salu(f"s_add_u32 s54, s54, {(OPT['pft0'] * 16384 - (0 if OPT['early'] else ((OPT['pf31'] - 1) // 4) << 24)) & 0xffffffff:#x}"))
        o.append(valu(f"v_and_b32 {vAuxT}, 63, v0"))
        o.append(valu(f"v_min_u32 {vAuxT}, {n - 1}, {vAuxT}"))
        o.append(valu(f"v_lshl_add_u32 {vAuxT}, {vAuxT}, 7, s54"))
    if OPT["aux"]:
        o.append(salu("s_lshr_b32 s54, s2, 3"))
        o.append(salu("s_lshl_b32 s55, s54, 7"))
        o.append(valu(f"v_lshl_add_u32 {vAuxC}, v0, 12, s55"))
    if OPT["aux"] & 2:
        piece = (32 - OPT["auxt0"]) * 16384 // OPT["auxn"]
        before = len([j for j in range(1, OPT["auxend"] + 1) if (j - OPT["auxend"]) % OPT["auxper"] == 0]) - OPT["auxn"]
        o.append(salu("s_and_b32 s54, s54, 3"))
        o.append(salu(f"s_mul_i32 s54, s54, {piece // 4}"))
        o.append(salu(f"s_add_u32 s54, s54, {(a * piece // 8 - before * piece) & 0xffffffff:#x}"))
        o.append(valu(f"v_and_b32 {vAuxT}, 63, v0"))
        o.append(valu(f"v_cmp_le_u32 vcc, {piece // 1024}, {vAuxT}"))
        o.append(valu(f"v_lshl_add_u32 {vAuxT}, {vAuxT}, 7, s54"))
        o.append(valu(f"v_cndmask_b32 {vAuxT}, {vAuxT}, 2.0, vcc"))
        o.append(salu(f"s_cmp_eq_u32 {sB}, 0"))
        o.append(salu("s_cselect_b32 s88, s16, s20"))
        o.append(salu("s_cselect_b32 s89, s17, s21"))
        o.append(salu(f"s_add_u32 s88, s88, {OPT['auxt0'] * 16384}"))
        o.append(salu("s_addc_u32 s89, s89, 0"))
        o.append(salu(f"s_mov_b32 s90, {(32 - OPT['auxt0']) * 16384}"))
        o.append(salu("s_mov_b32 s91, 0x20000"))
        if OPT["holes"]:
            o.append(salu("s_mov_b64 s[84:85], s[88:89]"))
            o.append(salu("s_mov_b32 s86, 0"))
            o.append(salu("s_mov_b32 s87, 0x20000"))
    return o


def finish(a):
    o = stamp(6)
    if OPT.get("amp"):
        lo, hi, base = OPT["amp"] // 100, OPT["amp"] % 100, OPT["ampbase"]
        o.append(raw("s_waitcnt vmcnt(0)"))
        o += stamp(7)
        o.append(raw(f"s_waitcnt lgkmcnt(0)\ns_and_b32 s95, s2, {OPT.get('ampmask', 255)}\ns_cmp_lg_u32 s95, {OPT.get('ampwg', 40)}\ns_cbranch_scc1 L_end\ns_sub_u32 s94, s{60 + 2 * hi}, s{60 + 2 * lo}\ns_sub_u32 s94, s94, {base}\ns_max_i32 s94, s94, 0\ns_mul_i32 s94, s94, {OPT.get('amprt', 1)}\ns_min_u32 s94, s94, 20000\ns_add_u32 s94, s94, 6000"))
        o.append(raw(f"L_amp{a}:\ns_memrealtime s[92:93]\ns_waitcnt lgkmcnt(0)\ns_sub_u32 s92, s92, s58\ns_cmp_lt_u32 s92, s94\ns_cbranch_scc1 L_amp{a}"))
    elif OPT["stamps"]:
        o.append(raw("s_waitcnt vmcnt(0)"))
        o += stamp(7)
        o.append(raw("s_memrealtime s[92:93]"))
        o.append(raw("s_waitcnt lgkmcnt(0)"))
        o.append(raw("s_mov_b32 s96, s56\ns_and_b32 s97, s57, 0xffff\ns_mov_b32 s98, 0x100000\ns_mov_b32 s99, 0x20000"))
        o.append(raw(f"s_lshl_b32 s94, s2, 2\ns_add_u32 s94, s94, {sW}\ns_lshl_b32 s94, s94, 7"))
        for i in range(16):
            o.append(raw(f"v_mov_b32 v{64 + i}, s{60 + 2 * i}"))
        o.append(raw("v_mov_b32 v80, s58\nv_mov_b32 v81, s92\nv_mov_b32 v82, s37\nv_mov_b32 v83, 0\nv_mov_b32 v84, 0"))
        if OPT["prof"]:
            o.append(raw("v_lshlrev_b32 v85, 2, v0\ns_lshl_b32 s95, s2, 10\ns_add_u32 s95, s95, 0x40000\nbuffer_store_dword v127, v85, s[96:99], s95 offen"))
        o.append(raw("s_mov_b64 exec, 1"))
        for i in range(5):
            o.append(raw(f"buffer_store_dwordx4 v[{64 + 4 * i}:{67 + 4 * i}], v84, s[96:99], s94 offen offset:{16 * i}"))
    o.append(raw("s_endpgm"))
    return o


def fallback(a, redo):
    NQ = 5 - a
    M, AD = PP, PP + 8
    o = [label(f"L_fallback{a}")]
    o.append(raw("s_waitcnt vmcnt(0) lgkmcnt(0)"))
    o.append(nop(7))
    o.append(salu("s_mov_b32 s18, 524288"))
    o.append(valu(f"v_and_b32 v{AD}, 15, v0"))
    o.append(valu(f"v_lshlrev_b32 v{AD}, 9, v{AD}"))
    o.append(valu(f"v_bfe_u32 v{AD + 1}, v0, 4, 1"))
    o.append(valu(f"v_lshl_add_u32 v{AD}, v{AD + 1}, 5, v{AD}"))
    o.append(valu(f"v_bfe_u32 v{AD + 1}, v0, 5, 1"))
    o.append(valu(f"v_lshl_add_u32 v{AD}, v{AD + 1}, 4, v{AD}"))
    for t in range(NQ):
        o.append(valu(f"v_mov_b32 v{M + t}, 0xff800000"))
    o.append(salu("s_mov_b32 s54, 0"))
    o.append(label(f"L_fbloop{a}"))
    for s in range(8):
        o.append(vload("buffer_load_dwordx4", Kf(s), f"v{AD}", sK, "s54", 64 * s))
    for t in range(NQ):
        for s in range(8):
            o.append(mfma(S(t), Kf(s), Qf(t, s), "0" if s == 0 else S(t)))
    for t in range(NQ):
        s0 = SS + 4 * t
        o.append(valu(f"v_max3_f32 v{M + t}, v{s0}, v{s0 + 1}, v{M + t}"))
        o.append(valu(f"v_max3_f32 v{M + t}, v{s0 + 2}, v{s0 + 3}, v{M + t}"))
    o.append(salu("s_add_u32 s54, s54, 8192"))
    o.append(salu("s_cmp_lt_u32 s54, 524288"))
    o.append(salu(f"s_cbranch_scc1 L_fbloop{a}"))
    for t in range(NQ):
        o += xlane("v_max_f32", M + t, AD + 1)
        for r in range(4):
            o.append(valu(f"v_sub_f32 v{NEGM + 4 * t + r}, 0, v{M + t}"))
    o.append(salu(f"s_mov_b64 {sKEEP}, -1"))
    o.append(salu(f"s_mov_b32 {sTHR}, -1"))
    o += redo
    o.append(barrier())
    o.append(salu("s_branch L_restart"))
    return o


def check_scalars(out):
    m0, cnt, seen, scc = None, {"K": 0, "V": 0}, set(), None
    for x in out:
        for ln in x.text.split("\n"):
            ln = ln.strip()
            if re.match(r"s_\w+ m0,", ln):
                m0 = ln
            for kind in "KV":
                if ln == bump(kind).text.split("\n")[0]:
                    cnt[kind] += 1
            if re.match(r"s_(cmp|add|sub|and|or|lshl|lshr|bitcmp|min|max)", ln):
                scc = ln
            if re.match(r"s_cbranch_scc|s_cselect", ln):
                assert scc.startswith(("s_cmp", "s_bitcmp")), (ln, scc)
        if x.kind == "dma":
            assert m0 == x.note[0], (x.text, m0, x.note)
            assert cnt[x.tag[0]] == x.tag[1], (x.text, x.tag, cnt)
            assert (x.tag, x.note[1]) not in seen
            seen.add((x.tag, x.note[1]))
        if x.text.startswith("ds_write_addtid"):
            assert m0 == msetter().text or OPT["prof"], (x.text, m0)
    for kind in "KV":
        for t in range(32):
            for i in range(4):
                assert ((kind, t), i) in seen, (kind, t, i)


def ablate(lines, lo, hi):
    ab = OPT["abl"]
    for n in range(lo, hi):
        l = lines[n]
        if (ab & 1 and l.endswith(" lds")) or (ab & 2 and l == "s_barrier") or (ab & 4 and l.startswith("ds_write")) or (ab & 8 and l.startswith("ds_read2")) \
           or (ab & 16 and l.startswith("ds_read_b64_tr")) or (ab & 32 and l.startswith("ds_read_b128")) or (ab & 64 and l.startswith("s_waitcnt")) \
           or (ab & 4096 and l.startswith("v_add_f32")):
            lines[n] = "; ablated"
        if ab & 8192 and l.startswith("v_add_f32") and not l.startswith("v_add_f32 v12"):
            lines[n] = "; ablated"
        if ab & 16384 and l.startswith("ds_read_b128 a[16") and l.split()[1] in ("a[160:163],", "a[168:171],"):
            k = n + 1
            while not lines[k].startswith("v_mfma"):
                k += 1
            pb = int(re.findall(r"v\[(\d+):", lines[k].split(",")[2] + " v[64:")[0]) & ~15
            off, acc = (2, 240) if "160" in l else (10, 244)
            lines[k] = f"v_mfma_f32_16x16x32_bf16 a[{acc}:{acc + 3}], a[248:251], v[{pb + off}:{pb + off + 3}], a[{acc}:{acc + 3}]\n    " + lines[k]
        if ab & 32768 and l.startswith("v_mfma"):
            p = [x.strip() for x in l.split(None, 1)[1].split(",")]
            if re.match(r"a\[(19[2-9]|2[01]\d|22[0-3]):", p[1]):
                lines[n] = f"v_mfma_f32_16x16x32_bf16 {p[0]}, {p[2]}, {p[1]}, {p[3]}"
        if ab & 65536 and l.startswith("v_mfma"):
            p = [x.strip() for x in l.split(None, 1)[1].split(",")]
            if re.match(r"a\[(1[678]\d):", p[1]):
                lines[n] = f"v_mfma_f32_16x16x32_bf16 {p[0]}, {p[2]}, {p[1]}, {p[3]}"
        if ab & 256 and l.startswith("s_waitcnt vmcnt"):
            lines[n] = re.sub(r"vmcnt\(\d+\) ", "", l)


def abl_init():
    if not OPT["abl"] & 16384:
        return []
    full = OPT.get("onesfull")
    return [raw("v_and_b32 v16, 15, v0\nv_mov_b32 v17, 0x3f803f80\nv_cmp_eq_u32 vcc, 0, v16\ns_nop 1\nv_cndmask_b32 v20, 0, v17, vcc\nv_cmp_eq_u32 vcc, 1, v16\ns_nop 1\nv_cndmask_b32 v16, 0, v17, vcc\n"
                + ("v_mov_b32 v20, v17\nv_mov_b32 v16, v17\n" if full else "")
                + "v_accvgpr_write_b32 a248, v20\nv_accvgpr_write_b32 a249, v20\nv_accvgpr_write_b32 a250, v16\nv_accvgpr_write_b32 a251, v16\n" + "\n".join(f"v_accvgpr_write_b32 a{240 + i}, 0" for i in range(8)))]


def build():
    j0, j1 = (5 if OPT["peel0"] else 1), (25 if OPT["early"] else 29)
    ent, redo = entry()
    text, evs = [], []
    for a in (0, 1):
        FLIP[0] = a if OPT["hflip"] else 0
        pro, rest = prologue(a)
        tr = list(ent) + [raw(";;ROLE")] + pro + [raw(";;IV 0")] + start_block(a, rest) + stamp(3) + abl_init()
        for j in range(1, 30):
            tr.append(raw(f";;IV {j}"))
            tr += interval(j, a, f"L_loop{a}" if (j0 <= j < j1 and (j - j0) % 4 == 3) else None)
        tr.append(raw(";;IV 30"))
        if OPT["prof"]:
            tr.append(raw("s_nop 4\n    v_mov_b32 v1, v17"))
        tr += stamp(4) + final_block(a)
        if OPT["prof"]:
            tr.append(raw("v_mov_b32 v127, v1"))
        tr += finish(a)
        out, ev, ins = resolve(tr)
        evs += ev
        check_scalars(out)
        lines = [x.text for x in out]
        k = lines.index(";;ROLE")
        if a == 0:
            text += lines[:k]
        idx = {j: lines.index(f";;IV {j}") for j in range(31)}
        for pos, w, c in ins:
            if idx[0] < pos and (OPT["show"] >= 0 or idx[1] < pos < idx[30]):
                print(f"; auto-inserted in role {a} @{pos - idx[0]}: {w} before {c}", file=sys.stderr)
        seg = lambda j: lines[idx[j] + 1: idx[j + 1]]
        for j in range(j0 + 4, j1):
            jb = j0 + (j - j0) % 4
            assert len(seg(j)) == len(seg(jb)), f"loop body not periodic at {j} role {a}"
            for n, (x, y) in enumerate(zip(seg(j), seg(jb))):
                if x != y:
                    assert re.sub(r"\d+", "", x) == re.sub(r"\d+", "", y) and x.startswith("s_waitcnt"), (j, a, x, y)
                    it = iter(min(int(p), int(q)) for p, q in zip(re.findall(r"\d+", x), re.findall(r"\d+", y)))
                    lines[idx[jb] + 1 + n] = re.sub(r"\d+", lambda m: str(next(it)), x)
        if OPT["abl"]:
            ablate(lines, idx[1], idx[30])
        text += lines[k + 1: idx[j0]]
        text.append(f".p2align {OPT['lalign']}")
        text.append(f"L_loop{a}:")
        text += lines[idx[j0]: idx[j0 + 4]]
        text += lines[idx[j1]:]
        fb, _, _ = resolve(fallback(a, redo))
        text += [x.text for x in fb]
        if OPT["thr2"]:
            text += [f"L_thr2{a}:", "s_waitcnt vmcnt(0)", f"s_branch L_thr2b{a}"]
    if OPT["thr1"]:
        text += ["L_thr1:", "s_waitcnt vmcnt(0)"] + [f"s_sleep {OPT.get('thrs')}"] * (1 if OPT.get("thrs") else 0) + ["s_branch L_thr1b"]
    assert check_lds(evs) == 0
    hdr = open("header.txt").read()
    body = "\n".join(("" if l.endswith(":") or l.startswith(".") else "    ") + l.replace(";;IV", "; interval") for l in text)
    return f"""{hdr}; @launch grid=(256,1,1) block=(256,1,1) lds={LDS_BYTES}
{open("design.txt").read()}.amdgcn_target "amdgcn-amd-amdhsa--gfx950"
.text
.globl {KN}
.p2align 8
.type {KN},@function
{KN}:
{body}
L_end:
    s_endpgm
.section .rodata,"a"
.p2align 6
.amdhsa_kernel {KN}
  .amdhsa_next_free_vgpr 512
  .amdhsa_next_free_sgpr 102
  .amdhsa_accum_offset 256
  .amdhsa_group_segment_fixed_size 0
  .amdhsa_kernarg_size 48
  .amdhsa_user_sgpr_count 2
  .amdhsa_user_sgpr_kernarg_segment_ptr 1
  .amdhsa_system_sgpr_workgroup_id_x 1
.end_amdhsa_kernel
"""


if __name__ == "__main__":
    for kv in sys.argv[1:]:
        k, v = kv.split("=", 1)
        if k.startswith("pol"):
            OPT[k] = "".join(" " + x for x in v.split("+") if x and x != "d")
        else:
            OPT[k] = int(v)
    print(build())
```

```python
import sys, struct, math, re
from asmlib import *
from sched import Block

KN = "standalone__gqa_softmax__near_ridge_kernel"
OPT = dict(abl=0, pol_kv="", pol_q="", pol_o=" sc0 sc1", stamps=0, prof=0, show=-1, thr=7,
           dma0=1, dmastep=8, dmastag=4, klead=3, walign=0, wq=1, feed0=4, feedl=1, prefeed=3,
           bar0=26, bara=30, barb=69, lalign=3, lazy=16, order=1, win=11, aux=0, early=0, auxj=3, sdma0=1, sdmas=3, sdman=8, lastfeed=0, k1stage=2, touch=0, mbias=35, obias=0, cref=0, spf=0, spfk=4, spfv=2, spfat=0, xbal=0, hflip=0, qfirst=1, ibar=0, stouch=0, pvt=0, defer=0, pvy=0, qkz=1, tm1=2, xearly=1, glds=0, peel0=0, bark=49, thr1=0, thr2=0, rot=0, nunder=0, prewait=0, ulo=2, ulo2=8, split=0, mergetail=1, rwin=1, pf31=25, pft0=29, pfgap=0, holes=0, holew=1, auxper=2, auxn=4, auxend=24, auxt0=28, nfast=3, nin=2)

PXA = 10240
KRING = 3 * PXA
SLOT = 16640
VRING = KRING + 4 * SLOT
LDS_BYTES = VRING + 4 * SLOT

sQ, sK, sV, sO, sC = "s[12:15]", "s[16:19]", "s[20:23]", "s[24:27]", "s[44:47]"
sW, sA, sB, sCNT, sKo, sVo, sKm, sVm, sPm, sMASK = "s28", "s29", "s30", "s31", "s32", "s33", "s34", "s35", "s36", "s39"
sSC, sKEEP = "s[40:41]", "s[42:43]"
sT = ["0", "s48", "s49", "s50", "s51"]
sT8 = ["s4", "s5", "s6", "s7", "s8"]
sX, sTHR = "s38", "s52"
sKg, sVg = "s[32:33]", "s[10:11]"
vKr, vV0, vV1, vKd, vVd, vPr, vPr2 = "v1", "v2", "v3", "v4", "v5", "v6", "v7"
vL = [8, 9, 10, 11, 12]
vO, vEw, vEr = "v13", "v22", "v23"
PXT = 14
TMP = 16
vAuxC, vAuxT, vAuxD, vAuxD2, sP = "v18", "v19", "v20", "v17", "s[88:91]"
NEGM, SS, PP, OO = 24, 44, 64, 128
SCT = 104
vQl, vQw, vQw2, vQwx, vQr, vQr2, vQrx, vKr0 = (f"v{96 + i}" for i in range(8))
vQlx = "v20"
vRr = "v21"
RAWX, SPRE0 = 112, 120
LP, FLG = 24, 30
RL = lambda t: SS + 4 * t
QXTAG = [(("P", 1, t), -1) for t in range(5)] + [(("L", t), -1) for t in range(6)]
AQ, AX, AKF, AVF, ASP = 0, 128, 160, 192, 224


def Qf(t, s):
    return R("a", (AQ + 32 * t if t < 4 else AX) + 4 * s, 4)


def Kf(s):
    return R("a", AKF + 4 * s, 4)


def S(t):
    return R("v", SS + 4 * t, 4)


def Ng(t):
    return R("v", NEGM + 4 * t, 4)


def Pown(j, t):
    return PP + 16 * (j % 4) + 4 * t if t < 4 else PXT


def Pop(j, t):
    return R("v", PP + 16 * (j % 4) + 4 * t, 4) if t < 4 else R("a", ASP + 4 * (j % 4), 4)


def O(t, dt):
    return R("v", OO + 32 * t + 4 * dt, 4) if t < 4 else R("a", AX + 4 * dt, 4)


def RAW(k, i):
    return OO + 32 * k + 4 * i


FLIP = [0]


def where(kind, tile):
    if OPT["early"] and kind == "V" and tile >= 30:
        return (("K", 0), 32) if tile == 30 else (("V", 2), 31)
    return ((kind, tile % 4), tile)


def tdma(kind, tile, i):
    reg = where(kind, tile)
    off = reg[0][1] * SLOT + i * (1568 if kind == "K" else 1552) - (4 * SLOT if reg[0][0] != kind else 0)
    m, v, srd, so = (sKm, vKd, sK, sKo) if kind == "K" else (sVm, vVd, sV, sVo)
    d = dma(v, srd, so, 512 * i, OPT["pol_kv"], reg, (kind, tile))
    if OPT["glds"]:
        pair = sKg if kind == "K" else sVg
        d = I(f"global_load_lds_dwordx4 {v}, {pair}" + (f" offset:{512 * i}" if i else "") + OPT["pol_kv"], "dma", regs(v) + regs(pair) + ["m0"], [], lds_wr=reg, tag=(kind, tile))
    st = salu(f"s_add_u32 m0, {m}, {off}" if off >= 0 else f"s_sub_u32 m0, {m}, {-off}")
    d.note = (st.text, i)
    return (st, d)


def bump(kind):
    so = sKo if kind == "K" else sVo
    if OPT["glds"]:
        lo, hi = regs(sKg if kind == "K" else sVg)
        return raw(f"s_add_u32 {lo}, {lo}, s49\n    s_addc_u32 {hi}, {hi}, 0")
    return salu(f"s_add_u32 {so}, {so}, s49")


def wrap(kind):
    so = sKo if kind == "K" else sVo
    return [salu(f"s_bitset0_b32 {so}, 19")] if OPT["rot"] else []


def dma_piece(kind, tile, i):
    return list(tdma(kind, tile, i)) + ([bump(kind)] + wrap(kind) if i == 3 else [])


def kread(tile, s, addr=vKr, dst=None):
    slot = tile % 4
    return ds_read("ds_read_b128", dst or Kf(s), addr, f"offset:{slot * SLOT + 64 * s}", (("K", slot), tile))


def vread(tile, dt, u, frag):
    reg = where("V", tile)
    base = (vV0, vV1) if reg[0][0] == "V" else (vKd, vVd)
    return ds_read("ds_read_b64_tr_b16", R("a", frag + 2 * u, 2), base[u], f"offset:{reg[0][1] * SLOT + 128 * ((dt // 4) ^ FLIP[0]) + 16 * (dt % 4)}", reg)


def pwrite(j, t, h):
    par = j % 2
    return ds_write("ds_write_addtid_b32", None, f"v{Pown(j, t) + h}", f"offset:{par * PXA + (2 * t + h) * 256}", (("P", par, t), j))


def preads(j, a):
    par = j % 2
    o = []
    for t in range(4):
        n = par * 40 + a * 20 + 2 * t
        o.append((t, ds_read("ds_read2st64_b32", R("v", Pown(j, t) + 2, 2), vPr, f"offset0:{n} offset1:{n + 1}", (("P", par, t), j))))
    if a == 1:
        n = par * 40 + 8
        for u in range(2):
            o.append((4, ds_read("ds_read2st64_b32", R("a", ASP + 4 * (j % 4) + 2 * u, 2), (vPr2, vPr)[u], f"offset0:{n} offset1:{n + 1}", (("P", par, 4), j))))
    return o


def msetter():
    return salu(f"s_mov_b32 m0, {sPm}")


def stamp(idx, mode=0):
    if (OPT["stamps"] == 3) != (mode == 3) and idx > 2:
        return []
    return [raw(f"{'s_memrealtime' if OPT.get('amprt') else 's_memtime'} s[{60 + 2 * idx}:{61 + 2 * idx}]")] if OPT["stamps"] else []


def xlane(op, reg, tmp):
    o = []
    for sw in ("v_permlane32_swap_b32", "v_permlane16_swap_b32"):
        o.append(valu(f"v_mov_b32 v{tmp}, v{reg}"))
        o.append(valu(f"{sw} v{tmp}, v{reg}"))
        o.append(valu(f"{op} v{reg}, v{tmp}, v{reg}"))
    return o


def chain_ops(b, seq, lo, dl, first_deps=(), hard=None):
    prev = None
    for n, ins in enumerate(seq):
        deps = list(first_deps) if prev is None else [(prev, (1 if b.chainy else 2) if ins.kind == "perm" else (0 if b.chainy and prev.cls == "valu" else 1))]
        prev = b.op(ins, "exp" if ins.kind == "trans" else "valu", lo, dl + n, deps, hard=hard)
    return prev


def add_qk(b, a, j):
    ends = []
    for t in range(5 - a):
        for n, s in enumerate(range(8) if not (OPT["qkz"] and t % 2) else reversed(range(8))):
            k = b.mfma(mfma(S(t), Kf(s), Qf(t, s), Ng(t) if n == 0 else S(t)))
        ends.append(k)
    return ends


def add_pv(b, a, tiles, h, frags, lo, zero=False, tmajor=False, lastuse=None, have=(), ts=None):
    NP = 4 + a
    order = [(d, t) for t in (range(NP) if tmajor is True else tmajor) for d in range(4)] if tmajor else \
            [(d, t) for d in range(4) for t in (range(NP) if d % 2 == 0 else reversed(range(NP)))]
    if tmajor and OPT["pvt"] == 2:
        order = [(d if (n // 4) % 2 == 0 else 3 - d, t) for n, (d, t) in enumerate(order)]
    if ts is not None:
        order = [x for x in order if x[1] in ts]
    first, done, pfirst = {}, {}, {}
    war = dict(lastuse) if lastuse is not None else {}
    for ci, (d, t) in enumerate(order):
        seq = list(enumerate(tiles))
        if OPT["pvy"] and len(tiles) == 2 and (len(order) - 1 - ci) % 2 == 1 and not zero:
            seq.reverse()
        for n, j in seq:
            k = b.mfma(mfma(O(t, 4 * h + d), Pop(j, t), R("a", frags[d][n], 4), ("4.0" if OPT["obias"] else "0") if zero and n == 0 else O(t, 4 * h + d)))
            first.setdefault((d, n), k)
            pfirst.setdefault((j, t), k)
            done[(t, 4 * h + d)] = k
            if lastuse is not None:
                lastuse[frags[d][n]] = k
    for d in range(4):
        for n, j in enumerate(tiles):
            for u in range(2 if j not in have else 0):
                f = first[(d, n)]
                b.op(vread(j, 4 * h + d, u, frags[d][n]), "ds", max(lo[j], war.get(frags[d][n], 0)), f - 10 + u, hard=f - 3)
    return done, pfirst


def add_softmax(b, a, j, ends, pub, defer, adds_by=None, soft=False, sub=None):
    ends = dict(enumerate(ends)) if isinstance(ends, list) else ends
    wa = OPT["walign"]
    H = (lambda x: None) if soft else (lambda x: x)
    adds = {}
    for n, t in enumerate(ends):
        base = ends[t] + 4
        late = pub - 7 - 5 * (len(ends) - 1 - n)
        ex = []
        for r in range(4):
            dl = (base - 300 if wa else min(base + 10, late - 8)) + r
            dep = []
            if sub and t in sub:
                dep = [b.op(valu(f"v_add_f32 v{SS + 4 * t + r}, v{SS + 4 * t + r}, v{NEGM + 4 * t}"), "valu", base + 1, dl - 2, [sub[t]])]
            ex.append(b.op(valu(f"v_exp_f32 v{SS + 4 * t + r}, v{SS + 4 * t + r}"), "exp", base, dl, dep, hard=H(pub - 6)))
        for h in range(2):
            c = b.op(valu(f"v_cvt_pk_bf16_f32 v{Pown(j, t) + h}, v{SS + 4 * t + 2 * h}, v{SS + 4 * t + 2 * h + 1}"), "valu", 0, (base - 50 if wa else late - 3) + h, ex[2 * h:2 * h + 2], hard=H(pub - 4))
            b.op(pwrite(j, t, h), "ds", base + 6 + h if wa else 0, (base - 200 if wa else late - 1) + h, [c], hard=H(pub - 3), m0="p", setter=msetter())
        if t not in defer:
            for r in range(4):
                adds[t] = b.op(valu(f"v_add_f32 v{vL[t]}, v{SS + 4 * t + r}, v{vL[t]}"), "valu", 0, (pub if adds_by is None else min(base + 12, adds_by)) + r, [ex[r]] + ([(adds[t], 0)] if t in adds else []),
                               hard=H(pub if adds_by is None else adds_by))
    return adds


def add_deferred(b, a, ends, j=None):
    for t in deferred(a, j):
        for r in range(4):
            b.op(valu(f"v_add_f32 v{vL[t]}, v{SS + 4 * t + r}, v{vL[t]}"), "valu", 0, ends[t] - 16 + r, hard=ends[t] - 8)


def deferred(a, j=None):
    if OPT["defer"] or j == 30:
        return [3 - a, 4 - a]
    return []


def add_dma(b, a, pieces, g0, step, G, lo=None):
    dops = []
    for n, (kind, tile, i) in enumerate(pieces):
        st, d = tdma(kind, tile, i)
        e = int(g0 + step * n)
        if lo and (kind, tile) in lo:
            e = max(e, lo[(kind, tile)])
        o = b.op(d, "dma", e, e - 100, [(dops[-1][0], 2)] if dops else [], hard=G - 3, m0=("d", n), setter=st)
        dops.append((o, kind, tile, i))
    for o, kind, tile, i in dops:
        if i == 3:
            nxt = [x for x, k, tl, _ in dops if k == kind and tl > tile]
            bp = bump(kind)
            if OPT["rot"]:
                bp = raw(bp.text + "\n    " + wrap(kind)[0].text)
            b.scalar(bp, (lambda o=o: o.gap + 1), (lambda nxt=nxt: nxt[0].gap - 1) if nxt else G - 4)
    return dops


def prof_hooks(out):
    if OPT["prof"]:
        k = max(n for n, x in enumerate(out) if x.kind == "barrier")
        out.insert(k, raw("v_writelane_b32 v17, s100, m0"))
        out.insert(k - 1, raw("s_mov_b32 m0, s3"))
        mk = [n for n, x in enumerate(out[:k]) if x.kind == "mfma"]
        out.insert(mk[22] + 1, raw("s_memtime s[100:101]" if OPT["prof"] == 1 else "s_memrealtime s[100:101]"))
        out.insert(mk[2] + 1, raw("s_add_u32 s3, s3, 1"))
    return out


TMPL = {
    1: ["RDRRRRRR RRDRRRdE E.EDEWEE WEEDEWEW EEWEDEWE EWWEED.E EWW..RDR RRRRRRRD RRRRdRRR",
        "RRRRRDRR RRRRRRDR EE.EEWED EWEEWEEW .DEEWEEW E.DEW.W. d.D..RRR RRRDRRRR RdRDRRRR"],
    2: ["RDRRRRRR RRDRRRdE E.EDEWEE WEEDEWEW EEWEDEWE EWWEED.E EWW.RRDR RRRRRRRD RRRRd.RR",
        "RRRRRDRR RRRRRRDR EE.EEWED EWEEWEEW .DEEWEEW E.DEW.W. d.DRRRRR RRRDRRRR RdRD..RR"],
    3: ["RDRRRRRR RRDRRREE EE.DEWWE EE.DEWWE EE.DEWWE EE.EWWED EE.WW.DR RRRRRRRD RRRRRRRR",
        "RRRRRDRR RRRRRRDR EEEE.WWE DEEE.WWE EDEE.WWE E.DEE.WW d.D.d.RR RRRDRRRR RRRDRRRR"],
}
FOLD = [AVF + 8 * d for d in range(4)]
FNEW = [AVF + 8 * d + 4 for d in range(4)]


def fold(j):
    return FOLD if j % 2 or not OPT["pvt"] else [ASP + 16 + 4 * d for d in range(4)]


def add_old_reads(b, j, lu, lo, G):
    FOLD = fold(j + 1)
    for d in range(4):
        for u in range(2):
            b.op(vread(j, 4 * ((j + 1) % 2) + d, u, FOLD[d]), "ds", max(lo, lu.get(FOLD[d], 0)), G + 2 * d + u, hard=G - 1)


def interval(j, a, loop_end=None):
    b = Block(f"interval {j} role {a}", wq=OPT["wq"] if OPT["walign"] else 0, wprio=bool(OPT["walign"]))
    ends = add_qk(b, a, j + 1)
    lu = {}
    if j <= 28:
        done, pfirst = add_pv(b, a, [j - 1, j], j % 2, [[fold(j)[d], FNEW[d]] for d in range(4)], {j: 0}, lastuse=lu, have=[j - 1], tmajor=bool(OPT["pvt"]))
        b.carry = [f"a{x + i}" for x in fold(j) for i in range(4)]
    else:
        if a == 1 and OPT["xbal"] & 1:
            assert not OPT["early"]
            add_pv(b, a, [28], 1, [[fold(29)[d]] for d in range(4)], {}, have=[28], ts=[4])
            b.carry = [f"a{x + i}" for x in fold(29) for i in range(4)]
        done, pfirst = add_pv(b, a, [j], 0, [[FNEW[d]] for d in range(4)], {j: 0})
    G = len(b.mf)
    if j <= (27 if OPT["early"] else 28):
        add_old_reads(b, j, lu, 40, G)
    for t, ins in preads(j, a):
        b.op(ins, "ds", 0, pfirst[(j, t)] - 10, hard=pfirst[(j, t)] - 3)
    for s in range(8):
        b.op(kread(j + 2, s), "ds", ends[-1] - (0 if OPT["qkz"] else 7 - s), G - 18 + s, hard=G - 3)
    kl = OPT["klead"]
    T = lambda kind, tile, r=range(4): [(kind, tile, i) for i in r]
    pieces = T("V", j + 2) + (T("K", j + 2 + kl) if j <= 28 else [])
    step = OPT["dmastep"]
    if j == 29:
        step = 4
    p0 = OPT["peel0"]
    if p0 and j <= 4:
        pieces = {1: T("V", 3) + T("K", 5) + T("K", 6, [0]), 2: T("V", 4) + T("K", 6, [1, 2, 3]) + T("K", 7, [0, 1]),
                  3: T("V", 5) + T("K", 7, [2, 3]) + T("K", 8, [0, 1, 2]), 4: T("V", 6) + T("K", 8, [3]) + T("K", 9)}[j]
    if OPT["early"] and j >= 25:
        if kl == 3:
            pieces = {25: T("V", 27) + T("K", 30), 26: T("V", 28) + T("K", 31), 27: T("V", 29) + T("V", 30), 28: T("V", 31), 29: []}[j]
        elif OPT["early"] == 1:
            pieces = {25: T("V", 27) + T("K", 29) + T("K", 30, [0]), 26: T("V", 28) + T("K", 30, [1, 2, 3]) + T("K", 31, [0, 1]),
                      27: T("V", 29) + T("K", 31, [2, 3]) + T("V", 30), 28: T("V", 31), 29: []}[j]
        elif OPT["early"] == 2:
            pieces = {25: T("V", 27) + T("K", 29), 26: T("V", 28) + T("K", 30), 27: T("V", 29) + T("K", 31), 28: T("V", 30) + T("V", 31), 29: []}[j]
        else:
            pieces = {25: T("V", 27) + T("K", 29) + T("K", 30, [0]), 26: T("V", 28) + T("K", 30, [1, 2, 3]) + T("K", 31, [0, 1]),
                      27: T("V", 29) + T("K", 31, [2, 3]) + T("V", 30, [0, 1, 2]), 28: T("V", 30, [3]) + T("V", 31), 29: []}[j]
        step = {25: 7, 26: 7, 27: 6, 28: 4, 29: 4}[j]
    dops = add_dma(b, a, pieces, OPT["dma0"] + a * min(OPT["dmastag"], step // 2), step, G)
    if OPT["cref"] and j == 29:
        p = R("v", TMP + 2, 2)
        x = chain_ops(b, [valu(f"v_lshl_add_u32 v{TMP + 2}, v0, 12, s46"), I(f"v_min_u32 v{TMP + 2}, L_end-L_pc, v{TMP + 2}", "valu", [f"v{TMP + 2}"], [f"v{TMP + 2}"]),
                          valu(f"v_mov_b32 v{TMP + 3}, 0"), valu(f"v_lshl_add_u64 {p}, {p}, 0, s[44:45]")], 0, -95)
        b.op(I(f"global_load_dword {vAuxD}, {p}, off", "vld", regs(p), [vAuxD]), "st", 0, -90, [x] + ([dops[-1][0]] if OPT["cref"] == 1 else []), hard=G - 3)
    if OPT["early"] and j == 29:
        b.op(valu(f"v_subrev_u32 {vKd}, {4 * SLOT}, {vV0}"), "valu", 0, G, hard=G - 1)
        b.op(valu(f"v_subrev_u32 {vVd}, {4 * SLOT}, {vV1}"), "valu", 0, G, hard=G - 1)
    if OPT["pf31"] and (j == OPT["pf31"] if OPT["early"] else j <= 28 and j % 4 == OPT["pf31"] % 4):
        x = b.op(vload("buffer_load_dword", vAuxD, vAuxT, sV, "0"), "st", OPT["pfgap"], -90 + OPT["pfgap"], hard=G - 3)
        if not OPT["early"]:
            b.op(valu(f"v_add_u32 {vAuxT}, 0x1000000, {vAuxT}"), "valu", 0, G, [x], hard=G - 1)
    if not OPT["early"] and j <= 28 and j % 4 == (30 - kl) % 4:
        kf = [o for o, k, _, _ in dops if k == "K"][0]
        vl = [o for o, k, _, _ in dops if k == "V"][-2]
        pair = raw(f"s_cmp_eq_u32 {sCNT}, 1\n    s_cselect_b32 s18, 0, s18")
        b.scalar(pair, (lambda: vl.gap + 1), (lambda: kf.gap - 2))
    if (5 if p0 else 1) <= j <= (24 if OPT["early"] else 28) and j % 4 == OPT.get("auxj", 1) and OPT["aux"] & 1:
        b.op(vload("buffer_load_dword", vAuxD, vAuxC, sC, "0"), "st", 3, -90, hard=40)
    if j <= 24 and (j - OPT["auxend"]) % OPT["auxper"] == 0 and OPT["aux"] & 2:
        x = b.op(vload("buffer_load_dword", vAuxD2, vAuxT, sP, "0"), "st", 5 - 4 * a, -90, hard=40)
        b.op(valu(f"v_add_u32 {vAuxT}, {(32 - OPT['auxt0']) * 16384 // OPT['auxn']:#x}, {vAuxT}"), "valu", 0, G, [x], hard=G - 1)
    nh = OPT["holes"] % 10 if a == 0 else OPT["holes"] // 10
    for n in range(nh if j <= 28 else 0):
        ref = dops[min(6, (2 * n + 1) * 8 // (2 * nh) - 1 + (1 if nh < 4 else 0))][0]
        w = OPT["holew"]
        b.op(vload("buffer_load_dword" + ("" if w == 1 else f"x{w}"), "v20" if w == 1 else R("a", 252, w), vAuxT, "s[84:87]", "0"), "st", 0, -95, [(ref, 2)], hard=G - 12)
    add_deferred(b, a, ends)
    add_softmax(b, a, j + 1, ends, G - 1, deferred(a, j + 1))
    if OPT["rwin"] and j <= 28:
        tm = TMPL[OPT["rwin"]][a].replace(" ", "")
        assert len(tm) == 72, len(tm)
        nd = len([o for o in b.ops if o.cls in ("dma", "st")])
        b.tmpl = tm.replace("d", "D", max(0, nd - 8) if nd > 4 else 1).replace("d", ".")
        for o in b.ops:
            if o.cls == "dma" or o.ins.kind == "dsw":
                o.lo = 0
            if o.ins.text.startswith("v_cvt"):
                o.dl -= 200
    vm = [("V", j + 1)] + ([("K", j + 3)] if j + 3 <= 31 else [])
    if j == 29:
        vm.append(("V", 31))
    if j < p0:
        b.barrier(OPT["bark"] + 3, [("K", j + 2)], None)
        for o in b.ops:
            if o.ins.text.startswith("ds_read_b128"):
                o.lo = max(o.lo, OPT["bark"] + 3)
    if j + 1 < p0:
        vm = [("V", j + 1)]
    b.barrier(G - 1, vm, ["w"] + [f"a{AKF + i}" for i in range(32)])
    if loop_end:
        b.scalar(salu(f"s_sub_u32 {sCNT}, {sCNT}, 1"), 51, G - 4)
        b.scalar(salu(f"s_cmp_lg_u32 {sCNT}, 0"), G - 3, G - 3)
    out, _ = b.schedule(show=OPT["show"] == j)
    out = prof_hooks(out)
    if loop_end:
        out.append(salu(f"s_cbranch_scc1 {loop_end}"))
    return out


def first_tile_instrs(t):
    SPRE = RAWX if t == 4 else SPRE0
    own, oth = R("v", SPRE, 4), R("v", SPRE + 4, 4)
    mf = [mfma(own, R("a", AVF + 4 * s, 4), Qf(t, s), "0" if s == 0 else own) for s in range(8)]
    mf += [mfma(oth, R("a", ASP + 4 * s, 4), Qf(t, s), "0" if s == 0 else oth) for s in range(8)]
    A_, B_, C_ = TMP, TMP + 1, TMP + 4
    m1 = [valu(f"v_max3_f32 v{C_}, v{SPRE}, v{SPRE + 1}, v{SPRE + 2}"), valu(f"v_max_f32 v{C_}, v{C_}, v{SPRE + 3}")]
    m2 = [valu(f"v_max3_f32 v{C_}, v{C_}, v{SPRE + 4}, v{SPRE + 5}"),
          valu(f"v_max3_f32 v{A_}, v{C_}, v{SPRE + 6}, v{SPRE + 7}"), valu(f"v_max3_f32 v{B_}, v{C_}, v{SPRE + 6}, v{SPRE + 7}"),
          valu(f"v_permlane32_swap_b32 v{A_}, v{B_}"),
          valu(f"v_max_f32 v{C_}, v{A_}, v{B_}"), valu(f"v_max_f32 v{B_}, v{A_}, v{B_}"),
          valu(f"v_permlane16_swap_b32 v{C_}, v{B_}"),
          valu(f"v_max_f32 v{A_}, v{C_}, v{B_}")]
    if OPT["mbias"]:
        m2.append(valu(f"v_add_f32 v{A_}, {struct.unpack('<I', struct.pack('<f', float(OPT['mbias'])))[0]:#x}, v{A_}"))
    cm = [valu(f"v_cndmask_b32 v{NEGM + 4 * t + r}, -v{TMP}, v{NEGM + 4 * t + r}, {sKEEP}") for r in range(4)]
    n = 8 if t < 4 else 4
    sb = [valu(f"v_add_f32 v{SPRE + r}, v{SPRE + r}, v{NEGM + 4 * t}") for r in range(n)]
    ex = [valu(f"v_exp_f32 v{SPRE + r}, v{SPRE + r}") for r in range(n)]
    cv = [valu(f"v_cvt_pk_bf16_f32 v{Pown(0, t) + h}, v{SPRE + 2 * h}, v{SPRE + 2 * h + 1}") for h in range(n // 2)]
    ad = [valu(f"v_add_f32 v{vL[t]}, v{SPRE + r}, v{vL[t]}") for r in range(4)]
    return mf, m1, m2, cm, sb, ex, cv, ad


def add_first_tile(b, t, need_by=None):
    mf, m1, m2, cm, sb, ex, cv, ad = first_tile_instrs(t)
    idx = [b.mfma(x) for x in mf]

    def ops(after=()):
        x = chain_ops(b, m1, idx[7] + 5, -510, after)
        last = chain_ops(b, m2, idx[15] + 5, -500, [x])
        c = [b.op(y, "valu", 0, -480 if r == 0 or t == 4 else 150, [(last, 0)]) for r, y in enumerate(cm)]
        ops.cm = c
        e = []
        for r in range(len(sb)):
            sbo = b.op(sb[r], "valu", 0, -478 + r, [(c[0], 0)], hard=need_by)
            e.append(b.op(ex[r], "exp", 0, -470 + r, [sbo], hard=need_by))
        for h, y in enumerate(cv):
            cvo = b.op(y, "valu", 0, -469 + 2 * h, e[2 * h:2 * h + 2], hard=need_by)
            if t == 4:
                b.op(pwrite(0, t, h), "ds", 0, 100 + h, [cvo], m0="p", setter=msetter())
        for r in range(4):
            b.op(ad[r], "valu", 0, 200 + r, [e[r]])
        return c[0]
    return idx, ops


def qk_chain(b, t, zero=False):
    for s in range(8):
        k = b.mfma(mfma(S(t), Kf(s), Qf(t, s), ("0" if zero else Ng(t)) if s == 0 else S(t)))
    return k


def flush(out, left):
    m0 = None
    left = list(left)
    while left:
        o = next(o for o in left if all(d not in left for d, _ in o.deps))
        left.remove(o)
        if o.m0 is not None and o.m0 != m0:
            out.append(o.setter)
            m0 = o.m0
        out.append(o.ins)
    return out


def merge(x, y):
    o = []
    for i in range(max(len(x), len(y))):
        o += x[i:i + 1] + y[i:i + 1]
    return o


def stage_block(a, k, feed):
    b = Block(f"stage {k} role {a}")
    b.chainy = True
    k1 = OPT["k1stage"]
    b.pre = ([kread(1, s) for s in range(8)] if k == k1 else []) + stage_read(k)
    c1 = {1: {1: [0, 4], 2: [1]}, 2: {2: [0, 1, 4]}}[k1].get(k, [])
    c1 = [t for t in c1 if t < 5 - a]
    ends, later = {}, []
    covered = (k == 0 and a == 0) or (k > k1)
    if k == 0 and a == 0:
        later.append(add_first_tile(b, 4)[1])
    if c1 and k == 2:
        ends[c1[0]] = qk_chain(b, c1[0])
    later.append(add_first_tile(b, k)[1])
    for t in c1:
        if t not in ends:
            ends[t] = qk_chain(b, t)
    G = len(b.mf)
    prev = ()
    for f in later:
        f(prev)
        prev = f.cm
    if ends:
        add_softmax(b, a, 1, ends, G + 16, deferred(a), soft=True)
    i = 0
    if not covered and OPT["prewait"]:
        b.pre += stage_load(k + 1, 0, feed)
        i = 1
    nun = OPT["nunder"]
    ulo = OPT["ulo"] if G <= 16 else OPT["ulo2"]
    prev = []
    for n in range(nun):
        src = RAW(k + 1, i)
        cv = []
        first = None
        for r in range(4):
            lo_ = b.op(valu(f"v_lshlrev_b32 v{SCT + 2 * r}, 16, v{src + r}"), "valu", ulo, 40 * n + 5 * r, prev)
            hi_ = b.op(valu(f"v_and_b32 v{SCT + 2 * r + 1}, {sMASK}, v{src + r}"), "valu", ulo, 40 * n + 5 * r + 1, prev)
            first = first or lo_
            m0_ = b.op(valu(f"v_mul_f32 v{SCT + 2 * r}, s40, v{SCT + 2 * r}"), "valu", 0, 40 * n + 5 * r + 2, [lo_])
            m1_ = b.op(valu(f"v_mul_f32 v{SCT + 2 * r + 1}, s40, v{SCT + 2 * r + 1}"), "valu", 0, 40 * n + 5 * r + 3, [hi_])
            cv.append(b.op(valu(f"v_cvt_pk_bf16_f32 v{src + r}, v{SCT + 2 * r}, v{SCT + 2 * r + 1}"), "valu", 0, 40 * n + 5 * r + 4, [m0_, m1_]))
        b.op(stage_write(k + 1, i), "solo", 0, 40 * n + 21, cv)
        fd = feed(("Q", k + 1, i))
        if fd:
            grp = I("\n    ".join(x.text for x in fd), "group")
            grp.tag = fd
            b.op(grp, "st", 0, 40 * n + 6, [first], m0=("g", n), setter=nop(0))
        prev = cv
        i += 1
    out, left = b.schedule(show=OPT["show"] == 0, leftover_ok=True)
    tail = flush([], left)
    if not any(x.wr & {f"v{SCT + r}" for r in range(8)} or x.rd & {f"v{SCT + r}" for r in range(8)} for x in tail) and i < 3 and OPT["mergetail"]:
        assert not any(x.kind == "group" for x in tail)
        nx = stage_load(k + 1, i, feed)
        i += 1
        p = max(n for n, x in enumerate(nx) if x.kind in ("dma", "vld", "salu") or n == 0)
        tail = nx[:p + 1] + merge(tail, nx[p + 1:])
    out += tail
    while i < 4:
        out += stage_load(k + 1, i, feed)
        i += 1
    o = []
    for x in out:
        o += x.tag if x.kind == "group" else [x]
    return o


def start_block(a, rest):
    b = Block(f"start role {a}")
    b.chainy = True
    b.pre = stage_read(3)
    ends = {2: qk_chain(b, 2)}
    G = 32 + 4 * (4 + a)
    idx, ops = add_first_tile(b, 3, need_by=G - 5)
    ends[3] = qk_chain(b, 3, zero=True)
    lu = {AVF + 4 * s: idx[s] for s in range(8)}
    done, pfirst = add_pv(b, a, [0], 0, [[FNEW[d]] for d in range(4)], {0: 0}, zero=True, tmajor=[0, 1, 2, 4, 3][:3] + ([4] if a else []) + [3], lastuse=dict(lu))
    assert G == len(b.mf)
    bar = OPT["bar0"]
    neg3 = ops()
    for d in range(4):
        for u in range(2):
            b.op(vread(0, 4 + d, u, FOLD[d]), "ds", lu[FOLD[d]], G + 30 + 2 * d + u)
    for t, ins in preads(0, a):
        if t == 4:
            b.op(ins, "ds", idx[8], pfirst[(0, t)] - 10, hard=pfirst[(0, t)] - 3)
    for s in range(8):
        b.op(kread(2, s), "ds", max(bar, ends[3] - 7 + s), G - 10 + s)
    pieces = rest + [("V", 2, i) for i in range(4)] + [("K", 4, i) for i in range(4)]
    if OPT["klead"] == 3 and not OPT["peel0"]:
        pieces += [("K", 5, i) for i in range(4)]
    nin = min(len(pieces), OPT["sdman"])
    add_dma(b, a, pieces[:nin], OPT["sdma0"], OPT["sdmas"], G)
    add_softmax(b, a, 1, ends, G + 12, deferred(a), soft=True, sub={3: neg3})
    b.barrier(bar, [("K", 2)], None)
    if OPT["stamps"] == 1:
        b.inserts[0] = stamp(12)
        b.inserts[bar - 2] = stamp(13)
        b.inserts[bar] = stamp(9)
        b.inserts[G - 1] = stamp(10)
    out, left = b.schedule(show=OPT["show"] == 0, leftover_ok=True)
    out = flush(out, left)
    for p in pieces[nin:]:
        out += dma_piece(*p)
    out.append(wait(vm=[("V", 1)] + ([("K", 3)] if OPT["peel0"] < 2 else []), lg=["w"] + [f"a{AKF + i}" for i in range(32)]))
    out.append(barrier())
    return prof_hooks(out)


def unit_instrs(a, t, h, n, packed):
    x = OO + 32 * t + 16 * h if t < 4 else OO
    mu = []
    for d in range(4):
        seq = []
        if t == 4:
            seq += [valu(f"v_accvgpr_read_b32 v{x + 4 * d + i}, a{AX + 16 * h + 4 * d + i}") for i in range(4)]
        if packed:
            seq += [valu(f"v_pk_mul_f32 {R('v', x + 4 * d + 2 * i, 2)}, {R('v', x + 4 * d + 2 * i, 2)}, {R('v', RL(t) + 2 * i, 2)}") for i in range(2)]
        else:
            seq += [valu(f"v_mul_f32 v{x + 4 * d + i}, v{x + 4 * d + i}, v{RL(t) + i}") for i in range(4)]
        mu.append(seq)
    cv = [[valu(f"v_cvt_pk_bf16_f32 v{x + 8 * e + r}, v{x + 8 * e + r}, v{x + 8 * e + 4 + r}") for r in range(4)] for e in range(2)]
    wr = []
    for r in range(4):
        w = ds_write("ds_write2_b32", vEw, f"v{x + r}, v{x + 8 + r}", f"offset0:{36 * r} offset1:{36 * r + 1}", (("K", 1), 99))
        w.rd |= {f"v{x + r}", f"v{x + 8 + r}"}
        wr.append(w)
    rd, st = [], []
    for i in range(2):
        q = ASP + 16 + 8 * (n % 2) + 4 * i
        rd += [ds_read("ds_read_b64_tr_b16", R("a", q + 2 * u, 2), vEr, f"offset:{8 * 144 * i + 32 * u}") for u in range(2)]
        st.append(vstore("buffer_store_dwordx4", R("a", q, 4), vO, sO, (sT, sT8)[i][t], 128 * (h ^ FLIP[0]), OPT["pol_o"] if h == 0 or "pol_o1" not in OPT else OPT["pol_o1"]))
    return mu, cv, wr, rd, st


def final_block(a):
    NQ, NP = 5 - a, 4 + a
    b = Block(f"final role {a}")
    b.lazy = OPT["lazy"]
    b.chainy = True
    save = OPT["walign"]
    OPT["walign"] = 0
    barA, barB = OPT["bara"], OPT["barb"]
    F = lambda i: AVF + 4 * i
    KF = lambda i: AKF + 4 * i
    lo = {28: 0, 29: 0, 30: 0, 31: 0}
    lu = {}
    rest = list(range(2, NP))
    tord = [0, 1, 2, 4, 3] if a == 1 and OPT["xbal"] & 2 else list(range(NP))
    f30, f31 = [[F(d)] for d in range(4)], [[F(4 + d)] for d in range(4)]
    ends = {t: qk_chain(b, t) for t in (0, 1, 2)}
    _, pf = add_pv(b, a, [30], 0, f30, lo, lastuse=lu, ts=[0, 1])
    ends[3] = qk_chain(b, 3)
    if a == 0 and OPT["xearly"]:
        ends[4] = qk_chain(b, 4)
    done0, pf1 = add_pv(b, a, [31], 0, f31, lo, tmajor=True, lastuse=lu, ts=[0, 1])
    X1 = len(b.mf) - 1
    if a == 0 and not OPT["xearly"]:
        ends[4] = qk_chain(b, 4)
    lu.update({KF(s): ends[NQ - 1] - 7 + s for s in range(8)})
    pf.update(add_pv(b, a, [30], 0, f30, lo, lastuse=lu, ts=rest, have=[30])[1])
    add_pv(b, a, [28], 1, [[ASP + 4 * d if a == 0 else KF(d)] for d in range(4)], lo, lastuse=lu, ts=[0, 1, 2, 3] if OPT["xbal"] & 1 else None)
    d2, p2 = add_pv(b, a, [31], 0, f31, lo, tmajor=True, lastuse=lu, ts=rest, have=[31])
    done0.update(d2)
    pf1.update(p2)
    X = len(b.mf) - 1
    pool = [KF(i) for i in range(8)] + [F(i) for i in range(4)] if a == 0 else [KF(4 + i) for i in range(4)] + [F(i) for i in range(4)] + [KF(i) for i in range(4)]
    done1, _ = add_pv(b, a, [29, 30, 31], 1, [pool[3 * d:3 * d + 3] for d in range(4)], lo, lastuse=lu, tmajor=tord if OPT["tm1"] else False)
    G = len(b.mf)
    bar = lambda t: barA if t < 2 else barB
    for t, ins in preads(30, a):
        b.op(ins, "ds", 0, pf[(30, t)] - 10, hard=pf[(30, t)] - 3)
    for t, ins in preads(31, a):
        b.op(ins, "ds", bar(t), pf1[(31, t)] - 12, hard=pf1[(31, t)] - 3)
    add_deferred(b, a, ends, 30)
    adds = add_softmax(b, a, 31, {t: ends[t] for t in (0, 1)}, barA, [], adds_by=barA - 4)
    adds.update(add_softmax(b, a, 31, {t: ends[t] for t in range(2, NQ)}, barB, [], adds_by=barB - 6))
    L = lambda *t: [(("L", x), 0) for x in t]
    lw = {t: b.op(ds_write("ds_write_addtid_b32", None, f"v{vL[t]}", f"offset:{2 * PXA + t * 256}", L(t)), "ds", 0, bar(t) - 8, [adds[t]], hard=bar(t) - 3, m0="p", setter=msetter()) for t in range(NQ)}
    w1 = b.op(valu(f"v_max3_u32 v{TMP}, v{vL[0]}, v{vL[1]}, v{vL[2]}"), "valu", 0, barB - 12, [adds[0], adds[1], adds[2]], hard=barB - 5)
    w2 = b.op(valu(f"v_max3_u32 v{TMP}, v{TMP}, v{vL[3]}, v{vL[NQ - 1]}"), "valu", 0, barB - 11, [w1, adds[3], adds[NQ - 1]], hard=barB - 4)
    b.op(ds_write("ds_write_addtid_b32", None, f"v{TMP}", f"offset:{2 * PXA + 5 * 256}", L(5)), "ds", 0, barB - 9, [w2], hard=barB - 3, m0="p", setter=msetter())
    b.barrier(barA, None, ["w"])
    b.barrier(barB, None, ["w"])
    base = 80
    lr = {}
    for t in (0, 2):
        lr[t] = lr[t + 1] = b.op(ds_read("ds_read2st64_b32", R("v", LP + t, 2), vPr, f"offset0:{base + a * 20 + t} offset1:{base + a * 20 + t + 1}", L(t, t + 1)), "ds", bar(t), bar(t) - 5)
    f1 = b.op(ds_read("ds_read2st64_b32", R("v", FLG, 2), vPr, f"offset0:{base + 5} offset1:{base + 25}", L(5)), "ds", barB, barB + 8)
    f2 = b.op(ds_read("ds_read2st64_b32", R("v", FLG + 2, 2), vPr2, f"offset0:{base + 5} offset1:{base + 25}", L(5)), "ds", barB, barB + 9)
    if a == 1:
        x1 = b.op(ds_read("ds_read_b32", f"v{LP + 4}", vPr, f"offset:{(base + 4) * 256}", L(4)), "ds", barB, barB + 5)
        lr[4] = b.op(ds_read("ds_read_b32", f"v{vL[4]}", vPr2, f"offset:{(base + 4) * 256}", L(4)), "ds", barB, barB + 6, [x1])
    ck = chain_ops(b, [valu(f"v_max3_u32 v{FLG}, v{FLG}, v{FLG + 1}, v{FLG + 2}"), valu(f"v_max_u32 v{FLG}, v{FLG}, v{FLG + 3}"), valu(f"v_cmp_lt_u32 vcc, {sTHR}, v{FLG}")],
                   0, barB + 30, [(f1, 6), (f2, 6)], hard=G - 4)
    if not OPT["abl"]:
        b.scalar(salu(f"s_cbranch_vccnz L_fallback{a}"), (lambda: ck.gap + 1), G - 1)
    rl = {}
    for t in range(NP):
        A_, B_, C_ = RL(t), RL(t) + 1, LP + t
        lim = X1 if t < 2 else X
        seq = [valu(f"v_add_f32 v{A_}, v{vL[t]}, v{C_}"), valu(f"v_add_f32 v{B_}, v{vL[t]}, v{C_}"), valu(f"v_permlane32_swap_b32 v{A_}, v{B_}"),
               valu(f"v_add_f32 v{C_}, v{A_}, v{B_}"), valu(f"v_add_f32 v{B_}, v{A_}, v{B_}"), valu(f"v_permlane16_swap_b32 v{C_}, v{B_}"),
               valu(f"v_add_f32 v{A_}, v{C_}, v{B_}"), valu(f"v_rcp_f32 v{A_}, v{A_}")]
        rc = chain_ops(b, seq, 0, -400 + 10 * t, [(lr[t], 6)], hard=lim)
        pl = 2 * PXA + (6 + t % 4) * 256
        w = b.op(ds_write("ds_write_addtid_b32", None, f"v{A_}", f"offset:{pl}"), "ds", 0, -390 + 10 * t, [rc], hard=lim, m0="p", setter=msetter())
        rl[t] = b.op(ds_read("ds_read_b128", R("v", RL(t), 4), vRr, f"offset:{pl}"), "ds", 0, -389 + 10 * t, [w], hard=lim)
    units = [(t, 0) for t in range(NP)] + [(t, 1) for t in tord]
    nfast = min(2 + OPT["nfast"], NP)
    nin = min(OPT["nin"], NP - nfast)

    def straight(lst, pend):
        o = []
        for n, (t, h) in lst:
            mu, cv, wr, rd, st = unit_instrs(a, t, h, n, True)
            for k in range(len(mu[0])):
                o += [mu[d][k] for d in range(4)]
            o += cv[0] + cv[1]
            o += pend
            o += wr + rd
            pend = st
        return o, pend
    en = list(enumerate(units))
    b.inserts[X1], pend = straight(en[:2], [])
    prev_rd, prev_st = [], {1: [b.op(x, "st", X1 + 6 + i, X1 - 50 + i, hard=X1 + 12) for i, x in enumerate(pend)]}
    if nfast > 2:
        b.inserts[X], pend = straight(en[2:nfast], [])
        prev_st[(nfast - 1) % 2] = [b.op(x, "st", X + 6 + i, X + i, hard=G - 1) for i, x in enumerate(pend)]
    if OPT["tm1"]:
        assert nfast == NP
        for x in prev_st[(nfast - 1) % 2]:
            x.hard = X + 12
        for n, t in enumerate(tord[:-1]):
            at = max(done1[(t, 4)], done1[(t, 7)]) + 4
            if OPT["tm1"] == 1:
                b.inserts[at], pend = straight(en[NP + n:NP + n + 1], [])
            else:
                mu, cv, wr, rd, pend = unit_instrs(a, t, 1, NP + n, False)
                at = min(at + 7, G - 1)
                mo = []
                for d in range(4):
                    pre = [b.op(x, "valu", done1[(t, 4 + d)] + 4, at - 21 + 3 * d, hard=at) for x in mu[d][:-4]]
                    mo.append([b.op(x, "valu", done1[(t, 4 + d)] + 4, at - 20 + 3 * d + i // 2, [(y, 0) for y in pre[i:i + 1]], hard=at) for i, x in enumerate(mu[d][-4:])])
                for e in range(2):
                    for r in range(4):
                        b.op(cv[e][r], "valu", 0, at - 15 + 6 * e, [mo[2 * e][r], mo[2 * e + 1][r]], hard=at)
                b.inserts[at] = wr + rd
            for i, x in enumerate(pend):
                b.op(x, "st", at + 6 + i, at - 50 + i, hard=at + 11)
        nin = 0
        nfast = 2 * NP - 1
    if OPT["stamps"] == 2:
        b.inserts[barA] = stamp(12)
        b.inserts[X1] = stamp(13) + b.inserts[X1]
        b.inserts[barB] = stamp(9)
        b.inserts[X] = stamp(10) + b.inserts.get(X, [])
    assert nin == 0
    out, left = b.schedule(show=OPT["show"] == 31, leftover_ok=True)
    OPT["walign"] = save
    out += stamp(5)
    pend = []
    for o in left:
        if o.ins.kind == "vst":
            pend.append(o.ins)
        else:
            if any(o.ins.wr & x.rd for x in pend):
                out += pend
                pend = []
            out.append(o.ins)
    o2, pend = straight(en[nfast + nin:], pend)
    return out + o2 + pend


def qload(k, i):
    return [vload("buffer_load_dwordx4", R("v", RAW(k, i), 4), vQl, sQ, sT[k], 512 * i, OPT["pol_q"], tag=("Q", k, i))]


def entry():
    o = []
    A = lambda t: o.append(salu(t))
    V = lambda t: o.append(valu(t))
    t0, t1, t2, t3, t4 = (f"v{TMP + i}" for i in range(5))
    A("s_cmp_ge_u32 s2, 256")
    A("s_cbranch_scc1 L_end")
    o.append(raw("s_load_dwordx8 s[4:11], s[0:1], 0"))
    if OPT["stamps"]:
        o.append(raw("s_load_dwordx2 s[56:57], s[0:1], 40"))
        o.append(raw("s_memrealtime s[58:59]"))
    o += stamp(0)
    o.append(raw("s_getpc_b64 s[44:45]"))
    o.append(label("L_pc"))
    A("s_lshr_b32 s54, s2, 3")
    A("s_lshl_b32 s46, s54, 7")
    V(f"v_lshl_add_u32 {t2}, v0, 12, s46")
    if OPT["aux"] & 1:
        A("s_and_b32 s45, s45, 0xffff")
        o.append(raw("s_mov_b32 s46, L_end-L_pc"))
        A("s_mov_b32 s47, 0x20000")
        o.append(vload("buffer_load_dword", "v15", t2, sC, "0"))
    else:
        o.append(I(f"v_min_u32 {t2}, L_end-L_pc, {t2}", "valu", [t2], [t2]))
        V(f"v_mov_b32 {t3}, 0")
        V(f"v_lshl_add_u64 {R('v', TMP + 2, 2)}, {R('v', TMP + 2, 2)}, 0, s[44:45]")
        o.append(I(f"global_load_dword v15, {R('v', TMP + 2, 2)}, off", "vld", [t2, t3], ["v15"]))
    V(f"v_lshrrev_b32 {t1}, 6, v0")
    A(f"s_mov_b64 {sKEEP}, 0")
    V(f"v_readfirstlane_b32 {sW}, {t1}")
    A(f"s_mov_b32 {sTHR}, {(127 + OPT['thr']) << 23:#x}")
    if OPT["prof"]:
        A("s_mov_b32 s3, 0")
    A("s_and_b32 s53, s2, 7")
    A("s_lshl_b32 s53, s53, 3")
    A("s_lshr_b32 s55, s2, 5")
    A("s_add_u32 s53, s53, s55")
    A("s_and_b32 s54, s54, 3")
    A("s_lshl_b32 s55, s53, 2")
    A("s_add_u32 s55, s55, s54")
    A("s_mul_i32 s37, s55, 73728")
    A("s_lshl_b32 s53, s53, 19")
    A(f"s_lshr_b32 {sA}, {sW}, 1")
    A(f"s_and_b32 {sB}, {sW}, 1")
    A(f"s_add_u32 s54, {sW}, 1")
    A("s_and_b32 s55, s54, 1")
    A("s_lshl_b32 s55, s55, 3")
    A("s_lshr_b32 s54, s54, 1")
    A("s_and_b32 s54, s54, 1")
    A("s_add_u32 s54, s54, s55")
    A("s_mul_i32 s54, s54, 1040")
    A(f"s_add_u32 {sKm}, s54, {KRING}")
    A("s_mov_b32 s48, 8192")
    A("s_mov_b32 s49, 16384")
    A("s_mov_b32 s50, 24576")
    A(f"s_mov_b32 {sX}, 65536")
    for srd, n in ((16, 524288), (12, 73728), (20, 524288), (24, 73728)):
        A(f"s_mov_b32 s{srd + 2}, {n}")
        A(f"s_mov_b32 s{srd + 3}, 0x20000")

    def src_offsets():
        V(f"v_and_b32 {t0}, 31, v0")
        V(f"v_lshlrev_b32 {t0}, 4, {t0}")
        V(f"v_bfe_u32 {t2}, v0, 5, 1")
        A(f"s_lshl_b32 s54, {sW}, 11")
        V(f"v_add_u32 {t1}, s54, {t0}")
        V(f"v_lshl_add_u32 {vKd}, {t2}, 13, {t1}")
        V(f"v_lshl_add_u32 {vQl}, {t2}, 15, {t1}")
        V(f"v_lshl_add_u32 {vQlx}, {t2}, 9, {t1}")
        if OPT["rot"]:
            A("s_and_b32 s54, s2, 7")
            A(f"s_mul_i32 s54, s54, {OPT['rot'] // 100}")
            A("s_lshr_b32 s55, s2, 5")
            A(f"s_mul_i32 s55, s55, {OPT['rot'] % 100}")
            A("s_add_u32 s54, s54, s55")
            A("s_and_b32 s54, s54, 31")
            A(f"s_lshl_b32 {sKo}, s54, 14")
            A(f"s_mov_b32 {sVo}, {sKo}")
        else:
            A(f"s_mov_b32 {sKo}, 0")
            A(f"s_mov_b32 {sVo}, 0")
    src_offsets()
    o.append(raw("s_waitcnt lgkmcnt(0)"))
    o += stamp(8)
    for srd, ptr, off in ((16, 6, "s53"), (12, 4, "s37"), (20, 8, "s53"), (24, 10, "s37")):
        A(f"s_add_u32 s{srd}, s{ptr}, {off}")
        A(f"s_addc_u32 s{srd + 1}, s{ptr + 1}, 0")
        A(f"s_and_b32 s{srd + 1}, s{srd + 1}, 0xffff")
    o.append(label("L_restart"))
    if OPT["glds"]:
        A(f"s_mov_b64 {sKg}, s[16:17]")
        A(f"s_mov_b64 {sVg}, s[20:21]")
    for i in range(4):
        o += dma_piece("K", 0, i) if not OPT["qfirst"] else []
    for i in range(2):
        o.append(vload("buffer_load_dwordx4", R("v", RAWX + 4 * i, 4), vQlx, sQ, sX, 1024 * i, OPT["pol_q"], tag=("Q", 4, i)))
    for i in range(4):
        o += qload(0, i) if OPT["qfirst"] else []
    if OPT["touch"] & 1:
        o.append(I("buffer_load_dword v14, off, s[20:23], 0", "vld", regs(sV), ["v14"]))
    if OPT["touch"] & 2:
        o.append(I("buffer_load_dword v14, off, s[24:27], 0", "vld", regs(sO), ["v14"]))
    if OPT["thr1"] or OPT["thr2"] or OPT["stamps"]:
        o.append(raw("s_getreg_b32 s37, hwreg(HW_REG_XCC_ID, 0, 4)" if not OPT.get("thrkey") else "s_lshr_b32 s37, s2, 5"))
    if OPT["thr1"]:
        o.append(raw(f"s_lshr_b32 s54, {OPT['thr1']}, s37\n    s_bitcmp1_b32 s54, 0\n    s_cbranch_scc1 L_thr1\nL_thr1b:"))
    if OPT["ibar"]:
        o.append(barrier())
    for i in range(4):
        o += qload(0, i) if not OPT["qfirst"] else dma_piece("K", 0, i)
    if OPT["stamps"] == 4:
        o += stamp(9)
    if OPT["stouch"]:
        for i in range(1, OPT["stouch"] + 1):
            o.append(raw(f"s_load_dword s9, s[44:45], {i * 4096 - 128}"))
    A(f"s_lshl_b32 s54, {sB}, 11")
    A(f"s_lshl_b32 s55, {sA}, 13")
    A("s_add_u32 s54, s54, s55")
    V(f"v_lshl_add_u32 {vVd}, {t2}, 12, {t0}")
    V(f"v_add_u32 {vVd}, s54, {vVd}")
    A(f"s_add_u32 s54, {sKm}, {3 * SLOT}")
    V(f"v_lshl_add_u32 {vQw}, {t2}, 9, {t0}")
    V(f"v_add_u32 {vQw}, s54, {vQw}")
    V(f"v_add_u32 {vQw2}, {4 * SLOT}, {vQw}")
    A(f"s_sub_u32 s54, {sKm}, {KRING - PXA}")
    V(f"v_mul_u32_u24 {vQwx}, 2080, {t2}")
    V(f"v_add3_u32 {vQwx}, {vQwx}, {t0}, s54")
    A(f"s_mul_i32 s54, {sB}, 8320")
    A(f"s_lshl_b32 s55, {sA}, 10")
    A("s_add_u32 s54, s54, s55")
    A(f"s_add_u32 {sVm}, s54, {VRING}")
    A(f"s_mul_i32 {sPm}, {sW}, 2560")
    V(f"v_and_b32 {t0}, 15, v0")
    V(f"v_bfe_u32 {t1}, v0, 4, 1")
    V(f"v_lshlrev_b32 {t3}, 5, {t1}")
    V(f"v_lshl_add_u32 {t3}, {t2}, 4, {t3}")
    V(f"v_add_u32 {t4}, 4, {t0}")
    V(f"v_bfe_u32 {vKr0}, {t4}, 3, 1")
    V(f"v_and_b32 {t4}, 7, {t4}")
    V(f"v_lshl_add_u32 {vKr0}, {t4}, 1, {vKr0}")
    V(f"v_mul_u32_u24 {vKr0}, 1040, {vKr0}")
    V(f"v_add_u32 {vKr0}, {vKr0}, {t3}")
    V(f"v_add_u32 {vQrx}, {PXA}, {vKr0}")
    V(f"v_add_u32 {vKr0}, {KRING}, {vKr0}")
    A(f"s_lshl_b32 s54, {sB}, 9")
    V(f"v_add_u32 {vKr}, s54, {vKr0}")
    A(f"s_lshl_b32 s54, {sA}, 9")
    A(f"s_add_u32 s54, s54, {3 * SLOT}")
    V(f"v_add_u32 {vQr}, s54, {vKr0}")
    V(f"v_add_u32 {vQr2}, {4 * SLOT}, {vQr}")
    A(f"s_lshl_b32 s54, {sB}, 9")
    A("s_sub_u32 s54, 512, s54")
    V(f"v_add_u32 {vKr0}, s54, {vKr0}")
    V(f"v_bfe_u32 {t4}, v0, 2, 2")
    V(f"v_mul_u32_u24 {vV0}, 2064, {t4}")
    V(f"v_mul_u32_u24 {t4}, 8320, {t1}")
    V(f"v_add_u32 {vV0}, {vV0}, {t4}")
    V(f"v_lshl_add_u32 {vV0}, {t2}, 9, {vV0}")
    V(f"v_bfe_u32 {t4}, v0, 1, 1")
    V(f"v_lshl_add_u32 {vV0}, {t4}, 6, {vV0}")
    V(f"v_and_b32 {t4}, 1, v0")
    V(f"v_lshl_add_u32 {vV0}, {t4}, 3, {vV0}")
    A(f"s_mul_i32 s54, {sB}, {256 + 1024}")
    A(f"s_add_u32 s54, s54, {VRING}")
    A(f"s_mul_i32 s55, {sB}, {1024 - 256}")
    A(f"s_sub_u32 s55, {VRING + 1024}, s55")
    V(f"v_add_u32 {vV1}, s55, {vV0}")
    V(f"v_add_u32 {vV0}, s54, {vV0}")
    V(f"v_and_b32 {t4}, 63, v0")
    V(f"v_lshlrev_b32 {t4}, 2, {t4}")
    A(f"s_mul_i32 s54, {sB}, 2560")
    A("s_sub_u32 s55, 2560, s54")
    V(f"v_add_u32 {vPr2}, s54, {t4}")
    V(f"v_add_u32 {vPr}, s55, {t4}")
    A(f"s_mul_i32 s55, {sW}, 2304")
    A(f"s_add_u32 s55, s55, {KRING + SLOT}")
    V(f"v_bfe_u32 {t4}, v0, 4, 2")
    V(f"v_mul_u32_u24 {vEw}, {4 * 144}, {t4}")
    V(f"v_lshl_add_u32 {vEw}, {t0}, 3, {vEw}")
    V(f"v_add_u32 {vEw}, s55, {vEw}")
    V(f"v_lshl_add_u32 {vRr}, {t4}, 4, {sPm}")
    V(f"v_bfe_u32 {t1}, v0, 1, 1")
    V(f"v_lshl_add_u32 {t4}, {t4}, 1, {t1}")
    V(f"v_mul_u32_u24 {vEr}, 144, {t4}")
    V(f"v_and_b32 {t1}, 1, v0")
    V(f"v_lshl_add_u32 {vEr}, {t1}, 6, {vEr}")
    V(f"v_bfe_u32 {t1}, v0, 2, 2")
    V(f"v_lshl_add_u32 {vEr}, {t1}, 3, {vEr}")
    V(f"v_add_u32 {vEr}, s55, {vEr}")
    V(f"v_bfe_u32 {t4}, v0, 3, 3")
    V(f"v_and_b32 {t1}, 7, v0")
    V(f"v_lshlrev_b32 {t1}, 4, {t1}")
    A(f"s_lshl_b32 s54, {sA}, 15")
    A(f"s_lshl_b32 s55, {sB}, 8")
    A("s_add_u32 s55, s55, s54")
    A("s_sub_u32 s51, 65536, s54")
    V(f"v_lshl_add_u32 {vO}, {t4}, 9, {t1}")
    V(f"v_add_u32 {vO}, s55, {vO}")
    for t in range(5):
        A(f"s_add_u32 {sT8[t]}, {sT[t]}, 4096" if t else f"s_mov_b32 {sT8[0]}, 4096")
    c = struct.unpack("<I", struct.pack("<f", math.log2(math.e) / 16.0))[0]
    A(f"s_mov_b32 s40, {c:#x}")
    A(f"s_mov_b32 s41, {c:#x}")
    A(f"s_mov_b32 {sMASK}, 0xffff0000")
    for t in range(5):
        V(f"v_mov_b32 v{vL[t]}, 0")
    for t in range(4):
        for i in range(8):
            if OPT["obias"]:
                V(f"v_mov_b32 v{OO + 32 * t + 16 + 2 * i}, 4.0")
                V(f"v_mov_b32 v{OO + 32 * t + 16 + 2 * i + 1}, 4.0")
            else:
                V(f"v_mov_b64 {R('v', OO + 32 * t + 16 + 2 * i, 2)}, 0")
    for i in range(16):
        V(f"v_accvgpr_write_b32 a{AX + 16 + i}, {'4.0' if OPT['obias'] else 0}")
    if OPT["stamps"] == 4:
        o += stamp(10)
    A(f"s_cmp_eq_u32 {sA}, 1")
    A("s_cbranch_scc1 L_role1")
    o2 = []
    o, keep = o2, o
    src_offsets()
    return keep, o2


def scale4(src):
    o = []
    T = SCT
    for i in range(4):
        o.append(valu(f"v_lshlrev_b32 v{T + 2 * i}, 16, v{src + i}"))
        o.append(valu(f"v_and_b32 v{T + 2 * i + 1}, {sMASK}, v{src + i}"))
    for i in range(4):
        o.append(valu(f"v_pk_mul_f32 {R('v', T + 2 * i, 2)}, {R('v', T + 2 * i, 2)}, {sSC}"))
    for i in range(4):
        o.append(valu(f"v_cvt_pk_bf16_f32 v{src + i}, v{T + 2 * i}, v{T + 2 * i + 1}"))
    return o


QST = {0: (("V", 1), vQw, vQr, 2 * SLOT), 1: (("K", 3), vQw, vQr, 0), 2: (("V", 2), vQw, vQr, 3 * SLOT), 3: (("V", 3), vQw2, vQr2, 0)}


def stage_write(k, i):
    if k == 4:
        return ds_write("ds_write_b128", vQwx, R("v", RAWX + 4 * i, 4), f"offset:{4160 * i}", QXTAG)
    reg, wb, rb, off = QST[k]
    return ds_write("ds_write_b128", wb, R("v", RAW(k, i), 4), f"offset:{off + 2080 * i}", (reg, -1))


def stage_load(k, i, feed):
    src = RAWX + 4 * i if k == 4 else RAW(k, i)
    return [wait(vm=[("Q", k, i)])] + feed(("Q", k, i)) + scale4(src) + [stage_write(k, i)]


def stage_in(k, feed):
    o = []
    for i in range(2 if k == 4 else 4):
        o += stage_load(k, i, feed)
    return o


def stage_read(k):
    if k == 4:
        return [ds_read("ds_read_b128", Qf(4, s), vQrx, f"offset:{64 * s}", QXTAG) for s in range(8)]
    reg, wb, rb, off = QST[k]
    return [ds_read("ds_read_b128", Qf(k, s), rb, f"offset:{off + 64 * s}", (reg, -1)) for s in range(8)]


def stage_compute(t):
    mf, m1, m2, cm, sb, ex, cv, ad = first_tile_instrs(t)
    o = mf + m1 + m2 + cm + sb + ex + cv
    if t == 4:
        o += [msetter(), ad[0]] + [pwrite(0, t, h) for h in range(2)] + ad[1:]
    else:
        o += ad
    return o


def prologue(a):
    o = [label(f"L_role{a}")] + aux_setup(a) + [salu(f"s_mov_b32 {sCNT}, {(24 if OPT['early'] else 28) // 4 - (1 if OPT['peel0'] else 0)}")]
    seq = {0: "Q1 Q2 Q3 K1 V0 K2 V1 K3", 1: "Q1 K1 Q2 V0 Q3 K2 V1 K3", 2: "Q1 Q2 K1 Q3 V0 K2 V1 K3", 3: "K1 Q1 V0 Q2 K2 Q3 V1 K3", 4: "Q1 Q2 K1 V0 Q3 K2 V1 K3", 5: "K1 Q1 Q2 V0 Q3 K2 V1 K3"}[OPT["order"]]
    full = [("K", 0, i) for i in range(4)] + [("Q", 4, i) for i in range(2)] + [("Q", 0, i) for i in range(4)]
    if OPT["qfirst"]:
        full = full[4:] + full[:4]
    order = [(x[0], int(x[1]), i) for x in seq.split() for i in range(4)]
    if OPT["split"]:
        n = 0
        while n + 8 <= len(order):
            if order[n][0] != "Q" and order[n + 4][0] == "Q":
                sp = OPT["split"]
                order[n:n + 8] = order[n + 4:n + 4 + sp] + order[n:n + 4] + order[n + 4 + sp:n + 8]
                n += 4
            n += 4
    full += order

    def feed(landed):
        r = []
        stage = -1 if landed[1] == 4 else landed[1]
        while order and full.index(order[0]) <= full.index(landed) + OPT["win"]:
            x = order[0]
            if (x[:2] == ("V", 1) and stage < 2) or (x[:2] == ("K", 3) and stage < 3) or (landed == ("Q", 3, 3) and not OPT["lastfeed"]):
                break
            order.pop(0)
            r += qload(x[1], x[2]) if x[0] == "Q" else dma_piece(*x)
            if OPT["spf"] and x == [("Q", 3, 3), ("K", 2, 3), ("V", 1, 3), ("Q", 2, 3), ("V", 0, 3)][OPT["spfat"]]:
                r.append(vload("buffer_load_dword", vAuxC, vAuxC, sP, "0"))
        return r
    if OPT["thr2"]:
        o.append(raw(f"s_lshr_b32 s54, {OPT['thr2']}, s37\n    s_bitcmp1_b32 s54, 0\n    s_cbranch_scc1 L_thr2{a}\nL_thr2b{a}:"))
    o += stage_in(4, feed)
    if OPT["qfirst"]:
        o += stage_in(0, feed) + [wait(vm=[("K", 0)])] + feed(("K", 0, 3))
    o.append(wait(vm=[("K", 0)], lg="all"))
    o.append(barrier())
    o += stamp(1)
    for s in range(8):
        o.append(kread(0, s, vKr, R("a", AVF + 4 * s, 4)))
    if a == 0:
        o += stage_read(4)
    for s in range(8):
        o.append(kread(0, s, vKr0, R("a", ASP + 4 * s, 4)))
    ps = iter([3, 4, 5, 6, 7, 8, 9, 10, 11, 12, 13, 14])
    pst = lambda: stamp(next(ps), 3)
    o += pst()
    if not OPT["qfirst"]:
        o += stage_in(0, feed)
    for k in range(4):
        o += pst()
        if k or not OPT["qfirst"]:
            o.append(wait(vm={OPT["k1stage"]: [("K", 1)], 3: [("V", 0)]}.get(k), lg="all"))
            o.append(barrier())
        if k < 3:
            o += pst() + pst()
            o += stage_block(a, k, feed)
    o += stamp(2)
    return o, order


def aux_setup(a):
    o = []
    if OPT["spf"]:
        n = OPT["spf"] * 16
        o.append(salu("s_lshr_b32 s54, s2, 3"))
        o.append(salu("s_and_b32 s54, s54, 3"))
        o.append(salu(f"s_mul_i32 s54, s54, {2 * n * 128}"))
        o.append(salu(f"s_cmp_eq_u32 {sB}, 0"))
        o.append(salu(f"s_cselect_b32 s55, {OPT['spfk']}, {OPT['spfv']}"))
        o.append(salu("s_cselect_b32 s88, s16, s20"))
        o.append(salu("s_cselect_b32 s89, s17, s21"))
        o.append(salu("s_lshl_b32 s55, s55, 14"))
        o.append(salu("s_add_u32 s54, s54, s55"))
        o.append(salu(f"s_add_u32 s54, s54, {a * n * 128}"))
        o.append(salu("s_mov_b32 s90, 524288"))
        o.append(salu("s_mov_b32 s91, 0x20000"))
        o.append(valu(f"v_and_b32 {vAuxC}, 63, v0"))
        o.append(valu(f"v_min_u32 {vAuxC}, {n - 1}, {vAuxC}"))
        o.append(valu(f"v_lshl_add_u32 {vAuxC}, {vAuxC}, 7, s54"))
    if OPT["pf31"]:
        n = (32 - OPT["pft0"]) * 8
        o.append(salu("s_lshr_b32 s54, s2, 3"))
        o.append(salu("s_and_b32 s54, s54, 3"))
        o.append(salu("s_lshl_b32 s54, s54, 2"))
        o.append(salu(f"s_add_u32 s54, s54, {sW}"))
        o.append(salu(f"s_mul_i32 s54, s54, {n * 128}"))
        o.append(salu(f"s_add_u32 s54, s54, {(OPT['pft0'] * 16384 - (0 if OPT['early'] else ((OPT['pf31'] - 1) // 4) << 24)) & 0xffffffff:#x}"))
        o.append(valu(f"v_and_b32 {vAuxT}, 63, v0"))
        o.append(valu(f"v_min_u32 {vAuxT}, {n - 1}, {vAuxT}"))
        o.append(valu(f"v_lshl_add_u32 {vAuxT}, {vAuxT}, 7, s54"))
    if OPT["aux"]:
        o.append(salu("s_lshr_b32 s54, s2, 3"))
        o.append(salu("s_lshl_b32 s55, s54, 7"))
        o.append(valu(f"v_lshl_add_u32 {vAuxC}, v0, 12, s55"))
    if OPT["aux"] & 2:
        piece = (32 - OPT["auxt0"]) * 16384 // OPT["auxn"]
        before = len([j for j in range(1, OPT["auxend"] + 1) if (j - OPT["auxend"]) % OPT["auxper"] == 0]) - OPT["auxn"]
        o.append(salu("s_and_b32 s54, s54, 3"))
        o.append(salu(f"s_mul_i32 s54, s54, {piece // 4}"))
        o.append(salu(f"s_add_u32 s54, s54, {(a * piece // 8 - before * piece) & 0xffffffff:#x}"))
        o.append(valu(f"v_and_b32 {vAuxT}, 63, v0"))
        o.append(valu(f"v_cmp_le_u32 vcc, {piece // 1024}, {vAuxT}"))
        o.append(valu(f"v_lshl_add_u32 {vAuxT}, {vAuxT}, 7, s54"))
        o.append(valu(f"v_cndmask_b32 {vAuxT}, {vAuxT}, 2.0, vcc"))
        o.append(salu(f"s_cmp_eq_u32 {sB}, 0"))
        o.append(salu("s_cselect_b32 s88, s16, s20"))
        o.append(salu("s_cselect_b32 s89, s17, s21"))
        o.append(salu(f"s_add_u32 s88, s88, {OPT['auxt0'] * 16384}"))
        o.append(salu("s_addc_u32 s89, s89, 0"))
        o.append(salu(f"s_mov_b32 s90, {(32 - OPT['auxt0']) * 16384}"))
        o.append(salu("s_mov_b32 s91, 0x20000"))
        if OPT["holes"]:
            o.append(salu("s_mov_b64 s[84:85], s[88:89]"))
            o.append(salu("s_mov_b32 s86, 0"))
            o.append(salu("s_mov_b32 s87, 0x20000"))
    return o


def finish(a):
    o = stamp(6)
    if OPT.get("amp"):
        lo, hi, base = OPT["amp"] // 100, OPT["amp"] % 100, OPT["ampbase"]
        o.append(raw("s_waitcnt vmcnt(0)"))
        o += stamp(7)
        o.append(raw(f"s_waitcnt lgkmcnt(0)\ns_and_b32 s95, s2, {OPT.get('ampmask', 255)}\ns_cmp_lg_u32 s95, {OPT.get('ampwg', 40)}\ns_cbranch_scc1 L_end\ns_sub_u32 s94, s{60 + 2 * hi}, s{60 + 2 * lo}\ns_sub_u32 s94, s94, {base}\ns_max_i32 s94, s94, 0\ns_mul_i32 s94, s94, {OPT.get('amprt', 1)}\ns_min_u32 s94, s94, 20000\ns_add_u32 s94, s94, 6000"))
        o.append(raw(f"L_amp{a}:\ns_memrealtime s[92:93]\ns_waitcnt lgkmcnt(0)\ns_sub_u32 s92, s92, s58\ns_cmp_lt_u32 s92, s94\ns_cbranch_scc1 L_amp{a}"))
    elif OPT["stamps"]:
        o.append(raw("s_waitcnt vmcnt(0)"))
        o += stamp(7)
        o.append(raw("s_memrealtime s[92:93]"))
        o.append(raw("s_waitcnt lgkmcnt(0)"))
        o.append(raw("s_mov_b32 s96, s56\ns_and_b32 s97, s57, 0xffff\ns_mov_b32 s98, 0x100000\ns_mov_b32 s99, 0x20000"))
        o.append(raw(f"s_lshl_b32 s94, s2, 2\ns_add_u32 s94, s94, {sW}\ns_lshl_b32 s94, s94, 7"))
        for i in range(16):
            o.append(raw(f"v_mov_b32 v{64 + i}, s{60 + 2 * i}"))
        o.append(raw("v_mov_b32 v80, s58\nv_mov_b32 v81, s92\nv_mov_b32 v82, s37\nv_mov_b32 v83, 0\nv_mov_b32 v84, 0"))
        if OPT["prof"]:
            o.append(raw("v_lshlrev_b32 v85, 2, v0\ns_lshl_b32 s95, s2, 10\ns_add_u32 s95, s95, 0x40000\nbuffer_store_dword v127, v85, s[96:99], s95 offen"))
        o.append(raw("s_mov_b64 exec, 1"))
        for i in range(5):
            o.append(raw(f"buffer_store_dwordx4 v[{64 + 4 * i}:{67 + 4 * i}], v84, s[96:99], s94 offen offset:{16 * i}"))
    o.append(raw("s_endpgm"))
    return o


def fallback(a, redo):
    NQ = 5 - a
    M, AD = PP, PP + 8
    o = [label(f"L_fallback{a}")]
    o.append(raw("s_waitcnt vmcnt(0) lgkmcnt(0)"))
    o.append(nop(7))
    o.append(salu("s_mov_b32 s18, 524288"))
    o.append(valu(f"v_and_b32 v{AD}, 15, v0"))
    o.append(valu(f"v_lshlrev_b32 v{AD}, 9, v{AD}"))
    o.append(valu(f"v_bfe_u32 v{AD + 1}, v0, 4, 1"))
    o.append(valu(f"v_lshl_add_u32 v{AD}, v{AD + 1}, 5, v{AD}"))
    o.append(valu(f"v_bfe_u32 v{AD + 1}, v0, 5, 1"))
    o.append(valu(f"v_lshl_add_u32 v{AD}, v{AD + 1}, 4, v{AD}"))
    for t in range(NQ):
        o.append(valu(f"v_mov_b32 v{M + t}, 0xff800000"))
    o.append(salu("s_mov_b32 s54, 0"))
    o.append(label(f"L_fbloop{a}"))
    for s in range(8):
        o.append(vload("buffer_load_dwordx4", Kf(s), f"v{AD}", sK, "s54", 64 * s))
    for t in range(NQ):
        for s in range(8):
            o.append(mfma(S(t), Kf(s), Qf(t, s), "0" if s == 0 else S(t)))
    for t in range(NQ):
        s0 = SS + 4 * t
        o.append(valu(f"v_max3_f32 v{M + t}, v{s0}, v{s0 + 1}, v{M + t}"))
        o.append(valu(f"v_max3_f32 v{M + t}, v{s0 + 2}, v{s0 + 3}, v{M + t}"))
    o.append(salu("s_add_u32 s54, s54, 8192"))
    o.append(salu("s_cmp_lt_u32 s54, 524288"))
    o.append(salu(f"s_cbranch_scc1 L_fbloop{a}"))
    for t in range(NQ):
        o += xlane("v_max_f32", M + t, AD + 1)
        for r in range(4):
            o.append(valu(f"v_sub_f32 v{NEGM + 4 * t + r}, 0, v{M + t}"))
    o.append(salu(f"s_mov_b64 {sKEEP}, -1"))
    o.append(salu(f"s_mov_b32 {sTHR}, -1"))
    o += redo
    o.append(barrier())
    o.append(salu("s_branch L_restart"))
    return o


def check_scalars(out):
    m0, cnt, seen, scc = None, {"K": 0, "V": 0}, set(), None
    for x in out:
        for ln in x.text.split("\n"):
            ln = ln.strip()
            if re.match(r"s_\w+ m0,", ln):
                m0 = ln
            for kind in "KV":
                if ln == bump(kind).text.split("\n")[0]:
                    cnt[kind] += 1
            if re.match(r"s_(cmp|add|sub|and|or|lshl|lshr|bitcmp|min|max)", ln):
                scc = ln
            if re.match(r"s_cbranch_scc|s_cselect", ln):
                assert scc.startswith(("s_cmp", "s_bitcmp")), (ln, scc)
        if x.kind == "dma":
            assert m0 == x.note[0], (x.text, m0, x.note)
            assert cnt[x.tag[0]] == x.tag[1], (x.text, x.tag, cnt)
            assert (x.tag, x.note[1]) not in seen
            seen.add((x.tag, x.note[1]))
        if x.text.startswith("ds_write_addtid"):
            assert m0 == msetter().text or OPT["prof"], (x.text, m0)
    for kind in "KV":
        for t in range(32):
            for i in range(4):
                assert ((kind, t), i) in seen, (kind, t, i)


def ablate(lines, lo, hi):
    ab = OPT["abl"]
    for n in range(lo, hi):
        l = lines[n]
        if (ab & 1 and l.endswith(" lds")) or (ab & 2 and l == "s_barrier") or (ab & 4 and l.startswith("ds_write")) or (ab & 8 and l.startswith("ds_read2")) \
           or (ab & 16 and l.startswith("ds_read_b64_tr")) or (ab & 32 and l.startswith("ds_read_b128")) or (ab & 64 and l.startswith("s_waitcnt")) \
           or (ab & 4096 and l.startswith("v_add_f32")):
            lines[n] = "; ablated"
        if ab & 8192 and l.startswith("v_add_f32") and not l.startswith("v_add_f32 v12"):
            lines[n] = "; ablated"
        if ab & 16384 and l.startswith("ds_read_b128 a[16") and l.split()[1] in ("a[160:163],", "a[168:171],"):
            k = n + 1
            while not lines[k].startswith("v_mfma"):
                k += 1
            pb = int(re.findall(r"v\[(\d+):", lines[k].split(",")[2] + " v[64:")[0]) & ~15
            off, acc = (2, 240) if "160" in l else (10, 244)
            lines[k] = f"v_mfma_f32_16x16x32_bf16 a[{acc}:{acc + 3}], a[248:251], v[{pb + off}:{pb + off + 3}], a[{acc}:{acc + 3}]\n    " + lines[k]
        if ab & 32768 and l.startswith("v_mfma"):
            p = [x.strip() for x in l.split(None, 1)[1].split(",")]
            if re.match(r"a\[(19[2-9]|2[01]\d|22[0-3]):", p[1]):
                lines[n] = f"v_mfma_f32_16x16x32_bf16 {p[0]}, {p[2]}, {p[1]}, {p[3]}"
        if ab & 65536 and l.startswith("v_mfma"):
            p = [x.strip() for x in l.split(None, 1)[1].split(",")]
            if re.match(r"a\[(1[678]\d):", p[1]):
                lines[n] = f"v_mfma_f32_16x16x32_bf16 {p[0]}, {p[2]}, {p[1]}, {p[3]}"
        if ab & 256 and l.startswith("s_waitcnt vmcnt"):
            lines[n] = re.sub(r"vmcnt\(\d+\) ", "", l)


def abl_init():
    if not OPT["abl"] & 16384:
        return []
    full = OPT.get("onesfull")
    return [raw("v_and_b32 v16, 15, v0\nv_mov_b32 v17, 0x3f803f80\nv_cmp_eq_u32 vcc, 0, v16\ns_nop 1\nv_cndmask_b32 v20, 0, v17, vcc\nv_cmp_eq_u32 vcc, 1, v16\ns_nop 1\nv_cndmask_b32 v16, 0, v17, vcc\n"
                + ("v_mov_b32 v20, v17\nv_mov_b32 v16, v17\n" if full else "")
                + "v_accvgpr_write_b32 a248, v20\nv_accvgpr_write_b32 a249, v20\nv_accvgpr_write_b32 a250, v16\nv_accvgpr_write_b32 a251, v16\n" + "\n".join(f"v_accvgpr_write_b32 a{240 + i}, 0" for i in range(8)))]


def build():
    j0, j1 = (5 if OPT["peel0"] else 1), (25 if OPT["early"] else 29)
    ent, redo = entry()
    text, evs = [], []
    for a in (0, 1):
        FLIP[0] = a if OPT["hflip"] else 0
        pro, rest = prologue(a)
        tr = list(ent) + [raw(";;ROLE")] + pro + [raw(";;IV 0")] + start_block(a, rest) + stamp(3) + abl_init()
        for j in range(1, 30):
            tr.append(raw(f";;IV {j}"))
            tr += interval(j, a, f"L_loop{a}" if (j0 <= j < j1 and (j - j0) % 4 == 3) else None)
        tr.append(raw(";;IV 30"))
        if OPT["prof"]:
            tr.append(raw("s_nop 4\n    v_mov_b32 v1, v17"))
        tr += stamp(4) + final_block(a)
        if OPT["prof"]:
            tr.append(raw("v_mov_b32 v127, v1"))
        tr += finish(a)
        out, ev, ins = resolve(tr)
        evs += ev
        check_scalars(out)
        lines = [x.text for x in out]
        k = lines.index(";;ROLE")
        if a == 0:
            text += lines[:k]
        idx = {j: lines.index(f";;IV {j}") for j in range(31)}
        for pos, w, c in ins:
            if idx[0] < pos and (OPT["show"] >= 0 or idx[1] < pos < idx[30]):
                print(f"; auto-inserted in role {a} @{pos - idx[0]}: {w} before {c}", file=sys.stderr)
        seg = lambda j: lines[idx[j] + 1: idx[j + 1]]
        for j in range(j0 + 4, j1):
            jb = j0 + (j - j0) % 4
            assert len(seg(j)) == len(seg(jb)), f"loop body not periodic at {j} role {a}"
            for n, (x, y) in enumerate(zip(seg(j), seg(jb))):
                if x != y:
                    assert re.sub(r"\d+", "", x) == re.sub(r"\d+", "", y) and x.startswith("s_waitcnt"), (j, a, x, y)
                    it = iter(min(int(p), int(q)) for p, q in zip(re.findall(r"\d+", x), re.findall(r"\d+", y)))
                    lines[idx[jb] + 1 + n] = re.sub(r"\d+", lambda m: str(next(it)), x)
        if OPT["abl"]:
            ablate(lines, idx[1], idx[30])
        text += lines[k + 1: idx[j0]]
        text.append(f".p2align {OPT['lalign']}")
        text.append(f"L_loop{a}:")
        text += lines[idx[j0]: idx[j0 + 4]]
        text += lines[idx[j1]:]
        fb, _, _ = resolve(fallback(a, redo))
        text += [x.text for x in fb]
        if OPT["thr2"]:
            text += [f"L_thr2{a}:", "s_waitcnt vmcnt(0)", f"s_branch L_thr2b{a}"]
    if OPT["thr1"]:
        text += ["L_thr1:", "s_waitcnt vmcnt(0)"] + [f"s_sleep {OPT.get('thrs')}"] * (1 if OPT.get("thrs") else 0) + ["s_branch L_thr1b"]
    assert check_lds(evs) == 0
    hdr = open("header.txt").read()
    body = "\n".join(("" if l.endswith(":") or l.startswith(".") else "    ") + l.replace(";;IV", "; interval") for l in text)
    return f"""{hdr}; @launch grid=(256,1,1) block=(256,1,1) lds={LDS_BYTES}
{open("design.txt").read()}.amdgcn_target "amdgcn-amd-amdhsa--gfx950"
.text
.globl {KN}
.p2align 8
.type {KN},@function
{KN}:
{body}
L_end:
    s_endpgm
.section .rodata,"a"
.p2align 6
.amdhsa_kernel {KN}
  .amdhsa_next_free_vgpr 512
  .amdhsa_next_free_sgpr 102
  .amdhsa_accum_offset 256
  .amdhsa_group_segment_fixed_size 0
  .amdhsa_kernarg_size 48
  .amdhsa_user_sgpr_count 2
  .amdhsa_user_sgpr_kernarg_segment_ptr 1
  .amdhsa_system_sgpr_workgroup_id_x 1
.end_amdhsa_kernel
"""


if __name__ == "__main__":
    for kv in sys.argv[1:]:
        k, v = kv.split("=", 1)
        if k.startswith("pol"):
            OPT[k] = "".join(" " + x for x in v.split("+") if x and x != "d")
        else:
            OPT[k] = float(v) if "." in v else int(v)
    print(build())
```

```python
import sys, struct, math, re
from asmlib import *
from sched import Block

KN = "standalone__gqa_softmax__near_ridge_kernel"
OPT = dict(abl=0, pol_kv="", pol_q="", pol_o=" sc0 sc1", stamps=0, prof=0, show=-1, thr=7,
           dma0=1, dmastep=8, dmastag=4, klead=3, walign=0, wq=1, feed0=4, feedl=1, prefeed=3,
           bar0=26, bara=30, barb=69, lalign=3, lazy=16, order=1, win=11, aux=0, early=0, auxj=3, sdma0=1, sdmas=3, sdman=8, lastfeed=0, k1stage=2, touch=0, m01=0, walk=2, lpad=1440, lpad0=2000, w64=0, mbias=35, obias=0, cref=0, spf=0, spfk=4, spfv=2, spfat=0, xbal=0, hflip=0, qfirst=1, ibar=0, stouch=0, pvt=0, defer=0, pvy=0, qkz=1, tm1=2, xearly=1, glds=0, peel0=3, bark=49, thr1=0, thr2=0, rot=0, nunder=0, prewait=0, ulo=2, ulo2=8, split=0, mergetail=1, rwin=1, pf31=25, pft0=29, pfgap=0, holes=0, holew=1, auxper=2, auxn=4, auxend=24, auxt0=28, nfast=3, nin=2)

PXA = 10240
KRING = 3 * PXA
SLOT = 16640
VRING = KRING + 4 * SLOT
LDS_BYTES = VRING + 4 * SLOT

sQ, sK, sV, sO, sC = "s[12:15]", "s[16:19]", "s[20:23]", "s[24:27]", "s[44:47]"
sW, sA, sB, sCNT, sKo, sVo, sKm, sVm, sPm, sMASK = "s28", "s29", "s30", "s31", "s32", "s33", "s34", "s35", "s36", "s39"
sSC, sKEEP = "s[40:41]", "s[42:43]"
sT = ["0", "s48", "s49", "s50", "s51"]
sT8 = ["s4", "s5", "s6", "s7", "s8"]
sX, sTHR = "s38", "s52"
sKg, sVg = "s[32:33]", "s[10:11]"
vKr, vV0, vV1, vKd, vVd, vPr, vPr2 = "v1", "v2", "v3", "v4", "v5", "v6", "v7"
vL = [8, 9, 10, 11, 12]
vO, vEw, vEr = "v13", "v22", "v23"
PXT = 14
TMP = 16
vAuxC, vAuxT, vAuxD, vAuxD2, sP = "v18", "v19", "v20", "v17", "s[88:91]"
NEGM, SS, PP, OO = 24, 44, 64, 128
SCT = 104
vQl, vQw, vQw2, vQwx, vQr, vQr2, vQrx, vKr0 = (f"v{96 + i}" for i in range(8))
vQlx = "v20"
vRr = "v21"
RAWX, SPRE0 = 112, 120
LP, FLG = 24, 30
RL = lambda t: SS + 4 * t
QXTAG = [(("P", 1, t), -1) for t in range(5)] + [(("L", t), -1) for t in range(6)]
AQ, AX, AKF, AVF, ASP = 0, 128, 160, 192, 224


def Qf(t, s):
    return R("a", (AQ + 32 * t if t < 4 else AX) + 4 * s, 4)


def Kf(s):
    return R("a", AKF + 4 * s, 4)


def S(t):
    return R("v", SS + 4 * t, 4)


def Ng(t):
    return R("v", NEGM + 4 * t, 4)


def Pown(j, t):
    return PP + 16 * (j % 4) + 4 * t if t < 4 else PXT


def Pop(j, t):
    return R("v", PP + 16 * (j % 4) + 4 * t, 4) if t < 4 else R("a", ASP + 4 * (j % 4), 4)


def O(t, dt):
    return R("v", OO + 32 * t + 4 * dt, 4) if t < 4 else R("a", AX + 4 * dt, 4)


def RAW(k, i):
    return OO + 32 * k + 4 * i


FLIP = [0]


def obc():
    return f"{struct.unpack('<I', struct.pack('<f', 1.5 * 2.0 ** (OPT['obias'] - 100 - OPT['mbias'])))[0]:#x}"


def where(kind, tile):
    if OPT["early"] and kind == "V" and tile >= 30:
        return (("K", 0), 32) if tile == 30 else (("V", 2), 31)
    return ((kind, tile % 4), tile)


def tdma(kind, tile, i):
    reg = where(kind, tile)
    off = reg[0][1] * SLOT + i * (1568 if kind == "K" else 1552) - (4 * SLOT if reg[0][0] != kind else 0)
    m, v, srd, so = (sKm, vKd, sK, sKo) if kind == "K" else (sVm, vVd, sV, sVo)
    d = dma(v, srd, so, 512 * i, OPT["pol_kv"], reg, (kind, tile))
    if OPT["glds"]:
        pair = sKg if kind == "K" else sVg
        d = I(f"global_load_lds_dwordx4 {v}, {pair}" + (f" offset:{512 * i}" if i else "") + OPT["pol_kv"], "dma", regs(v) + regs(pair) + ["m0"], [], lds_wr=reg, tag=(kind, tile))
    st = salu(f"s_add_u32 m0, {m}, {off}" if off >= 0 else f"s_sub_u32 m0, {m}, {-off}")
    d.note = (st.text, i)
    return (st, d)


def bump(kind):
    so = sKo if kind == "K" else sVo
    if OPT["glds"]:
        lo, hi = regs(sKg if kind == "K" else sVg)
        return raw(f"s_add_u32 {lo}, {lo}, s49\n    s_addc_u32 {hi}, {hi}, 0")
    return salu(f"s_add_u32 {so}, {so}, s49")


def wrap(kind):
    so = sKo if kind == "K" else sVo
    return [salu(f"s_bitset0_b32 {so}, 19")] if OPT["rot"] else []


def dma_piece(kind, tile, i):
    return list(tdma(kind, tile, i)) + ([bump(kind)] + wrap(kind) if i == 3 else [])


def kread(tile, s, addr=vKr, dst=None):
    slot = tile % 4
    return ds_read("ds_read_b128", dst or Kf(s), addr, f"offset:{slot * SLOT + 64 * s}", (("K", slot), tile))


def vread(tile, dt, u, frag):
    reg = where("V", tile)
    base = (vV0, vV1) if reg[0][0] == "V" else (vKd, vVd)
    return ds_read("ds_read_b64_tr_b16", R("a", frag + 2 * u, 2), base[u], f"offset:{reg[0][1] * SLOT + 128 * ((dt // 4) ^ FLIP[0]) + 16 * (dt % 4)}", reg)


def pwrite(j, t, h):
    par = j % 2
    return ds_write("ds_write_addtid_b32", None, f"v{Pown(j, t) + h}", f"offset:{par * PXA + (2 * t + h) * 256}", (("P", par, t), j))


def preads(j, a):
    par = j % 2
    o = []
    if OPT["w64"] and 1 <= j <= 28:
        o = [(t, ds_read("ds_read_b64", R("v", Pown(j, t) + 2, 2), "v16", f"offset:{par * PXA + a * 5120 + t * 512}", (("P", par, t), j))) for t in range(4)]
        if a == 1:
            o += [(4, ds_read("ds_read_b64", R("a", ASP + 4 * (j % 4) + 2 * u, 2), "v16", f"offset:{par * PXA + 2048}", (("P", par, 4), j))) for u in range(2)]
        return o
    for t in range(4):
        n = par * 40 + a * 20 + 2 * t
        o.append((t, ds_read("ds_read2st64_b32", R("v", Pown(j, t) + 2, 2), vPr, f"offset0:{n} offset1:{n + 1}", (("P", par, t), j))))
    if a == 1:
        n = par * 40 + 8
        for u in range(2):
            o.append((4, ds_read("ds_read2st64_b32", R("a", ASP + 4 * (j % 4) + 2 * u, 2), (vPr2, vPr)[u], f"offset0:{n} offset1:{n + 1}", (("P", par, 4), j))))
    return o


def msetter():
    return salu(f"s_mov_b32 m0, {sPm}")


def stamp(idx, mode=0):
    if (OPT["stamps"] == 3) != (mode == 3) and idx > 2:
        return []
    return [raw(f"{'s_memrealtime' if OPT.get('amprt') else 's_memtime'} s[{60 + 2 * idx}:{61 + 2 * idx}]")] if OPT["stamps"] else []


def xlane(op, reg, tmp):
    o = []
    for sw in ("v_permlane32_swap_b32", "v_permlane16_swap_b32"):
        o.append(valu(f"v_mov_b32 v{tmp}, v{reg}"))
        o.append(valu(f"{sw} v{tmp}, v{reg}"))
        o.append(valu(f"{op} v{reg}, v{tmp}, v{reg}"))
    return o


def chain_ops(b, seq, lo, dl, first_deps=(), hard=None):
    prev = None
    for n, ins in enumerate(seq):
        deps = list(first_deps) if prev is None else [(prev, (1 if b.chainy else 2) if ins.kind == "perm" else (0 if b.chainy and prev.cls == "valu" else 1))]
        prev = b.op(ins, "exp" if ins.kind == "trans" else "valu", lo, dl + n, deps, hard=hard)
    return prev


def add_qk(b, a, j):
    ends = []
    for t in range(5 - a):
        for n, s in enumerate(range(8) if not (OPT["qkz"] and t % 2) else reversed(range(8))):
            k = b.mfma(mfma(S(t), Kf(s), Qf(t, s), Ng(t) if n == 0 else S(t)))
        ends.append(k)
    return ends


def add_pv(b, a, tiles, h, frags, lo, zero=False, tmajor=False, lastuse=None, have=(), ts=None):
    NP = 4 + a
    order = [(d, t) for t in (range(NP) if tmajor is True else tmajor) for d in range(4)] if tmajor else \
            [(d, t) for d in range(4) for t in (range(NP) if d % 2 == 0 else reversed(range(NP)))]
    if tmajor and OPT["pvt"] == 2:
        order = [(d if (n // 4) % 2 == 0 else 3 - d, t) for n, (d, t) in enumerate(order)]
    if ts is not None:
        order = [x for x in order if x[1] in ts]
    first, done, pfirst = {}, {}, {}
    war = dict(lastuse) if lastuse is not None else {}
    for ci, (d, t) in enumerate(order):
        seq = list(enumerate(tiles))
        if OPT["pvy"] and len(tiles) == 2 and (len(order) - 1 - ci) % 2 == 1 and not zero:
            seq.reverse()
        for n, j in seq:
            k = b.mfma(mfma(O(t, 4 * h + d), Pop(j, t), R("a", frags[d][n], 4), (("v[104:107]" if t < 4 else O(t, d)) if OPT["obias"] else "0") if zero and n == 0 else O(t, 4 * h + d)))
            first.setdefault((d, n), k)
            pfirst.setdefault((j, t), k)
            done[(t, 4 * h + d)] = k
            if lastuse is not None:
                lastuse[frags[d][n]] = k
    for d in range(4):
        for n, j in enumerate(tiles):
            for u in range(2 if j not in have else 0):
                f = first[(d, n)]
                b.op(vread(j, 4 * h + d, u, frags[d][n]), "ds", max(lo[j], war.get(frags[d][n], 0)), f - 10 + u, hard=f - 3)
    return done, pfirst


def add_softmax(b, a, j, ends, pub, defer, adds_by=None, soft=False, sub=None):
    ends = dict(enumerate(ends)) if isinstance(ends, list) else ends
    wa = OPT["walign"]
    H = (lambda x: None) if soft else (lambda x: x)
    adds = {}
    for n, t in enumerate(ends):
        base = ends[t] + 4
        late = pub - 7 - 5 * (len(ends) - 1 - n)
        ex = []
        for r in range(4):
            dl = (base - 300 if wa else min(base + 10, late - 8)) + r
            dep = []
            if sub and t in sub:
                dep = [b.op(valu(f"v_add_f32 v{SS + 4 * t + r}, v{SS + 4 * t + r}, v{NEGM + 4 * t}"), "valu", base + 1, dl - 2, [sub[t]])]
            ex.append(b.op(valu(f"v_exp_f32 v{SS + 4 * t + r}, v{SS + 4 * t + r}"), "exp", base, dl, dep, hard=H(pub - 6)))
        for h in range(2):
            c = b.op(valu(f"v_cvt_pk_bf16_f32 v{Pown(j, t) + h}, v{SS + 4 * t + 2 * h}, v{SS + 4 * t + 2 * h + 1}"), "valu", 0, (base - 50 if wa else late - 3) + h, ex[2 * h:2 * h + 2], hard=H(pub - 4))
            if OPT["w64"] and 2 <= j <= 29:
                cvs = [c] if h == 0 else cvs + [c]
                if h == 1:
                    b.op(ds_write("ds_write_b64", "v18", R("v", Pown(j, t), 2), f"offset:{(j % 2) * PXA + t * 512}", (("P", j % 2, t), j)), "solo", 0, late, cvs, hard=H(pub - 3))
                continue
            b.op(pwrite(j, t, h), "ds", base + 6 + h if wa else 0, (base - 200 if wa else late - 1) + h, [c], hard=H(pub - 3), m0="p", setter=msetter())
        if t not in defer:
            for r in range(4):
                adds[t] = b.op(valu(f"v_add_f32 v{vL[t]}, v{SS + 4 * t + r}, v{vL[t]}"), "valu", 0, (pub if adds_by is None else min(base + 12, adds_by)) + r, [ex[r]] + ([(adds[t], 0)] if t in adds else []),
                               hard=H(pub if adds_by is None else adds_by))
    return adds


def add_deferred(b, a, ends, j=None):
    for t in deferred(a, j):
        for r in range(4):
            b.op(valu(f"v_add_f32 v{vL[t]}, v{SS + 4 * t + r}, v{vL[t]}"), "valu", 0, ends[t] - 16 + r, hard=ends[t] - 8)


def deferred(a, j=None):
    if OPT["defer"] or j == 30:
        return [3 - a, 4 - a]
    return []


def add_dma(b, a, pieces, g0, step, G, lo=None):
    dops = []
    for n, (kind, tile, i) in enumerate(pieces):
        st, d = tdma(kind, tile, i)
        e = int(g0 + step * n)
        if lo and (kind, tile) in lo:
            e = max(e, lo[(kind, tile)])
        o = b.op(d, "dma", e, e - 100, [(dops[-1][0], 2)] if dops else [], hard=G - 3, m0=("d", n), setter=st)
        dops.append((o, kind, tile, i))
    for o, kind, tile, i in dops:
        if i == 3:
            nxt = [x for x, k, tl, _ in dops if k == kind and tl > tile]
            bp = bump(kind)
            if OPT["rot"]:
                bp = raw(bp.text + "\n    " + wrap(kind)[0].text)
            b.scalar(bp, (lambda o=o: o.gap + 1), (lambda nxt=nxt: nxt[0].gap - 1) if nxt else G - 4)
    return dops


def prof_hooks(out):
    if OPT["prof"]:
        k = max(n for n, x in enumerate(out) if x.kind == "barrier")
        out.insert(k, raw("v_writelane_b32 v17, s100, m0"))
        out.insert(k - 1, raw("s_mov_b32 m0, s3"))
        mk = [n for n, x in enumerate(out[:k]) if x.kind == "mfma"]
        out.insert(mk[22] + 1, raw("s_memtime s[100:101]" if OPT["prof"] == 1 else "s_memrealtime s[100:101]"))
        out.insert(mk[2] + 1, raw("s_add_u32 s3, s3, 1"))
    return out


TMPL = {
    1: ["RDRRRRRR RRDRRRdE E.EDEWEE WEEDEWEW EEWEDEWE EWWEED.E EWW..RDR RRRRRRRD RRRRdRRR",
        "RRRRRDRR RRRRRRDR EE.EEWED EWEEWEEW .DEEWEEW E.DEW.W. d.D..RRR RRRDRRRR RdRDRRRR"],
    2: ["RDRRRRRR RRDRRRdE E.EDEWEE WEEDEWEW EEWEDEWE EWWEED.E EWW.RRDR RRRRRRRD RRRRd.RR",
        "RRRRRDRR RRRRRRDR EE.EEWED EWEEWEEW .DEEWEEW E.DEW.W. d.DRRRRR RRRDRRRR RdRD..RR"],
    4: ["RDRRRRRR RRDRRRdE EEED.WEE EE.DWEEE E.WEDEEE .W.EEDEE .W...RDR RRRRRRRD RRRRdRRR",
        "RRRRRDRR RRRRRRDR EEEE.WED EEE.W.EE EDE.W.EE E.DE.W.. d.D..RRR RRRDRRRR RdRDRRRR"],
    5: ["RDRRRRRR RRDRRRdE E.EDEWEE WEEDEWEW EEWEDEWE EWWEED.E EWW..D.R RRRRRRRD RRRRRRRR",
        "RRRRRDRR RRRRRRDR EE.EEWED EWEEWEEW .DEEWEEW E.DEW.W. d.D...RR RRRDRRRR RRRDRRRR"],
    6: ["RDRRRRRR RRDRRREE .EEWEDEW EEW.DEEW EEWEDEWE EW.dEEWE EW.W.D.R RDRRRRRR RDRRRRRR",
        "RRRRRDRR RRRRRRDR EE.EEWED EWEEWEEW .DEEWEEW E.DEW.W. d.D...RR RRRRRDRR RRRRDRRR"],
    7: ["RDRRRRRR RRDRRRdE E.EDEWEE WEEDEWEW EEWEDEWE EWWEED.E EWW..D.R RRRRRRRD RRRRRRRR",
        "RRRRRDRR RRRRRRDR EE.EEWED .EEEEW.W EDEWEEWE EWW.DE.. .W.D.dRR RRRDRRRR RRRDRRRR"],
    8: ["RDRRRRRR RRDRRRdE E.EDEWEE WEEDEWEW EEWEDEWE EWWEED.E EWW..D.R RRRRRRRD RRRRRRRR",
        "RRRRRDRR RRRRRRDR EE.EEWEE WEDEWEEW EEWEDEWE EW.W.D.. d.D...RR RRRDRRRR RRRDRRRR"],
    9: ["RDRRRRRR RRDRRRdE EEED.WWE EEED.WWE EEE.DEWW EEE.EDEW WEE.WW.D RRRRRRRR RRRRRRRR",
        "RRRRRDRR RRRRRRDR EEEE.WWE DEEE.WWE EDEE.WWE E.DEE.WW d.D...RR RRRDRRRR RRRDRRRR"],
    3: ["RDRRRRRR RRDRRREE EE.DEWWE EE.DEWWE EE.DEWWE EE.EWWED EE.WW.DR RRRRRRRD RRRRRRRR",
        "RRRRRDRR RRRRRRDR EEEE.WWE DEEE.WWE EDEE.WWE E.DEE.WW d.D.d.RR RRRDRRRR RRRDRRRR"],
}
FOLD = [AVF + 8 * d for d in range(4)]
FNEW = [AVF + 8 * d + 4 for d in range(4)]


def fold(j):
    return FOLD if j % 2 or not OPT["pvt"] else [ASP + 16 + 4 * d for d in range(4)]


def add_old_reads(b, j, lu, lo, G):
    FOLD = fold(j + 1)
    for d in range(4):
        for u in range(2):
            b.op(vread(j, 4 * ((j + 1) % 2) + d, u, FOLD[d]), "ds", max(lo, lu.get(FOLD[d], 0)), G + 2 * d + u, hard=G - 1)


def interval(j, a, loop_end=None):
    b = Block(f"interval {j} role {a}", wq=OPT["wq"] if OPT["walign"] else 0, wprio=bool(OPT["walign"]))
    ends = add_qk(b, a, j + 1)
    lu = {}
    if j <= 28:
        done, pfirst = add_pv(b, a, [j - 1, j], j % 2, [[fold(j)[d], FNEW[d]] for d in range(4)], {j: 0}, lastuse=lu, have=[j - 1], tmajor=bool(OPT["pvt"]))
        b.carry = [f"a{x + i}" for x in fold(j) for i in range(4)]
    else:
        if a == 1 and OPT["xbal"] & 1:
            assert not OPT["early"]
            add_pv(b, a, [28], 1, [[fold(29)[d]] for d in range(4)], {}, have=[28], ts=[4])
            b.carry = [f"a{x + i}" for x in fold(29) for i in range(4)]
        done, pfirst = add_pv(b, a, [j], 0, [[FNEW[d]] for d in range(4)], {j: 0})
    G = len(b.mf)
    if j <= (27 if OPT["early"] else 28):
        add_old_reads(b, j, lu, 40, G)
    for t, ins in preads(j, a):
        b.op(ins, "ds", 0, pfirst[(j, t)] - 10, hard=pfirst[(j, t)] - 3)
    for s in range(8):
        b.op(kread(j + 2, s), "ds", ends[-1] - (0 if OPT["qkz"] else 7 - s), G - 18 + s, hard=G - 3)
    kl = OPT["klead"]
    T = lambda kind, tile, r=range(4): [(kind, tile, i) for i in r]
    pieces = T("V", j + 2) + (T("K", j + 2 + kl) if j <= 28 else [])
    step = OPT["dmastep"]
    if j == 29:
        step = 4
    p0 = OPT["peel0"]
    if p0 and j <= 4:
        pieces = {1: T("V", 3) + T("K", 5) + T("K", 6, [0]), 2: T("V", 4) + T("K", 6, [1, 2, 3]) + T("K", 7, [0, 1]),
                  3: T("V", 5) + T("K", 7, [2, 3]) + T("K", 8, [0, 1, 2]), 4: T("V", 6) + T("K", 8, [3]) + T("K", 9)}[j]
    if OPT["early"] and j >= 25:
        if kl == 3:
            pieces = {25: T("V", 27) + T("K", 30), 26: T("V", 28) + T("K", 31), 27: T("V", 29) + T("V", 30), 28: T("V", 31), 29: []}[j]
        elif OPT["early"] == 1:
            pieces = {25: T("V", 27) + T("K", 29) + T("K", 30, [0]), 26: T("V", 28) + T("K", 30, [1, 2, 3]) + T("K", 31, [0, 1]),
                      27: T("V", 29) + T("K", 31, [2, 3]) + T("V", 30), 28: T("V", 31), 29: []}[j]
        elif OPT["early"] == 2:
            pieces = {25: T("V", 27) + T("K", 29), 26: T("V", 28) + T("K", 30), 27: T("V", 29) + T("K", 31), 28: T("V", 30) + T("V", 31), 29: []}[j]
        else:
            pieces = {25: T("V", 27) + T("K", 29) + T("K", 30, [0]), 26: T("V", 28) + T("K", 30, [1, 2, 3]) + T("K", 31, [0, 1]),
                      27: T("V", 29) + T("K", 31, [2, 3]) + T("V", 30, [0, 1, 2]), 28: T("V", 30, [3]) + T("V", 31), 29: []}[j]
        step = {25: 7, 26: 7, 27: 6, 28: 4, 29: 4}[j]
    merged = j == 1 and OPT["m01"]
    if merged:
        pieces = HAND[a][1] + pieces
        step = (66 - OPT.get("m01d", 1)) // len(pieces)
    dops = add_dma(b, a, pieces, (OPT.get("m01d", 1) if merged else OPT["dma0"]) + a * min(OPT["dmastag"], step // 2), step, G)
    if OPT["cref"] and j == 29:
        p = R("v", TMP + 2, 2)
        x = chain_ops(b, [valu(f"v_lshl_add_u32 v{TMP + 2}, v0, 12, s46"), I(f"v_min_u32 v{TMP + 2}, L_end-L_pc, v{TMP + 2}", "valu", [f"v{TMP + 2}"], [f"v{TMP + 2}"]),
                          valu(f"v_mov_b32 v{TMP + 3}, 0"), valu(f"v_lshl_add_u64 {p}, {p}, 0, s[44:45]")], 0, -95)
        b.op(I(f"global_load_dword {vAuxD}, {p}, off", "vld", regs(p), [vAuxD]), "st", 0, -90, [x] + ([dops[-1][0]] if OPT["cref"] == 1 else []), hard=G - 3)
    if OPT["early"] and j == 29:
        b.op(valu(f"v_subrev_u32 {vKd}, {4 * SLOT}, {vV0}"), "valu", 0, G, hard=G - 1)
        b.op(valu(f"v_subrev_u32 {vVd}, {4 * SLOT}, {vV1}"), "valu", 0, G, hard=G - 1)
    if OPT["pf31"] and (j == OPT["pf31"] if OPT["early"] else (5 if p0 else 1) <= j <= 28 and j % 4 == OPT["pf31"] % 4):
        x = b.op(vload("buffer_load_dword", vAuxD, vAuxT, sV, "0"), "st", OPT["pfgap"], -90 + OPT["pfgap"], hard=G - 3)
        if not OPT["early"]:
            b.op(valu(f"v_add_u32 {vAuxT}, 0x1000000, {vAuxT}"), "valu", 0, G, [x], hard=G - 1)
    if not OPT["early"] and j <= 28 and j % 4 == (30 - kl) % 4:
        kf = [o for o, k, _, _ in dops if k == "K"][0]
        vl = [o for o, k, _, _ in dops if k == "V"][-2]
        pair = raw(f"s_cmp_eq_u32 {sCNT}, 1\n    s_cselect_b32 s18, 0, s18")
        b.scalar(pair, (lambda: vl.gap + 1), (lambda: kf.gap - 2))
    if (5 if p0 else 1) <= j <= (24 if OPT["early"] else 28) and j % 4 == OPT.get("auxj", 1) and OPT["aux"] & 1:
        b.op(vload("buffer_load_dword", vAuxD, vAuxC, sC, "0"), "st", 3, -90, hard=40)
    if j <= 24 and (j - OPT["auxend"]) % OPT["auxper"] == 0 and OPT["aux"] & 2:
        x = b.op(vload("buffer_load_dword", vAuxD2, vAuxT, sP, "0"), "st", 5 - 4 * a, -90, hard=40)
        b.op(valu(f"v_add_u32 {vAuxT}, {(32 - OPT['auxt0']) * 16384 // OPT['auxn']:#x}, {vAuxT}"), "valu", 0, G, [x], hard=G - 1)
    nh = OPT["holes"] % 10 if a == 0 else OPT["holes"] // 10
    for n in range(nh if j <= 28 else 0):
        ref = dops[min(6, (2 * n + 1) * 8 // (2 * nh) - 1 + (1 if nh < 4 else 0))][0]
        w = OPT["holew"]
        b.op(vload("buffer_load_dword" + ("" if w == 1 else f"x{w}"), "v20" if w == 1 else R("a", 252, w), vAuxT, "s[84:87]", "0"), "st", 0, -95, [(ref, 2)], hard=G - 12)
    add_deferred(b, a, ends)
    add_softmax(b, a, j + 1, ends, G - 1, deferred(a, j + 1))
    if merged:
        bm = OPT["m01"]
        for o in b.ops:
            if o.ins.kind in ("dsr", "dsw"):
                o.lo = max(o.lo, bm)
        for n, o in enumerate(HAND[a][0]):
            o.deps = [(d, k) for d, k in o.deps if d.gap is None]
            o.lo, o.dl = 0, -300 + n
            o.hard = bm - 3 if o.ins.kind != "dsr" and not o.ins.text.startswith("v_add_f32 v1") and not o.ins.text.startswith("v_cndmask") else 22
            if o.hard == 22:
                o.dl = n - 20
            for r in o.ins.rd | o.ins.wr:
                for base in (SS, NEGM):
                    if r[0] == "v" and r[1:].isdigit() and base <= int(r[1:]) < base + 20:
                        tt = (int(r[1:]) - base) // 4
                        assert tt >= 2, o.ins.text
                        o.hard = min(o.hard, 8 * tt - 2)
            b.ops.append(o)
        b.barrier(bm, [("V", 1)], ["w"])
        b.lazy = 12
    if OPT["rwin"] and j <= 28 and not merged:
        tm = TMPL[OPT["rwin"]][a].replace(" ", "")
        assert len(tm) == 72, len(tm)
        nd = len([o for o in b.ops if o.cls in ("dma", "st")])
        b.tmpl = tm.replace("d", "D", max(0, nd - 8) if nd > 4 else 1).replace("d", ".")
        for o in b.ops:
            if o.cls == "dma" or o.ins.kind == "dsw":
                o.lo = 0
            if o.ins.text.startswith("v_cvt"):
                o.dl -= 200
    vm = [("V", j + 1)] + ([("K", j + 3)] if j + 3 <= 31 else [])
    if j == 29:
        vm.append(("V", 31))
    if j < p0:
        b.barrier(OPT["bark"] + 3, [("K", j + 2)], None)
        for o in b.ops:
            if o.ins.text.startswith("ds_read_b128"):
                o.lo = max(o.lo, OPT["bark"] + 3)
    if j + 1 < p0:
        vm = [("V", j + 1)]
    b.barrier(G - 1, vm, ["w"] + [f"a{AKF + i}" for i in range(32)])
    if loop_end:
        b.scalar(salu(f"s_sub_u32 {sCNT}, {sCNT}, 1"), 51, G - 4)
        b.scalar(salu(f"s_cmp_lg_u32 {sCNT}, 0"), G - 3, G - 3)
    out, _ = b.schedule(show=OPT["show"] == j)
    out = prof_hooks(out)
    if loop_end:
        out.append(salu(f"s_cbranch_scc1 {loop_end}"))
    return out


def first_tile_instrs(t):
    SPRE = RAWX if t == 4 else SPRE0
    own, oth = R("v", SPRE, 4), R("v", SPRE + 4, 4)
    mf = [mfma(own, R("a", AVF + 4 * s, 4), Qf(t, s), "0" if s == 0 else own) for s in range(8)]
    mf += [mfma(oth, R("a", ASP + 4 * s, 4), Qf(t, s), "0" if s == 0 else oth) for s in range(8)]
    A_, B_, C_ = TMP, TMP + 1, TMP + 4
    m1 = [valu(f"v_max3_f32 v{C_}, v{SPRE}, v{SPRE + 1}, v{SPRE + 2}"), valu(f"v_max_f32 v{C_}, v{C_}, v{SPRE + 3}")]
    m2 = [valu(f"v_max3_f32 v{C_}, v{C_}, v{SPRE + 4}, v{SPRE + 5}"),
          valu(f"v_max3_f32 v{A_}, v{C_}, v{SPRE + 6}, v{SPRE + 7}"), valu(f"v_max3_f32 v{B_}, v{C_}, v{SPRE + 6}, v{SPRE + 7}"),
          valu(f"v_permlane32_swap_b32 v{A_}, v{B_}"),
          valu(f"v_max_f32 v{C_}, v{A_}, v{B_}"), valu(f"v_max_f32 v{B_}, v{A_}, v{B_}"),
          valu(f"v_permlane16_swap_b32 v{C_}, v{B_}"),
          valu(f"v_max_f32 v{A_}, v{C_}, v{B_}")]
    if OPT["mbias"]:
        m2.append(valu(f"v_add_f32 v{A_}, {struct.unpack('<I', struct.pack('<f', float(OPT['mbias'])))[0]:#x}, v{A_}"))
    cm = [valu(f"v_cndmask_b32 v{NEGM + 4 * t + r}, -v{TMP}, v{NEGM + 4 * t + r}, {sKEEP}") for r in range(4)]
    n = 8 if t < 4 else 4
    sb = [valu(f"v_add_f32 v{SPRE + r}, v{SPRE + r}, v{NEGM + 4 * t}") for r in range(n)]
    ex = [valu(f"v_exp_f32 v{SPRE + r}, v{SPRE + r}") for r in range(n)]
    cv = [valu(f"v_cvt_pk_bf16_f32 v{Pown(0, t) + h}, v{SPRE + 2 * h}, v{SPRE + 2 * h + 1}") for h in range(n // 2)]
    ad = [valu(f"v_add_f32 v{vL[t]}, v{SPRE + r}, v{vL[t]}") for r in range(4)]
    return mf, m1, m2, cm, sb, ex, cv, ad


def add_first_tile(b, t, need_by=None):
    mf, m1, m2, cm, sb, ex, cv, ad = first_tile_instrs(t)
    idx = [b.mfma(x) for x in mf]

    def ops(after=()):
        x = chain_ops(b, m1, idx[7] + 5, -510, after)
        last = chain_ops(b, m2, idx[15] + 5, -500, [x])
        c = [b.op(y, "valu", 0, -480 if r == 0 or t == 4 else 150, [(last, 0)]) for r, y in enumerate(cm)]
        ops.cm = c
        e = []
        for r in range(len(sb)):
            sbo = b.op(sb[r], "valu", 0, -478 + r, [(c[0], 0)], hard=need_by)
            e.append(b.op(ex[r], "exp", 0, -470 + r, [sbo], hard=need_by))
        for h, y in enumerate(cv):
            cvo = b.op(y, "valu", 0, -469 + 2 * h, e[2 * h:2 * h + 2], hard=need_by)
            if t == 4:
                b.op(pwrite(0, t, h), "ds", 0, 100 + h, [cvo], m0="p", setter=msetter())
        for r in range(4):
            b.op(ad[r], "valu", 0, 200 + r, [e[r]])
        return c[0]
    return idx, ops


def qk_chain(b, t, zero=False):
    for s in range(8):
        k = b.mfma(mfma(S(t), Kf(s), Qf(t, s), ("0" if zero else Ng(t)) if s == 0 else S(t)))
    return k


def flush(out, left):
    m0 = None
    left = list(left)
    while left:
        o = next(o for o in left if all(d not in left for d, _ in o.deps))
        left.remove(o)
        if o.m0 is not None and o.m0 != m0:
            out.append(o.setter)
            m0 = o.m0
        out.append(o.ins)
    return out


def merge(x, y):
    o = []
    for i in range(max(len(x), len(y))):
        o += x[i:i + 1] + y[i:i + 1]
    return o


def stage_block(a, k, feed):
    b = Block(f"stage {k} role {a}")
    b.chainy = True
    k1 = OPT["k1stage"]
    b.pre = ([kread(1, s) for s in range(8)] if k == k1 else []) + stage_read(k)
    c1 = {1: {1: [0, 4], 2: [1]}, 2: {2: [0, 1, 4]}}[k1].get(k, [])
    c1 = [t for t in c1 if t < 5 - a]
    ends, later = {}, []
    covered = (k == 0 and a == 0) or (k > k1)
    if k == 0 and a == 0:
        later.append(add_first_tile(b, 4)[1])
    if c1 and k == 2:
        ends[c1[0]] = qk_chain(b, c1[0])
    later.append(add_first_tile(b, k)[1])
    for t in c1:
        if t not in ends:
            ends[t] = qk_chain(b, t)
    G = len(b.mf)
    prev = ()
    for f in later:
        f(prev)
        prev = f.cm
    if ends:
        add_softmax(b, a, 1, ends, G + 16, deferred(a), soft=True)
    i = 0
    if not covered and OPT["prewait"]:
        b.pre += stage_load(k + 1, 0, feed)
        i = 1
    nun = OPT["nunder"]
    ulo = OPT["ulo"] if G <= 16 else OPT["ulo2"]
    prev = []
    for n in range(nun):
        src = RAW(k + 1, i)
        cv = []
        first = None
        for r in range(4):
            lo_ = b.op(valu(f"v_lshlrev_b32 v{SCT + 2 * r}, 16, v{src + r}"), "valu", ulo, 40 * n + 5 * r, prev)
            hi_ = b.op(valu(f"v_and_b32 v{SCT + 2 * r + 1}, {sMASK}, v{src + r}"), "valu", ulo, 40 * n + 5 * r + 1, prev)
            first = first or lo_
            m0_ = b.op(valu(f"v_mul_f32 v{SCT + 2 * r}, s40, v{SCT + 2 * r}"), "valu", 0, 40 * n + 5 * r + 2, [lo_])
            m1_ = b.op(valu(f"v_mul_f32 v{SCT + 2 * r + 1}, s40, v{SCT + 2 * r + 1}"), "valu", 0, 40 * n + 5 * r + 3, [hi_])
            cv.append(b.op(valu(f"v_cvt_pk_bf16_f32 v{src + r}, v{SCT + 2 * r}, v{SCT + 2 * r + 1}"), "valu", 0, 40 * n + 5 * r + 4, [m0_, m1_]))
        b.op(stage_write(k + 1, i), "solo", 0, 40 * n + 21, cv)
        fd = feed(("Q", k + 1, i))
        if fd:
            grp = I("\n    ".join(x.text for x in fd), "group")
            grp.tag = fd
            b.op(grp, "st", 0, 40 * n + 6, [first], m0=("g", n), setter=nop(0))
        prev = cv
        i += 1
    out, left = b.schedule(show=OPT["show"] == 0, leftover_ok=True)
    tail = flush([], left)
    if not any(x.wr & {f"v{SCT + r}" for r in range(8)} or x.rd & {f"v{SCT + r}" for r in range(8)} for x in tail) and i < 3 and OPT["mergetail"]:
        assert not any(x.kind == "group" for x in tail)
        nx = stage_load(k + 1, i, feed)
        i += 1
        p = max(n for n, x in enumerate(nx) if x.kind in ("dma", "vld", "salu") or n == 0)
        tail = nx[:p + 1] + merge(tail, nx[p + 1:])
    out += tail
    while i < 4:
        out += stage_load(k + 1, i, feed)
        i += 1
    o = []
    for x in out:
        o += x.tag if x.kind == "group" else [x]
    return o


HAND = {}


def start_block(a, rest):
    b = Block(f"start role {a}")
    b.chainy = True
    b.pre = stage_read(3) + ([valu(f"v_mov_b32 v{104 + i}, {obc()}") for i in range(4)] if OPT["obias"] else [])
    ends = {2: qk_chain(b, 2)}
    G = 32 + 4 * (4 + a)
    idx, ops = add_first_tile(b, 3, need_by=G - 5)
    ends[3] = qk_chain(b, 3, zero=True)
    lu = {AVF + 4 * s: idx[s] for s in range(8)}
    done, pfirst = add_pv(b, a, [0], 0, [[FNEW[d]] for d in range(4)], {0: 0}, zero=True, tmajor=[0, 1, 2, 4, 3][:3] + ([4] if a else []) + [3], lastuse=dict(lu))
    assert G == len(b.mf)
    bar = OPT["bar0"]
    neg3 = ops()
    for d in range(4):
        for u in range(2):
            b.op(vread(0, 4 + d, u, FOLD[d]), "ds", lu[FOLD[d]], G + 30 + 2 * d + u)
    for t, ins in preads(0, a):
        if t == 4:
            b.op(ins, "ds", idx[8], pfirst[(0, t)] - 10, hard=pfirst[(0, t)] - 3)
    for s in range(8):
        b.op(kread(2, s), "ds", max(bar, ends[3] - 7 + s), G - 10 + s)
    pieces = rest + [("V", 2, i) for i in range(4)] + [("K", 4, i) for i in range(4)]
    if OPT["klead"] == 3 and not OPT["peel0"]:
        pieces += [("K", 5, i) for i in range(4)]
    nin = min(len(pieces), OPT["sdman"])
    add_dma(b, a, pieces[:nin], OPT["sdma0"], OPT["sdmas"], G)
    add_softmax(b, a, 1, ends, G + 12, deferred(a), soft=True, sub={3: neg3})
    b.barrier(bar, [("K", 2)], None)
    if OPT["stamps"] == 1:
        b.inserts[0] = stamp(12)
        b.inserts[bar - 2] = stamp(13)
        b.inserts[bar] = stamp(9)
        b.inserts[G - 1] = stamp(10)
    out, left = b.schedule(show=OPT["show"] == 0, leftover_ok=True)
    if OPT["m01"]:
        now = [o for o in left if o.ins.text.startswith("ds_read_b128")]
        HAND[a] = ([o for o in left if o not in now], pieces[nin:])
        return flush(out, now)
    out = flush(out, left)
    for p in pieces[nin:]:
        out += dma_piece(*p)
    out.append(wait(vm=[("V", 1)] + ([("K", 3)] if OPT["peel0"] < 2 else []), lg=["w"] + [f"a{AKF + i}" for i in range(32)]))
    out.append(barrier())
    return prof_hooks(out)


def unit_instrs(a, t, h, n, packed):
    x = OO + 32 * t + 16 * h if t < 4 else OO
    mu = []
    for d in range(4):
        seq = []
        if t == 4:
            seq += [valu(f"v_accvgpr_read_b32 v{x + 4 * d + i}, a{AX + 16 * h + 4 * d + i}") for i in range(4)]
        if packed:
            seq += [valu(f"v_pk_mul_f32 {R('v', x + 4 * d + 2 * i, 2)}, {R('v', x + 4 * d + 2 * i, 2)}, {R('v', RL(t) + 2 * i, 2)}") for i in range(2)]
        else:
            seq += [valu(f"v_mul_f32 v{x + 4 * d + i}, v{x + 4 * d + i}, v{RL(t) + i}") for i in range(4)]
        mu.append(seq)
    cv = [[valu(f"v_cvt_pk_bf16_f32 v{x + 8 * e + r}, v{x + 8 * e + r}, v{x + 8 * e + 4 + r}") for r in range(4)] for e in range(2)]
    wr = []
    for r in range(4):
        w = ds_write("ds_write2_b32", vEw, f"v{x + r}, v{x + 8 + r}", f"offset0:{36 * r} offset1:{36 * r + 1}", (("K", 1), 99))
        w.rd |= {f"v{x + r}", f"v{x + 8 + r}"}
        wr.append(w)
    rd, st = [], []
    for i in range(2):
        q = ASP + 16 + 8 * (n % 2) + 4 * i
        rd += [ds_read("ds_read_b64_tr_b16", R("a", q + 2 * u, 2), vEr, f"offset:{8 * 144 * i + 32 * u}") for u in range(2)]
        st.append(vstore("buffer_store_dwordx4", R("a", q, 4), vO, sO, (sT, sT8)[i][t], 128 * (h ^ FLIP[0]), OPT["pol_o"] if h == 0 or "pol_o1" not in OPT else OPT["pol_o1"]))
    return mu, cv, wr, rd, st


def final_block(a):
    NQ, NP = 5 - a, 4 + a
    b = Block(f"final role {a}")
    b.lazy = OPT["lazy"]
    b.chainy = True
    save = OPT["walign"]
    OPT["walign"] = 0
    barA, barB = OPT["bara"], OPT["barb"]
    F = lambda i: AVF + 4 * i
    KF = lambda i: AKF + 4 * i
    lo = {28: 0, 29: 0, 30: 0, 31: 0}
    lu = {}
    rest = list(range(2, NP))
    tord = [0, 1, 2, 4, 3] if a == 1 and OPT["xbal"] & 2 else list(range(NP))
    f30, f31 = [[F(d)] for d in range(4)], [[F(4 + d)] for d in range(4)]
    ends = {t: qk_chain(b, t) for t in (0, 1, 2)}
    _, pf = add_pv(b, a, [30], 0, f30, lo, lastuse=lu, ts=[0, 1])
    ends[3] = qk_chain(b, 3)
    if a == 0 and OPT["xearly"]:
        ends[4] = qk_chain(b, 4)
    done0, pf1 = add_pv(b, a, [31], 0, f31, lo, tmajor=True, lastuse=lu, ts=[0, 1])
    X1 = len(b.mf) - 1
    if a == 0 and not OPT["xearly"]:
        ends[4] = qk_chain(b, 4)
    lu.update({KF(s): ends[NQ - 1] - 7 + s for s in range(8)})
    pf.update(add_pv(b, a, [30], 0, f30, lo, lastuse=lu, ts=rest, have=[30])[1])
    add_pv(b, a, [28], 1, [[ASP + 4 * d if a == 0 else KF(d)] for d in range(4)], lo, lastuse=lu, ts=[0, 1, 2, 3] if OPT["xbal"] & 1 else None)
    d2, p2 = add_pv(b, a, [31], 0, f31, lo, tmajor=True, lastuse=lu, ts=rest, have=[31])
    done0.update(d2)
    pf1.update(p2)
    X = len(b.mf) - 1
    pool = [KF(i) for i in range(8)] + [F(i) for i in range(4)] if a == 0 else [KF(4 + i) for i in range(4)] + [F(i) for i in range(4)] + [KF(i) for i in range(4)]
    done1, _ = add_pv(b, a, [29, 30, 31], 1, [pool[3 * d:3 * d + 3] for d in range(4)], lo, lastuse=lu, tmajor=tord if OPT["tm1"] else False)
    G = len(b.mf)
    bar = lambda t: barA if t < 2 else barB
    for t, ins in preads(30, a):
        b.op(ins, "ds", 0, pf[(30, t)] - 10, hard=pf[(30, t)] - 3)
    for t, ins in preads(31, a):
        b.op(ins, "ds", bar(t), pf1[(31, t)] - 12, hard=pf1[(31, t)] - 3)
    add_deferred(b, a, ends, 30)
    adds = add_softmax(b, a, 31, {t: ends[t] for t in (0, 1)}, barA, [], adds_by=barA - 4)
    adds.update(add_softmax(b, a, 31, {t: ends[t] for t in range(2, NQ)}, barB, [], adds_by=barB - 6))
    L = lambda *t: [(("L", x), 0) for x in t]
    lw = {t: b.op(ds_write("ds_write_addtid_b32", None, f"v{vL[t]}", f"offset:{2 * PXA + t * 256}", L(t)), "ds", 0, bar(t) - 8, [adds[t]], hard=bar(t) - 3, m0="p", setter=msetter()) for t in range(NQ)}
    w1 = b.op(valu(f"v_max3_u32 v{TMP}, v{vL[0]}, v{vL[1]}, v{vL[2]}"), "valu", 0, barB - 12, [adds[0], adds[1], adds[2]], hard=barB - 5)
    w2 = b.op(valu(f"v_max3_u32 v{TMP}, v{TMP}, v{vL[3]}, v{vL[NQ - 1]}"), "valu", 0, barB - 11, [w1, adds[3], adds[NQ - 1]], hard=barB - 4)
    b.op(ds_write("ds_write_addtid_b32", None, f"v{TMP}", f"offset:{2 * PXA + 5 * 256}", L(5)), "ds", 0, barB - 9, [w2], hard=barB - 3, m0="p", setter=msetter())
    b.barrier(barA, None, ["w"])
    b.barrier(barB, None, ["w"])
    base = 80
    lr = {}
    for t in (0, 2):
        lr[t] = lr[t + 1] = b.op(ds_read("ds_read2st64_b32", R("v", LP + t, 2), vPr, f"offset0:{base + a * 20 + t} offset1:{base + a * 20 + t + 1}", L(t, t + 1)), "ds", bar(t), bar(t) - 5)
    f1 = b.op(ds_read("ds_read2st64_b32", R("v", FLG, 2), vPr, f"offset0:{base + 5} offset1:{base + 25}", L(5)), "ds", barB, barB + 8)
    f2 = b.op(ds_read("ds_read2st64_b32", R("v", FLG + 2, 2), vPr2, f"offset0:{base + 5} offset1:{base + 25}", L(5)), "ds", barB, barB + 9)
    if a == 1:
        x1 = b.op(ds_read("ds_read_b32", f"v{LP + 4}", vPr, f"offset:{(base + 4) * 256}", L(4)), "ds", barB, barB + 5)
        lr[4] = b.op(ds_read("ds_read_b32", f"v{vL[4]}", vPr2, f"offset:{(base + 4) * 256}", L(4)), "ds", barB, barB + 6, [x1])
    ck = chain_ops(b, [valu(f"v_max3_u32 v{FLG}, v{FLG}, v{FLG + 1}, v{FLG + 2}"), valu(f"v_max_u32 v{FLG}, v{FLG}, v{FLG + 3}"), valu(f"v_cmp_lt_u32 vcc, {sTHR}, v{FLG}")],
                   0, barB + 30, [(f1, 6), (f2, 6)], hard=G - 4)
    if not OPT["abl"]:
        b.scalar(salu(f"s_cbranch_vccnz L_fallback{a}"), (lambda: ck.gap + 1), G - 1)
    rl = {}
    for t in range(NP):
        A_, B_, C_ = RL(t), RL(t) + 1, LP + t
        lim = X1 if t < 2 else X
        seq = [valu(f"v_add_f32 v{A_}, v{vL[t]}, v{C_}"), valu(f"v_add_f32 v{B_}, v{vL[t]}, v{C_}"), valu(f"v_permlane32_swap_b32 v{A_}, v{B_}"),
               valu(f"v_add_f32 v{C_}, v{A_}, v{B_}"), valu(f"v_add_f32 v{B_}, v{A_}, v{B_}"), valu(f"v_permlane16_swap_b32 v{C_}, v{B_}"),
               valu(f"v_add_f32 v{A_}, v{C_}, v{B_}"), valu(f"v_rcp_f32 v{A_}, v{A_}")]
        rc = chain_ops(b, seq, 0, -400 + 10 * t, [(lr[t], 6)], hard=lim)
        pl = 2 * PXA + (6 + t % 4) * 256
        w = b.op(ds_write("ds_write_addtid_b32", None, f"v{A_}", f"offset:{pl}"), "ds", 0, -390 + 10 * t, [rc], hard=lim, m0="p", setter=msetter())
        rl[t] = b.op(ds_read("ds_read_b128", R("v", RL(t), 4), vRr, f"offset:{pl}"), "ds", 0, -389 + 10 * t, [w], hard=lim)
    units = [(t, 0) for t in range(NP)] + [(t, 1) for t in tord]
    nfast = min(2 + OPT["nfast"], NP)
    nin = min(OPT["nin"], NP - nfast)

    def straight(lst, pend):
        o = []
        for n, (t, h) in lst:
            mu, cv, wr, rd, st = unit_instrs(a, t, h, n, True)
            for k in range(len(mu[0])):
                o += [mu[d][k] for d in range(4)]
            o += cv[0] + cv[1]
            o += pend
            o += wr + rd
            pend = st
        return o, pend
    en = list(enumerate(units))
    b.inserts[X1], pend = straight(en[:2], [])
    prev_rd, prev_st = [], {1: [b.op(x, "st", X1 + 6 + i, X1 - 50 + i, hard=X1 + 12) for i, x in enumerate(pend)]}
    if nfast > 2:
        b.inserts[X], pend = straight(en[2:nfast], [])
        prev_st[(nfast - 1) % 2] = [b.op(x, "st", X + 6 + i, X + i, hard=G - 1) for i, x in enumerate(pend)]
    if OPT["tm1"]:
        assert nfast == NP
        for x in prev_st[(nfast - 1) % 2]:
            x.hard = X + 12
        for n, t in enumerate(tord[:-1]):
            at = max(done1[(t, 4)], done1[(t, 7)]) + 4
            if OPT["tm1"] == 1:
                b.inserts[at], pend = straight(en[NP + n:NP + n + 1], [])
            else:
                mu, cv, wr, rd, pend = unit_instrs(a, t, 1, NP + n, False)
                at = min(at + 7, G - 1)
                mo = []
                for d in range(4):
                    pre = [b.op(x, "valu", done1[(t, 4 + d)] + 4, at - 21 + 3 * d, hard=at) for x in mu[d][:-4]]
                    mo.append([b.op(x, "valu", done1[(t, 4 + d)] + 4, at - 20 + 3 * d + i // 2, [(y, 0) for y in pre[i:i + 1]], hard=at) for i, x in enumerate(mu[d][-4:])])
                for e in range(2):
                    for r in range(4):
                        b.op(cv[e][r], "valu", 0, at - 15 + 6 * e, [mo[2 * e][r], mo[2 * e + 1][r]], hard=at)
                b.inserts[at] = wr + rd
            for i, x in enumerate(pend):
                b.op(x, "st", at + 6 + i, at - 50 + i, hard=at + 11)
        nin = 0
        nfast = 2 * NP - 1
    if OPT["stamps"] == 2:
        b.inserts[barA] = stamp(12)
        b.inserts[X1] = stamp(13) + b.inserts[X1]
        b.inserts[barB] = stamp(9)
        b.inserts[X] = stamp(10) + b.inserts.get(X, [])
    assert nin == 0
    out, left = b.schedule(show=OPT["show"] == 31, leftover_ok=True)
    OPT["walign"] = save
    out += stamp(5)
    pend = []
    for o in left:
        if o.ins.kind == "vst":
            pend.append(o.ins)
        else:
            if any(o.ins.wr & x.rd for x in pend):
                out += pend
                pend = []
            out.append(o.ins)
    o2, pend = straight(en[nfast + nin:], pend)
    return out + o2 + pend


def qload(k, i):
    return [vload("buffer_load_dwordx4", R("v", RAW(k, i), 4), vQl, sQ, sT[k], 512 * i, OPT["pol_q"], tag=("Q", k, i))]


def entry():
    o = []
    A = lambda t: o.append(salu(t))
    V = lambda t: o.append(valu(t))
    t0, t1, t2, t3, t4 = (f"v{TMP + i}" for i in range(5))
    A("s_cmp_ge_u32 s2, 256")
    A("s_cbranch_scc1 L_end")
    o.append(raw("s_load_dwordx8 s[4:11], s[0:1], 0"))
    if OPT["stamps"]:
        o.append(raw("s_load_dwordx2 s[56:57], s[0:1], 40"))
        o.append(raw("s_memrealtime s[58:59]"))
    o += stamp(0)
    o.append(raw("s_getpc_b64 s[44:45]"))
    o.append(label("L_pc"))
    A("s_lshr_b32 s54, s2, 3")
    A("s_lshl_b32 s46, s54, 7")
    V(f"v_lshl_add_u32 {t2}, v0, 12, s46")
    if OPT["aux"] & 1:
        A("s_and_b32 s45, s45, 0xffff")
        o.append(raw("s_mov_b32 s46, L_end-L_pc"))
        A("s_mov_b32 s47, 0x20000")
        o.append(vload("buffer_load_dword", "v15", t2, sC, "0"))
    else:
        o.append(I(f"v_min_u32 {t2}, L_end-L_pc, {t2}", "valu", [t2], [t2]))
        V(f"v_mov_b32 {t3}, 0")
        V(f"v_lshl_add_u64 {R('v', TMP + 2, 2)}, {R('v', TMP + 2, 2)}, 0, s[44:45]")
        o.append(I(f"global_load_dword v15, {R('v', TMP + 2, 2)}, off", "vld", [t2, t3], ["v15"]))
    V(f"v_lshrrev_b32 {t1}, 6, v0")
    A(f"s_mov_b64 {sKEEP}, 0")
    V(f"v_readfirstlane_b32 {sW}, {t1}")
    A(f"s_mov_b32 {sTHR}, {(127 + OPT['thr']) << 23:#x}")
    if OPT["prof"]:
        A("s_mov_b32 s3, 0")
    A("s_and_b32 s53, s2, 7")
    A("s_lshl_b32 s53, s53, 3")
    A("s_lshr_b32 s55, s2, 5")
    A("s_add_u32 s53, s53, s55")
    A("s_and_b32 s54, s54, 3")
    A("s_lshl_b32 s55, s53, 2")
    A("s_add_u32 s55, s55, s54")
    A("s_mul_i32 s37, s55, 73728")
    A("s_lshl_b32 s53, s53, 19")
    A(f"s_lshr_b32 {sA}, {sW}, 1")
    A(f"s_and_b32 {sB}, {sW}, 1")
    A(f"s_add_u32 s54, {sW}, 1")
    A("s_and_b32 s55, s54, 1")
    A("s_lshl_b32 s55, s55, 3")
    A("s_lshr_b32 s54, s54, 1")
    A("s_and_b32 s54, s54, 1")
    A("s_add_u32 s54, s54, s55")
    A("s_mul_i32 s54, s54, 1040")
    A(f"s_add_u32 {sKm}, s54, {KRING}")
    A("s_mov_b32 s48, 8192")
    A("s_mov_b32 s49, 16384")
    A("s_mov_b32 s50, 24576")
    A(f"s_mov_b32 {sX}, 65536")
    for srd, n in ((16, 524288), (12, 73728), (20, 524288), (24, 73728)):
        A(f"s_mov_b32 s{srd + 2}, {n}")
        A(f"s_mov_b32 s{srd + 3}, 0x20000")

    def src_offsets():
        V(f"v_and_b32 {t0}, 31, v0")
        V(f"v_lshlrev_b32 {t0}, 4, {t0}")
        V(f"v_bfe_u32 {t2}, v0, 5, 1")
        A(f"s_lshl_b32 s54, {sW}, 11")
        V(f"v_add_u32 {t1}, s54, {t0}")
        V(f"v_lshl_add_u32 {vKd}, {t2}, 13, {t1}")
        V(f"v_lshl_add_u32 {vQl}, {t2}, 15, {t1}")
        V(f"v_lshl_add_u32 {vQlx}, {t2}, 9, {t1}")
        if OPT["rot"]:
            A("s_and_b32 s54, s2, 7")
            A(f"s_mul_i32 s54, s54, {OPT['rot'] // 100}")
            A("s_lshr_b32 s55, s2, 5")
            A(f"s_mul_i32 s55, s55, {OPT['rot'] % 100}")
            A("s_add_u32 s54, s54, s55")
            A("s_and_b32 s54, s54, 31")
            A(f"s_lshl_b32 {sKo}, s54, 14")
            A(f"s_mov_b32 {sVo}, {sKo}")
        else:
            A(f"s_mov_b32 {sKo}, 0")
            A(f"s_mov_b32 {sVo}, 0")
    src_offsets()
    o.append(raw("s_waitcnt lgkmcnt(0)"))
    o += stamp(8)
    for srd, ptr, off in ((16, 6, "s53"), (12, 4, "s37"), (20, 8, "s53"), (24, 10, "s37")):
        A(f"s_add_u32 s{srd}, s{ptr}, {off}")
        A(f"s_addc_u32 s{srd + 1}, s{ptr + 1}, 0")
        A(f"s_and_b32 s{srd + 1}, s{srd + 1}, 0xffff")
    o.append(label("L_restart"))
    if OPT["glds"]:
        A(f"s_mov_b64 {sKg}, s[16:17]")
        A(f"s_mov_b64 {sVg}, s[20:21]")
    for i in range(4):
        o += dma_piece("K", 0, i) if not OPT["qfirst"] else []
    for i in range(2):
        o.append(vload("buffer_load_dwordx4", R("v", RAWX + 4 * i, 4), vQlx, sQ, sX, 1024 * i, OPT["pol_q"], tag=("Q", 4, i)))
    for i in range(4):
        o += qload(0, i) if OPT["qfirst"] else []
    if OPT["touch"] & 1:
        o.append(I("buffer_load_dword v14, off, s[20:23], 0", "vld", regs(sV), ["v14"]))
    if OPT["touch"] & 2:
        o.append(I("buffer_load_dword v14, off, s[24:27], 0", "vld", regs(sO), ["v14"]))
    if OPT["thr1"] or OPT["thr2"] or OPT["stamps"]:
        o.append(raw("s_getreg_b32 s37, hwreg(HW_REG_XCC_ID, 0, 4)" if not OPT.get("thrkey") else "s_lshr_b32 s37, s2, 5"))
    if OPT["thr1"]:
        o.append(raw(f"s_lshr_b32 s54, {OPT['thr1']}, s37\n    s_bitcmp1_b32 s54, 0\n    s_cbranch_scc1 L_thr1\nL_thr1b:"))
    if OPT["ibar"]:
        o.append(barrier())
    for i in range(4):
        o += qload(0, i) if not OPT["qfirst"] else dma_piece("K", 0, i)
    if OPT["stamps"] == 4:
        o += stamp(9)
    if OPT["stouch"]:
        for i in range(1, OPT["stouch"] + 1):
            o.append(raw(f"s_load_dword s9, s[44:45], {i * 4096 - 128}"))
    A(f"s_lshl_b32 s54, {sB}, 11")
    A(f"s_lshl_b32 s55, {sA}, 13")
    A("s_add_u32 s54, s54, s55")
    V(f"v_lshl_add_u32 {vVd}, {t2}, 12, {t0}")
    V(f"v_add_u32 {vVd}, s54, {vVd}")
    A(f"s_add_u32 s54, {sKm}, {3 * SLOT}")
    V(f"v_lshl_add_u32 {vQw}, {t2}, 9, {t0}")
    V(f"v_add_u32 {vQw}, s54, {vQw}")
    V(f"v_add_u32 {vQw2}, {4 * SLOT}, {vQw}")
    A(f"s_sub_u32 s54, {sKm}, {KRING - PXA}")
    V(f"v_mul_u32_u24 {vQwx}, 2080, {t2}")
    V(f"v_add3_u32 {vQwx}, {vQwx}, {t0}, s54")
    A(f"s_mul_i32 s54, {sB}, 8320")
    A(f"s_lshl_b32 s55, {sA}, 10")
    A("s_add_u32 s54, s54, s55")
    A(f"s_add_u32 {sVm}, s54, {VRING}")
    A(f"s_mul_i32 {sPm}, {sW}, 2560")
    V(f"v_and_b32 {t0}, 15, v0")
    V(f"v_bfe_u32 {t1}, v0, 4, 1")
    V(f"v_lshlrev_b32 {t3}, 5, {t1}")
    V(f"v_lshl_add_u32 {t3}, {t2}, 4, {t3}")
    V(f"v_add_u32 {t4}, 4, {t0}")
    V(f"v_bfe_u32 {vKr0}, {t4}, 3, 1")
    V(f"v_and_b32 {t4}, 7, {t4}")
    V(f"v_lshl_add_u32 {vKr0}, {t4}, 1, {vKr0}")
    V(f"v_mul_u32_u24 {vKr0}, 1040, {vKr0}")
    V(f"v_add_u32 {vKr0}, {vKr0}, {t3}")
    V(f"v_add_u32 {vQrx}, {PXA}, {vKr0}")
    V(f"v_add_u32 {vKr0}, {KRING}, {vKr0}")
    A(f"s_lshl_b32 s54, {sB}, 9")
    V(f"v_add_u32 {vKr}, s54, {vKr0}")
    A(f"s_lshl_b32 s54, {sA}, 9")
    A(f"s_add_u32 s54, s54, {3 * SLOT}")
    V(f"v_add_u32 {vQr}, s54, {vKr0}")
    V(f"v_add_u32 {vQr2}, {4 * SLOT}, {vQr}")
    A(f"s_lshl_b32 s54, {sB}, 9")
    A("s_sub_u32 s54, 512, s54")
    V(f"v_add_u32 {vKr0}, s54, {vKr0}")
    V(f"v_bfe_u32 {t4}, v0, 2, 2")
    V(f"v_mul_u32_u24 {vV0}, 2064, {t4}")
    V(f"v_mul_u32_u24 {t4}, 8320, {t1}")
    V(f"v_add_u32 {vV0}, {vV0}, {t4}")
    V(f"v_lshl_add_u32 {vV0}, {t2}, 9, {vV0}")
    V(f"v_bfe_u32 {t4}, v0, 1, 1")
    V(f"v_lshl_add_u32 {vV0}, {t4}, 6, {vV0}")
    V(f"v_and_b32 {t4}, 1, v0")
    V(f"v_lshl_add_u32 {vV0}, {t4}, 3, {vV0}")
    A(f"s_mul_i32 s54, {sB}, {256 + 1024}")
    A(f"s_add_u32 s54, s54, {VRING}")
    A(f"s_mul_i32 s55, {sB}, {1024 - 256}")
    A(f"s_sub_u32 s55, {VRING + 1024}, s55")
    V(f"v_add_u32 {vV1}, s55, {vV0}")
    V(f"v_add_u32 {vV0}, s54, {vV0}")
    V(f"v_and_b32 {t4}, 63, v0")
    V(f"v_lshlrev_b32 {t4}, 2, {t4}")
    A(f"s_mul_i32 s54, {sB}, 2560")
    A("s_sub_u32 s55, 2560, s54")
    V(f"v_add_u32 {vPr2}, s54, {t4}")
    V(f"v_add_u32 {vPr}, s55, {t4}")
    A(f"s_mul_i32 s55, {sW}, 2304")
    A(f"s_add_u32 s55, s55, {KRING + SLOT}")
    V(f"v_bfe_u32 {t4}, v0, 4, 2")
    V(f"v_mul_u32_u24 {vEw}, {4 * 144}, {t4}")
    V(f"v_lshl_add_u32 {vEw}, {t0}, 3, {vEw}")
    V(f"v_add_u32 {vEw}, s55, {vEw}")
    V(f"v_lshl_add_u32 {vRr}, {t4}, 4, {sPm}")
    V(f"v_bfe_u32 {t1}, v0, 1, 1")
    V(f"v_lshl_add_u32 {t4}, {t4}, 1, {t1}")
    V(f"v_mul_u32_u24 {vEr}, 144, {t4}")
    V(f"v_and_b32 {t1}, 1, v0")
    V(f"v_lshl_add_u32 {vEr}, {t1}, 6, {vEr}")
    V(f"v_bfe_u32 {t1}, v0, 2, 2")
    V(f"v_lshl_add_u32 {vEr}, {t1}, 3, {vEr}")
    V(f"v_add_u32 {vEr}, s55, {vEr}")
    V(f"v_bfe_u32 {t4}, v0, 3, 3")
    V(f"v_and_b32 {t1}, 7, v0")
    V(f"v_lshlrev_b32 {t1}, 4, {t1}")
    A(f"s_lshl_b32 s54, {sA}, 15")
    A(f"s_lshl_b32 s55, {sB}, 8")
    A("s_add_u32 s55, s55, s54")
    A("s_sub_u32 s51, 65536, s54")
    V(f"v_lshl_add_u32 {vO}, {t4}, 9, {t1}")
    V(f"v_add_u32 {vO}, s55, {vO}")
    for t in range(5):
        A(f"s_add_u32 {sT8[t]}, {sT[t]}, 4096" if t else f"s_mov_b32 {sT8[0]}, 4096")
    c = struct.unpack("<I", struct.pack("<f", math.log2(math.e) / 16.0))[0]
    A(f"s_mov_b32 s40, {c:#x}")
    A(f"s_mov_b32 s41, {c:#x}")
    A(f"s_mov_b32 {sMASK}, 0xffff0000")
    for t in range(5):
        V(f"v_mov_b32 v{vL[t]}, 0")
    for t in range(4):
        for i in range(8):
            if OPT["obias"]:
                V(f"v_mov_b32 v{OO + 32 * t + 16 + 2 * i}, {obc()}")
                V(f"v_mov_b32 v{OO + 32 * t + 16 + 2 * i + 1}, {obc()}")
            else:
                V(f"v_mov_b64 {R('v', OO + 32 * t + 16 + 2 * i, 2)}, 0")
    for i in range(16):
        V(f"v_accvgpr_write_b32 a{AX + 16 + i}, {f'v{OO + 16}' if OPT['obias'] else 0}")
        if OPT["obias"]:
            V(f"v_accvgpr_write_b32 a{AX + i}, v{OO + 16}")
    if OPT["stamps"] == 4:
        o += stamp(10)
    A(f"s_cmp_eq_u32 {sA}, 1")
    A("s_cbranch_scc1 L_role1")
    o2 = []
    o, keep = o2, o
    src_offsets()
    return keep, o2


def scale4(src):
    o = []
    T = SCT
    for i in range(4):
        o.append(valu(f"v_lshlrev_b32 v{T + 2 * i}, 16, v{src + i}"))
        o.append(valu(f"v_and_b32 v{T + 2 * i + 1}, {sMASK}, v{src + i}"))
    for i in range(4):
        o.append(valu(f"v_pk_mul_f32 {R('v', T + 2 * i, 2)}, {R('v', T + 2 * i, 2)}, {sSC}"))
    for i in range(4):
        o.append(valu(f"v_cvt_pk_bf16_f32 v{src + i}, v{T + 2 * i}, v{T + 2 * i + 1}"))
    return o


QST = {0: (("V", 1), vQw, vQr, 2 * SLOT), 1: (("K", 3), vQw, vQr, 0), 2: (("V", 2), vQw, vQr, 3 * SLOT), 3: (("V", 3), vQw2, vQr2, 0)}


def stage_write(k, i):
    if k == 4:
        return ds_write("ds_write_b128", vQwx, R("v", RAWX + 4 * i, 4), f"offset:{4160 * i}", QXTAG)
    reg, wb, rb, off = QST[k]
    return ds_write("ds_write_b128", wb, R("v", RAW(k, i), 4), f"offset:{off + 2080 * i}", (reg, -1))


def stage_load(k, i, feed):
    src = RAWX + 4 * i if k == 4 else RAW(k, i)
    return [wait(vm=[("Q", k, i)])] + feed(("Q", k, i)) + scale4(src) + [stage_write(k, i)]


def stage_in(k, feed):
    o = []
    for i in range(2 if k == 4 else 4):
        o += stage_load(k, i, feed)
    return o


def stage_read(k):
    if k == 4:
        return [ds_read("ds_read_b128", Qf(4, s), vQrx, f"offset:{64 * s}", QXTAG) for s in range(8)]
    reg, wb, rb, off = QST[k]
    return [ds_read("ds_read_b128", Qf(k, s), rb, f"offset:{off + 64 * s}", (reg, -1)) for s in range(8)]


def stage_compute(t):
    mf, m1, m2, cm, sb, ex, cv, ad = first_tile_instrs(t)
    o = mf + m1 + m2 + cm + sb + ex + cv
    if t == 4:
        o += [msetter(), ad[0]] + [pwrite(0, t, h) for h in range(2)] + ad[1:]
    else:
        o += ad
    return o


def prologue(a):
    o = [label(f"L_role{a}")] + aux_setup(a) + [salu(f"s_mov_b32 {sCNT}, {(24 if OPT['early'] else 28) // 4 - (1 if OPT['peel0'] else 0)}")]
    if OPT["walk"]:
        o.append(raw(f"s_mov_b64 vcc, -1\n    s_cmp_eq_u32 {sB}, 0\n    s_cbranch_scc1 L_pad{a}_0\n    s_branch L_pad{a}_1\nL_walked{a}:\n    s_mov_b64 vcc, 0"))
    seq = {0: "Q1 Q2 Q3 K1 V0 K2 V1 K3", 1: "Q1 K1 Q2 V0 Q3 K2 V1 K3", 2: "Q1 Q2 K1 Q3 V0 K2 V1 K3", 3: "K1 Q1 V0 Q2 K2 Q3 V1 K3", 4: "Q1 Q2 K1 V0 Q3 K2 V1 K3", 5: "K1 Q1 Q2 V0 Q3 K2 V1 K3"}[OPT["order"]]
    full = [("K", 0, i) for i in range(4)] + [("Q", 4, i) for i in range(2)] + [("Q", 0, i) for i in range(4)]
    if OPT["qfirst"]:
        full = full[4:] + full[:4]
    order = [(x[0], int(x[1]), i) for x in seq.split() for i in range(4)]
    if OPT["split"]:
        n = 0
        while n + 8 <= len(order):
            if order[n][0] != "Q" and order[n + 4][0] == "Q":
                sp = OPT["split"]
                order[n:n + 8] = order[n + 4:n + 4 + sp] + order[n:n + 4] + order[n + 4 + sp:n + 8]
                n += 4
            n += 4
    full += order

    def feed(landed):
        r = []
        stage = -1 if landed[1] == 4 else landed[1]
        while order and full.index(order[0]) <= full.index(landed) + OPT["win"]:
            x = order[0]
            if (x[:2] == ("V", 1) and stage < 2) or (x[:2] == ("K", 3) and stage < 3) or (landed == ("Q", 3, 3) and not OPT["lastfeed"]):
                break
            order.pop(0)
            r += qload(x[1], x[2]) if x[0] == "Q" else dma_piece(*x)
            if OPT["spf"] and x == [("Q", 3, 3), ("K", 2, 3), ("V", 1, 3), ("Q", 2, 3), ("V", 0, 3)][OPT["spfat"]]:
                r.append(vload("buffer_load_dword", vAuxC, vAuxC, sP, "0"))
        return r
    if OPT["thr2"]:
        o.append(raw(f"s_lshr_b32 s54, {OPT['thr2']}, s37\n    s_bitcmp1_b32 s54, 0\n    s_cbranch_scc1 L_thr2{a}\nL_thr2b{a}:"))
    o += stage_in(4, feed)
    if OPT["qfirst"]:
        o += stage_in(0, feed) + [wait(vm=[("K", 0)])] + feed(("K", 0, 3))
    o.append(wait(vm=[("K", 0)], lg="all"))
    o.append(barrier())
    o += stamp(1)
    for s in range(8):
        o.append(kread(0, s, vKr, R("a", AVF + 4 * s, 4)))
    if a == 0:
        o += stage_read(4)
    for s in range(8):
        o.append(kread(0, s, vKr0, R("a", ASP + 4 * s, 4)))
    ps = iter([3, 4, 5, 6, 7, 8, 9, 10, 11, 12, 13, 14])
    pst = lambda: stamp(next(ps), 3)
    o += pst()
    if not OPT["qfirst"]:
        o += stage_in(0, feed)
    for k in range(4):
        o += pst()
        if k or not OPT["qfirst"]:
            o.append(wait(vm={OPT["k1stage"]: [("K", 1)], 3: [("V", 0)]}.get(k), lg="all"))
            o.append(barrier())
        if k < 3:
            o += pst() + pst()
            o += stage_block(a, k, feed)
    o += stamp(2)
    return o, order


def aux_setup(a):
    o = []
    if OPT["spf"]:
        n = OPT["spf"] * 16
        o.append(salu("s_lshr_b32 s54, s2, 3"))
        o.append(salu("s_and_b32 s54, s54, 3"))
        o.append(salu(f"s_mul_i32 s54, s54, {2 * n * 128}"))
        o.append(salu(f"s_cmp_eq_u32 {sB}, 0"))
        o.append(salu(f"s_cselect_b32 s55, {OPT['spfk']}, {OPT['spfv']}"))
        o.append(salu("s_cselect_b32 s88, s16, s20"))
        o.append(salu("s_cselect_b32 s89, s17, s21"))
        o.append(salu("s_lshl_b32 s55, s55, 14"))
        o.append(salu("s_add_u32 s54, s54, s55"))
        o.append(salu(f"s_add_u32 s54, s54, {a * n * 128}"))
        o.append(salu("s_mov_b32 s90, 524288"))
        o.append(salu("s_mov_b32 s91, 0x20000"))
        o.append(valu(f"v_and_b32 {vAuxC}, 63, v0"))
        o.append(valu(f"v_min_u32 {vAuxC}, {n - 1}, {vAuxC}"))
        o.append(valu(f"v_lshl_add_u32 {vAuxC}, {vAuxC}, 7, s54"))
    if OPT["pf31"]:
        n = (32 - OPT["pft0"]) * 8
        o.append(salu("s_lshr_b32 s54, s2, 3"))
        o.append(salu("s_and_b32 s54, s54, 3"))
        o.append(salu("s_lshl_b32 s54, s54, 2"))
        o.append(salu(f"s_add_u32 s54, s54, {sW}"))
        o.append(salu(f"s_mul_i32 s54, s54, {n * 128}"))
        o.append(salu(f"s_add_u32 s54, s54, {(OPT['pft0'] * 16384 - (0 if OPT['early'] else ((OPT['pf31'] - (5 if OPT['peel0'] else 1)) // 4) << 24)) & 0xffffffff:#x}"))
        o.append(valu(f"v_and_b32 {vAuxT}, 63, v0"))
        o.append(valu(f"v_min_u32 {vAuxT}, {n - 1}, {vAuxT}"))
        o.append(valu(f"v_lshl_add_u32 {vAuxT}, {vAuxT}, 7, s54"))
    if OPT["aux"]:
        o.append(salu("s_lshr_b32 s54, s2, 3"))
        o.append(salu("s_lshl_b32 s55, s54, 7"))
        o.append(valu(f"v_lshl_add_u32 {vAuxC}, v0, 12, s55"))
    if OPT["aux"] & 2:
        piece = (32 - OPT["auxt0"]) * 16384 // OPT["auxn"]
        before = len([j for j in range(1, OPT["auxend"] + 1) if (j - OPT["auxend"]) % OPT["auxper"] == 0]) - OPT["auxn"]
        o.append(salu("s_and_b32 s54, s54, 3"))
        o.append(salu(f"s_mul_i32 s54, s54, {piece // 4}"))
        o.append(salu(f"s_add_u32 s54, s54, {(a * piece // 8 - before * piece) & 0xffffffff:#x}"))
        o.append(valu(f"v_and_b32 {vAuxT}, 63, v0"))
        o.append(valu(f"v_cmp_le_u32 vcc, {piece // 1024}, {vAuxT}"))
        o.append(valu(f"v_lshl_add_u32 {vAuxT}, {vAuxT}, 7, s54"))
        o.append(valu(f"v_cndmask_b32 {vAuxT}, {vAuxT}, 2.0, vcc"))
        o.append(salu(f"s_cmp_eq_u32 {sB}, 0"))
        o.append(salu("s_cselect_b32 s88, s16, s20"))
        o.append(salu("s_cselect_b32 s89, s17, s21"))
        o.append(salu(f"s_add_u32 s88, s88, {OPT['auxt0'] * 16384}"))
        o.append(salu("s_addc_u32 s89, s89, 0"))
        o.append(salu(f"s_mov_b32 s90, {(32 - OPT['auxt0']) * 16384}"))
        o.append(salu("s_mov_b32 s91, 0x20000"))
        if OPT["holes"]:
            o.append(salu("s_mov_b64 s[84:85], s[88:89]"))
            o.append(salu("s_mov_b32 s86, 0"))
            o.append(salu("s_mov_b32 s87, 0x20000"))
    return o


def finish(a):
    o = stamp(6)
    if OPT.get("amp"):
        lo, hi, base = OPT["amp"] // 100, OPT["amp"] % 100, OPT["ampbase"]
        o.append(raw("s_waitcnt vmcnt(0)"))
        o += stamp(7)
        o.append(raw(f"s_waitcnt lgkmcnt(0)\ns_and_b32 s95, s2, {OPT.get('ampmask', 255)}\ns_cmp_lg_u32 s95, {OPT.get('ampwg', 40)}\ns_cbranch_scc1 L_end\ns_sub_u32 s94, s{60 + 2 * hi}, s{60 + 2 * lo}\ns_sub_u32 s94, s94, {base}\ns_max_i32 s94, s94, 0\ns_mul_i32 s94, s94, {OPT.get('amprt', 1)}\ns_min_u32 s94, s94, 20000\ns_add_u32 s94, s94, 6000"))
        o.append(raw(f"L_amp{a}:\ns_memrealtime s[92:93]\ns_waitcnt lgkmcnt(0)\ns_sub_u32 s92, s92, s58\ns_cmp_lt_u32 s92, s94\ns_cbranch_scc1 L_amp{a}"))
    elif OPT["stamps"]:
        o.append(raw("s_waitcnt vmcnt(0)"))
        o += stamp(7)
        o.append(raw("s_memrealtime s[92:93]"))
        o.append(raw("s_waitcnt lgkmcnt(0)"))
        o.append(raw("s_mov_b32 s96, s56\ns_and_b32 s97, s57, 0xffff\ns_mov_b32 s98, 0x100000\ns_mov_b32 s99, 0x20000"))
        o.append(raw(f"s_lshl_b32 s94, s2, 2\ns_add_u32 s94, s94, {sW}\ns_lshl_b32 s94, s94, 7"))
        for i in range(16):
            o.append(raw(f"v_mov_b32 v{64 + i}, s{60 + 2 * i}"))
        o.append(raw("v_mov_b32 v80, s58\nv_mov_b32 v81, s92\nv_mov_b32 v82, s37\nv_mov_b32 v83, 0\nv_mov_b32 v84, 0"))
        if OPT["prof"]:
            o.append(raw("v_lshlrev_b32 v85, 2, v0\ns_lshl_b32 s95, s2, 10\ns_add_u32 s95, s95, 0x40000\nbuffer_store_dword v127, v85, s[96:99], s95 offen"))
        o.append(raw("s_mov_b64 exec, 1"))
        for i in range(5):
            o.append(raw(f"buffer_store_dwordx4 v[{64 + 4 * i}:{67 + 4 * i}], v84, s[96:99], s94 offen offset:{16 * i}"))
    o.append(raw("s_endpgm"))
    return o


def fallback(a, redo):
    NQ = 5 - a
    M, AD = PP, PP + 8
    o = [label(f"L_fallback{a}")]
    o.append(raw("s_waitcnt vmcnt(0) lgkmcnt(0)"))
    o.append(nop(7))
    o.append(salu("s_mov_b32 s18, 524288"))
    o.append(valu(f"v_and_b32 v{AD}, 15, v0"))
    o.append(valu(f"v_lshlrev_b32 v{AD}, 9, v{AD}"))
    o.append(valu(f"v_bfe_u32 v{AD + 1}, v0, 4, 1"))
    o.append(valu(f"v_lshl_add_u32 v{AD}, v{AD + 1}, 5, v{AD}"))
    o.append(valu(f"v_bfe_u32 v{AD + 1}, v0, 5, 1"))
    o.append(valu(f"v_lshl_add_u32 v{AD}, v{AD + 1}, 4, v{AD}"))
    for t in range(NQ):
        o.append(valu(f"v_mov_b32 v{M + t}, 0xff800000"))
    o.append(salu("s_mov_b32 s54, 0"))
    o.append(label(f"L_fbloop{a}"))
    for s in range(8):
        o.append(vload("buffer_load_dwordx4", Kf(s), f"v{AD}", sK, "s54", 64 * s))
    for t in range(NQ):
        for s in range(8):
            o.append(mfma(S(t), Kf(s), Qf(t, s), "0" if s == 0 else S(t)))
    for t in range(NQ):
        s0 = SS + 4 * t
        o.append(valu(f"v_max3_f32 v{M + t}, v{s0}, v{s0 + 1}, v{M + t}"))
        o.append(valu(f"v_max3_f32 v{M + t}, v{s0 + 2}, v{s0 + 3}, v{M + t}"))
    o.append(salu("s_add_u32 s54, s54, 8192"))
    o.append(salu("s_cmp_lt_u32 s54, 524288"))
    o.append(salu(f"s_cbranch_scc1 L_fbloop{a}"))
    for t in range(NQ):
        o += xlane("v_max_f32", M + t, AD + 1)
        for r in range(4):
            o.append(valu(f"v_sub_f32 v{NEGM + 4 * t + r}, 0, v{M + t}"))
    o.append(salu(f"s_mov_b64 {sKEEP}, -1"))
    o.append(salu(f"s_mov_b32 {sTHR}, -1"))
    o += redo
    o.append(barrier())
    o.append(salu("s_branch L_restart"))
    return o


def check_scalars(out):
    m0, cnt, seen, scc = None, {"K": 0, "V": 0}, set(), None
    for x in out:
        for ln in x.text.split("\n"):
            ln = ln.strip()
            if re.match(r"s_\w+ m0,", ln):
                m0 = ln
            for kind in "KV":
                if ln == bump(kind).text.split("\n")[0]:
                    cnt[kind] += 1
            if re.match(r"s_(cmp|add|sub|and|or|lshl|lshr|bitcmp|min|max)", ln):
                scc = ln
            if re.match(r"s_cbranch_scc|s_cselect", ln):
                assert scc.startswith(("s_cmp", "s_bitcmp")), (ln, scc)
        if x.kind == "dma":
            assert m0 == x.note[0], (x.text, m0, x.note)
            assert cnt[x.tag[0]] == x.tag[1], (x.text, x.tag, cnt)
            assert (x.tag, x.note[1]) not in seen
            seen.add((x.tag, x.note[1]))
        if x.text.startswith("ds_write_addtid"):
            assert m0 == msetter().text or OPT["prof"], (x.text, m0)
    for kind in "KV":
        for t in range(32):
            for i in range(4):
                assert ((kind, t), i) in seen, (kind, t, i)


def ablate(lines, lo, hi):
    ab = OPT["abl"]
    for n in range(lo, hi):
        l = lines[n]
        if (ab & 1 and l.endswith(" lds")) or (ab & 2 and l == "s_barrier") or (ab & 4 and l.startswith("ds_write")) or (ab & 8 and l.startswith("ds_read2")) \
           or (ab & 16 and l.startswith("ds_read_b64_tr")) or (ab & 32 and l.startswith("ds_read_b128")) or (ab & 64 and l.startswith("s_waitcnt")) \
           or (ab & 4096 and l.startswith("v_add_f32")):
            lines[n] = "; ablated"
        if ab & 8192 and l.startswith("v_add_f32") and not l.startswith("v_add_f32 v12"):
            lines[n] = "; ablated"
        if ab & 16384 and l.startswith("ds_read_b128 a[16") and l.split()[1] in ("a[160:163],", "a[168:171],"):
            k = n + 1
            while not lines[k].startswith("v_mfma"):
                k += 1
            pb = int(re.findall(r"v\[(\d+):", lines[k].split(",")[2] + " v[64:")[0]) & ~15
            off, acc = (2, 240) if "160" in l else (10, 244)
            lines[k] = f"v_mfma_f32_16x16x32_bf16 a[{acc}:{acc + 3}], a[248:251], v[{pb + off}:{pb + off + 3}], a[{acc}:{acc + 3}]\n    " + lines[k]
        if ab & 32768 and l.startswith("v_mfma"):
            p = [x.strip() for x in l.split(None, 1)[1].split(",")]
            if re.match(r"a\[(19[2-9]|2[01]\d|22[0-3]):", p[1]):
                lines[n] = f"v_mfma_f32_16x16x32_bf16 {p[0]}, {p[2]}, {p[1]}, {p[3]}"
        if ab & 65536 and l.startswith("v_mfma"):
            p = [x.strip() for x in l.split(None, 1)[1].split(",")]
            if re.match(r"a\[(1[678]\d):", p[1]):
                lines[n] = f"v_mfma_f32_16x16x32_bf16 {p[0]}, {p[2]}, {p[1]}, {p[3]}"
        if ab & 131072 and l.startswith("s_add_u32 m0, s3"):
            p = l.split(", ")
            lines[n] = f"s_add_u32 m0, {'s86' if p[1] == 's34' else 's87'}, {int(p[2]) & ~127}"
        if ab & 256 and l.startswith("s_waitcnt vmcnt"):
            lines[n] = re.sub(r"vmcnt\(\d+\) ", "", l)


PADS = [0, 0]


def build2():
    src = build()
    if OPT["lpad"] < 0:
        return src
    import subprocess, tempfile, os
    d = tempfile.mkdtemp()
    stubs = "\n.text\n" + "\n".join(f"L_pad{a}_{k}:" for a in (0, 1) for k in (0, 1)) + "\n" if OPT["walk"] else ""
    open(d + "/k.s", "w").write(src + stubs)
    cc = ["clang", "-x", "assembler", "-target", "amdgcn-amd-amdhsa", "-mcpu=gfx950", "-c", d + "/k.s", "-o", d + "/k.o"]
    subprocess.run(cc, check=True)
    sym = subprocess.run(["llvm-readelf", "-s", d + "/k.o"], capture_output=True, text=True).stdout
    ad = {l.split()[-1]: int(l.split()[1], 16) for l in sym.splitlines() if " L_" in l}
    for a in (0, 1):
        PADS[a] = (OPT.get(f"lpad{a}", OPT["lpad"]) - (ad[f"L_loop{a}"] - ad[f"L_role{a}"])) % 4096
    src = build()
    if not OPT["walk"]:
        return src
    L = src.split("\n")
    tmp = [(f"L_a{n}:\n" if l.startswith("    ") and not l.strip().startswith(";") else "") + l for n, l in enumerate(L)]
    open(d + "/k.s", "w").write("\n".join(tmp) + stubs)
    subprocess.run(cc, check=True)
    sym = subprocess.run(["llvm-readelf", "-s", d + "/k.o"], capture_output=True, text=True).stdout
    ad = {l.split()[-1]: int(l.split()[1], 16) for l in sym.splitlines() if " L_" in l}
    ins = {}
    for a in (0, 1):
        lo = [n for n, l in enumerate(L) if l.strip() == "; interval 0"][a]
        if OPT["walk"] >= 2:
            lo = L.index(f"L_walked{a}:") + (260 if OPT["walk"] == 2 else 4)
        hi = L.index(f"L_fallback{a}:")
        hi = max(n for n in range(lo, hi) if "buffer_store_dwordx4 a[" in L[n])
        rows = [n for n in range(lo, hi) if f"L_a{n}" in ad]
        sites, shift = [], 0
        page = (ad[f"L_a{rows[0]}"] >> 12) + 1
        for i, n in enumerate(rows[1:], 1):
            at = ad[f"L_a{n}"] + shift
            prev, cur = L[rows[i - 1]].strip(), L[n].strip()
            good = prev.startswith("v_mfma") and not cur.startswith(("s_", "buffer_"))
            if at >= page * 4096 + 8 and (good or at >= page * 4096 + 44) and not cur.startswith(("s_cselect", "s_addc")):
                sites.append(n)
                shift += 4
                page += 1
        assert 2 <= len(sites) <= 6, sites
        vc = [n for n in range(L.index(f"L_walked{a}:") + 2, hi) if "vcc" in L[n]]
        assert len(vc) in (1, 2) and not any(vc[0] < n and (len(vc) == 1 or n <= vc[1]) for n in sites), (vc, sites)
        for k, n in enumerate(sites):
            nxt = f"L_pad{a}_{k + 2}" if k + 2 < len(sites) else f"L_walked{a}"
            ins[n] = f"L_pad{a}_{k}:\n    s_cbranch_vccnz {nxt}"
        print(f"; role {a}: pads at lines {sites}", file=sys.stderr)
    return "\n".join((ins[n] + "\n" if n in ins else "") + l for n, l in enumerate(L))


def abl_init():
    if OPT["w64"]:
        return [raw("v_and_b32 v16, 63, v0\nv_lshlrev_b32 v16, 2, v16\nv_lshl_add_u32 v18, v16, 1, s36\nv_add_u32 v16, v16, v6")]
    if OPT["abl"] & 131072:
        return [raw("s_and_b32 s86, s34, 0xffffff80\ns_and_b32 s87, s35, 0xffffff80")]
    if not OPT["abl"] & 16384:
        return []
    full = OPT.get("onesfull")
    return [raw("v_and_b32 v16, 15, v0\nv_mov_b32 v17, 0x3f803f80\nv_cmp_eq_u32 vcc, 0, v16\ns_nop 1\nv_cndmask_b32 v20, 0, v17, vcc\nv_cmp_eq_u32 vcc, 1, v16\ns_nop 1\nv_cndmask_b32 v16, 0, v17, vcc\n"
                + ("v_mov_b32 v20, v17\nv_mov_b32 v16, v17\n" if full else "")
                + "v_accvgpr_write_b32 a248, v20\nv_accvgpr_write_b32 a249, v20\nv_accvgpr_write_b32 a250, v16\nv_accvgpr_write_b32 a251, v16\n" + "\n".join(f"v_accvgpr_write_b32 a{240 + i}, 0" for i in range(8)))]


def build():
    j0, j1 = (5 if OPT["peel0"] else 1), (25 if OPT["early"] else 29)
    ent, redo = entry()
    text, evs = [], []
    for a in (0, 1):
        FLIP[0] = a if OPT["hflip"] else 0
        pro, rest = prologue(a)
        tr = list(ent) + [raw(";;ROLE")] + pro + [raw(";;IV 0")] + start_block(a, rest) + stamp(3) + abl_init()
        for j in range(1, 30):
            tr.append(raw(f";;IV {j}"))
            tr += interval(j, a, f"L_loop{a}" if (j0 <= j < j1 and (j - j0) % 4 == 3) else None)
        tr.append(raw(";;IV 30"))
        if OPT["prof"]:
            tr.append(raw("s_nop 4\n    v_mov_b32 v1, v17"))
        tr += stamp(4) + final_block(a)
        if OPT["prof"]:
            tr.append(raw("v_mov_b32 v127, v1"))
        tr += finish(a)
        out, ev, ins = resolve(tr)
        evs += ev
        check_scalars(out)
        lines = [x.text for x in out]
        k = lines.index(";;ROLE")
        if a == 0:
            text += lines[:k]
        idx = {j: lines.index(f";;IV {j}") for j in range(31)}
        for pos, w, c in ins:
            if idx[0] < pos and (OPT["show"] >= 0 or idx[1] < pos < idx[30]):
                print(f"; auto-inserted in role {a} @{pos - idx[0]}: {w} before {c}", file=sys.stderr)
        seg = lambda j: lines[idx[j] + 1: idx[j + 1]]
        for j in range(j0 + 4, j1):
            jb = j0 + (j - j0) % 4
            assert len(seg(j)) == len(seg(jb)), f"loop body not periodic at {j} role {a}"
            for n, (x, y) in enumerate(zip(seg(j), seg(jb))):
                if x != y:
                    assert re.sub(r"\d+", "", x) == re.sub(r"\d+", "", y) and x.startswith("s_waitcnt"), (j, a, x, y)
                    it = iter(min(int(p), int(q)) for p, q in zip(re.findall(r"\d+", x), re.findall(r"\d+", y)))
                    lines[idx[jb] + 1 + n] = re.sub(r"\d+", lambda m: str(next(it)), x)
        if OPT["abl"]:
            ablate(lines, idx[1], idx[30])
        if OPT["lpad"] >= 0:
            if a == 0:
                text.append("s_branch L_role0")
            text += [".p2align 12", f".fill {PADS[a] // 4}, 4, 0xbf810000"]
        text += lines[k + 1: idx[j0]]
        text.append(f".p2align {OPT['lalign']}")
        text.append(f"L_loop{a}:")
        text += lines[idx[j0]: idx[j0 + 4]]
        text += lines[idx[j1]:]
        fb, _, _ = resolve(fallback(a, redo))
        text += [x.text for x in fb]
        if OPT["thr2"]:
            text += [f"L_thr2{a}:", "s_waitcnt vmcnt(0)", f"s_branch L_thr2b{a}"]
    if OPT["thr1"]:
        text += ["L_thr1:", "s_waitcnt vmcnt(0)"] + [f"s_sleep {OPT.get('thrs')}"] * (1 if OPT.get("thrs") else 0) + ["s_branch L_thr1b"]
    assert check_lds(evs) == 0
    hdr = open("header.txt").read()
    body = "\n".join(("" if l.endswith(":") or l.startswith(".") else "    ") + l.replace(";;IV", "; interval") for l in text)
    return f"""{hdr}; @launch grid=(256,1,1) block=(256,1,1) lds={LDS_BYTES}
{open("design.txt").read()}.amdgcn_target "amdgcn-amd-amdhsa--gfx950"
.text
.globl {KN}
.p2align 8
.type {KN},@function
{KN}:
{body}
L_end:
    s_endpgm
.section .rodata,"a"
.p2align 6
.amdhsa_kernel {KN}
  .amdhsa_next_free_vgpr 512
  .amdhsa_next_free_sgpr 102
  .amdhsa_accum_offset 256
  .amdhsa_group_segment_fixed_size 0
  .amdhsa_kernarg_size 48
  .amdhsa_user_sgpr_count 2
  .amdhsa_user_sgpr_kernarg_segment_ptr 1
  .amdhsa_system_sgpr_workgroup_id_x 1
.end_amdhsa_kernel
"""


if __name__ == "__main__":
    for kv in sys.argv[1:]:
        k, v = kv.split("=", 1)
        if k.startswith("pol"):
            OPT[k] = "".join(" " + x for x in v.split("+") if x and x != "d")
        else:
            OPT[k] = float(v) if "." in v else int(v)
    print(build2())
```

```python
import sys, struct, math, re
from asmlib import *
from sched import Block

KN = "standalone__gqa_softmax__near_ridge_kernel"
OPT = dict(abl=0, pol_kv="", pol_q="", pol_o=" sc0 sc1", stamps=0, prof=0, show=-1, thr=7,
           dma0=1, dmastep=8, dmastag=4, klead=3, walign=0, wq=1, feed0=4, feedl=1, prefeed=3,
           bar0=26, bara=30, barb=69, lalign=3, lazy=16, order=1, win=11, aux=0, early=0, auxj=3, sdma0=1, sdmas=3, sdman=8, lastfeed=0, k1stage=2, touch=0, m01=0, walk=2, lpad=1440, lpad0=2000, w64=0, mbias=35, obias=0, cref=0, spf=0, spfk=4, spfv=2, spfat=0, xbal=0, hflip=0, qfirst=1, ibar=0, stouch=0, pvt=0, defer=0, pvy=0, qkz=1, tm1=2, xearly=1, glds=0, peel0=3, bark=49, thr1=0, thr2=0, rot=0, nunder=0, prewait=0, ulo=2, ulo2=8, split=0, mergetail=1, rwin=1, pf31=25, pft0=29, pfgap=0, holes=0, holew=1, auxper=2, auxn=4, auxend=24, auxt0=28, nfast=3, nin=2)

PXA = 10240
KRING = 3 * PXA
SLOT = 16640
VRING = KRING + 4 * SLOT
LDS_BYTES = VRING + 4 * SLOT

sQ, sK, sV, sO, sC = "s[12:15]", "s[16:19]", "s[20:23]", "s[24:27]", "s[44:47]"
sW, sA, sB, sCNT, sKo, sVo, sKm, sVm, sPm, sMASK = "s28", "s29", "s30", "s31", "s32", "s33", "s34", "s35", "s36", "s39"
sSC, sKEEP = "s[40:41]", "s[42:43]"
sT = ["0", "s48", "s49", "s50", "s51"]
sT8 = ["s4", "s5", "s6", "s7", "s8"]
sX, sTHR = "s38", "s52"
sKg, sVg = "s[32:33]", "s[10:11]"
vKr, vV0, vV1, vKd, vVd, vPr, vPr2 = "v1", "v2", "v3", "v4", "v5", "v6", "v7"
vL = [8, 9, 10, 11, 12]
vO, vEw, vEr = "v13", "v22", "v23"
PXT = 14
TMP = 16
vAuxC, vAuxT, vAuxD, vAuxD2, sP = "v18", "v19", "v20", "v17", "s[88:91]"
NEGM, SS, PP, OO = 24, 44, 64, 128
SCT = 104
vQl, vQw, vQw2, vQwx, vQr, vQr2, vQrx, vKr0 = (f"v{96 + i}" for i in range(8))
vQlx = "v20"
vRr = "v21"
RAWX, SPRE0 = 112, 120
LP, FLG = 24, 30
RL = lambda t: SS + 4 * t
QXTAG = [(("P", 1, t), -1) for t in range(5)] + [(("L", t), -1) for t in range(6)]
AQ, AX, AKF, AVF, ASP = 0, 128, 160, 192, 224


def Qf(t, s):
    return R("a", (AQ + 32 * t if t < 4 else AX) + 4 * s, 4)


def Kf(s):
    return R("a", AKF + 4 * s, 4)


def S(t):
    return R("v", SS + 4 * t, 4)


def Ng(t):
    return R("v", NEGM + 4 * t, 4)


def Pown(j, t):
    return PP + 16 * (j % 4) + 4 * t if t < 4 else PXT


def Pop(j, t):
    return R("v", PP + 16 * (j % 4) + 4 * t, 4) if t < 4 else R("a", ASP + 4 * (j % 4), 4)


def O(t, dt):
    return R("v", OO + 32 * t + 4 * dt, 4) if t < 4 else R("a", AX + 4 * dt, 4)


def RAW(k, i):
    return OO + 32 * k + 4 * i


FLIP = [0]


def obc():
    return f"{struct.unpack('<I', struct.pack('<f', 1.5 * 2.0 ** (OPT['obias'] - 100 - OPT['mbias'])))[0]:#x}"


def where(kind, tile):
    if OPT["early"] and kind == "V" and tile >= 30:
        return (("K", 0), 32) if tile == 30 else (("V", 2), 31)
    return ((kind, tile % 4), tile)


def tdma(kind, tile, i):
    reg = where(kind, tile)
    off = reg[0][1] * SLOT + i * (1568 if kind == "K" else 1552) - (4 * SLOT if reg[0][0] != kind else 0)
    m, v, srd, so = (sKm, vKd, sK, sKo) if kind == "K" else (sVm, vVd, sV, sVo)
    d = dma(v, srd, so, 512 * i, OPT["pol_kv"], reg, (kind, tile))
    if OPT["glds"]:
        pair = sKg if kind == "K" else sVg
        d = I(f"global_load_lds_dwordx4 {v}, {pair}" + (f" offset:{512 * i}" if i else "") + OPT["pol_kv"], "dma", regs(v) + regs(pair) + ["m0"], [], lds_wr=reg, tag=(kind, tile))
    st = salu(f"s_add_u32 m0, {m}, {off}" if off >= 0 else f"s_sub_u32 m0, {m}, {-off}")
    d.note = (st.text, i)
    return (st, d)


def bump(kind):
    so = sKo if kind == "K" else sVo
    if OPT["glds"]:
        lo, hi = regs(sKg if kind == "K" else sVg)
        return raw(f"s_add_u32 {lo}, {lo}, s49\n    s_addc_u32 {hi}, {hi}, 0")
    return salu(f"s_add_u32 {so}, {so}, s49")


def wrap(kind):
    so = sKo if kind == "K" else sVo
    return [salu(f"s_bitset0_b32 {so}, 19")] if OPT["rot"] else []


def dma_piece(kind, tile, i):
    return list(tdma(kind, tile, i)) + ([bump(kind)] + wrap(kind) if i == 3 else [])


def kread(tile, s, addr=vKr, dst=None):
    slot = tile % 4
    return ds_read("ds_read_b128", dst or Kf(s), addr, f"offset:{slot * SLOT + 64 * s}", (("K", slot), tile))


def vread(tile, dt, u, frag):
    reg = where("V", tile)
    base = (vV0, vV1) if reg[0][0] == "V" else (vKd, vVd)
    return ds_read("ds_read_b64_tr_b16", R("a", frag + 2 * u, 2), base[u], f"offset:{reg[0][1] * SLOT + 128 * ((dt // 4) ^ FLIP[0]) + 16 * (dt % 4)}", reg)


def pwrite(j, t, h):
    par = j % 2
    return ds_write("ds_write_addtid_b32", None, f"v{Pown(j, t) + h}", f"offset:{par * PXA + (2 * t + h) * 256}", (("P", par, t), j))


def preads(j, a):
    par = j % 2
    o = []
    if OPT["w64"] and 1 <= j <= 28:
        o = [(t, ds_read("ds_read_b64", R("v", Pown(j, t) + 2, 2), "v16", f"offset:{par * PXA + a * 5120 + t * 512}", (("P", par, t), j))) for t in range(4)]
        if a == 1:
            o += [(4, ds_read("ds_read_b64", R("a", ASP + 4 * (j % 4) + 2 * u, 2), "v16", f"offset:{par * PXA + 2048}", (("P", par, 4), j))) for u in range(2)]
        return o
    for t in range(4):
        n = par * 40 + a * 20 + 2 * t
        o.append((t, ds_read("ds_read2st64_b32", R("v", Pown(j, t) + 2, 2), vPr, f"offset0:{n} offset1:{n + 1}", (("P", par, t), j))))
    if a == 1:
        n = par * 40 + 8
        for u in range(2):
            o.append((4, ds_read("ds_read2st64_b32", R("a", ASP + 4 * (j % 4) + 2 * u, 2), (vPr2, vPr)[u], f"offset0:{n} offset1:{n + 1}", (("P", par, 4), j))))
    return o


def msetter():
    return salu(f"s_mov_b32 m0, {sPm}")


def stamp(idx, mode=0):
    if (OPT["stamps"] == 3) != (mode == 3) and idx > 2:
        return []
    return [raw(f"{'s_memrealtime' if OPT.get('amprt') else 's_memtime'} s[{60 + 2 * idx}:{61 + 2 * idx}]")] if OPT["stamps"] else []


def xlane(op, reg, tmp):
    o = []
    for sw in ("v_permlane32_swap_b32", "v_permlane16_swap_b32"):
        o.append(valu(f"v_mov_b32 v{tmp}, v{reg}"))
        o.append(valu(f"{sw} v{tmp}, v{reg}"))
        o.append(valu(f"{op} v{reg}, v{tmp}, v{reg}"))
    return o


def chain_ops(b, seq, lo, dl, first_deps=(), hard=None):
    prev = None
    for n, ins in enumerate(seq):
        deps = list(first_deps) if prev is None else [(prev, (1 if b.chainy else 2) if ins.kind == "perm" else (0 if b.chainy and prev.cls == "valu" else 1))]
        prev = b.op(ins, "exp" if ins.kind == "trans" else "valu", lo, dl + n, deps, hard=hard)
    return prev


def add_qk(b, a, j):
    ends = []
    for t in range(5 - a):
        for n, s in enumerate(range(8) if not (OPT["qkz"] and t % 2) else reversed(range(8))):
            k = b.mfma(mfma(S(t), Kf(s), Qf(t, s), Ng(t) if n == 0 else S(t)))
        ends.append(k)
    return ends


def add_pv(b, a, tiles, h, frags, lo, zero=False, tmajor=False, lastuse=None, have=(), ts=None):
    NP = 4 + a
    order = [(d, t) for t in (range(NP) if tmajor is True else tmajor) for d in range(4)] if tmajor else \
            [(d, t) for d in range(4) for t in (range(NP) if d % 2 == 0 else reversed(range(NP)))]
    if tmajor and OPT["pvt"] == 2:
        order = [(d if (n // 4) % 2 == 0 else 3 - d, t) for n, (d, t) in enumerate(order)]
    if ts is not None:
        order = [x for x in order if x[1] in ts]
    first, done, pfirst = {}, {}, {}
    war = dict(lastuse) if lastuse is not None else {}
    for ci, (d, t) in enumerate(order):
        seq = list(enumerate(tiles))
        if OPT["pvy"] and len(tiles) == 2 and (len(order) - 1 - ci) % 2 == 1 and not zero:
            seq.reverse()
        for n, j in seq:
            k = b.mfma(mfma(O(t, 4 * h + d), Pop(j, t), R("a", frags[d][n], 4), (("v[104:107]" if t < 4 else O(t, d)) if OPT["obias"] else "0") if zero and n == 0 else O(t, 4 * h + d)))
            first.setdefault((d, n), k)
            pfirst.setdefault((j, t), k)
            done[(t, 4 * h + d)] = k
            if lastuse is not None:
                lastuse[frags[d][n]] = k
    for d in range(4):
        for n, j in enumerate(tiles):
            for u in range(2 if j not in have else 0):
                f = first[(d, n)]
                b.op(vread(j, 4 * h + d, u, frags[d][n]), "ds", max(lo[j], war.get(frags[d][n], 0)), f - 10 + u, hard=f - 3)
    return done, pfirst


def add_softmax(b, a, j, ends, pub, defer, adds_by=None, soft=False, sub=None):
    ends = dict(enumerate(ends)) if isinstance(ends, list) else ends
    wa = OPT["walign"]
    H = (lambda x: None) if soft else (lambda x: x)
    adds = {}
    for n, t in enumerate(ends):
        base = ends[t] + 4
        late = pub - 7 - 5 * (len(ends) - 1 - n)
        ex = []
        for r in range(4):
            dl = (base - 300 if wa else min(base + 10, late - 8)) + r
            dep = []
            if sub and t in sub:
                dep = [b.op(valu(f"v_add_f32 v{SS + 4 * t + r}, v{SS + 4 * t + r}, v{NEGM + 4 * t}"), "valu", base + 1, dl - 2, [sub[t]])]
            ex.append(b.op(valu(f"v_exp_f32 v{SS + 4 * t + r}, v{SS + 4 * t + r}"), "exp", base, dl, dep, hard=H(pub - 6)))
        for h in range(2):
            c = b.op(valu(f"v_cvt_pk_bf16_f32 v{Pown(j, t) + h}, v{SS + 4 * t + 2 * h}, v{SS + 4 * t + 2 * h + 1}"), "valu", 0, (base - 50 if wa else late - 3) + h, ex[2 * h:2 * h + 2], hard=H(pub - 4))
            if OPT["w64"] and 2 <= j <= 29:
                cvs = [c] if h == 0 else cvs + [c]
                if h == 1:
                    b.op(ds_write("ds_write_b64", "v18", R("v", Pown(j, t), 2), f"offset:{(j % 2) * PXA + t * 512}", (("P", j % 2, t), j)), "solo", 0, late, cvs, hard=H(pub - 3))
                continue
            b.op(pwrite(j, t, h), "ds", base + 6 + h if wa else 0, (base - 200 if wa else late - 1) + h, [c], hard=H(pub - 3), m0="p", setter=msetter())
        if t not in defer:
            for r in range(4):
                adds[t] = b.op(valu(f"v_add_f32 v{vL[t]}, v{SS + 4 * t + r}, v{vL[t]}"), "valu", 0, (pub if adds_by is None else min(base + 12, adds_by)) + r, [ex[r]] + ([(adds[t], 0)] if t in adds else []),
                               hard=H(pub if adds_by is None else adds_by))
    return adds


def add_deferred(b, a, ends, j=None):
    for t in deferred(a, j):
        for r in range(4):
            b.op(valu(f"v_add_f32 v{vL[t]}, v{SS + 4 * t + r}, v{vL[t]}"), "valu", 0, ends[t] - 16 + r, hard=ends[t] - 8)


def deferred(a, j=None):
    if OPT["defer"] or j == 30:
        return [3 - a, 4 - a]
    return []


def add_dma(b, a, pieces, g0, step, G, lo=None):
    dops = []
    for n, (kind, tile, i) in enumerate(pieces):
        st, d = tdma(kind, tile, i)
        e = int(g0 + step * n)
        if lo and (kind, tile) in lo:
            e = max(e, lo[(kind, tile)])
        o = b.op(d, "dma", e, e - 100, [(dops[-1][0], 2)] if dops else [], hard=G - 3, m0=("d", n), setter=st)
        dops.append((o, kind, tile, i))
    for o, kind, tile, i in dops:
        if i == 3:
            nxt = [x for x, k, tl, _ in dops if k == kind and tl > tile]
            bp = bump(kind)
            if OPT["rot"]:
                bp = raw(bp.text + "\n    " + wrap(kind)[0].text)
            b.scalar(bp, (lambda o=o: o.gap + 1), (lambda nxt=nxt: nxt[0].gap - 1) if nxt else G - 4)
    return dops


def prof_hooks(out):
    if OPT["prof"]:
        k = max(n for n, x in enumerate(out) if x.kind == "barrier")
        out.insert(k, raw("v_writelane_b32 v17, s100, m0"))
        out.insert(k - 1, raw("s_mov_b32 m0, s3"))
        mk = [n for n, x in enumerate(out[:k]) if x.kind == "mfma"]
        out.insert(mk[22] + 1, raw("s_memtime s[100:101]" if OPT["prof"] == 1 else "s_memrealtime s[100:101]"))
        out.insert(mk[2] + 1, raw("s_add_u32 s3, s3, 1"))
    return out


TMPL = {
    1: ["RDRRRRRR RRDRRRdE E.EDEWEE WEEDEWEW EEWEDEWE EWWEED.E EWW..RDR RRRRRRRD RRRRdRRR",
        "RRRRRDRR RRRRRRDR EE.EEWED EWEEWEEW .DEEWEEW E.DEW.W. d.D..RRR RRRDRRRR RdRDRRRR"],
    2: ["RDRRRRRR RRDRRRdE E.EDEWEE WEEDEWEW EEWEDEWE EWWEED.E EWW.RRDR RRRRRRRD RRRRd.RR",
        "RRRRRDRR RRRRRRDR EE.EEWED EWEEWEEW .DEEWEEW E.DEW.W. d.DRRRRR RRRDRRRR RdRD..RR"],
    4: ["RDRRRRRR RRDRRRdE EEED.WEE EE.DWEEE E.WEDEEE .W.EEDEE .W...RDR RRRRRRRD RRRRdRRR",
        "RRRRRDRR RRRRRRDR EEEE.WED EEE.W.EE EDE.W.EE E.DE.W.. d.D..RRR RRRDRRRR RdRDRRRR"],
    5: ["RDRRRRRR RRDRRRdE E.EDEWEE WEEDEWEW EEWEDEWE EWWEED.E EWW..D.R RRRRRRRD RRRRRRRR",
        "RRRRRDRR RRRRRRDR EE.EEWED EWEEWEEW .DEEWEEW E.DEW.W. d.D...RR RRRDRRRR RRRDRRRR"],
    6: ["RDRRRRRR RRDRRREE .EEWEDEW EEW.DEEW EEWEDEWE EW.dEEWE EW.W.D.R RDRRRRRR RDRRRRRR",
        "RRRRRDRR RRRRRRDR EE.EEWED EWEEWEEW .DEEWEEW E.DEW.W. d.D...RR RRRRRDRR RRRRDRRR"],
    7: ["RDRRRRRR RRDRRRdE E.EDEWEE WEEDEWEW EEWEDEWE EWWEED.E EWW..D.R RRRRRRRD RRRRRRRR",
        "RRRRRDRR RRRRRRDR EE.EEWED .EEEEW.W EDEWEEWE EWW.DE.. .W.D.dRR RRRDRRRR RRRDRRRR"],
    8: ["RDRRRRRR RRDRRRdE E.EDEWEE WEEDEWEW EEWEDEWE EWWEED.E EWW..D.R RRRRRRRD RRRRRRRR",
        "RRRRRDRR RRRRRRDR EE.EEWEE WEDEWEEW EEWEDEWE EW.W.D.. d.D...RR RRRDRRRR RRRDRRRR"],
    9: ["RDRRRRRR RRDRRRdE EEED.WWE EEED.WWE EEE.DEWW EEE.EDEW WEE.WW.D RRRRRRRR RRRRRRRR",
        "RRRRRDRR RRRRRRDR EEEE.WWE DEEE.WWE EDEE.WWE E.DEE.WW d.D...RR RRRDRRRR RRRDRRRR"],
    3: ["RDRRRRRR RRDRRREE EE.DEWWE EE.DEWWE EE.DEWWE EE.EWWED EE.WW.DR RRRRRRRD RRRRRRRR",
        "RRRRRDRR RRRRRRDR EEEE.WWE DEEE.WWE EDEE.WWE E.DEE.WW d.D.d.RR RRRDRRRR RRRDRRRR"],
}
FOLD = [AVF + 8 * d for d in range(4)]
FNEW = [AVF + 8 * d + 4 for d in range(4)]


def fold(j):
    return FOLD if j % 2 or not OPT["pvt"] else [ASP + 16 + 4 * d for d in range(4)]


def add_old_reads(b, j, lu, lo, G):
    FOLD = fold(j + 1)
    for d in range(4):
        for u in range(2):
            b.op(vread(j, 4 * ((j + 1) % 2) + d, u, FOLD[d]), "ds", max(lo, lu.get(FOLD[d], 0)), G + 2 * d + u, hard=G - 1)


def interval(j, a, loop_end=None):
    b = Block(f"interval {j} role {a}", wq=OPT["wq"] if OPT["walign"] else 0, wprio=bool(OPT["walign"]))
    ends = add_qk(b, a, j + 1)
    lu = {}
    if j <= 28:
        done, pfirst = add_pv(b, a, [j - 1, j], j % 2, [[fold(j)[d], FNEW[d]] for d in range(4)], {j: 0}, lastuse=lu, have=[j - 1], tmajor=bool(OPT["pvt"]))
        b.carry = [f"a{x + i}" for x in fold(j) for i in range(4)]
    else:
        if a == 1 and OPT["xbal"] & 1:
            assert not OPT["early"]
            add_pv(b, a, [28], 1, [[fold(29)[d]] for d in range(4)], {}, have=[28], ts=[4])
            b.carry = [f"a{x + i}" for x in fold(29) for i in range(4)]
        done, pfirst = add_pv(b, a, [j], 0, [[FNEW[d]] for d in range(4)], {j: 0})
    G = len(b.mf)
    if j <= (27 if OPT["early"] else 28):
        add_old_reads(b, j, lu, 40, G)
    for t, ins in preads(j, a):
        b.op(ins, "ds", 0, pfirst[(j, t)] - 10, hard=pfirst[(j, t)] - 3)
    for s in range(8):
        b.op(kread(j + 2, s), "ds", ends[-1] - (0 if OPT["qkz"] else 7 - s), G - 18 + s, hard=G - 3)
    kl = OPT["klead"]
    T = lambda kind, tile, r=range(4): [(kind, tile, i) for i in r]
    pieces = T("V", j + 2) + (T("K", j + 2 + kl) if j <= 28 else [])
    step = OPT["dmastep"]
    if j == 29:
        step = 4
    p0 = OPT["peel0"]
    if p0 and j <= 4:
        pieces = {1: T("V", 3) + T("K", 5) + T("K", 6, [0]), 2: T("V", 4) + T("K", 6, [1, 2, 3]) + T("K", 7, [0, 1]),
                  3: T("V", 5) + T("K", 7, [2, 3]) + T("K", 8, [0, 1, 2]), 4: T("V", 6) + T("K", 8, [3]) + T("K", 9)}[j]
    if OPT["early"] and j >= 25:
        if kl == 3:
            pieces = {25: T("V", 27) + T("K", 30), 26: T("V", 28) + T("K", 31), 27: T("V", 29) + T("V", 30), 28: T("V", 31), 29: []}[j]
        elif OPT["early"] == 1:
            pieces = {25: T("V", 27) + T("K", 29) + T("K", 30, [0]), 26: T("V", 28) + T("K", 30, [1, 2, 3]) + T("K", 31, [0, 1]),
                      27: T("V", 29) + T("K", 31, [2, 3]) + T("V", 30), 28: T("V", 31), 29: []}[j]
        elif OPT["early"] == 2:
            pieces = {25: T("V", 27) + T("K", 29), 26: T("V", 28) + T("K", 30), 27: T("V", 29) + T("K", 31), 28: T("V", 30) + T("V", 31), 29: []}[j]
        else:
            pieces = {25: T("V", 27) + T("K", 29) + T("K", 30, [0]), 26: T("V", 28) + T("K", 30, [1, 2, 3]) + T("K", 31, [0, 1]),
                      27: T("V", 29) + T("K", 31, [2, 3]) + T("V", 30, [0, 1, 2]), 28: T("V", 30, [3]) + T("V", 31), 29: []}[j]
        step = {25: 7, 26: 7, 27: 6, 28: 4, 29: 4}[j]
    merged = j == 1 and OPT["m01"]
    if merged:
        pieces = HAND[a][1] + pieces
        step = (66 - OPT.get("m01d", 1)) // len(pieces)
    dops = add_dma(b, a, pieces, (OPT.get("m01d", 1) if merged else OPT["dma0"]) + a * min(OPT["dmastag"], step // 2), step, G)
    if OPT["cref"] and j == 29:
        p = R("v", TMP + 2, 2)
        x = chain_ops(b, [valu(f"v_lshl_add_u32 v{TMP + 2}, v0, 12, s46"), I(f"v_min_u32 v{TMP + 2}, L_end-L_pc, v{TMP + 2}", "valu", [f"v{TMP + 2}"], [f"v{TMP + 2}"]),
                          valu(f"v_mov_b32 v{TMP + 3}, 0"), valu(f"v_lshl_add_u64 {p}, {p}, 0, s[44:45]")], 0, -95)
        b.op(I(f"global_load_dword {vAuxD}, {p}, off", "vld", regs(p), [vAuxD]), "st", 0, -90, [x] + ([dops[-1][0]] if OPT["cref"] == 1 else []), hard=G - 3)
    if OPT["early"] and j == 29:
        b.op(valu(f"v_subrev_u32 {vKd}, {4 * SLOT}, {vV0}"), "valu", 0, G, hard=G - 1)
        b.op(valu(f"v_subrev_u32 {vVd}, {4 * SLOT}, {vV1}"), "valu", 0, G, hard=G - 1)
    if OPT["pf31"] and (j == OPT["pf31"] if OPT["early"] else (5 if p0 else 1) <= j <= 28 and j % 4 == OPT["pf31"] % 4):
        x = b.op(vload("buffer_load_dword", vAuxD, vAuxT, sV, "0"), "st", OPT["pfgap"], -90 + OPT["pfgap"], hard=G - 3)
        if not OPT["early"]:
            b.op(valu(f"v_add_u32 {vAuxT}, 0x1000000, {vAuxT}"), "valu", 0, G, [x], hard=G - 1)
    if not OPT["early"] and j <= 28 and j % 4 == (30 - kl) % 4:
        kf = [o for o, k, _, _ in dops if k == "K"][0]
        vl = [o for o, k, _, _ in dops if k == "V"][-2]
        pair = raw(f"s_cmp_eq_u32 {sCNT}, 1\n    s_cselect_b32 s18, 0, s18")
        b.scalar(pair, (lambda: vl.gap + 1), (lambda: kf.gap - 2))
    if (5 if p0 else 1) <= j <= (24 if OPT["early"] else 28) and j % 4 == OPT.get("auxj", 1) and OPT["aux"] & 1:
        b.op(vload("buffer_load_dword", vAuxD, vAuxC, sC, "0"), "st", 3, -90, hard=40)
    if j <= 24 and (j - OPT["auxend"]) % OPT["auxper"] == 0 and OPT["aux"] & 2:
        x = b.op(vload("buffer_load_dword", vAuxD2, vAuxT, sP, "0"), "st", 5 - 4 * a, -90, hard=40)
        b.op(valu(f"v_add_u32 {vAuxT}, {(32 - OPT['auxt0']) * 16384 // OPT['auxn']:#x}, {vAuxT}"), "valu", 0, G, [x], hard=G - 1)
    nh = OPT["holes"] % 10 if a == 0 else OPT["holes"] // 10
    for n in range(nh if j <= 28 else 0):
        ref = dops[min(6, (2 * n + 1) * 8 // (2 * nh) - 1 + (1 if nh < 4 else 0))][0]
        w = OPT["holew"]
        b.op(vload("buffer_load_dword" + ("" if w == 1 else f"x{w}"), "v20" if w == 1 else R("a", 252, w), vAuxT, "s[84:87]", "0"), "st", 0, -95, [(ref, 2)], hard=G - 12)
    add_deferred(b, a, ends)
    add_softmax(b, a, j + 1, ends, G - 1, deferred(a, j + 1))
    if merged:
        bm = OPT["m01"]
        for o in b.ops:
            if o.ins.kind in ("dsr", "dsw"):
                o.lo = max(o.lo, bm)
        for n, o in enumerate(HAND[a][0]):
            o.deps = [(d, k) for d, k in o.deps if d.gap is None]
            o.lo, o.dl = 0, -300 + n
            o.hard = bm - 3 if o.ins.kind != "dsr" and not o.ins.text.startswith("v_add_f32 v1") and not o.ins.text.startswith("v_cndmask") else 22
            if o.hard == 22:
                o.dl = n - 20
            for r in o.ins.rd | o.ins.wr:
                for base in (SS, NEGM):
                    if r[0] == "v" and r[1:].isdigit() and base <= int(r[1:]) < base + 20:
                        tt = (int(r[1:]) - base) // 4
                        assert tt >= 2, o.ins.text
                        o.hard = min(o.hard, 8 * tt - 2)
            b.ops.append(o)
        b.barrier(bm, [("V", 1)], ["w"])
        b.lazy = 12
    if OPT["rwin"] and j <= 28 and not merged:
        tm = TMPL[OPT["rwin"]][a].replace(" ", "")
        assert len(tm) == 72, len(tm)
        nd = len([o for o in b.ops if o.cls in ("dma", "st")])
        b.tmpl = tm.replace("d", "D", max(0, nd - 8) if nd > 4 else 1).replace("d", ".")
        for o in b.ops:
            if o.cls == "dma" or o.ins.kind == "dsw":
                o.lo = 0
            if o.ins.text.startswith("v_cvt"):
                o.dl -= 200
    vm = [("V", j + 1)] + ([("K", j + 3)] if j + 3 <= 31 else [])
    if j == 29:
        vm.append(("V", 31))
    if j < p0:
        b.barrier(OPT["bark"] + 3, [("K", j + 2)], None)
        for o in b.ops:
            if o.ins.text.startswith("ds_read_b128"):
                o.lo = max(o.lo, OPT["bark"] + 3)
    if j + 1 < p0:
        vm = [("V", j + 1)]
    b.barrier(G - 1, vm, ["w"] + [f"a{AKF + i}" for i in range(32)])
    if loop_end:
        b.scalar(salu(f"s_sub_u32 {sCNT}, {sCNT}, 1"), 51, G - 4)
        b.scalar(salu(f"s_cmp_lg_u32 {sCNT}, 0"), G - 3, G - 3)
    out, _ = b.schedule(show=OPT["show"] == j)
    out = prof_hooks(out)
    if loop_end:
        out.append(salu(f"s_cbranch_scc1 {loop_end}"))
    return out


def first_tile_instrs(t):
    SPRE = RAWX if t == 4 else SPRE0
    own, oth = R("v", SPRE, 4), R("v", SPRE + 4, 4)
    mf = [mfma(own, R("a", AVF + 4 * s, 4), Qf(t, s), "0" if s == 0 else own) for s in range(8)]
    mf += [mfma(oth, R("a", ASP + 4 * s, 4), Qf(t, s), "0" if s == 0 else oth) for s in range(8)]
    A_, B_, C_ = TMP, TMP + 1, TMP + 4
    m1 = [valu(f"v_max3_f32 v{C_}, v{SPRE}, v{SPRE + 1}, v{SPRE + 2}"), valu(f"v_max_f32 v{C_}, v{C_}, v{SPRE + 3}")]
    m2 = [valu(f"v_max3_f32 v{C_}, v{C_}, v{SPRE + 4}, v{SPRE + 5}"),
          valu(f"v_max3_f32 v{A_}, v{C_}, v{SPRE + 6}, v{SPRE + 7}"), valu(f"v_max3_f32 v{B_}, v{C_}, v{SPRE + 6}, v{SPRE + 7}"),
          valu(f"v_permlane32_swap_b32 v{A_}, v{B_}"),
          valu(f"v_max_f32 v{C_}, v{A_}, v{B_}"), valu(f"v_max_f32 v{B_}, v{A_}, v{B_}"),
          valu(f"v_permlane16_swap_b32 v{C_}, v{B_}"),
          valu(f"v_max_f32 v{A_}, v{C_}, v{B_}")]
    if OPT["mbias"]:
        m2.append(valu(f"v_add_f32 v{A_}, {struct.unpack('<I', struct.pack('<f', float(OPT['mbias'])))[0]:#x}, v{A_}"))
    cm = [valu(f"v_cndmask_b32 v{NEGM + 4 * t + r}, -v{TMP}, v{NEGM + 4 * t + r}, {sKEEP}") for r in range(4)]
    n = 8 if t < 4 else 4
    sb = [valu(f"v_add_f32 v{SPRE + r}, v{SPRE + r}, v{NEGM + 4 * t}") for r in range(n)]
    ex = [valu(f"v_exp_f32 v{SPRE + r}, v{SPRE + r}") for r in range(n)]
    cv = [valu(f"v_cvt_pk_bf16_f32 v{Pown(0, t) + h}, v{SPRE + 2 * h}, v{SPRE + 2 * h + 1}") for h in range(n // 2)]
    ad = [valu(f"v_add_f32 v{vL[t]}, v{SPRE + r}, v{vL[t]}") for r in range(4)]
    return mf, m1, m2, cm, sb, ex, cv, ad


def add_first_tile(b, t, need_by=None):
    mf, m1, m2, cm, sb, ex, cv, ad = first_tile_instrs(t)
    idx = [b.mfma(x) for x in mf]

    def ops(after=()):
        x = chain_ops(b, m1, idx[7] + 5, -510, after)
        last = chain_ops(b, m2, idx[15] + 5, -500, [x])
        c = [b.op(y, "valu", 0, -480 if r == 0 or t == 4 else 150, [(last, 0)]) for r, y in enumerate(cm)]
        ops.cm = c
        e = []
        for r in range(len(sb)):
            sbo = b.op(sb[r], "valu", 0, -478 + r, [(c[0], 0)], hard=need_by)
            e.append(b.op(ex[r], "exp", 0, -470 + r, [sbo], hard=need_by))
        for h, y in enumerate(cv):
            cvo = b.op(y, "valu", 0, -469 + 2 * h, e[2 * h:2 * h + 2], hard=need_by)
            if t == 4:
                b.op(pwrite(0, t, h), "ds", 0, 100 + h, [cvo], m0="p", setter=msetter())
        for r in range(4):
            b.op(ad[r], "valu", 0, 200 + r, [e[r]])
        return c[0]
    return idx, ops


def qk_chain(b, t, zero=False):
    for s in range(8):
        k = b.mfma(mfma(S(t), Kf(s), Qf(t, s), ("0" if zero else Ng(t)) if s == 0 else S(t)))
    return k


def flush(out, left):
    m0 = None
    left = list(left)
    while left:
        o = next(o for o in left if all(d not in left for d, _ in o.deps))
        left.remove(o)
        if o.m0 is not None and o.m0 != m0:
            out.append(o.setter)
            m0 = o.m0
        out.append(o.ins)
    return out


def merge(x, y):
    o = []
    for i in range(max(len(x), len(y))):
        o += x[i:i + 1] + y[i:i + 1]
    return o


def stage_block(a, k, feed):
    b = Block(f"stage {k} role {a}")
    b.chainy = True
    k1 = OPT["k1stage"]
    b.pre = ([kread(1, s) for s in range(8)] if k == k1 else []) + stage_read(k)
    c1 = {1: {1: [0, 4], 2: [1]}, 2: {2: [0, 1, 4]}}[k1].get(k, [])
    c1 = [t for t in c1 if t < 5 - a]
    ends, later = {}, []
    covered = (k == 0 and a == 0) or (k > k1)
    if k == 0 and a == 0:
        later.append(add_first_tile(b, 4)[1])
    if c1 and k == 2:
        ends[c1[0]] = qk_chain(b, c1[0])
    later.append(add_first_tile(b, k)[1])
    for t in c1:
        if t not in ends:
            ends[t] = qk_chain(b, t)
    G = len(b.mf)
    prev = ()
    for f in later:
        f(prev)
        prev = f.cm
    if ends:
        add_softmax(b, a, 1, ends, G + 16, deferred(a), soft=True)
    i = 0
    if not covered and OPT["prewait"]:
        b.pre += stage_load(k + 1, 0, feed)
        i = 1
    nun = OPT["nunder"]
    ulo = OPT["ulo"] if G <= 16 else OPT["ulo2"]
    prev = []
    for n in range(nun):
        src = RAW(k + 1, i)
        cv = []
        first = None
        for r in range(4):
            lo_ = b.op(valu(f"v_lshlrev_b32 v{SCT + 2 * r}, 16, v{src + r}"), "valu", ulo, 40 * n + 5 * r, prev)
            hi_ = b.op(valu(f"v_and_b32 v{SCT + 2 * r + 1}, {sMASK}, v{src + r}"), "valu", ulo, 40 * n + 5 * r + 1, prev)
            first = first or lo_
            m0_ = b.op(valu(f"v_mul_f32 v{SCT + 2 * r}, s40, v{SCT + 2 * r}"), "valu", 0, 40 * n + 5 * r + 2, [lo_])
            m1_ = b.op(valu(f"v_mul_f32 v{SCT + 2 * r + 1}, s40, v{SCT + 2 * r + 1}"), "valu", 0, 40 * n + 5 * r + 3, [hi_])
            cv.append(b.op(valu(f"v_cvt_pk_bf16_f32 v{src + r}, v{SCT + 2 * r}, v{SCT + 2 * r + 1}"), "valu", 0, 40 * n + 5 * r + 4, [m0_, m1_]))
        b.op(stage_write(k + 1, i), "solo", 0, 40 * n + 21, cv)
        fd = feed(("Q", k + 1, i))
        if fd:
            grp = I("\n    ".join(x.text for x in fd), "group")
            grp.tag = fd
            b.op(grp, "st", 0, 40 * n + 6, [first], m0=("g", n), setter=nop(0))
        prev = cv
        i += 1
    out, left = b.schedule(show=OPT["show"] == 0, leftover_ok=True)
    tail = flush([], left)
    if not any(x.wr & {f"v{SCT + r}" for r in range(8)} or x.rd & {f"v{SCT + r}" for r in range(8)} for x in tail) and i < 3 and OPT["mergetail"]:
        assert not any(x.kind == "group" for x in tail)
        nx = stage_load(k + 1, i, feed)
        i += 1
        p = max(n for n, x in enumerate(nx) if x.kind in ("dma", "vld", "salu") or n == 0)
        tail = nx[:p + 1] + merge(tail, nx[p + 1:])
    out += tail
    while i < 4:
        out += stage_load(k + 1, i, feed)
        i += 1
    o = []
    for x in out:
        o += x.tag if x.kind == "group" else [x]
    return o


HAND = {}


def start_block(a, rest):
    b = Block(f"start role {a}")
    b.chainy = True
    b.pre = stage_read(3) + ([valu(f"v_mov_b32 v{104 + i}, {obc()}") for i in range(4)] if OPT["obias"] else [])
    ends = {2: qk_chain(b, 2)}
    G = 32 + 4 * (4 + a)
    idx, ops = add_first_tile(b, 3, need_by=G - 5)
    ends[3] = qk_chain(b, 3, zero=True)
    lu = {AVF + 4 * s: idx[s] for s in range(8)}
    done, pfirst = add_pv(b, a, [0], 0, [[FNEW[d]] for d in range(4)], {0: 0}, zero=True, tmajor=[0, 1, 2, 4, 3][:3] + ([4] if a else []) + [3], lastuse=dict(lu))
    assert G == len(b.mf)
    bar = OPT["bar0"]
    neg3 = ops()
    for d in range(4):
        for u in range(2):
            b.op(vread(0, 4 + d, u, FOLD[d]), "ds", lu[FOLD[d]], G + 30 + 2 * d + u)
    for t, ins in preads(0, a):
        if t == 4:
            b.op(ins, "ds", idx[8], pfirst[(0, t)] - 10, hard=pfirst[(0, t)] - 3)
    for s in range(8):
        b.op(kread(2, s), "ds", max(bar, ends[3] - 7 + s), G - 10 + s)
    pieces = rest + [("V", 2, i) for i in range(4)] + [("K", 4, i) for i in range(4)]
    if OPT["klead"] == 3 and not OPT["peel0"]:
        pieces += [("K", 5, i) for i in range(4)]
    nin = min(len(pieces), OPT["sdman"])
    add_dma(b, a, pieces[:nin], OPT["sdma0"], OPT["sdmas"], G)
    add_softmax(b, a, 1, ends, G + 12, deferred(a), soft=True, sub={3: neg3})
    b.barrier(bar, [("K", 2)], None)
    if OPT["stamps"] == 1:
        b.inserts[0] = stamp(12)
        b.inserts[bar - 2] = stamp(13)
        b.inserts[bar] = stamp(9)
        b.inserts[G - 1] = stamp(10)
    out, left = b.schedule(show=OPT["show"] == 0, leftover_ok=True)
    if OPT["m01"]:
        now = [o for o in left if o.ins.text.startswith("ds_read_b128")]
        HAND[a] = ([o for o in left if o not in now], pieces[nin:])
        return flush(out, now)
    out = flush(out, left)
    for p in pieces[nin:]:
        out += dma_piece(*p)
    out.append(wait(vm=[("V", 1)] + ([("K", 3)] if OPT["peel0"] < 2 else []), lg=["w"] + [f"a{AKF + i}" for i in range(32)]))
    out.append(barrier())
    return prof_hooks(out)


def unit_instrs(a, t, h, n, packed):
    x = OO + 32 * t + 16 * h if t < 4 else OO
    mu = []
    for d in range(4):
        seq = []
        if t == 4:
            seq += [valu(f"v_accvgpr_read_b32 v{x + 4 * d + i}, a{AX + 16 * h + 4 * d + i}") for i in range(4)]
        if packed:
            seq += [valu(f"v_pk_mul_f32 {R('v', x + 4 * d + 2 * i, 2)}, {R('v', x + 4 * d + 2 * i, 2)}, {R('v', RL(t) + 2 * i, 2)}") for i in range(2)]
        else:
            seq += [valu(f"v_mul_f32 v{x + 4 * d + i}, v{x + 4 * d + i}, v{RL(t) + i}") for i in range(4)]
        mu.append(seq)
    cv = [[valu(f"v_cvt_pk_bf16_f32 v{x + 8 * e + r}, v{x + 8 * e + r}, v{x + 8 * e + 4 + r}") for r in range(4)] for e in range(2)]
    wr = []
    for r in range(4):
        w = ds_write("ds_write2_b32", vEw, f"v{x + r}, v{x + 8 + r}", f"offset0:{36 * r} offset1:{36 * r + 1}", (("K", 1), 99))
        w.rd |= {f"v{x + r}", f"v{x + 8 + r}"}
        wr.append(w)
    rd, st = [], []
    for i in range(2):
        q = ASP + 16 + 8 * (n % 2) + 4 * i
        rd += [ds_read("ds_read_b64_tr_b16", R("a", q + 2 * u, 2), vEr, f"offset:{8 * 144 * i + 32 * u}") for u in range(2)]
        st.append(vstore("buffer_store_dwordx4", R("a", q, 4), vO, sO, (sT, sT8)[i][t], 128 * (h ^ FLIP[0]), OPT["pol_o"] if h == 0 or "pol_o1" not in OPT else OPT["pol_o1"]))
    return mu, cv, wr, rd, st


def final_block(a):
    NQ, NP = 5 - a, 4 + a
    b = Block(f"final role {a}")
    b.lazy = OPT["lazy"]
    b.chainy = True
    save = OPT["walign"]
    OPT["walign"] = 0
    barA, barB = OPT["bara"], OPT["barb"]
    F = lambda i: AVF + 4 * i
    KF = lambda i: AKF + 4 * i
    lo = {28: 0, 29: 0, 30: 0, 31: 0}
    lu = {}
    rest = list(range(2, NP))
    tord = [0, 1, 2, 4, 3] if a == 1 and OPT["xbal"] & 2 else list(range(NP))
    f30, f31 = [[F(d)] for d in range(4)], [[F(4 + d)] for d in range(4)]
    ends = {t: qk_chain(b, t) for t in (0, 1, 2)}
    _, pf = add_pv(b, a, [30], 0, f30, lo, lastuse=lu, ts=[0, 1])
    ends[3] = qk_chain(b, 3)
    if a == 0 and OPT["xearly"]:
        ends[4] = qk_chain(b, 4)
    done0, pf1 = add_pv(b, a, [31], 0, f31, lo, tmajor=True, lastuse=lu, ts=[0, 1])
    X1 = len(b.mf) - 1
    if a == 0 and not OPT["xearly"]:
        ends[4] = qk_chain(b, 4)
    lu.update({KF(s): ends[NQ - 1] - 7 + s for s in range(8)})
    pf.update(add_pv(b, a, [30], 0, f30, lo, lastuse=lu, ts=rest, have=[30])[1])
    add_pv(b, a, [28], 1, [[ASP + 4 * d if a == 0 else KF(d)] for d in range(4)], lo, lastuse=lu, ts=[0, 1, 2, 3] if OPT["xbal"] & 1 else None)
    d2, p2 = add_pv(b, a, [31], 0, f31, lo, tmajor=True, lastuse=lu, ts=rest, have=[31])
    done0.update(d2)
    pf1.update(p2)
    X = len(b.mf) - 1
    pool = [KF(i) for i in range(8)] + [F(i) for i in range(4)] if a == 0 else [KF(4 + i) for i in range(4)] + [F(i) for i in range(4)] + [KF(i) for i in range(4)]
    done1, _ = add_pv(b, a, [29, 30, 31], 1, [pool[3 * d:3 * d + 3] for d in range(4)], lo, lastuse=lu, tmajor=tord if OPT["tm1"] else False)
    G = len(b.mf)
    bar = lambda t: barA if t < 2 else barB
    for t, ins in preads(30, a):
        b.op(ins, "ds", 0, pf[(30, t)] - 10, hard=pf[(30, t)] - 3)
    for t, ins in preads(31, a):
        b.op(ins, "ds", bar(t), pf1[(31, t)] - 12, hard=pf1[(31, t)] - 3)
    add_deferred(b, a, ends, 30)
    adds = add_softmax(b, a, 31, {t: ends[t] for t in (0, 1)}, barA, [], adds_by=barA - 4)
    adds.update(add_softmax(b, a, 31, {t: ends[t] for t in range(2, NQ)}, barB, [], adds_by=barB - 6))
    L = lambda *t: [(("L", x), 0) for x in t]
    lw = {t: b.op(ds_write("ds_write_addtid_b32", None, f"v{vL[t]}", f"offset:{2 * PXA + t * 256}", L(t)), "ds", 0, bar(t) - 8, [adds[t]], hard=bar(t) - 3, m0="p", setter=msetter()) for t in range(NQ)}
    w1 = b.op(valu(f"v_max3_u32 v{TMP}, v{vL[0]}, v{vL[1]}, v{vL[2]}"), "valu", 0, barB - 12, [adds[0], adds[1], adds[2]], hard=barB - 5)
    w2 = b.op(valu(f"v_max3_u32 v{TMP}, v{TMP}, v{vL[3]}, v{vL[NQ - 1]}"), "valu", 0, barB - 11, [w1, adds[3], adds[NQ - 1]], hard=barB - 4)
    b.op(ds_write("ds_write_addtid_b32", None, f"v{TMP}", f"offset:{2 * PXA + 5 * 256}", L(5)), "ds", 0, barB - 9, [w2], hard=barB - 3, m0="p", setter=msetter())
    b.barrier(barA, None, ["w"])
    b.barrier(barB, None, ["w"])
    base = 80
    lr = {}
    for t in (0, 2):
        lr[t] = lr[t + 1] = b.op(ds_read("ds_read2st64_b32", R("v", LP + t, 2), vPr, f"offset0:{base + a * 20 + t} offset1:{base + a * 20 + t + 1}", L(t, t + 1)), "ds", bar(t), bar(t) - 5)
    f1 = b.op(ds_read("ds_read2st64_b32", R("v", FLG, 2), vPr, f"offset0:{base + 5} offset1:{base + 25}", L(5)), "ds", barB, barB + 8)
    f2 = b.op(ds_read("ds_read2st64_b32", R("v", FLG + 2, 2), vPr2, f"offset0:{base + 5} offset1:{base + 25}", L(5)), "ds", barB, barB + 9)
    if a == 1:
        x1 = b.op(ds_read("ds_read_b32", f"v{LP + 4}", vPr, f"offset:{(base + 4) * 256}", L(4)), "ds", barB, barB + 5)
        lr[4] = b.op(ds_read("ds_read_b32", f"v{vL[4]}", vPr2, f"offset:{(base + 4) * 256}", L(4)), "ds", barB, barB + 6, [x1])
    ck = chain_ops(b, [valu(f"v_max3_u32 v{FLG}, v{FLG}, v{FLG + 1}, v{FLG + 2}"), valu(f"v_max_u32 v{FLG}, v{FLG}, v{FLG + 3}"), valu(f"v_cmp_lt_u32 vcc, {sTHR}, v{FLG}")],
                   0, barB + 30, [(f1, 6), (f2, 6)], hard=G - 4)
    if not OPT["abl"]:
        b.scalar(salu(f"s_cbranch_vccnz L_fallback{a}"), (lambda: ck.gap + 1), G - 1)
    rl = {}
    for t in range(NP):
        A_, B_, C_ = RL(t), RL(t) + 1, LP + t
        lim = X1 if t < 2 else X
        seq = [valu(f"v_add_f32 v{A_}, v{vL[t]}, v{C_}"), valu(f"v_add_f32 v{B_}, v{vL[t]}, v{C_}"), valu(f"v_permlane32_swap_b32 v{A_}, v{B_}"),
               valu(f"v_add_f32 v{C_}, v{A_}, v{B_}"), valu(f"v_add_f32 v{B_}, v{A_}, v{B_}"), valu(f"v_permlane16_swap_b32 v{C_}, v{B_}"),
               valu(f"v_add_f32 v{A_}, v{C_}, v{B_}"), valu(f"v_rcp_f32 v{A_}, v{A_}")]
        rc = chain_ops(b, seq, 0, -400 + 10 * t, [(lr[t], 6)], hard=lim)
        pl = 2 * PXA + (6 + t % 4) * 256
        w = b.op(ds_write("ds_write_addtid_b32", None, f"v{A_}", f"offset:{pl}"), "ds", 0, -390 + 10 * t, [rc], hard=lim, m0="p", setter=msetter())
        rl[t] = b.op(ds_read("ds_read_b128", R("v", RL(t), 4), vRr, f"offset:{pl}"), "ds", 0, -389 + 10 * t, [w], hard=lim)
    units = [(t, 0) for t in range(NP)] + [(t, 1) for t in tord]
    nfast = min(2 + OPT["nfast"], NP)
    nin = min(OPT["nin"], NP - nfast)

    def straight(lst, pend):
        o = []
        for n, (t, h) in lst:
            mu, cv, wr, rd, st = unit_instrs(a, t, h, n, True)
            for k in range(len(mu[0])):
                o += [mu[d][k] for d in range(4)]
            o += cv[0] + cv[1]
            o += pend
            o += wr + rd
            pend = st
        return o, pend
    en = list(enumerate(units))
    b.inserts[X1], pend = straight(en[:2], [])
    prev_rd, prev_st = [], {1: [b.op(x, "st", X1 + 6 + i, X1 - 50 + i, hard=X1 + 12) for i, x in enumerate(pend)]}
    if nfast > 2:
        b.inserts[X], pend = straight(en[2:nfast], [])
        prev_st[(nfast - 1) % 2] = [b.op(x, "st", X + 6 + i, X + i, hard=G - 1) for i, x in enumerate(pend)]
    if OPT["tm1"]:
        assert nfast == NP
        for x in prev_st[(nfast - 1) % 2]:
            x.hard = X + 12
        for n, t in enumerate(tord[:-1]):
            at = max(done1[(t, 4)], done1[(t, 7)]) + 4
            if OPT["tm1"] == 1:
                b.inserts[at], pend = straight(en[NP + n:NP + n + 1], [])
            else:
                mu, cv, wr, rd, pend = unit_instrs(a, t, 1, NP + n, False)
                at = min(at + 7, G - 1)
                mo = []
                for d in range(4):
                    pre = [b.op(x, "valu", done1[(t, 4 + d)] + 4, at - 21 + 3 * d, hard=at) for x in mu[d][:-4]]
                    mo.append([b.op(x, "valu", done1[(t, 4 + d)] + 4, at - 20 + 3 * d + i // 2, [(y, 0) for y in pre[i:i + 1]], hard=at) for i, x in enumerate(mu[d][-4:])])
                for e in range(2):
                    for r in range(4):
                        b.op(cv[e][r], "valu", 0, at - 15 + 6 * e, [mo[2 * e][r], mo[2 * e + 1][r]], hard=at)
                b.inserts[at] = wr + rd
            for i, x in enumerate(pend):
                b.op(x, "st", at + 6 + i, at - 50 + i, hard=at + 11)
        nin = 0
        nfast = 2 * NP - 1
    if OPT["stamps"] == 2:
        b.inserts[barA] = stamp(12)
        b.inserts[X1] = stamp(13) + b.inserts[X1]
        b.inserts[barB] = stamp(9)
        b.inserts[X] = stamp(10) + b.inserts.get(X, [])
    assert nin == 0
    out, left = b.schedule(show=OPT["show"] == 31, leftover_ok=True)
    OPT["walign"] = save
    out += stamp(5)
    pend = []
    for o in left:
        if o.ins.kind == "vst":
            pend.append(o.ins)
        else:
            if any(o.ins.wr & x.rd for x in pend):
                out += pend
                pend = []
            out.append(o.ins)
    o2, pend = straight(en[nfast + nin:], pend)
    return out + o2 + pend


def qload(k, i):
    return [vload("buffer_load_dwordx4", R("v", RAW(k, i), 4), vQl, sQ, sT[k], 512 * i, OPT["pol_q"], tag=("Q", k, i))]


def entry():
    o = []
    A = lambda t: o.append(salu(t))
    V = lambda t: o.append(valu(t))
    t0, t1, t2, t3, t4 = (f"v{TMP + i}" for i in range(5))
    A("s_cmp_ge_u32 s2, 256")
    A("s_cbranch_scc1 L_end")
    o.append(raw("s_load_dwordx8 s[4:11], s[0:1], 0"))
    if OPT["stamps"]:
        o.append(raw("s_load_dwordx2 s[56:57], s[0:1], 40"))
        o.append(raw("s_memrealtime s[58:59]"))
    o += stamp(0)
    o.append(raw("s_getpc_b64 s[44:45]"))
    o.append(label("L_pc"))
    A("s_lshr_b32 s54, s2, 3")
    A("s_lshl_b32 s46, s54, 7")
    V(f"v_lshl_add_u32 {t2}, v0, 12, s46")
    if OPT["aux"] & 1:
        A("s_and_b32 s45, s45, 0xffff")
        o.append(raw("s_mov_b32 s46, L_end-L_pc"))
        A("s_mov_b32 s47, 0x20000")
        o.append(vload("buffer_load_dword", "v15", t2, sC, "0"))
    else:
        o.append(I(f"v_min_u32 {t2}, L_end-L_pc, {t2}", "valu", [t2], [t2]))
        V(f"v_mov_b32 {t3}, 0")
        V(f"v_lshl_add_u64 {R('v', TMP + 2, 2)}, {R('v', TMP + 2, 2)}, 0, s[44:45]")
        o.append(I(f"global_load_dword v15, {R('v', TMP + 2, 2)}, off", "vld", [t2, t3], ["v15"]))
    V(f"v_lshrrev_b32 {t1}, 6, v0")
    A(f"s_mov_b64 {sKEEP}, 0")
    V(f"v_readfirstlane_b32 {sW}, {t1}")
    A(f"s_mov_b32 {sTHR}, {(127 + OPT['thr']) << 23:#x}")
    if OPT["prof"]:
        A("s_mov_b32 s3, 0")
    A("s_and_b32 s53, s2, 7")
    A("s_lshl_b32 s53, s53, 3")
    A("s_lshr_b32 s55, s2, 5")
    A("s_add_u32 s53, s53, s55")
    A("s_and_b32 s54, s54, 3")
    A("s_lshl_b32 s55, s53, 2")
    A("s_add_u32 s55, s55, s54")
    A("s_mul_i32 s37, s55, 73728")
    A("s_lshl_b32 s53, s53, 19")
    A(f"s_lshr_b32 {sA}, {sW}, 1")
    A(f"s_and_b32 {sB}, {sW}, 1")
    A(f"s_add_u32 s54, {sW}, 1")
    A("s_and_b32 s55, s54, 1")
    A("s_lshl_b32 s55, s55, 3")
    A("s_lshr_b32 s54, s54, 1")
    A("s_and_b32 s54, s54, 1")
    A("s_add_u32 s54, s54, s55")
    A("s_mul_i32 s54, s54, 1040")
    A(f"s_add_u32 {sKm}, s54, {KRING}")
    A("s_mov_b32 s48, 8192")
    A("s_mov_b32 s49, 16384")
    A("s_mov_b32 s50, 24576")
    A(f"s_mov_b32 {sX}, 65536")
    for srd, n in ((16, 524288), (12, 73728), (20, 524288), (24, 73728)):
        A(f"s_mov_b32 s{srd + 2}, {n}")
        A(f"s_mov_b32 s{srd + 3}, 0x20000")

    def src_offsets():
        V(f"v_and_b32 {t0}, 31, v0")
        V(f"v_lshlrev_b32 {t0}, 4, {t0}")
        V(f"v_bfe_u32 {t2}, v0, 5, 1")
        A(f"s_lshl_b32 s54, {sW}, 11")
        V(f"v_add_u32 {t1}, s54, {t0}")
        V(f"v_lshl_add_u32 {vKd}, {t2}, 13, {t1}")
        V(f"v_lshl_add_u32 {vQl}, {t2}, 15, {t1}")
        V(f"v_lshl_add_u32 {vQlx}, {t2}, 9, {t1}")
        if OPT["rot"]:
            A("s_and_b32 s54, s2, 7")
            A(f"s_mul_i32 s54, s54, {OPT['rot'] // 100}")
            A("s_lshr_b32 s55, s2, 5")
            A(f"s_mul_i32 s55, s55, {OPT['rot'] % 100}")
            A("s_add_u32 s54, s54, s55")
            A("s_and_b32 s54, s54, 31")
            A(f"s_lshl_b32 {sKo}, s54, 14")
            A(f"s_mov_b32 {sVo}, {sKo}")
        else:
            A(f"s_mov_b32 {sKo}, 0")
            A(f"s_mov_b32 {sVo}, 0")
    src_offsets()
    o.append(raw("s_waitcnt lgkmcnt(0)"))
    o += stamp(8)
    for srd, ptr, off in ((16, 6, "s53"), (12, 4, "s37"), (20, 8, "s53"), (24, 10, "s37")):
        A(f"s_add_u32 s{srd}, s{ptr}, {off}")
        A(f"s_addc_u32 s{srd + 1}, s{ptr + 1}, 0")
        A(f"s_and_b32 s{srd + 1}, s{srd + 1}, 0xffff")
    o.append(label("L_restart"))
    if OPT["glds"]:
        A(f"s_mov_b64 {sKg}, s[16:17]")
        A(f"s_mov_b64 {sVg}, s[20:21]")
    for i in range(4):
        o += dma_piece("K", 0, i) if not OPT["qfirst"] else []
    for i in range(2):
        o.append(vload("buffer_load_dwordx4", R("v", RAWX + 4 * i, 4), vQlx, sQ, sX, 1024 * i, OPT["pol_q"], tag=("Q", 4, i)))
    for i in range(4):
        o += qload(0, i) if OPT["qfirst"] else []
    if OPT["touch"] & 1:
        o.append(I("buffer_load_dword v14, off, s[20:23], 0", "vld", regs(sV), ["v14"]))
    if OPT["touch"] & 2:
        o.append(I("buffer_load_dword v14, off, s[24:27], 0", "vld", regs(sO), ["v14"]))
    if OPT["thr1"] or OPT["thr2"] or OPT["stamps"]:
        o.append(raw("s_getreg_b32 s37, hwreg(HW_REG_XCC_ID, 0, 4)" if not OPT.get("thrkey") else "s_lshr_b32 s37, s2, 5"))
    if OPT["thr1"]:
        o.append(raw(f"s_lshr_b32 s54, {OPT['thr1']}, s37\n    s_bitcmp1_b32 s54, 0\n    s_cbranch_scc1 L_thr1\nL_thr1b:"))
    if OPT["ibar"]:
        o.append(barrier())
    for i in range(4):
        o += qload(0, i) if not OPT["qfirst"] else dma_piece("K", 0, i)
    if OPT["stamps"] == 4:
        o += stamp(9)
    if OPT["stouch"]:
        for i in range(1, OPT["stouch"] + 1):
            o.append(raw(f"s_load_dword s9, s[44:45], {i * 4096 - 128}"))
    A(f"s_lshl_b32 s54, {sB}, 11")
    A(f"s_lshl_b32 s55, {sA}, 13")
    A("s_add_u32 s54, s54, s55")
    V(f"v_lshl_add_u32 {vVd}, {t2}, 12, {t0}")
    V(f"v_add_u32 {vVd}, s54, {vVd}")
    A(f"s_add_u32 s54, {sKm}, {3 * SLOT}")
    V(f"v_lshl_add_u32 {vQw}, {t2}, 9, {t0}")
    V(f"v_add_u32 {vQw}, s54, {vQw}")
    V(f"v_add_u32 {vQw2}, {4 * SLOT}, {vQw}")
    A(f"s_sub_u32 s54, {sKm}, {KRING - PXA}")
    V(f"v_mul_u32_u24 {vQwx}, 2080, {t2}")
    V(f"v_add3_u32 {vQwx}, {vQwx}, {t0}, s54")
    A(f"s_mul_i32 s54, {sB}, 8320")
    A(f"s_lshl_b32 s55, {sA}, 10")
    A("s_add_u32 s54, s54, s55")
    A(f"s_add_u32 {sVm}, s54, {VRING}")
    A(f"s_mul_i32 {sPm}, {sW}, 2560")
    V(f"v_and_b32 {t0}, 15, v0")
    V(f"v_bfe_u32 {t1}, v0, 4, 1")
    V(f"v_lshlrev_b32 {t3}, 5, {t1}")
    V(f"v_lshl_add_u32 {t3}, {t2}, 4, {t3}")
    V(f"v_add_u32 {t4}, 4, {t0}")
    V(f"v_bfe_u32 {vKr0}, {t4}, 3, 1")
    V(f"v_and_b32 {t4}, 7, {t4}")
    V(f"v_lshl_add_u32 {vKr0}, {t4}, 1, {vKr0}")
    V(f"v_mul_u32_u24 {vKr0}, 1040, {vKr0}")
    V(f"v_add_u32 {vKr0}, {vKr0}, {t3}")
    V(f"v_add_u32 {vQrx}, {PXA}, {vKr0}")
    V(f"v_add_u32 {vKr0}, {KRING}, {vKr0}")
    A(f"s_lshl_b32 s54, {sB}, 9")
    V(f"v_add_u32 {vKr}, s54, {vKr0}")
    A(f"s_lshl_b32 s54, {sA}, 9")
    A(f"s_add_u32 s54, s54, {3 * SLOT}")
    V(f"v_add_u32 {vQr}, s54, {vKr0}")
    V(f"v_add_u32 {vQr2}, {4 * SLOT}, {vQr}")
    A(f"s_lshl_b32 s54, {sB}, 9")
    A("s_sub_u32 s54, 512, s54")
    V(f"v_add_u32 {vKr0}, s54, {vKr0}")
    V(f"v_bfe_u32 {t4}, v0, 2, 2")
    V(f"v_mul_u32_u24 {vV0}, 2064, {t4}")
    V(f"v_mul_u32_u24 {t4}, 8320, {t1}")
    V(f"v_add_u32 {vV0}, {vV0}, {t4}")
    V(f"v_lshl_add_u32 {vV0}, {t2}, 9, {vV0}")
    V(f"v_bfe_u32 {t4}, v0, 1, 1")
    V(f"v_lshl_add_u32 {vV0}, {t4}, 6, {vV0}")
    V(f"v_and_b32 {t4}, 1, v0")
    V(f"v_lshl_add_u32 {vV0}, {t4}, 3, {vV0}")
    A(f"s_mul_i32 s54, {sB}, {256 + 1024}")
    A(f"s_add_u32 s54, s54, {VRING}")
    A(f"s_mul_i32 s55, {sB}, {1024 - 256}")
    A(f"s_sub_u32 s55, {VRING + 1024}, s55")
    V(f"v_add_u32 {vV1}, s55, {vV0}")
    V(f"v_add_u32 {vV0}, s54, {vV0}")
    V(f"v_and_b32 {t4}, 63, v0")
    V(f"v_lshlrev_b32 {t4}, 2, {t4}")
    A(f"s_mul_i32 s54, {sB}, 2560")
    A("s_sub_u32 s55, 2560, s54")
    V(f"v_add_u32 {vPr2}, s54, {t4}")
    V(f"v_add_u32 {vPr}, s55, {t4}")
    A(f"s_mul_i32 s55, {sW}, 2304")
    A(f"s_add_u32 s55, s55, {KRING + SLOT}")
    V(f"v_bfe_u32 {t4}, v0, 4, 2")
    V(f"v_mul_u32_u24 {vEw}, {4 * 144}, {t4}")
    V(f"v_lshl_add_u32 {vEw}, {t0}, 3, {vEw}")
    V(f"v_add_u32 {vEw}, s55, {vEw}")
    V(f"v_lshl_add_u32 {vRr}, {t4}, 4, {sPm}")
    V(f"v_bfe_u32 {t1}, v0, 1, 1")
    V(f"v_lshl_add_u32 {t4}, {t4}, 1, {t1}")
    V(f"v_mul_u32_u24 {vEr}, 144, {t4}")
    V(f"v_and_b32 {t1}, 1, v0")
    V(f"v_lshl_add_u32 {vEr}, {t1}, 6, {vEr}")
    V(f"v_bfe_u32 {t1}, v0, 2, 2")
    V(f"v_lshl_add_u32 {vEr}, {t1}, 3, {vEr}")
    V(f"v_add_u32 {vEr}, s55, {vEr}")
    V(f"v_bfe_u32 {t4}, v0, 3, 3")
    V(f"v_and_b32 {t1}, 7, v0")
    V(f"v_lshlrev_b32 {t1}, 4, {t1}")
    A(f"s_lshl_b32 s54, {sA}, 15")
    A(f"s_lshl_b32 s55, {sB}, 8")
    A("s_add_u32 s55, s55, s54")
    A("s_sub_u32 s51, 65536, s54")
    V(f"v_lshl_add_u32 {vO}, {t4}, 9, {t1}")
    V(f"v_add_u32 {vO}, s55, {vO}")
    for t in range(5):
        A(f"s_add_u32 {sT8[t]}, {sT[t]}, 4096" if t else f"s_mov_b32 {sT8[0]}, 4096")
    c = struct.unpack("<I", struct.pack("<f", math.log2(math.e) / 16.0))[0]
    A(f"s_mov_b32 s40, {c:#x}")
    A(f"s_mov_b32 s41, {c:#x}")
    A(f"s_mov_b32 {sMASK}, 0xffff0000")
    for t in range(5):
        V(f"v_mov_b32 v{vL[t]}, 0")
    for t in range(4):
        for i in range(8):
            if OPT["obias"]:
                V(f"v_mov_b32 v{OO + 32 * t + 16 + 2 * i}, {obc()}")
                V(f"v_mov_b32 v{OO + 32 * t + 16 + 2 * i + 1}, {obc()}")
            else:
                V(f"v_mov_b64 {R('v', OO + 32 * t + 16 + 2 * i, 2)}, 0")
    for i in range(16):
        V(f"v_accvgpr_write_b32 a{AX + 16 + i}, {f'v{OO + 16}' if OPT['obias'] else 0}")
        if OPT["obias"]:
            V(f"v_accvgpr_write_b32 a{AX + i}, v{OO + 16}")
    if OPT["stamps"] == 4:
        o += stamp(10)
    A(f"s_cmp_eq_u32 {sA}, 1")
    A("s_cbranch_scc1 L_role1")
    o2 = []
    o, keep = o2, o
    src_offsets()
    return keep, o2


def scale4(src):
    o = []
    T = SCT
    for i in range(4):
        o.append(valu(f"v_lshlrev_b32 v{T + 2 * i}, 16, v{src + i}"))
        o.append(valu(f"v_and_b32 v{T + 2 * i + 1}, {sMASK}, v{src + i}"))
    for i in range(4):
        o.append(valu(f"v_pk_mul_f32 {R('v', T + 2 * i, 2)}, {R('v', T + 2 * i, 2)}, {sSC}"))
    for i in range(4):
        o.append(valu(f"v_cvt_pk_bf16_f32 v{src + i}, v{T + 2 * i}, v{T + 2 * i + 1}"))
    return o


QST = {0: (("V", 1), vQw, vQr, 2 * SLOT), 1: (("K", 3), vQw, vQr, 0), 2: (("V", 2), vQw, vQr, 3 * SLOT), 3: (("V", 3), vQw2, vQr2, 0)}


def stage_write(k, i):
    if k == 4:
        return ds_write("ds_write_b128", vQwx, R("v", RAWX + 4 * i, 4), f"offset:{4160 * i}", QXTAG)
    reg, wb, rb, off = QST[k]
    return ds_write("ds_write_b128", wb, R("v", RAW(k, i), 4), f"offset:{off + 2080 * i}", (reg, -1))


def stage_load(k, i, feed):
    src = RAWX + 4 * i if k == 4 else RAW(k, i)
    return [wait(vm=[("Q", k, i)])] + feed(("Q", k, i)) + scale4(src) + [stage_write(k, i)]


def stage_in(k, feed):
    o = []
    for i in range(2 if k == 4 else 4):
        o += stage_load(k, i, feed)
    return o


def stage_read(k):
    if k == 4:
        return [ds_read("ds_read_b128", Qf(4, s), vQrx, f"offset:{64 * s}", QXTAG) for s in range(8)]
    reg, wb, rb, off = QST[k]
    return [ds_read("ds_read_b128", Qf(k, s), rb, f"offset:{off + 64 * s}", (reg, -1)) for s in range(8)]


def stage_compute(t):
    mf, m1, m2, cm, sb, ex, cv, ad = first_tile_instrs(t)
    o = mf + m1 + m2 + cm + sb + ex + cv
    if t == 4:
        o += [msetter(), ad[0]] + [pwrite(0, t, h) for h in range(2)] + ad[1:]
    else:
        o += ad
    return o


def prologue(a):
    o = [label(f"L_role{a}")] + aux_setup(a) + [salu(f"s_mov_b32 {sCNT}, {(24 if OPT['early'] else 28) // 4 - (1 if OPT['peel0'] else 0)}")]
    if OPT["walk"]:
        o.append(raw(f"s_mov_b64 vcc, -1\n    s_cmp_eq_u32 {sB}, 0\n    s_cbranch_scc1 L_pad{a}_0\n    s_branch L_pad{a}_1\nL_walked{a}:\n    s_mov_b64 vcc, 0"))
    seq = {0: "Q1 Q2 Q3 K1 V0 K2 V1 K3", 1: "Q1 K1 Q2 V0 Q3 K2 V1 K3", 2: "Q1 Q2 K1 Q3 V0 K2 V1 K3", 3: "K1 Q1 V0 Q2 K2 Q3 V1 K3", 4: "Q1 Q2 K1 V0 Q3 K2 V1 K3", 5: "K1 Q1 Q2 V0 Q3 K2 V1 K3"}[OPT["order"]]
    full = [("K", 0, i) for i in range(4)] + [("Q", 4, i) for i in range(2)] + [("Q", 0, i) for i in range(4)]
    if OPT["qfirst"]:
        full = full[4:] + full[:4]
    order = [(x[0], int(x[1]), i) for x in seq.split() for i in range(4)]
    if OPT["split"]:
        n = 0
        while n + 8 <= len(order):
            if order[n][0] != "Q" and order[n + 4][0] == "Q":
                sp = OPT["split"]
                order[n:n + 8] = order[n + 4:n + 4 + sp] + order[n:n + 4] + order[n + 4 + sp:n + 8]
                n += 4
            n += 4
    full += order

    def feed(landed):
        r = []
        stage = -1 if landed[1] == 4 else landed[1]
        while order and full.index(order[0]) <= full.index(landed) + OPT["win"]:
            x = order[0]
            if (x[:2] == ("V", 1) and stage < 2) or (x[:2] == ("K", 3) and stage < 3) or (landed == ("Q", 3, 3) and not OPT["lastfeed"]):
                break
            order.pop(0)
            r += qload(x[1], x[2]) if x[0] == "Q" else dma_piece(*x)
            if OPT["spf"] and x == [("Q", 3, 3), ("K", 2, 3), ("V", 1, 3), ("Q", 2, 3), ("V", 0, 3)][OPT["spfat"]]:
                r.append(vload("buffer_load_dword", vAuxC, vAuxC, sP, "0"))
        return r
    if OPT["thr2"]:
        o.append(raw(f"s_lshr_b32 s54, {OPT['thr2']}, s37\n    s_bitcmp1_b32 s54, 0\n    s_cbranch_scc1 L_thr2{a}\nL_thr2b{a}:"))
    o += stage_in(4, feed)
    if OPT["qfirst"]:
        o += stage_in(0, feed) + [wait(vm=[("K", 0)])] + feed(("K", 0, 3))
    o.append(wait(vm=[("K", 0)], lg="all"))
    o.append(barrier())
    o += stamp(1)
    for s in range(8):
        o.append(kread(0, s, vKr, R("a", AVF + 4 * s, 4)))
    if a == 0:
        o += stage_read(4)
    for s in range(8):
        o.append(kread(0, s, vKr0, R("a", ASP + 4 * s, 4)))
    ps = iter([3, 4, 5, 6, 7, 8, 9, 10, 11, 12, 13, 14])
    pst = lambda: stamp(next(ps), 3)
    o += pst()
    if not OPT["qfirst"]:
        o += stage_in(0, feed)
    for k in range(4):
        o += pst()
        if k or not OPT["qfirst"]:
            o.append(wait(vm={OPT["k1stage"]: [("K", 1)], 3: [("V", 0)]}.get(k), lg="all"))
            o.append(barrier())
        if k < 3:
            o += pst() + pst()
            o += stage_block(a, k, feed)
    o += stamp(2)
    return o, order


def aux_setup(a):
    o = []
    if OPT["spf"]:
        n = OPT["spf"] * 16
        o.append(salu("s_lshr_b32 s54, s2, 3"))
        o.append(salu("s_and_b32 s54, s54, 3"))
        o.append(salu(f"s_mul_i32 s54, s54, {2 * n * 128}"))
        o.append(salu(f"s_cmp_eq_u32 {sB}, 0"))
        o.append(salu(f"s_cselect_b32 s55, {OPT['spfk']}, {OPT['spfv']}"))
        o.append(salu("s_cselect_b32 s88, s16, s20"))
        o.append(salu("s_cselect_b32 s89, s17, s21"))
        o.append(salu("s_lshl_b32 s55, s55, 14"))
        o.append(salu("s_add_u32 s54, s54, s55"))
        o.append(salu(f"s_add_u32 s54, s54, {a * n * 128}"))
        o.append(salu("s_mov_b32 s90, 524288"))
        o.append(salu("s_mov_b32 s91, 0x20000"))
        o.append(valu(f"v_and_b32 {vAuxC}, 63, v0"))
        o.append(valu(f"v_min_u32 {vAuxC}, {n - 1}, {vAuxC}"))
        o.append(valu(f"v_lshl_add_u32 {vAuxC}, {vAuxC}, 7, s54"))
    if OPT["pf31"]:
        n = (32 - OPT["pft0"]) * 8
        o.append(salu("s_lshr_b32 s54, s2, 3"))
        o.append(salu("s_and_b32 s54, s54, 3"))
        o.append(salu("s_lshl_b32 s54, s54, 2"))
        o.append(salu(f"s_add_u32 s54, s54, {sW}"))
        o.append(salu(f"s_mul_i32 s54, s54, {n * 128}"))
        o.append(salu(f"s_add_u32 s54, s54, {(OPT['pft0'] * 16384 - (0 if OPT['early'] else ((OPT['pf31'] - (5 if OPT['peel0'] else 1)) // 4) << 24)) & 0xffffffff:#x}"))
        o.append(valu(f"v_and_b32 {vAuxT}, 63, v0"))
        o.append(valu(f"v_min_u32 {vAuxT}, {n - 1}, {vAuxT}"))
        o.append(valu(f"v_lshl_add_u32 {vAuxT}, {vAuxT}, 7, s54"))
    if OPT["aux"]:
        o.append(salu("s_lshr_b32 s54, s2, 3"))
        o.append(salu("s_lshl_b32 s55, s54, 7"))
        o.append(valu(f"v_lshl_add_u32 {vAuxC}, v0, 12, s55"))
    if OPT["aux"] & 2:
        piece = (32 - OPT["auxt0"]) * 16384 // OPT["auxn"]
        before = len([j for j in range(1, OPT["auxend"] + 1) if (j - OPT["auxend"]) % OPT["auxper"] == 0]) - OPT["auxn"]
        o.append(salu("s_and_b32 s54, s54, 3"))
        o.append(salu(f"s_mul_i32 s54, s54, {piece // 4}"))
        o.append(salu(f"s_add_u32 s54, s54, {(a * piece // 8 - before * piece) & 0xffffffff:#x}"))
        o.append(valu(f"v_and_b32 {vAuxT}, 63, v0"))
        o.append(valu(f"v_cmp_le_u32 vcc, {piece // 1024}, {vAuxT}"))
        o.append(valu(f"v_lshl_add_u32 {vAuxT}, {vAuxT}, 7, s54"))
        o.append(valu(f"v_cndmask_b32 {vAuxT}, {vAuxT}, 2.0, vcc"))
        o.append(salu(f"s_cmp_eq_u32 {sB}, 0"))
        o.append(salu("s_cselect_b32 s88, s16, s20"))
        o.append(salu("s_cselect_b32 s89, s17, s21"))
        o.append(salu(f"s_add_u32 s88, s88, {OPT['auxt0'] * 16384}"))
        o.append(salu("s_addc_u32 s89, s89, 0"))
        o.append(salu(f"s_mov_b32 s90, {(32 - OPT['auxt0']) * 16384}"))
        o.append(salu("s_mov_b32 s91, 0x20000"))
        if OPT["holes"]:
            o.append(salu("s_mov_b64 s[84:85], s[88:89]"))
            o.append(salu("s_mov_b32 s86, 0"))
            o.append(salu("s_mov_b32 s87, 0x20000"))
    return o


def finish(a):
    o = stamp(6)
    if OPT.get("amp"):
        lo, hi, base = OPT["amp"] // 100, OPT["amp"] % 100, OPT["ampbase"]
        o.append(raw("s_waitcnt vmcnt(0)"))
        o += stamp(7)
        o.append(raw(f"s_waitcnt lgkmcnt(0)\ns_and_b32 s95, s2, {OPT.get('ampmask', 255)}\ns_cmp_lg_u32 s95, {OPT.get('ampwg', 40)}\ns_cbranch_scc1 L_end\ns_sub_u32 s94, s{60 + 2 * hi}, s{60 + 2 * lo}\ns_sub_u32 s94, s94, {base}\ns_max_i32 s94, s94, 0\ns_mul_i32 s94, s94, {OPT.get('amprt', 1)}\ns_min_u32 s94, s94, 20000\ns_add_u32 s94, s94, 6000"))
        o.append(raw(f"L_amp{a}:\ns_memrealtime s[92:93]\ns_waitcnt lgkmcnt(0)\ns_sub_u32 s92, s92, s58\ns_cmp_lt_u32 s92, s94\ns_cbranch_scc1 L_amp{a}"))
    elif OPT["stamps"]:
        o.append(raw("s_waitcnt vmcnt(0)"))
        o += stamp(7)
        o.append(raw("s_memrealtime s[92:93]"))
        o.append(raw("s_waitcnt lgkmcnt(0)"))
        o.append(raw("s_mov_b32 s96, s56\ns_and_b32 s97, s57, 0xffff\ns_mov_b32 s98, 0x100000\ns_mov_b32 s99, 0x20000"))
        o.append(raw(f"s_lshl_b32 s94, s2, 2\ns_add_u32 s94, s94, {sW}\ns_lshl_b32 s94, s94, 7"))
        for i in range(16):
            o.append(raw(f"v_mov_b32 v{64 + i}, s{60 + 2 * i}"))
        o.append(raw("v_mov_b32 v80, s58\nv_mov_b32 v81, s92\nv_mov_b32 v82, s37\nv_mov_b32 v83, 0\nv_mov_b32 v84, 0"))
        if OPT["prof"]:
            o.append(raw("v_lshlrev_b32 v85, 2, v0\ns_lshl_b32 s95, s2, 10\ns_add_u32 s95, s95, 0x40000\nbuffer_store_dword v127, v85, s[96:99], s95 offen"))
        o.append(raw("s_mov_b64 exec, 1"))
        for i in range(5):
            o.append(raw(f"buffer_store_dwordx4 v[{64 + 4 * i}:{67 + 4 * i}], v84, s[96:99], s94 offen offset:{16 * i}"))
    o.append(raw("s_endpgm"))
    return o


def fallback(a, redo):
    NQ = 5 - a
    M, AD = PP, PP + 8
    o = [label(f"L_fallback{a}")]
    o.append(raw("s_waitcnt vmcnt(0) lgkmcnt(0)"))
    o.append(nop(7))
    o.append(salu("s_mov_b32 s18, 524288"))
    o.append(valu(f"v_and_b32 v{AD}, 15, v0"))
    o.append(valu(f"v_lshlrev_b32 v{AD}, 9, v{AD}"))
    o.append(valu(f"v_bfe_u32 v{AD + 1}, v0, 4, 1"))
    o.append(valu(f"v_lshl_add_u32 v{AD}, v{AD + 1}, 5, v{AD}"))
    o.append(valu(f"v_bfe_u32 v{AD + 1}, v0, 5, 1"))
    o.append(valu(f"v_lshl_add_u32 v{AD}, v{AD + 1}, 4, v{AD}"))
    for t in range(NQ):
        o.append(valu(f"v_mov_b32 v{M + t}, 0xff800000"))
    o.append(salu("s_mov_b32 s54, 0"))
    o.append(label(f"L_fbloop{a}"))
    for s in range(8):
        o.append(vload("buffer_load_dwordx4", Kf(s), f"v{AD}", sK, "s54", 64 * s))
    for t in range(NQ):
        for s in range(8):
            o.append(mfma(S(t), Kf(s), Qf(t, s), "0" if s == 0 else S(t)))
    for t in range(NQ):
        s0 = SS + 4 * t
        o.append(valu(f"v_max3_f32 v{M + t}, v{s0}, v{s0 + 1}, v{M + t}"))
        o.append(valu(f"v_max3_f32 v{M + t}, v{s0 + 2}, v{s0 + 3}, v{M + t}"))
    o.append(salu("s_add_u32 s54, s54, 8192"))
    o.append(salu("s_cmp_lt_u32 s54, 524288"))
    o.append(salu(f"s_cbranch_scc1 L_fbloop{a}"))
    for t in range(NQ):
        o += xlane("v_max_f32", M + t, AD + 1)
        for r in range(4):
            o.append(valu(f"v_sub_f32 v{NEGM + 4 * t + r}, 0, v{M + t}"))
    o.append(salu(f"s_mov_b64 {sKEEP}, -1"))
    o.append(salu(f"s_mov_b32 {sTHR}, -1"))
    o += redo
    o.append(barrier())
    o.append(salu("s_branch L_restart"))
    return o


def check_scalars(out):
    m0, cnt, seen, scc = None, {"K": 0, "V": 0}, set(), None
    for x in out:
        for ln in x.text.split("\n"):
            ln = ln.strip()
            if re.match(r"s_\w+ m0,", ln):
                m0 = ln
            for kind in "KV":
                if ln == bump(kind).text.split("\n")[0]:
                    cnt[kind] += 1
            if re.match(r"s_(cmp|add|sub|and|or|lshl|lshr|bitcmp|min|max)", ln):
                scc = ln
            if re.match(r"s_cbranch_scc|s_cselect", ln):
                assert scc.startswith(("s_cmp", "s_bitcmp")), (ln, scc)
        if x.kind == "dma":
            assert m0 == x.note[0], (x.text, m0, x.note)
            assert cnt[x.tag[0]] == x.tag[1], (x.text, x.tag, cnt)
            assert (x.tag, x.note[1]) not in seen
            seen.add((x.tag, x.note[1]))
        if x.text.startswith("ds_write_addtid"):
            assert m0 == msetter().text or OPT["prof"], (x.text, m0)
    for kind in "KV":
        for t in range(32):
            for i in range(4):
                assert ((kind, t), i) in seen, (kind, t, i)


def ablate(lines, lo, hi):
    ab = OPT["abl"]
    for n in range(lo, hi):
        l = lines[n]
        if (ab & 1 and l.endswith(" lds")) or (ab & 2 and l == "s_barrier") or (ab & 4 and l.startswith("ds_write")) or (ab & 8 and l.startswith("ds_read2")) \
           or (ab & 16 and l.startswith("ds_read_b64_tr")) or (ab & 32 and l.startswith("ds_read_b128")) or (ab & 64 and l.startswith("s_waitcnt")) \
           or (ab & 4096 and l.startswith("v_add_f32")):
            lines[n] = "; ablated"
        if ab & 8192 and l.startswith("v_add_f32") and not l.startswith("v_add_f32 v12"):
            lines[n] = "; ablated"
        if ab & 16384 and l.startswith("ds_read_b128 a[16") and l.split()[1] in ("a[160:163],", "a[168:171],"):
            k = n + 1
            while not lines[k].startswith("v_mfma"):
                k += 1
            pb = int(re.findall(r"v\[(\d+):", lines[k].split(",")[2] + " v[64:")[0]) & ~15
            off, acc = (2, 240) if "160" in l else (10, 244)
            lines[k] = f"v_mfma_f32_16x16x32_bf16 a[{acc}:{acc + 3}], a[248:251], v[{pb + off}:{pb + off + 3}], a[{acc}:{acc + 3}]\n    " + lines[k]
        if ab & 32768 and l.startswith("v_mfma"):
            p = [x.strip() for x in l.split(None, 1)[1].split(",")]
            if re.match(r"a\[(19[2-9]|2[01]\d|22[0-3]):", p[1]):
                lines[n] = f"v_mfma_f32_16x16x32_bf16 {p[0]}, {p[2]}, {p[1]}, {p[3]}"
        if ab & 65536 and l.startswith("v_mfma"):
            p = [x.strip() for x in l.split(None, 1)[1].split(",")]
            if re.match(r"a\[(1[678]\d):", p[1]):
                lines[n] = f"v_mfma_f32_16x16x32_bf16 {p[0]}, {p[2]}, {p[1]}, {p[3]}"
        if ab & 131072 and l.startswith("s_add_u32 m0, s3"):
            p = l.split(", ")
            lines[n] = f"s_add_u32 m0, {'s86' if p[1] == 's34' else 's87'}, {int(p[2]) & ~127}"
        if ab & 256 and l.startswith("s_waitcnt vmcnt"):
            lines[n] = re.sub(r"vmcnt\(\d+\) ", "", l)


PADS = [0, 0]


def build2():
    src = build()
    if OPT["lpad"] < 0:
        return src
    import subprocess, tempfile, os
    d = tempfile.mkdtemp()
    stubs = "\n.text\n" + "\n".join(f"L_pad{a}_{k}:" for a in (0, 1) for k in (0, 1)) + "\n" if OPT["walk"] else ""
    open(d + "/k.s", "w").write(src + stubs)
    cc = ["clang", "-x", "assembler", "-target", "amdgcn-amd-amdhsa", "-mcpu=gfx950", "-c", d + "/k.s", "-o", d + "/k.o"]
    subprocess.run(cc, check=True)
    sym = subprocess.run(["llvm-readelf", "-s", d + "/k.o"], capture_output=True, text=True).stdout
    ad = {l.split()[-1]: int(l.split()[1], 16) for l in sym.splitlines() if " L_" in l}
    for a in (0, 1):
        PADS[a] = (OPT.get(f"lpad{a}", OPT["lpad"]) - (ad[f"L_loop{a}"] - ad[f"L_role{a}"])) % 4096
    src = build()
    if not OPT["walk"]:
        return src
    L = src.split("\n")
    tmp = [(f"L_a{n}:\n" if l.startswith("    ") and not l.strip().startswith(";") else "") + l for n, l in enumerate(L)]
    open(d + "/k.s", "w").write("\n".join(tmp) + stubs)
    subprocess.run(cc, check=True)
    sym = subprocess.run(["llvm-readelf", "-s", d + "/k.o"], capture_output=True, text=True).stdout
    ad = {l.split()[-1]: int(l.split()[1], 16) for l in sym.splitlines() if " L_" in l}
    ins = {}
    for a in (0, 1):
        lo = [n for n, l in enumerate(L) if l.strip() == "; interval 0"][a]
        if OPT["walk"] >= 2:
            lo = L.index(f"L_walked{a}:") + (260 if OPT["walk"] == 2 else 4)
        hi = L.index("L_role1:" if a == 0 else "L_end:")
        hi = max(n for n in range(lo, hi) if "buffer_store_dwordx4 a[" in L[n])
        rows = [n for n in range(lo, hi) if f"L_a{n}" in ad]
        sites, shift = [], 0
        page = (ad[f"L_a{rows[0]}"] >> 12) + 1
        for i, n in enumerate(rows[1:], 1):
            at = ad[f"L_a{n}"] + shift
            prev, cur = L[rows[i - 1]].strip(), L[n].strip()
            good = prev.startswith("v_mfma") and not cur.startswith(("s_", "buffer_"))
            if at >= page * 4096 + 8 and (good or at >= page * 4096 + 44) and not cur.startswith(("s_cselect", "s_addc")):
                sites.append(n)
                shift += 4
                page += 1
        assert 2 <= len(sites) <= 6, sites
        vc = [n for n in range(L.index(f"L_walked{a}:") + 2, hi) if "vcc" in L[n]]
        assert len(vc) in (1, 2) and not any(vc[0] < n and (len(vc) == 1 or n <= vc[1]) for n in sites), (vc, sites)
        for k, n in enumerate(sites):
            nxt = f"L_pad{a}_{k + 2}" if k + 2 < len(sites) else f"L_walked{a}"
            ins[n] = f"L_pad{a}_{k}:\n    s_cbranch_vccnz {nxt}"
        print(f"; role {a}: pads at lines {sites}", file=sys.stderr)
    return "\n".join((ins[n] + "\n" if n in ins else "") + l for n, l in enumerate(L))


def abl_init():
    if OPT["w64"]:
        return [raw("v_and_b32 v16, 63, v0\nv_lshlrev_b32 v16, 2, v16\nv_lshl_add_u32 v18, v16, 1, s36\nv_add_u32 v16, v16, v6")]
    if OPT["abl"] & 131072:
        return [raw("s_and_b32 s86, s34, 0xffffff80\ns_and_b32 s87, s35, 0xffffff80")]
    if not OPT["abl"] & 16384:
        return []
    full = OPT.get("onesfull")
    return [raw("v_and_b32 v16, 15, v0\nv_mov_b32 v17, 0x3f803f80\nv_cmp_eq_u32 vcc, 0, v16\ns_nop 1\nv_cndmask_b32 v20, 0, v17, vcc\nv_cmp_eq_u32 vcc, 1, v16\ns_nop 1\nv_cndmask_b32 v16, 0, v17, vcc\n"
                + ("v_mov_b32 v20, v17\nv_mov_b32 v16, v17\n" if full else "")
                + "v_accvgpr_write_b32 a248, v20\nv_accvgpr_write_b32 a249, v20\nv_accvgpr_write_b32 a250, v16\nv_accvgpr_write_b32 a251, v16\n" + "\n".join(f"v_accvgpr_write_b32 a{240 + i}, 0" for i in range(8)))]


def build():
    j0, j1 = (5 if OPT["peel0"] else 1), (25 if OPT["early"] else 29)
    ent, redo = entry()
    text, evs = [], []
    for a in (0, 1):
        FLIP[0] = a if OPT["hflip"] else 0
        pro, rest = prologue(a)
        tr = list(ent) + [raw(";;ROLE")] + pro + [raw(";;IV 0")] + start_block(a, rest) + stamp(3) + abl_init()
        for j in range(1, 30):
            tr.append(raw(f";;IV {j}"))
            tr += interval(j, a, f"L_loop{a}" if (j0 <= j < j1 and (j - j0) % 4 == 3) else None)
        tr.append(raw(";;IV 30"))
        if OPT["prof"]:
            tr.append(raw("s_nop 4\n    v_mov_b32 v1, v17"))
        tr += stamp(4) + final_block(a)
        if OPT["prof"]:
            tr.append(raw("v_mov_b32 v127, v1"))
        tr += finish(a)
        out, ev, ins = resolve(tr)
        evs += ev
        check_scalars(out)
        lines = [x.text for x in out]
        k = lines.index(";;ROLE")
        if a == 0:
            text += lines[:k]
        idx = {j: lines.index(f";;IV {j}") for j in range(31)}
        for pos, w, c in ins:
            if idx[0] < pos and (OPT["show"] >= 0 or idx[1] < pos < idx[30]):
                print(f"; auto-inserted in role {a} @{pos - idx[0]}: {w} before {c}", file=sys.stderr)
        seg = lambda j: lines[idx[j] + 1: idx[j + 1]]
        for j in range(j0 + 4, j1):
            jb = j0 + (j - j0) % 4
            assert len(seg(j)) == len(seg(jb)), f"loop body not periodic at {j} role {a}"
            for n, (x, y) in enumerate(zip(seg(j), seg(jb))):
                if x != y:
                    assert re.sub(r"\d+", "", x) == re.sub(r"\d+", "", y) and x.startswith("s_waitcnt"), (j, a, x, y)
                    it = iter(min(int(p), int(q)) for p, q in zip(re.findall(r"\d+", x), re.findall(r"\d+", y)))
                    lines[idx[jb] + 1 + n] = re.sub(r"\d+", lambda m: str(next(it)), x)
        if OPT["abl"]:
            ablate(lines, idx[1], idx[30])
        if OPT["lpad"] >= 0:
            if a == 0:
                text.append("s_branch L_role0")
                for r in (0, 1):
                    text += [x.text for x in resolve(fallback(r, redo))[0]]
            text += ["; unreachable filler (s_endpgm)", ".p2alignl 12, 0xbf810000", f".fill {PADS[a] // 4}, 4, 0xbf810000"]
        text += lines[k + 1: idx[j0]]
        text.append(f".p2align {OPT['lalign']}")
        text.append(f"L_loop{a}:")
        text += lines[idx[j0]: idx[j0 + 4]]
        text += lines[idx[j1]:]
        if OPT["lpad"] < 0:
            text += [x.text for x in resolve(fallback(a, redo))[0]]
        if OPT["thr2"]:
            text += [f"L_thr2{a}:", "s_waitcnt vmcnt(0)", f"s_branch L_thr2b{a}"]
    if OPT["thr1"]:
        text += ["L_thr1:", "s_waitcnt vmcnt(0)"] + [f"s_sleep {OPT.get('thrs')}"] * (1 if OPT.get("thrs") else 0) + ["s_branch L_thr1b"]
    assert check_lds(evs) == 0
    hdr = open("header.txt").read()
    body = "\n".join(("" if l.endswith(":") or l.startswith(".") else "    ") + l.replace(";;IV", "; interval") for l in text)
    return f"""{hdr}; @launch grid=(256,1,1) block=(256,1,1) lds={LDS_BYTES}
{open("design.txt").read()}.amdgcn_target "amdgcn-amd-amdhsa--gfx950"
.text
.globl {KN}
.p2align 8
.type {KN},@function
{KN}:
{body}
L_end:
    s_endpgm
; unreachable filler: instruction prefetch may run past the last instruction
.fill 256, 4, 0xbf810000
.section .rodata,"a"
.p2align 6
.amdhsa_kernel {KN}
  .amdhsa_next_free_vgpr 512
  .amdhsa_next_free_sgpr 102
  .amdhsa_accum_offset 256
  .amdhsa_group_segment_fixed_size 0
  .amdhsa_kernarg_size 48
  .amdhsa_user_sgpr_count 2
  .amdhsa_user_sgpr_kernarg_segment_ptr 1
  .amdhsa_system_sgpr_workgroup_id_x 1
.end_amdhsa_kernel
"""


if __name__ == "__main__":
    for kv in sys.argv[1:]:
        k, v = kv.split("=", 1)
        if k.startswith("pol"):
            OPT[k] = "".join(" " + x for x in v.split("+") if x and x != "d")
        else:
            OPT[k] = float(v) if "." in v else int(v)
    print(build2())
```
